```python
import torch

def _softmax(x, axis=-1):
    return torch.softmax(x, dim=axis)

def _gelu(x):
    return torch.nn.functional.gelu(x, approximate='tanh')

def _silu(x):
    return torch.nn.functional.silu(x)

def _sigmoid(x):
    return torch.sigmoid(x)

def _layernorm(x, axis=-1, eps=1e-05):
    m = x.mean(dim=axis, keepdim=True)
    v = x.var(dim=axis, keepdim=True, unbiased=False)
    return (x - m) / torch.sqrt(v + eps)

def _scatter_add(tgt, idx, src, axis=0):
    return tgt.clone().index_add_(axis, idx, src)

def _segment_sum(src, seg, n):
    out = torch.zeros((n,) + src.shape[1:], dtype=src.dtype)
    return out.index_add_(0, seg, src)

def _pad(x, pw):
    flat = tuple((v for pair in reversed(pw) for v in pair))
    return torch.nn.functional.pad(x, flat)
kernel_name = 'adaLN_cond__spectral_fnet__glu_gated_glu__prompt'

def setup_inputs():

    _w = lambda a: (lambda t: t.to(torch.bfloat16) if t.is_floating_point() else t)(torch.as_tensor(a))

    def _A_setup():
        B, S, D = (1, 2048, 448)
        ns = torch.arange(S)[:, None] * torch.arange(S)[None, :]
        nd = torch.arange(D)[:, None] * torch.arange(D)[None, :]
        Ws_re = torch.cos(-2.0 * torch.pi * ns / S).to(float)
        Ws_im = torch.sin(-2.0 * torch.pi * ns / S).to(float)
        Wd_re = torch.cos(-2.0 * torch.pi * nd / D).to(float)
        Wd_im = torch.sin(-2.0 * torch.pi * nd / D).to(float)
        return {'x': _w((lambda *s: torch.randn(*s, dtype=torch.bfloat16) * 0.05)(B, S, D)), 'dft_seq_re': _w(Ws_re), 'dft_seq_im': _w(Ws_im), 'dft_hid_re': _w(Wd_re), 'dft_hid_im': _w(Wd_im)}
    _A_in = _A_setup()

    def _B_setup():
        B, S, D, F = (1, 2048, 448, 1792)
        return {'x': _w((lambda *s: torch.randn(*s, dtype=torch.bfloat16) * 0.05)(B, S, D)), 'w_gate': _w((lambda *s: torch.randn(*s, dtype=torch.bfloat16) * 3.2)(D, F)), 'w_up': _w((lambda *s: torch.randn(*s, dtype=torch.bfloat16) * 1.6)(D, F)), 'w_down': _w((lambda *s: torch.randn(*s, dtype=torch.bfloat16) * 1.6)(F, D))}
    _B_in = _B_setup()
    return {'A_x': _A_in['x'], 'A_dft_seq_re': _A_in['dft_seq_re'], 'A_dft_seq_im': _A_in['dft_seq_im'], 'A_dft_hid_re': _A_in['dft_hid_re'], 'A_dft_hid_im': _A_in['dft_hid_im'], 'B_x': _B_in['x'], 'B_w_gate': _B_in['w_gate'], 'B_w_up': _B_in['w_up'], 'B_w_down': _B_in['w_down'], 'c': _w((lambda *s: torch.randn(*s, dtype=torch.bfloat16) * 0.1)(1, 448) * 8.0), 'w_mod': _w((lambda *s: torch.randn(*s, dtype=torch.bfloat16) * 0.1)(448, 6 * 448) * 448 ** (-0.5) * 8.0)}

def reference(A_x, A_dft_seq_re, A_dft_seq_im, A_dft_hid_re, A_dft_hid_im, B_x, B_w_gate, B_w_up, B_w_down, c, w_mod):

    def _A_ref(x, dft_seq_re, dft_seq_im, dft_hid_re, dft_hid_im):
        a = torch.einsum('bsd,ed->bse', x, dft_hid_re)
        b = torch.einsum('bsd,ed->bse', x, dft_hid_im)
        y = torch.einsum('ts,bse->bte', dft_seq_re, a) - torch.einsum('ts,bse->bte', dft_seq_im, b)
        return y

    def _B_ref(x, w_gate, w_up, w_down):
        g = torch.einsum('bsd,df->bsf', x, w_gate)
        u = torch.einsum('bsd,df->bsf', x, w_up)
        h = _sigmoid(g) * u
        return torch.einsum('bsf,fd->bsd', h, w_down)
    x = A_x
    mod = (_silu(c) @ w_mod).reshape(c.shape[0], 6, 1, -1)
    sa, ca, ga, sb, cb, gb = (mod[:, 0].clone(), mod[:, 1].clone(), mod[:, 2].clone(), mod[:, 3].clone(), mod[:, 4].clone(), mod[:, 5].clone())
    h = _layernorm(x, axis=-1) * (1 + ca) + sa
    x = x + ga * _A_ref(h, A_dft_seq_re, A_dft_seq_im, A_dft_hid_re, A_dft_hid_im)
    h = _layernorm(x, axis=-1) * (1 + cb) + sb
    x = x + gb * _B_ref(h, B_w_gate, B_w_up, B_w_down)
    return x
```

```python
import re

TRANS = ('v_exp_f32','v_log_f32','v_rcp_f32','v_rsq_f32','v_sqrt_f32','v_sin_f32','v_cos_f32')

def _regs(op):
    op = op.strip()
    if op.startswith('-'): op = op[1:]
    m = re.fullmatch(r'abs\((.*)\)', op) or re.fullmatch(r'\|(.*)\|', op)
    if m: op = m.group(1)
    m = re.fullmatch(r'([vas])(\d+)', op)
    if m: return {(m.group(1), int(m.group(2)))}
    m = re.fullmatch(r'([vas])\[(\d+):(\d+)\]', op)
    if m: return {(m.group(1), i) for i in range(int(m.group(2)), int(m.group(3))+1)}
    if op in ('vcc','vcc_lo','vcc_hi'): return {('x','vcc')}
    if op in ('exec','exec_lo','exec_hi'): return {('x','exec')}
    if op == 'm0': return {('x','m0')}
    return set()

class Ins:
    def __init__(self, text):
        self.text = text
        t = text.split(';')[0].strip()
        self.label = t.endswith(':')
        self.kind = 'other'; self.w = set(); self.r = set()
        self.states = 1
        self.dpp = False; self.trans = False; self.dot = False; self.perm = False
        self.A = self.B = self.C = set(); self.passes = 0
        self.store_data = set(); self.ldsdma = False; self.rdlane = False
        if self.label or not t or t.startswith('.'):
            self.kind = 'none'; self.states = 0; return
        parts = t.split(None, 1)
        mn = parts[0]; self.mn = mn
        rest = parts[1] if len(parts) > 1 else ''
        ops = []; cur = ''; depth = 0
        for ch in rest:
            if ch in '[(': depth += 1
            if ch in '])': depth -= 1
            if ch == ',' and depth == 0: ops.append(cur.strip()); cur = ''
            else: cur += ch
        if cur.strip(): ops.append(cur.strip())
        mods = ''
        if ops:
            last = ops[-1].split(None, 1)
            ops[-1] = last[0]; mods = last[1] if len(last) > 1 else ''
        R = [_regs(o) for o in ops]
        allbut0 = set().union(*R[1:]) if len(R) > 1 else set()
        if mn == 's_nop':
            self.kind = 'nop'; self.states = int(ops[0], 0) + 1
        elif mn.startswith('v_mfma'):
            self.kind = 'mfma'; self.w = R[0]; self.A = R[1]; self.B = R[2]; self.C = R[3]
            self.r = self.A | self.B | self.C
            self.passes = 8 if '32x32x16' in mn else 4 if '16x16x32' in mn else None
            assert self.passes
        elif mn.startswith('v_'):
            self.kind = 'valu'
            base = re.sub(r'_(e32|e64|dpp|sdwa)$', '', mn)
            self.w = set(R[0]); self.r = set(allbut0)
            self.trans = base in TRANS
            self.dpp = mn.endswith('_dpp') or 'quad_perm' in mods or 'row_' in mods
            self.dot = base.startswith('v_dot')
            if self.dpp: self.r |= R[0]
            if base.startswith(('v_fmac','v_dot2c','v_pk_fmac')): self.r |= R[0]
            if base.startswith('v_permlane'):
                self.perm = True; self.w = R[0] | R[1]; self.r = R[0] | R[1]
            if base.startswith(('v_add_co','v_sub_co','v_addc_co','v_subb_co')):
                self.w |= R[1]; self.r = set().union(*R[2:])
            if base in ('v_readfirstlane_b32','v_readlane_b32'): self.rdlane = True
            if base.startswith('v_cmpx'): self.w |= {('x','exec')}
        elif mn.startswith(('buffer_','global_')):
            self.kind = 'vmem'
            if mn in ('buffer_inv','buffer_wbl2'): return
            lds = ' lds' in (' '+mods) or '_lds_' in mn
            if lds:
                self.ldsdma = True; self.r = set().union(*R) | {('x','m0')}
            elif '_load' in mn:
                self.w = R[0]; self.r = allbut0
                if 'd16' in mn: self.r |= R[0]
            else:
                self.r = set().union(*R)
                di = 0 if mn.startswith('buffer_') else 1
                if 'atomic' in mn and 'sc0' in mods:
                    self.w = R[0]
                if mn.endswith(('x3','x4')): self.store_data = R[di]
        elif mn.startswith('ds_'):
            self.kind = 'ds'
            if mn.startswith(('ds_read','ds_bpermute','ds_permute','ds_swizzle')):
                self.w = R[0]; self.r = allbut0
                if 'd16' in mn: self.r |= R[0]
            else: self.r = set().union(*R)
        elif mn.startswith('s_'):
            self.kind = 'salu'
            if mn.startswith(('s_cmp','s_waitcnt','s_barrier','s_cbranch','s_branch','s_endpgm','s_sleep','s_setprio','s_bitcmp')):
                self.r = set().union(*R) if R else set()
            else:
                self.w = set(R[0]) if R else set(); self.r = allbut0
                if 'saveexec' in mn: self.w |= {('x','exec')}
        else:
            raise ValueError(text)

def need(p, c):
    n = 0
    vw = {x for x in p.w if x[0] in 'va'}
    sw = {x for x in p.w if x[0] == 's' or x == ('x','vcc')}
    if p.kind == 'valu':
        if c.kind == 'mfma' and vw & c.r: n = max(n, 3 if p.dot else 2)
        if c.kind == 'valu':
            if c.dpp and vw & c.r: n = max(n, 2)
            if c.perm and vw & c.r: n = max(n, 2)
            if c.rdlane and vw & c.r: n = max(n, 1)
            if p.trans and not c.trans and vw & c.r: n = max(n, 1)
            if sw & c.r: n = max(n, 4 if c.rdlane else 2)
            if 'sdwa' in p.mn and vw & (c.r | c.w): n = max(n, 1)
        if p.trans and c.kind in ('vmem','ds') and vw & c.r: n = max(n, 1)
        if p.dot and vw & (c.r | c.w):
            same = c.kind == 'valu' and c.dot and c.mn == p.mn and vw <= c.w and not _dot_ab(c) & vw
            if not same: n = max(n, 3)
        if c.kind == 'vmem' and sw & c.r: n = max(n, 5)
        if c.kind == 'salu' and sw & c.r: n = max(n, 1)
        if ('x','exec') in p.w:
            if c.kind == 'mfma' or c.perm or c.rdlane: n = max(n, 4)
            if c.dpp: n = max(n, 5)
    if p.kind in ('vmem','ds') and c.kind == 'valu' and c.dpp and vw & c.r: n = max(n, 2)
    if p.kind == 'salu' and ('x','m0') in p.w and c.ldsdma: n = max(n, 1)
    if p.store_data and c.w & p.store_data: n = max(n, 2 if c.kind in ('valu','mfma') else 1)
    if p.kind == 'mfma':
        big = {4: 8, 8: 12}[p.passes]
        if c.kind == 'mfma':
            if p.w & (c.A | c.B): n = max(n, big)
            if p.w & c.C:
                if not (p.w == c.C and p.passes == c.passes): n = max(n, big - 2)
            elif p.w & c.w: n = max(n, big)
        elif c.kind in ('valu','vmem','ds'):
            if p.w & (c.r | c.w): n = max(n, big)
            if c.kind == 'valu' and p.C & c.w: n = max(n, {4: 3, 8: 7}[p.passes])
    return n

def _dot_ab(c):
    t = c.text.split(';')[0].split(None,1)[1].split(',')
    return _regs(t[1]) | _regs(t[2].split()[0])

def pad_hazards(lines):
    out = []; win = []
    added = 0
    for ln in lines:
        c = Ins(ln)
        if c.kind == 'none':
            out.append(ln); continue
        k = 0
        for p, d in win: k = max(k, need(p, c) - d)
        while k > 0:
            s = min(k, 16); out.append(f'    s_nop {s-1}'); added += 1
            for e in win: e[1] += s
            k -= s
        out.append(ln)
        for e in win: e[1] += c.states
        win = [e for e in win if e[1] < 24]
        win.append([c, 0])
        if c.kind == 'salu' and c.mn in ('s_branch','s_endpgm'): win = []
    return out

class K:
    def __init__(self):
        self.L = []; self.vm = []; self.lg = []; self.uid = 0
    def e(self, s):
        for x in s.strip().split('\n'):
            x = x.strip()
            if x: self.L.append(x if x.endswith(':') else '    ' + x)
    def label(self, base):
        self.uid += 1; return f'{base}_{self.uid}'
    def reset_counts(self): self.vm = []; self.lg = []
    def vm_op(self, s, tag=None, maybe=False):
        self.e(s); self.vm.append((tag, maybe))
    def ds_op(self, s, tag=None, maybe=False):
        self.e(s); self.lg.append((tag, maybe))
    @staticmethod
    def _cnt(q, tags):
        if not isinstance(tags, (list, tuple, set)): tags = [tags]
        idx = [i for i, (t, _) in enumerate(q) if t in tags]
        if not idx: return None
        return max(idx), sum(1 for t, m in q[max(idx)+1:] if not m)
    def wait(self, vm=None, lg=None):
        parts = []
        if vm is not None:
            if vm == 'all': parts.append('vmcnt(0)'); self.vm = []
            else:
                r = self._cnt(self.vm, vm)
                if r is not None:
                    i, n = r
                    parts.append(f'vmcnt({min(n,63)})'); self.vm = self.vm[i+1:]
        if lg is not None:
            if lg == 'all': parts.append('lgkmcnt(0)'); self.lg = []
            else:
                r = self._cnt(self.lg, lg)
                if r is not None:
                    i, n = r
                    parts.append(f'lgkmcnt({min(n,15)})'); self.lg = self.lg[i+1:]
        if parts: self.e('s_waitcnt ' + ' '.join(parts))

def v(a, n=1): return f'v{a}' if n == 1 else f'v[{a}:{a+n-1}]'
def a(i, n=1): return f'a{i}' if n == 1 else f'a[{i}:{i+n-1}]'
def s(i, n=1): return f's{i}' if n == 1 else f's[{i}:{i+n-1}]'
import struct
def f2h(x): return '0x%08x' % struct.unpack('<I', struct.pack('<f', x))[0]

def kernel_text(name, lines, nvgpr, nagpr=0, nsgpr=96):
    acc = max(4, (nvgpr + 3)//4*4)
    nfv = acc + nagpr if nagpr else nvgpr
    body = '\n'.join(pad_hazards(lines))
    code = f""".globl {name}
.p2align 8
.type {name},@function
{name}:
{body}
"""
    desc = f""".p2align 6
.amdhsa_kernel {name}
  .amdhsa_next_free_vgpr {nfv}
  .amdhsa_next_free_sgpr {nsgpr}
  .amdhsa_accum_offset {acc}
  .amdhsa_group_segment_fixed_size 0
  .amdhsa_kernarg_size 112
  .amdhsa_user_sgpr_count 2
  .amdhsa_user_sgpr_kernarg_segment_ptr 1
  .amdhsa_system_sgpr_workgroup_id_x 1
  .amdhsa_float_denorm_mode_32 3
.end_amdhsa_kernel
"""
    return code, desc
```

```python
from asmlib import *
from layout import *
import math

NB, NZ, NC, NA, ND3, NDD = 14, 7, 28, 128, 49, 25
B0 = 0; Z0 = B0+NB; C0 = Z0+NZ; A0 = C0+NC; D30 = A0+NA; DD0 = D30+ND3; K1_GRID = DD0+NDD
K1_LDS = 20480

def srd(k, d, base, size):
    k.e(f's_mov_b32 s{d}, s{base}\ns_and_b32 s{d+1}, s{base+1}, 0xffff\ns_mov_b32 s{d+2}, {size}\ns_mov_b32 s{d+3}, 0x20000')

def gen_k1():
    k = K()
    k.e(f'''
    s_load_dwordx2 s[4:5], s[0:1], 0
    s_load_dwordx16 s[16:31], s[0:1], 48
    v_lshrrev_b32 v1, 6, v0
    v_and_b32 v2, 63, v0
    v_readfirstlane_b32 s3, v1
    s_cmp_ge_u32 s2, {K1_GRID}
    s_cbranch_scc1 K1_END
    s_cmp_ge_u32 s2, {D30}
    s_cbranch_scc1 K1_D
    s_cmp_lt_u32 s2, {A0}
    s_cbranch_scc1 K1_G
    ''')
    role_A(k)
    k.e('K1_G:'); k.reset_counts(); role_G(k)
    k.e('K1_D:'); k.reset_counts(); role_D(k)
    k.e('K1_END:\ns_endpgm')
    return k.L

def role_A(k):
    X = 8
    M = 36
    T = 44
    k.e(f'''
    s_sub_u32 s36, s2, {A0}
    s_and_b32 s37, s36, 7
    s_lshr_b32 s38, s36, 5
    s_lshl_b32 s38, s38, 3
    s_add_u32 s37, s37, s38          ; s2 index (0..31)
    s_bfe_u32 s38, s36, 0x20003      ; J
    v_lshrrev_b32 v3, 3, v0
    v_and_b32 v4, 7, v0
    v_mul_u32_u24 v5, {32*896}, v3
    v_lshl_add_u32 v5, v4, 4, v5     ; x voffset
    s_mul_i32 s39, s37, 896
    s_lshl_b32 s40, s38, 8
    s_waitcnt lgkmcnt(0)
    ''')
    srd(k, 8, 4, 2048*896)
    for i in range(7):
        k.e('s_add_u32 s41, s39, s40')
        k.vm_op(f'buffer_load_dwordx4 {v(X+4*i,4)}, v5, s[8:11], s41 offen', f'x{i}')
        if i < 6: k.e('s_add_u32 s40, s40, 128\ns_cmp_ge_u32 s40, 896\ns_cselect_b32 s40, 0, s40')
    srd(k, 12, 30, WS_END)
    k.e(f'''
    s_and_b32 s42, s3, 1
    s_lshl_b32 s42, s42, 4
    s_bfe_u32 s43, s3, 0x10001       ; isI
    v_and_b32 v6, 15, v2
    v_add_u32 v6, s42, v6            ; g
    v_cvt_f32_u32 v7, v6
    s_cmp_eq_u32 s43, 1
    s_cselect_b32 s44, {f2h(0.25)}, 0
    s_cselect_b32 s45, {f2h(32.0)}, 0
    v_mov_b32 v{T}, s44
    v_mov_b32 v{T+1}, s45
    v_cmp_eq_u32 vcc, 0, v6
    v_cndmask_b32 v7, v7, v{T+1}, vcc
    v_cndmask_b32 v{T}, v{T}, 0, vcc
    v_mul_f32 v7, {f2h(1/64)}, v7    ; step
    v_lshrrev_b32 v{T+1}, 4, v2
    v_lshlrev_b32 v{T+1}, 2, v{T+1}
    v_cvt_f32_u32 v{T+1}, v{T+1}
    v_fma_f32 v{T}, v7, v{T+1}, v{T}
    ''')
    for ks in range(2):
        for n in range(8):
            c = 32*ks + 16*(n >> 2) + (n & 3)
            k.e(f'v_fmamk_f32 v{T+2+n}, v7, {f2h(c)}, v{T}')
        for n in range(8): k.e(f'v_cos_f32 v{T+2+n}, v{T+2+n}')
        for r in range(4): k.e(f'v_cvt_pk_bf16_f32 v{M+4*ks+r}, v{T+2+2*r}, v{T+3+2*r}')
    k.e(f'''
    v_mul_u32_u24 v60, 160, v3
    v_lshl_add_u32 v60, v4, 4, v60
    v_lshrrev_b32 v61, 2, v2
    v_mul_u32_u24 v61, 160, v61
    v_and_b32 v62, 3, v2
    v_lshl_add_u32 v61, v62, 3, v61
    s_lshr_b32 s46, s3, 2
    s_mul_i32 s47, s46, 10240
    v_add_u32 v61, s47, v61
    v_lshrrev_b32 v62, 4, v2
    v_lshlrev_b32 v62, 2, v62
    v_add_u32 v62, s42, v62          ; g of r=0
    v_mul_u32_u24 v62, {2*32*896}, v62
    v_and_b32 v63, 15, v2
    v_lshl_add_u32 v62, v63, 3, v62  ; U voffset
    s_mul_i32 s48, s43, {32*896}
    s_add_u32 s48, s48, s39
    s_lshl_b32 s49, s38, 1
    s_add_u32 s49, s49, s46          ; chunk
    s_lshl_b32 s50, s49, 7
    s_add_u32 s48, s48, s50
    s_add_u32 s48, s48, {WS_U}
    s_mov_b32 s51, 0x3f803f80
    ''')
    for i in range(4): k.e(f'v_mov_b32 v{T+i}, 0')
    for i in range(7):
        k.wait(vm=f'x{i}')
        for d in range(4):
            r = X+4*i+d
            k.e(f'v_dot2_f32_bf16 v{T+(d&1)}, v{r}, s51, v{T+(d&1)}')
            k.e(f'v_dot2_f32_bf16 v{T+2+(d&1)}, v{r}, v{r}, v{T+2+(d&1)}')
    k.e(f'v_add_f32 v{T}, v{T}, v{T+1}\nv_add_f32 v{T+2}, v{T+2}, v{T+3}')
    for m in ('quad_perm:[1,0,3,2]', 'quad_perm:[2,3,0,1]', 'row_half_mirror'):
        for r in (T, T+2): k.e(f'v_add_f32_dpp v{r}, v{r}, v{r} {m} row_mask:0xf bank_mask:0xf')
    k.e(f'''
    v_mul_f32 v{T}, {f2h(1/448)}, v{T}
    v_mul_f32 v{T+2}, {f2h(1/448)}, v{T+2}
    v_fma_f32 v{T+2}, -v{T}, v{T}, v{T+2}
    v_max_f32 v{T+2}, 0, v{T+2}
    v_add_f32 v{T+2}, {f2h(1e-5)}, v{T+2}
    v_rsq_f32 v{T+2}, v{T+2}
    v_mul_f32 v{T}, v{T}, v{T+2}
    ''')
    for c in range(2):
        for d in range(4):
            r = X+4*c+d
            k.e(f'''v_lshlrev_b32 v{T+4}, 16, v{r}
            v_and_b32 v{T+5}, 0xffff0000, v{r}
            v_fma_f32 v{T+4}, v{T+4}, v{T+2}, -v{T}
            v_fma_f32 v{T+5}, v{T+5}, v{T+2}, -v{T}
            v_cvt_pk_bf16_f32 v{r}, v{T+4}, v{T+5}''')
        k.ds_op(f'ds_write_b128 v60, {v(X+4*c,4)} offset:{10240*c}')
    k.wait(lg='all'); k.e('s_barrier')
    k.e('s_cmp_ge_u32 s49, 7\ns_cbranch_scc1 K1_END')
    for ks in range(2):
        for t in range(4):
            for hf in range(2):
                k.ds_op(f'ds_read_b64_tr_b16 {v(64+16*ks+4*t+2*hf,2)}, v61 offset:{ks*32*160+hf*16*160+t*32}', f'b{ks}{t}')
    for ks in range(2):
        for t in range(4):
            k.wait(lg=f'b{ks}{t}')
            c = '0' if ks == 0 else v(X+4*t,4)
            k.e(f'v_mfma_f32_16x16x32_bf16 {v(X+4*t,4)}, {v(M+4*ks,4)}, {v(64+16*ks+4*t,4)}, {c}')
    for r in range(4):
        k.e(f'v_cvt_pk_bf16_f32 v{T+2*r}, v{X+r}, v{X+4+r}\nv_cvt_pk_bf16_f32 v{T+2*r+1}, v{X+8+r}, v{X+12+r}')
        k.vm_op(f'buffer_store_dwordx2 {v(T+2*r,2)}, v62, s[12:15], s48 offen sc1')
        if r < 3: k.e(f's_add_u32 s48, s48, {2*32*896}')
    k.e('s_endpgm')

def role_G(k):
    W = 8; SL = 36; SH = 43; AC = 50; T = 58; CS = 64
    k.e(f'''
    s_cmp_lt_u32 s2, {Z0}
    s_cbranch_scc0 K1_G1
    s_lshr_b32 s36, s2, 1            ; jd
    s_and_b32 s37, s2, 1             ; mat
    s_add_u32 s38, s36, 7
    s_branch K1_G2
K1_G1:
    s_sub_u32 s36, s2, {Z0}
    s_mov_b32 s37, 0
    s_sub_u32 s38, s2, {C0-14}
    s_cmp_lt_u32 s2, {C0}
    s_cselect_b32 s38, s36, s38
K1_G2:
    s_mul_i32 s39, s3, 56
    v_lshrrev_b32 v3, 3, v2
    v_add_u32 v4, s39, v3
    v_mul_u32_u24 v4, 5376, v4
    v_and_b32 v5, 7, v2
    v_lshl_add_u32 v4, v5, 4, v4
    v_add_u32 v6, s39, v2
    v_lshlrev_b32 v6, 1, v6          ; c voffset
    s_lshl_b32 s40, s38, 7
    s_waitcnt lgkmcnt(0)
    ''')
    srd(k, 32, 22, 896); srd(k, 8, 24, 448*5376)
    k.vm_op(f'buffer_load_ushort v7, v6, s[32:35], 0 offen', 'c')
    for i in range(7):
        k.vm_op(f'buffer_load_dwordx4 {v(W+4*i,4)}, v4, s[8:11], s40 offen', f'w{i}')
        if i < 6: k.e(f's_add_u32 s40, s40, {8*5376}')
    srd(k, 12, 30, WS_END)
    k.e(f's_mov_b32 s52, {f2h(1/448)}\ns_mov_b32 s53, {f2h(-448.0)}')
    def cosval(dst, ef, df, ph):
        k.e(f'''v_mul_f32 v{dst}, v{ef}, v{df}
        v_mul_f32 v{T+5}, s52, v{dst}
        v_floor_f32 v{T+5}, v{T+5}
        v_fma_f32 v{dst}, v{T+5}, s53, v{dst}
        v_fma_f32 v{dst}, v{dst}, s52, {ph}
        v_cos_f32 v{dst}, v{dst}''')
    k.e(f's_cmp_ge_u32 s2, {C0}\ns_cbranch_scc1 K1_G4\ns_cmp_ge_u32 s2, {Z0}\ns_cbranch_scc1 K1_G3')
    k.e(f'''
    s_and_b32 s41, s3, 3             ; kk
    s_lshr_b32 s42, s3, 2            ; j0
    v_lshrrev_b32 v{T}, 5, v2
    v_lshlrev_b32 v{T}, 1, v{T}
    s_lshl_b32 s43, s41, 2
    v_add_u32 v104, s43, v{T}        ; 4kk+2h
    s_lshl_b32 s44, s36, 6
    v_add_u32 v{T}, s44, v104
    v_cvt_f32_u32 v{T}, v{T}
    v_lshlrev_b32 v104, 2, v104
    ''')
    for n in range(8): k.e(f'v_add_f32 v{96+n}, {f2h(16*(n&3)+(n>>2))}, v{T}')
    k.e(f'''
    v_and_b32 v{T}, 31, v2
    s_lshl_b32 s45, s42, 5
    v_add_u32 v{T}, s45, v{T}
    v_cvt_f32_u32 v{T+1}, v{T}
    s_cmp_eq_u32 s37, 1
    s_cselect_b32 s46, {f2h(-0.25)}, 0
    s_cselect_b32 s47, {f2h(224.0)}, 0
    v_mov_b32 v{T+2}, s46
    v_mov_b32 v{T+3}, s47
    v_cmp_eq_u32 vcc, 0, v{T}
    v_cndmask_b32 v{T+3}, v{T+1}, v{T+3}, vcc
    v_cndmask_b32 v{T+4}, v{T+2}, 0, vcc
    ''')
    for jj in range(4):
        if jj: k.e(f'v_add_f32 v{T+1}, {f2h(64.0)}, v{T+1}')
        for n in range(8):
            cosval(CS+8*jj+n, T+3 if jj == 0 else T+1, 96+n, f'v{T+4}' if jj == 0 else f'v{T+2}')
    k.e('s_branch K1_G4')
    k.e(f'''K1_G3:
    v_lshrrev_b32 v{T}, 1, v0
    v_cvt_f32_u32 v{T+1}, v{T}       ; e
    v_and_b32 v{T+2}, 1, v0
    v_lshlrev_b32 v{T+2}, 5, v{T+2}
    s_lshl_b32 s44, s36, 6
    v_add_u32 v{T+2}, s44, v{T+2}
    v_cvt_f32_u32 v{T+2}, v{T+2}
    ''')
    for n in range(32):
        cosval(CS+n, T+1, T+2, '0')
        if n < 31: k.e(f'v_add_f32 v{T+2}, 1.0, v{T+2}')
    k.e('K1_G4:')
    k.wait(vm='c')
    k.e(f'''
    v_lshlrev_b32 v7, 16, v7
    v_mul_f32 v{T}, {f2h(-math.log2(math.e))}, v7
    v_exp_f32 v{T}, v{T}
    v_add_f32 v{T}, 1.0, v{T}
    v_rcp_f32 v{T}, v{T}
    v_mul_f32 v7, v7, v{T}
    v_mov_b32 v{T}, 0
    v_cvt_pk_bf16_f32 v7, v7, v{T}
    v_lshlrev_b32 v3, 2, v3
    ''')
    for i in range(7): k.ds_op(f'ds_bpermute_b32 v{SL+i}, v3, v7 offset:{32*i}')
    for i in range(8): k.e(f'v_mov_b32 v{AC+i}, 0')
    k.wait(lg='all')
    for i in range(7): k.e(f'v_lshlrev_b32 v{SH+i}, 16, v{SL+i}')
    for i in range(7):
        k.wait(vm=f'w{i}')
        for d in range(4):
            k.e(f'v_dot2_f32_bf16 v{AC+2*d}, v{W+4*i+d}, v{SL+i}, v{AC+2*d}')
            k.e(f'v_dot2_f32_bf16 v{AC+2*d+1}, v{W+4*i+d}, v{SH+i}, v{AC+2*d+1}')
    for i in range(4): k.e(f'v_permlane32_swap_b32 v{AC+i}, v{AC+4+i}')
    for i in range(4): k.e(f'v_add_f32 v{AC+i}, v{AC+i}, v{AC+4+i}')
    for i in range(2): k.e(f'v_permlane16_swap_b32 v{AC+i}, v{AC+2+i}')
    for i in range(2): k.e(f'v_add_f32 v{AC+i}, v{AC+i}, v{AC+2+i}')
    k.e(f'''
    v_add_f32_dpp v{AC+2}, v{AC}, v{AC} row_ror:8 row_mask:0xf bank_mask:0xf
    v_add_f32_dpp v{AC+2}, v{AC+1}, v{AC+1} row_ror:8 row_mask:0xf bank_mask:0xc
    v_lshlrev_b32 v{T}, 3, v5
    v_lshrrev_b32 v{T+1}, 3, v2
    v_add_u32 v{T}, v{T}, v{T+1}     ; col = 8*(l&7) + (l>>3)
    v_lshlrev_b32 v{T}, 2, v{T}
    s_lshl_b32 s48, s3, 8
    v_add_u32 v{T}, s48, v{T}
    v_lshlrev_b32 v{T+1}, 2, v2
    ''')
    k.ds_op(f'ds_write_b32 v{T}, v{AC+2}')
    k.wait(lg='all'); k.e('s_barrier')
    for i in range(4): k.ds_op(f'ds_read2st64_b32 {v(W+2*i,2)}, v{T+1} offset0:{2*i} offset1:{2*i+1}')
    k.wait(lg='all')
    for i in range(4): k.e(f'v_add_f32 v{W+i}, v{W+i}, v{W+4+i}')
    k.e(f'''v_add_f32 v{W}, v{W}, v{W+2}
    v_add_f32 v{W+1}, v{W+1}, v{W+3}
    v_add_f32 v{W}, v{W}, v{W+1}
    v_cvt_pk_bf16_f32 v{W}, v{W}, v{W}
    v_and_b32 v{W}, 0xffff0000, v{W}
    v_add_f32 v{W+1}, 1.0, v{W}
    v_cvt_pk_bf16_f32 v{W+1}, v{W+1}, v{W+1}
    v_and_b32 v{W+1}, 0xffff0000, v{W+1}
    s_cmp_ge_u32 s2, {C0}
    s_cbranch_scc1 K1_G6
    s_cmp_ge_u32 s2, {Z0}
    s_cbranch_scc1 K1_G5
    ''')
    for n in range(8): k.ds_op(f'ds_bpermute_b32 v{96+n}, v104, v{W+1} offset:{4*(16*(n&3)+(n>>2))}')
    k.e(f'''
    v_lshlrev_b32 v{T}, 4, v2
    s_lshl_b32 s43, s42, 1
    s_add_u32 s43, s43, s37
    s_mul_i32 s43, s43, 28
    s_lshl_b32 s44, s36, 2
    s_add_u32 s43, s43, s44
    s_add_u32 s43, s43, s41
    s_lshl_b32 s43, s43, 10
    s_add_u32 s43, s43, {WS_CP}
    ''')
    k.wait(lg='all')
    for jj in range(4):
        if jj == 3: k.e('s_cmp_eq_u32 s42, 1\ns_cbranch_scc1 K1_END')
        for n in range(8): k.e(f'v_mul_f32 v{CS+8*jj+n}, v{CS+8*jj+n}, v{96+n}')
        for r in range(4): k.e(f'v_cvt_pk_bf16_f32 v{W+4+4*jj+r}, v{CS+8*jj+2*r}, v{CS+8*jj+2*r+1}')
        k.vm_op(f'buffer_store_dwordx4 {v(W+4+4*jj,4)}, v{T}, s[12:15], s43 offen sc1')
        if jj < 3: k.e(f's_add_u32 s43, s43, {4*28*1024}')
    k.e('s_endpgm')
    k.e(f'''K1_G5:
    v_add_u32 v{T+1}, s48, v{T+1}
    v_and_b32 v{T+2}, 1, v0
    v_lshlrev_b32 v{T+3}, 7, v{T+2}
    v_add_u32 v{T+3}, s48, v{T+3}
    ''')
    k.ds_op(f'ds_write_b32 v{T+1}, v{W} offset:2048')
    for i in range(8): k.ds_op(f'ds_read_b128 {v(12+4*i,4)}, v{T+3} offset:{2048+16*i}', f'z{i}')
    k.e(f'''
    v_lshrrev_b32 v96, 1, v0         ; e
    v_lshrrev_b32 v97, 5, v96
    v_cmp_eq_u32 vcc, 1, v{T+2}
    v_cndmask_b32 v97, v97, 7, vcc   ; frag
    v_mov_b32 v98, 224
    v_cndmask_b32 v98, v98, 30, vcc  ; limit
    v_sub_u32 v99, v96, v{T+2}
    v_and_b32 v96, 31, v96
    v_lshlrev_b32 v96, 4, v96
    v_lshl_add_u32 v96, v97, 10, v96
    v_cmp_gt_u32 vcc, v99, v98
    v_mov_b32 v97, 0x7fffff00
    v_cndmask_b32 v96, v96, v97, vcc
    s_lshr_b32 s43, s36, 2
    s_lshl_b32 s43, s43, 9
    s_and_b32 s44, s36, 3
    s_lshl_b32 s44, s44, 2
    s_add_u32 s43, s43, s44
    s_add_u32 s43, s43, {WS_ZF}
    ''')
    for i in range(8):
        k.wait(lg=f'z{i}')
        for d in range(4):
            if i == 0: k.e(f'v_mul_f32 v{AC+d}, v{CS+d}, v{12+d}')
            else: k.e(f'v_fmac_f32 v{AC+d}, v{CS+4*i+d}, v{12+4*i+d}')
    k.e(f'''v_add_f32 v{AC}, v{AC}, v{AC+1}
    v_add_f32 v{AC+2}, v{AC+2}, v{AC+3}
    v_add_f32 v{AC}, v{AC}, v{AC+2}
    v_add_f32_dpp v{AC}, v{AC}, v{AC} quad_perm:[1,0,3,2] row_mask:0xf bank_mask:0xf
    v_cvt_pk_bf16_f32 v{AC+1}, v{AC}, v{AC}
    v_and_b32 v{AC+1}, 0xffff0000, v{AC+1}
    v_sub_f32 v{AC+1}, v{AC}, v{AC+1}
    v_cvt_pk_bf16_f32 v{AC}, v{AC}, v{AC+1}
    v_mov_b32 v{AC+1}, 0
    buffer_store_dword v{AC}, v96, s[12:15], s43 offen sc1
    s_cmp_eq_u32 s36, 6
    s_cbranch_scc0 K1_END
    buffer_store_dword v{AC+1}, v96, s[12:15], s43 offen offset:4 sc1
    s_endpgm
    ''')
    k.e(f'''K1_G6:
    s_cmp_lg_u32 s3, 0
    s_cbranch_scc1 K1_END
    s_sub_u32 s36, s2, {C0}
    s_mul_i32 s37, s36, 37
    s_lshr_b32 s37, s37, 8
    s_mul_i32 s41, s37, 7
    s_sub_u32 s41, s36, s41
    s_lshl_b32 s41, s41, 6
    v_add_u32 v64, s41, v2           ; col
    v_sub_u32 v65, 448, v64
    v_cmp_le_u32 vcc, 224, v64
    v_cndmask_b32 v65, v64, v65, vcc ; e
    v_cndmask_b32 v66, 0, 1, vcc     ; mir
    v_cmp_eq_u32 vcc, 224, v65
    v_cndmask_b32 v65, v65, 0, vcc
    v_lshrrev_b32 v67, 5, v65
    v_lshl_add_u32 v67, v67, 1, v66  ; beta
    v_and_b32 v65, 31, v65           ; i
    v_lshl_add_u32 v68, v67, 5, v65
    v_lshlrev_b32 v68, 2, v68        ; P offset
    v_lshlrev_b32 v69, 6, v67        ; K offset
    v_bfe_u32 v70, v65, 4, 1
    v_lshl_add_u32 v69, v70, 5, v69
    v_bfe_u32 v70, v65, 2, 1
    v_lshl_add_u32 v69, v70, 4, v69
    v_bfe_u32 v70, v65, 3, 1
    v_lshl_add_u32 v69, v70, 3, v69
    v_and_b32 v70, 3, v65
    v_lshl_add_u32 v69, v70, 1, v69
    v_lshlrev_b32 v64, 2, v64
    s_mov_b32 s43, {WS_MOD}
    s_mov_b32 s44, {WS_MOD+4096}
    s_cmp_eq_u32 s37, 0
    s_cbranch_scc0 K1_G7
    buffer_store_dword v{W}, v68, s[12:15], s43 offen offset:{GA_P} sc1
    s_endpgm
K1_G7:
    s_cmp_eq_u32 s37, 1
    s_cbranch_scc0 K1_G8
    buffer_store_short_d16_hi v{W}, v69, s[12:15], s44 offen offset:{SB_K-4096} sc1
    s_endpgm
K1_G8:
    s_cmp_eq_u32 s37, 2
    s_cbranch_scc0 K1_G9
    buffer_store_dword v{W+1}, v68, s[12:15], s43 offen offset:{CB1_P} sc1
    buffer_store_short_d16_hi v{W+1}, v69, s[12:15], s44 offen offset:{CB1_K-4096} sc1
    s_endpgm
K1_G9:
    buffer_store_dword v{W}, v64, s[12:15], s44 offen offset:{GB_N-4096} sc1
    s_endpgm
    ''')

DELT = [16*a + 8*(n >> 2) + (n & 3) for a in range(2) for n in range(8)]
def role_D(k):
    L = 8; O = 40
    k.e(f'''
    v_and_b32 v3, 31, v2
    v_lshlrev_b32 v3, 2, v3          ; c*4
    v_lshrrev_b32 v4, 5, v2          ; h
    v_lshlrev_b32 v7, 4, v2
    s_mov_b32 s54, 0x05040100
    s_mov_b32 s55, 0x07060302
    s_cmp_ge_u32 s2, {DD0}
    s_cbranch_scc1 K1_DD
    s_sub_u32 s36, s2, {D30}
    s_lshl_b32 s36, s36, 3
    s_add_u32 s36, s36, s3
    s_mul_i32 s37, s36, 1171
    s_lshr_b32 s37, s37, 16          ; j = u/56
    s_mul_i32 s38, s37, 56
    s_sub_u32 s38, s36, s38
    s_and_b32 s39, s38, 1            ; mat
    s_lshr_b32 s38, s38, 1           ; cs
    v_mul_u32_u24 v5, {4*3584}, v4
    v_add_u32 v5, v5, v3
    v_xor_b32 v6, 1, v4
    v_mul_u32_u24 v6, {4*3584}, v6
    v_add_u32 v6, v6, v3
    s_lshl_b32 s40, s38, 7
    s_mul_i32 s41, s37, {32*3584}
    s_add_u32 s42, s41, s40
    s_sub_u32 s43, {444*3584}, s41
    s_add_u32 s43, s43, s40
    s_cmp_eq_u32 s37, 0
    s_cselect_b32 s44, {224*3584}, 0
    v_xor_b32 v1, 1, v4
    v_mul_lo_u32 v1, v1, s44
    v_sub_u32 v1, v6, v1
    v_add_u32 v1, s43, v1
    s_waitcnt lgkmcnt(0)
    s_cmp_eq_u32 s39, 0
    s_cselect_b32 s4, s16, s18
    s_cselect_b32 s5, s17, s19
    ''')
    srd(k, 8, 4, 448*3584)
    for i in range(16):
        k.e(f's_add_u32 s45, s42, {DELT[i]*3584}')
        k.vm_op(f'buffer_load_dword v{L+i}, v5, s[8:11], s45 offen', f'l{i}')
    k.vm_op(f'buffer_load_dword v{L+16}, v1, s[8:11], 0 offen', 'l16')
    for i in range(1, 16):
        k.e(f's_sub_u32 s45, s43, {DELT[i]*3584}')
        k.vm_op(f'buffer_load_dword v{L+16+i}, v6, s[8:11], s45 offen', f'l{16+i}')
    k.e(f'''
    s_mul_i32 s46, s38, {2*56}
    s_lshl_b32 s47, s37, 3
    s_add_u32 s46, s46, s47
    s_add_u32 s46, s46, s39
    s_lshl_b32 s46, s46, 10
    s_add_u32 s46, s46, {WS_W3P}     ; T=0, unit 0
    s_add_u32 s47, s46, {56*1024}    ; T=1
    s_mov_b32 s48, 4096
    s_branch K1_D2
K1_DD:
    s_sub_u32 s36, s2, {DD0}
    s_lshl_b32 s36, s36, 3
    s_add_u32 s36, s36, s3           ; (m*2+u)*7 + jt
    s_cmp_ge_u32 s36, 196
    s_cbranch_scc1 K1_END
    s_mul_i32 s37, s36, 9363
    s_lshr_b32 s37, s37, 16
    s_mul_i32 s38, s37, 7
    s_sub_u32 s38, s36, s38          ; jt
    v_mul_u32_u24 v5, {8*896}, v4
    v_add_u32 v5, v5, v3
    s_mul_i32 s42, s37, {64*896}
    s_lshl_b32 s40, s38, 7
    s_add_u32 s42, s42, s40
    s_waitcnt lgkmcnt(0)
    ''')
    srd(k, 8, 20, 1792*896)
    k.reset_counts()
    for b in range(2):
        for i in range(16):
            k.e(f's_add_u32 s45, s42, {(2*DELT[i]+b)*896}')
            k.vm_op(f'buffer_load_dword v{L+16*b+i}, v5, s[8:11], s45 offen', f'l{16*b+i}')
    k.e(f'''
    s_and_b32 s46, s37, 1
    s_lshl_b32 s46, s46, 1
    s_lshl_b32 s47, s38, 2
    s_add_u32 s46, s46, s47
    s_mul_i32 s46, s46, 14
    s_lshr_b32 s47, s37, 1
    s_add_u32 s46, s46, s47
    s_lshl_b32 s46, s46, 12
    s_add_u32 s46, s46, {WS_WDP}
    s_add_u32 s47, s46, 1024
    s_mov_b32 s48, {14*4096}
K1_D2:
    ''')
    srd(k, 12, 30, WS_END)
    for b in range(2):
        for a_ in range(2):
            k.wait(vm=f'l{16*b+8*a_+7}')
            o = O + 16*b + 8*a_
            for t in range(2):
                for r in range(4):
                    l0 = L+16*b+8*a_+2*r
                    k.e(f'v_perm_b32 v{o+4*t+r}, v{l0+1}, v{l0}, s{54+t}')
                k.vm_op(f'buffer_store_dwordx4 {v(o+4*t,4)}, v7, s[12:15], s{46+t} offen offset:{2048*a_} sc1')
        if b == 0: k.e('s_add_u32 s46, s46, s48\ns_add_u32 s47, s47, s48')
    k.e('s_endpgm')
```

```python
from asmlib import *
from layout import *
from k1 import srd, DELT
import math
NMAIN = 224; NSIDE = 28
LDS_ALL = 163840
def prologue(k, tag, nside):
    k.e(f'''
    s_load_dwordx2 s[4:5], s[0:1], 0
    s_load_dwordx4 s[24:27], s[0:1], 80
    s_load_dwordx4 s[28:31], s[0:1], 96
    v_lshrrev_b32 v1, 6, v0
    v_and_b32 v2, 63, v0
    v_readfirstlane_b32 s3, v1
    s_cmp_ge_u32 s2, {NMAIN+nside}
    s_cbranch_scc1 {tag}_END
    v_lshlrev_b32 v3, 4, v2          ; lane*16
    v_and_b32 v4, 31, v2             ; lane&31
    v_lshrrev_b32 v5, 5, v2          ; h
    ''')
    if nside: k.e(f's_cmp_ge_u32 s2, {NMAIN}\ns_cbranch_scc1 {tag}_SIDE')
    k.e(f'''
    s_and_b32 s32, s2, 7
    s_lshl_b32 s32, s32, 1
    s_lshr_b32 s33, s2, 3
    s_cmp_ge_u32 s33, 14
    s_cselect_b32 s34, 14, 0
    s_addc_u32 s32, s32, 0           ; G
    s_sub_u32 s33, s33, s34          ; mem
    s_cmp_ge_u32 s33, 7
    s_cselect_b32 s34, 1, 0
    s_cselect_b32 s35, 7, 0
    s_sub_u32 s35, s33, s35
    ''')

def t1_of(k, dst, g, b, tmp):
    k.e(f'''s_sub_u32 {tmp}, 64, {g}
    s_cmp_eq_u32 {g}, 0
    s_cselect_b32 {tmp}, 32, {tmp}
    s_cmp_eq_u32 {b}, 0
    s_cselect_b32 {dst}, {g}, {tmp}''')

P2_U, P2_CP, P2_X, P2_XI = 0, 57344, 114688, 126976
def P2(k):
    ACC = 16; FB = 32; CC = 96; SG = 104; IC = 112; RS = 120; IS = 128; XV = 136; GA = 152; CB = 168; ZF = 184; ZB = 188; T = 192
    k.e(f'''
    s_lshl_b32 s6, s32, 1
    s_add_u32 s6, s6, s34
    s_and_b32 s7, s3, 1
    s_lshr_b32 s16, s3, 1
    v_lshrrev_b32 v6, 3, v2
    s_lshl_b32 s20, s3, 4
    v_add_u32 v6, s20, v6
    v_mul_u32_u24 v6, 896, v6
    v_lshrrev_b32 v7, 4, v2
    v_xor_b32 v7, v7, v2
    v_and_b32 v7, 7, v7              ; (l&7)^(l>>4)
    v_xor_b32 v8, 4, v7
    v_lshl_add_u32 v8, v8, 4, v6
    v_add_u32 v8, {8*896-1024}, v8
    v_lshl_add_u32 v7, v7, 4, v6
    s_mul_i32 s20, s6, 57344
    s_add_u32 s20, s20, {WS_U}       ; U soffset
    s_lshl_b32 s21, s3, 11           ; U lds
    s_mul_i32 s22, s16, 28
    s_lshl_b32 s23, s7, 1
    s_add_u32 s22, s22, s23
    s_lshl_b32 s22, s22, 10
    s_mul_i32 s23, s35, 57344
    s_add_u32 s23, s23, s22
    s_add_u32 s23, s23, {WS_CP}
    s_add_u32 s22, s22, {P2_CP}      ; CP lds
    s_waitcnt lgkmcnt(0)
    ''')
    srd(k, 12, 30, WS_END)
    def dma_chunk(c):
        k.e('s_mov_b32 m0, s21')
        k.vm_op('buffer_load_dwordx4 v7, s[12:15], s20 offen lds')
        k.vm_op('buffer_load_dwordx4 v8, s[12:15], s20 offen offset:1024 lds')
        k.e('s_mov_b32 m0, s22')
        k.vm_op('buffer_load_dwordx4 v3, s[12:15], s23 offen lds')
        k.vm_op('buffer_load_dwordx4 v3, s[12:15], s23 offen offset:1024 lds', f'ch{c}')
        if c < 6: k.e('s_add_u32 s20, s20, 128\ns_add_u32 s21, s21, 8192\ns_add_u32 s22, s22, 4096\ns_add_u32 s23, s23, 4096')
    for c in range(7): dma_chunk(c)
    t1_of(k, 's17', 's6', 's7', 's18')
    k.e(f'''
    s_lshl_b32 s18, s35, 1
    s_add_u32 s18, s18, s16          ; beta
    s_lshl_b32 s19, s6, 1
    s_add_u32 s19, s19, s7           ; rho
    s_lshl_b32 s20, s18, 7
    s_add_u32 s20, s20, {WS_MOD}
    s_add_u32 s20, s30, s20
    s_addc_u32 s21, s31, 0
    s_load_dwordx16 s[36:51], s[20:21], {GA_P}
    s_load_dwordx16 s[52:67], s[20:21], {GA_P+64}
    s_load_dwordx16 s[68:83], s[20:21], {CB1_P}
    s_load_dwordx16 s[84:99], s[20:21], {CB1_P+64}
    ''')
    srd(k, 8, 4, 2048*896)
    k.e(f'''
    s_lshl_b32 s20, s35, 6
    s_sub_u32 s21, 832, s20
    s_cmp_eq_u32 s16, 0
    s_cselect_b32 s20, s20, s21
    s_add_u32 s21, s20, 64
    s_cmp_eq_u32 s21, 896
    s_cselect_b32 s21, 448, s21
    s_cmp_eq_u32 s16, 0
    s_cselect_b32 s21, 0x7fff0000, s21
    s_mul_i32 s22, s17, 896
    s_mul_i32 s23, s3, 3072
    s_add_u32 s23, s23, {P2_XI}
    v_mov_b32 v{T+3}, s21
    ''')
    for t in range(3):
        k.e(f'''
        v_add_u32 v{T}, {64*t}, v2
        v_mul_u32_u24 v{T+1}, 205, v{T}
        v_lshrrev_b32 v{T+1}, 10, v{T+1}     ; row
        v_mul_u32_u24 v{T+2}, 5, v{T+1}
        v_sub_u32 v{T}, v{T}, v{T+2}         ; piece
        v_cmp_eq_u32 vcc, 4, v{T}
        v_lshl_add_u32 v{T}, v{T}, 4, s20
        v_cndmask_b32 v{T}, v{T}, v{T+3}, vcc
        v_mul_u32_u24 v{T+1}, {64*896}, v{T+1}
        v_add_u32 v{T}, v{T}, v{T+1}
        s_mov_b32 m0, s23
        s_add_u32 s23, s23, 1024
        ''')
        k.vm_op(f'buffer_load_dwordx4 v{T}, s[8:11], s22 offen lds', 'xi')
    k.e(f'''
    s_cmp_eq_u32 s18, 1
    s_cselect_b32 s20, 7, s35
    s_lshl_b32 s20, s20, 10
    s_add_u32 s20, s20, {WS_ZF}
    ''')
    k.vm_op(f'buffer_load_dwordx4 {v(ZF,4)}, v3, s[12:15], s20 offen', 'zf')
    k.e(f'''
    v_lshlrev_b32 v{T}, 6, v4
    v_add_u32 v{T}, s17, v{T}        ; tau
    v_cmp_eq_u32 vcc, 0, v{T}
    v_mov_b32 v{ZB}, 0x45004500
    v_cndmask_b32 v{ZB}, 0, v{ZB}, vcc
    v_mov_b32 v{ZB+1}, v{ZB}
    v_mov_b32 v{ZB+2}, v{ZB}
    v_mov_b32 v{ZB+3}, v{ZB}
    v_cvt_f32_u32 v{T}, v{T}
    v_mul_f32 v{T}, {f2h(1/2048)}, v{T}
    v_lshlrev_b32 v{T+1}, 2, v5
    v_cvt_f32_u32 v{T+1}, v{T+1}
    v_mul_f32 v{T+1}, v{T}, v{T+1}
    ''')
    for r in range(8):
        k.e(f'''v_fmamk_f32 v{T+2}, v{T}, {f2h(DELT[2*r])}, v{T+1}
        v_fmamk_f32 v{T+3}, v{T}, {f2h(DELT[2*r+1])}, v{T+1}
        v_cos_f32 v{T+4}, v{T+2}
        v_cos_f32 v{T+5}, v{T+3}
        v_sin_f32 v{T+2}, v{T+2}
        v_sin_f32 v{T+3}, v{T+3}
        v_cvt_pk_bf16_f32 v{CC+r}, v{T+4}, v{T+5}
        v_cvt_pk_bf16_f32 v{SG+r}, v{T+2}, v{T+3}''')
    k.e(f'''
    s_cmp_eq_u32 s7, 1
    s_cselect_b32 s20, 0x80008000, 0     ; sign b
    s_cmp_eq_u32 s16, 1
    s_cselect_b32 s21, 0, 0x80008000
    s_xor_b32 s22, s20, s21
    s_xor_b32 s22, s22, 0x80008000       ; sgnb*sgnmu
    s_cmp_eq_u32 s6, 0
    s_cselect_b32 s23, 0, -1
    v_mov_b32 v{T}, s23
    ''')
    for r in range(8):
        k.e(f'''v_bitop3_b32 v{IC+r}, v{SG+r}, s20, v{T} bitop3:0x28
        v_xor_b32 v{RS+r}, s21, v{SG+r}
        v_bitop3_b32 v{IS+r}, v{CC+r}, s22, v{T} bitop3:0x28''')
    k.e('s_waitcnt lgkmcnt(0)\ns_mov_b32 exec_hi, 0')
    for r in range(16): k.e(f'v_mov_b32 v{GA+r}, s{36+DELT[r]}\nv_mov_b32 v{CB+r}, s{68+DELT[r]}')
    k.e('s_not_b64 exec, exec')
    for r in range(16): k.e(f'v_mov_b32 v{GA+r}, s{40+DELT[r]}\nv_mov_b32 v{CB+r}, s{72+DELT[r]}')
    k.e('s_mov_b64 exec, -1')
    k.e(f'''
    s_lshl_b32 s20, s7, 12
    v_lshlrev_b32 v9, 7, v4
    v_add_u32 v9, s20, v9
    v_bfe_u32 v{T}, v2, 1, 3
    v_xor_b32 v{T}, v{T}, v5
    v_lshl_add_u32 v9, v{T}, 4, v9
    v_xor_b32 v10, 32, v9
    v_xor_b32 v11, 64, v9
    v_xor_b32 v12, 96, v9
    s_mul_i32 s20, s16, {28*1024}
    s_add_u32 s20, s20, {P2_CP}
    v_add_u32 v13, s20, v3
    s_lshl_b32 s20, s3, 11
    s_add_u32 s20, s20, {P2_X}
    v_add_u32 v14, s20, v3
    ''')
    for r in range(16): k.e(f'v_mov_b32 v{XV+r}, 0')
    k.ds_op(f'ds_write_b128 v14, {v(XV,4)}'); k.ds_op(f'ds_write_b128 v14, {v(XV,4)} offset:1024')
    k.e(f'''
    s_cmp_eq_u32 s18, 1
    s_cselect_b32 s20, 4096, 0
    v_mov_b32 v{T}, s20
    v_cmp_eq_u32 vcc, 0, v4
    v_cndmask_b32 v{T}, 0, v{T}, vcc
    v_add_u32 v14, v14, v{T}
    v_lshl_add_u32 v7, v{T}, 1, v3
    v_add_u32 v7, {P2_X}, v7             ; C-type reads
    v_add_u32 v15, {P2_X+4096}, v3       ; S-type reads
    s_cmp_eq_u32 s19, 1
    s_cselect_b32 s20, 2048, 0
    v_add_u32 v6, s20, v7                ; RC
    v_add_u32 v8, s20, v15               ; RS
    v_mul_u32_u24 v1, 80, v4
    s_mul_i32 s20, s3, 3072
    s_add_u32 s20, s20, {P2_XI}
    v_add_u32 v1, s20, v1
    v_lshlrev_b32 v{T}, 3, v5
    v_sub_u32 v{T+1}, 10, v{T}
    s_cmp_eq_u32 s16, 0
    s_cselect_b64 vcc, -1, 0
    v_cndmask_b32 v{T}, v{T+1}, v{T}, vcc
    v_add_u32 v1, v1, v{T}
    ''')
    def reads(c):
        b = FB + 32*(c & 1)
        for kk in range(4):
            k.ds_op(f'ds_read_b128 {v(b+8*kk,4)}, v{9+kk} offset:{P2_U+8192*c}')
            k.ds_op(f'ds_read_b128 {v(b+8*kk+4,4)}, v13 offset:{(4*c+kk)*1024}', f'r{c}{kk}')
    def mf(c):
        b = FB + 32*(c & 1)
        for kk in range(4):
            k.wait(lg=f'r{c}{kk}')
            cc = '0' if c == 0 and kk == 0 else v(ACC,16)
            k.e(f'v_mfma_f32_32x32x16_bf16 {v(ACC,16)}, {v(b+8*kk,4)}, {v(b+8*kk+4,4)}, {cc}')
    for c in range(7):
        k.wait(vm=f'ch{c}'); k.e('s_barrier')
        reads(c)
        if c: mf(c-1)
    k.wait(vm='zf')
    la, lb = k.label('P2xa'), k.label('P2xb')
    k.e(f's_cmp_eq_u32 s16, 0\ns_cbranch_scc0 {la}')
    mf6_done = False
    for r in range(16): k.e(f'ds_read_u16_d16_hi v{XV+r}, v1 offset:{2*DELT[r]}')
    k.e(f's_branch {lb}\n{la}:')
    for r in range(16): k.ds_op(f'ds_read_u16_d16_hi v{XV+r}, v1 offset:{2*DELT[15-r]}', 'xv')
    k.e(f'{lb}:')
    mf(6)
    for r in range(8): k.e(f'v_cvt_pk_bf16_f32 v{T+r}, v{ACC+2*r}, v{ACC+2*r+1}')
    k.ds_op(f'ds_write_b128 v14, {v(T,4)}'); k.ds_op(f'ds_write_b128 v14, {v(T+4,4)} offset:1024')
    k.wait(lg='all'); k.e('s_barrier')
    kinds = [('v6', 0, CC), ('v7', 2048, IC), ('v8', 0, RS), ('v15', 2048, IS)]
    for i, (ad, off, _) in enumerate(kinds):
        for a_ in range(2): k.ds_op(f'ds_read_b128 {v(FB+8*i+4*a_,4)}, {ad} offset:{off+1024*a_}', f'x{i}{a_}')
    k.e(f'v_mfma_f32_32x32x16_bf16 {v(ACC,16)}, {v(ZF,4)}, {v(ZB,4)}, 0')
    for i, (_, _, co) in enumerate(kinds):
        for a_ in range(2):
            k.wait(lg=f'x{i}{a_}')
            k.e(f'v_mfma_f32_32x32x16_bf16 {v(ACC,16)}, {v(FB+8*i+4*a_,4)}, {v(co+4*a_,4)}, {v(ACC,16)}')
    k.e(f'''
    s_mul_i32 s20, s19, 14
    s_add_u32 s20, s20, s18
    s_lshl_b32 s21, s20, 8
    s_add_u32 s21, s21, {WS_ST}
    s_lshl_b32 s20, s20, 11
    s_add_u32 s22, s20, {WS_X1}
    s_add_u32 s20, s20, {WS_X1C}
    v_lshlrev_b32 v9, 3, v4
    v_lshl_add_u32 v9, v5, 2, v9
    ''')
    for r in range(16): k.e(f'v_fma_f32 v{XV+r}, v{ACC+r}, v{GA+r}, v{XV+r}')
    for hf in range(2):
        for r in range(8*hf, 8*hf+8): k.e(f'v_mul_f32 v{CB+r}, v{CB+r}, v{XV+r}')
        for r in range(4*hf, 4*hf+4): k.e(f'v_cvt_pk_bf16_f32 v{FB+r}, v{CB+2*r}, v{CB+2*r+1}')
        k.vm_op(f'buffer_store_dwordx4 {v(FB+4*hf,4)}, v3, s[12:15], s20 offen offset:{1024*hf} sc1')
    k.e(f'''v_add_f32 v{T}, v{XV}, v{XV+1}
    v_add_f32 v{T+2}, v{XV+2}, v{XV+3}
    v_mul_f32 v{T+1}, v{XV}, v{XV}
    v_mul_f32 v{T+3}, v{XV+1}, v{XV+1}''')
    for r in range(2, 16):
        if r >= 4: k.e(f'v_add_f32 v{T+2*(r&1)}, v{T+2*(r&1)}, v{XV+r}')
        k.e(f'v_fmac_f32 v{T+1+2*(r&1)}, v{XV+r}, v{XV+r}')
    k.e(f'''v_add_f32 v{T}, v{T}, v{T+2}
    v_add_f32 v{T+1}, v{T+1}, v{T+3}
    v_permlane32_swap_b32 v{T}, v{T+1}
    v_add_f32 v{T}, v{T}, v{T+1}''')
    k.vm_op(f'buffer_store_dword v{T}, v9, s[12:15], s21 offen sc1', 'p2st')
    for hf in range(2):
        for r in range(4*hf, 4*hf+4): k.e(f'v_cvt_pk_bf16_f32 v{FB+8+r}, v{XV+2*r}, v{XV+2*r+1}')
        k.vm_op(f'buffer_store_dwordx4 {v(FB+8+4*hf,4)}, v3, s[12:15], s22 offen offset:{1024*hf} sc1')

def side(k):
    W = 16; A = 128; ACC = 240
    k.e(f'''
    s_sub_u32 s6, s2, {NMAIN}
    s_lshl_b32 s6, s6, 2
    s_add_u32 s6, s6, s3
    s_lshr_b32 s7, s6, 1
    s_mul_i32 s7, s7, 56
    s_and_b32 s16, s6, 1
    s_add_u32 s7, s7, s16
    s_lshl_b32 s7, s7, 10
    s_add_u32 s7, s7, {WS_W3P}
    s_lshl_b32 s17, s3, 11
    s_mov_b32 s18, {WS_MOD+CB1_K}
    s_waitcnt lgkmcnt(0)
    ''')
    srd(k, 12, 30, WS_END)
    k.e('s_mov_b32 m0, s17')
    k.vm_op('buffer_load_dwordx4 v3, s[12:15], s18 offen lds')
    k.vm_op('buffer_load_dwordx4 v3, s[12:15], s18 offen offset:1024 lds', 'vec')
    for ks in range(28):
        k.vm_op(f'buffer_load_dwordx4 {v(W+4*ks,4)}, v3, s[12:15], s7 offen offset:{2048*(ks&1)}', f'w{ks}')
        if ks & 1: k.e('s_add_u32 s7, s7, 4096')
    k.e(f'''
    v_and_b32 v6, 1, v2
    v_lshlrev_b32 v6, 10, v6
    v_lshl_add_u32 v6, v5, 4, v6
    v_add_u32 v6, s17, v6
    s_lshl_b32 s19, s6, 10
    s_add_u32 s19, s19, {WS_WEXT}
    ''')
    k.wait(vm='vec')
    for ks in range(28): k.ds_op(f'ds_read_b128 {v(A+4*ks,4)}, v6 offset:{32*ks}', f'a{ks}')
    for ks in range(28):
        k.wait(vm=f'w{ks}', lg=f'a{ks}')
        c = '0' if ks == 0 else v(ACC,16)
        k.e(f'v_mfma_f32_32x32x16_bf16 {v(ACC,16)}, {v(A+4*ks,4)}, {v(W+4*ks,4)}, {c}')
    k.e(f'''
    v_cvt_pk_bf16_f32 v9, v{ACC}, v{ACC+1}
    v_lshlrev_b32 v12, 16, v9
    v_and_b32 v13, 0xffff0000, v9
    v_sub_f32 v12, v{ACC}, v12
    v_sub_f32 v13, v{ACC+1}, v13
    v_cvt_pk_bf16_f32 v8, v{ACC}, v12
    v_cvt_pk_bf16_f32 v10, v13, v{ACC+1}
    v_mov_b32 v11, 0
    v_cmp_eq_u32 vcc, 0, v5
    v_cndmask_b32 v8, 0, v8, vcc
    v_cndmask_b32 v9, 0, v9, vcc
    v_cndmask_b32 v10, 0, v10, vcc
    ''')
    k.vm_op('buffer_store_dwordx4 v[8:11], v3, s[12:15], s19 offen sc1')

def gen_k2():
    k = K(); prologue(k, 'K2', NSIDE); P2(k); k.e('s_endpgm\nK2_SIDE:'); k.reset_counts(); side(k)
    k.e('K2_END:\ns_endpgm'); return k.L

IMG = 29696; KSP = 4*IMG
ACC0 = 16; RING = 80; WX = 96; ET = 104
def P3_w3loads(k, lo, hi):
    for f in range(lo, hi):
        k.vm_op(f'buffer_load_dwordx4 {a(4*f,4)}, v3, s[12:15], s36 offen offset:{1024*(f&3)}', f'w3_{f}')
        if f & 3 == 3: k.e('s_add_u32 s36, s36, 4096')

def epi3_ops(acc, st):
    ops = []
    K1 = ET + 2*(st & 1); SS = K1 + 1; T = ET + 4; PK = ET + 12
    for q in range(4):
        rr = range(4*q, 4*q+4)
        t = T + 4*(q & 1)
        for r in rr: ops.append(f'v_mul_f32 v{t+(r&3)}, v{acc+r}, v{K1}')
        for r in rr: ops.append(f'v_exp_f32 v{t+(r&3)}, v{t+(r&3)}')
        for r in rr: ops.append(f'v_fma_f32 v{t+(r&3)}, v{t+(r&3)}, v{SS}, v{SS}')
        for r in rr: ops.append(f'v_rcp_f32 v{t+(r&3)}, v{t+(r&3)}')
        for r in rr: ops.append(f'v_mul_f32 v{t+(r&3)}, v{t+(r&3)}, v{acc+16+r}')
        ops.append(f'v_cvt_pk_bf16_f32 v{PK+2*q}, v{t}, v{t+1}')
        ops.append(f'v_cvt_pk_bf16_f32 v{PK+2*q+1}, v{t+2}, v{t+3}')
        if q & 1: ops.append(('vm', f'buffer_store_dwordx4 {v(PK+4*(q>>1),4)}, v3, s[12:15], s{40+st} offen offset:{1024*(q>>1)} sc1', f'hh{st}'))
    return ops

def emit_op(k, op):
    if isinstance(op, tuple):
        if op[0] == 'vm': k.vm_op(op[1], op[2])
        elif op[0] == 'ds': k.ds_op(op[1], op[2])
        elif op[0] == 'fn': op[1]()
    else: k.e(op)

def P3(k):
    T = ET + 4
    for st in range(4):
        k.e(f'''s_add_u32 s6, s33, {1+st}
        s_and_b32 s6, s6, 3
        s_lshl_b32 s7, s32, 2
        s_add_u32 s6, s6, s7             ; rho
        s_mul_i32 s{44+st}, s6, {28*1024}
        s_add_u32 s{44+st}, s{44+st}, {WS_X1C}
        s_lshl_b32 s6, s6, 2
        s_add_u32 s6, s6, s3
        s_mul_i32 s6, s6, 14
        s_add_u32 s6, s6, s33
        s_lshl_b32 s6, s6, 11
        s_add_u32 s{40+st}, s6, {WS_HH}''')
    k.e(f'''
    s_add_u32 s6, s33, s3
    s_add_u32 s6, s6, 1
    s_and_b32 s6, s6, 3
    s_lshl_b32 s7, s32, 2
    s_add_u32 s6, s6, s7
    s_mul_i32 s37, s6, 3584
    s_add_u32 s37, s37, {WS_ST}
    s_lshl_b32 s6, s33, 2
    s_add_u32 s6, s6, s3
    s_lshl_b32 s38, s6, 11
    s_add_u32 s38, s38, {WS_WEXT}
    s_mul_i32 s36, s6, {56*1024}
    s_add_u32 s36, s36, {WS_W3P}
    v_lshlrev_b32 v6, 3, v2
    s_waitcnt lgkmcnt(0)
    ''')
    srd(k, 12, 30, WS_END)
    def dma(st, first, n, tag):
        done = 0
        while done < n:
            m = min(4, n-done)
            k.e(f's_add_u32 s7, s6, {st*IMG+done*1024}\ns_mov_b32 m0, s7\ns_add_u32 s7, s6, s{44+st}')
            if done: k.e(f's_add_u32 s7, s7, {done*1024}')
            for i in range(m): k.vm_op(f'buffer_load_dwordx4 v3, s[12:15], s7 offen offset:{1024*i} sc1 lds', tag)
            done += m
    k.e('s_lshl_b32 s6, s3, 11'); dma(0, None, 2, 'a0a')
    P3_w3loads(k, 0, 16)
    for i in range(7): k.vm_op(f'buffer_load_dwordx2 {v(128+2*i,2)}, v6, s[12:15], s37 offen offset:{512*i} sc1', 'st')
    k.e('s_mul_i32 s6, s3, 5120\ns_add_u32 s6, s6, 8192'); dma(0, None, 5, 'a0b')
    P3_w3loads(k, 16, 44)
    late = [('fn', lambda: P3_w3loads(k, 44, 56))]
    def wext():
        for mt in range(2): k.vm_op(f'buffer_load_dwordx4 {v(WX+4*mt,4)}, v3, s[12:15], s38 offen offset:{1024*mt} sc1', 'wx')
    def dmast(st):
        k.e('s_mul_i32 s6, s3, 7168'); dma(st, None, 7, f'a{st}')
    def stats():
        k.wait(vm='st')
        for i in range(1, 7): k.e(f'v_add_f32 v128, v128, v{128+2*i}\nv_add_f32 v129, v129, v{129+2*i}')
        k.e(f'''v_mov_b32 v130, v128
        v_mov_b32 v131, v129
        v_permlane32_swap_b32 v128, v130
        v_permlane32_swap_b32 v129, v131
        v_add_f32 v128, v128, v130
        v_add_f32 v129, v129, v131
        v_mul_f32 v128, {f2h(-1/448)}, v128      ; -mean
        v_mul_f32 v129, {f2h(1/448)}, v129
        v_fma_f32 v129, -v128, v128, v129
        v_max_f32 v129, 0, v129
        v_add_f32 v129, {f2h(1e-5)}, v129
        v_rsq_f32 v130, v129
        v_sqrt_f32 v131, v129                    ; std
        v_mul_f32 v130, {f2h(-math.log2(math.e))}, v130
        v_cvt_pk_bf16_f32 v132, v128, v128       ; (-m_hi,-m_hi)
        v_cvt_pk_bf16_f32 v136, v131, v131
        v_and_b32 v137, 0xffff0000, v132
        v_and_b32 v136, 0xffff0000, v136
        v_sub_f32 v137, v128, v137
        v_sub_f32 v136, v131, v136
        v_cvt_pk_bf16_f32 v133, v137, v131
        v_cvt_pk_bf16_f32 v134, v131, v136
        v_mov_b32 v135, 0
        v_cmp_eq_u32 vcc, 0, v5
        v_cndmask_b32 v132, 0, v132, vcc
        v_cndmask_b32 v133, 0, v133, vcc
        v_cndmask_b32 v134, 0, v134, vcc
        s_mul_i32 s6, s3, {IMG}
        v_add_u32 v136, s6, v3
        s_lshl_b32 s6, s3, 9
        s_add_u32 s6, s6, {KSP}
        v_add_u32 v137, s6, v6
        ''')
        k.ds_op('ds_write_b128 v136, v[132:135] offset:28672', 'stw')
        k.ds_op('ds_write_b64 v137, v[130:131]', 'stw')
    k.e(f'v_add_u32 v7, {2*IMG}, v3\nv_add_u32 v8, {KSP}, v6')
    seq = [(st, ks) for st in range(4) for ks in range(29)]
    def rd(n):
        st, ks = seq[n]
        base, off = ('v3', st*IMG) if st < 2 else ('v7', (st-2)*IMG)
        k.ds_op(f'ds_read_b128 {v(RING+4*(n&3),4)}, {base} offset:{off+1024*ks}', f'b{n}')
    PD = 3
    k.wait(vm='a0a'); k.e('s_barrier')
    for n in range(PD): rd(n)
    fill = []
    for n, (st, ks) in enumerate(seq):
        acc = ACC0 + 32*(st & 1)
        nn = n + PD
        if nn < len(seq):
            s2, k2 = seq[nn]
            if (s2, k2) == (0, 8):
                stats(); k.wait(vm='a0b', lg='stw'); k.e('s_barrier')
                P3_w3loads(k, 44, 56); wext(); dmast(1)
            elif k2 == 0:
                k.wait(vm=f'a{s2}'); k.e('s_barrier')
                if s2 < 3: dmast(s2+1)
            rd(nn)
        if ks == 20: k.ds_op(f'ds_read_b64 {v(ET+2*(st&1),2)}, v8 offset:{512*st}', f'ks{st}')
        if ks == 2 and st > 0: fill = epi3_ops(ACC0 + 32*((st-1) & 1), st-1)
        for mt in range(2):
            if ks < 28:
                A = a(8*ks+4*mt, 4)
                k.wait(vm=f'w3_{2*ks+mt}' if st == 0 else None, lg=f'b{n}')
            else:
                A = v(WX+4*mt, 4); k.wait(vm='wx', lg=f'b{n}')
            c = '0' if ks == 0 else v(acc+16*mt, 16)
            k.e(f'v_mfma_f32_32x32x16_bf16 {v(acc+16*mt,16)}, {A}, {v(RING+4*(n&3),4)}, {c}')
            for _ in range(2):
                if fill: emit_op(k, fill.pop(0))
        if ks == 28: assert not fill
    k.wait(lg='all')
    for op in epi3_ops(ACC0+32, 3): emit_op(k, op)

def gen_k3():
    k = K(); prologue(k, 'K3', 0); P3(k); k.e('K3_END:\ns_endpgm'); return k.L

REGI = [0, 1, 4, 5, 8, 9, 12, 13, 2]; LDSI = [3, 6, 7, 10, 11]
WDL = [120832, 120832+16384, 0, 16384, 32768]
X1L = 59392; RED = 71680; XR = 128
def wdreg(i, f):
    n = REGI.index(i)*4 + f
    return v(144+4*n, 4) if n < 28 else a(224+4*(n-28), 4)
def P4_setup(k):
    k.e(f'''s_lshr_b32 s16, s3, 1
    s_lshl_b32 s17, s34, 1''')
    for i in range(14):
        k.e(f'''s_xor_b32 s6, s16, {i}
        s_add_u32 s6, s6, s17''')
        if i >= 12: k.e('s_sub_u32 s7, s6, 14\ns_cmp_ge_u32 s6, 14\ns_cselect_b32 s6, s7, s6')
        k.e(f's_lshl_b32 s{48+i}, s6, 11')
    k.e(f'''s_lshl_b32 s6, s32, 2
    s_add_u32 s6, s6, s17
    s_add_u32 s65, s6, s16
    s_xor_b32 s7, s65, 1
    s_lshl_b32 s62, s65, 2
    s_add_u32 s62, s62, s3
    s_mul_i32 s62, s62, {28*1024}
    s_add_u32 s62, s62, {WS_HH}
    s_lshl_b32 s63, s7, 2
    s_add_u32 s63, s63, s3
    s_mul_i32 s63, s63, {28*1024}
    s_add_u32 s63, s63, {WS_HH}
    s_lshl_b32 s64, s35, 2
    s_add_u32 s64, s64, s3
    s_mul_i32 s64, s64, {56*1024}
    s_add_u32 s64, s64, {WS_WDP}
    s_and_b32 s66, s3, 1
    s_lshl_b32 s6, s66, 8
    v_xor_b32 v9, s6, v3
    ''')
def P4_wd_reg(k, i):
    k.e(f's_lshl_b32 s6, s{48+i}, 1\ns_add_u32 s6, s6, s64')
    for f in range(4): k.vm_op(f'buffer_load_dwordx4 {wdreg(i,f)}, v3, s[12:15], s6 offen offset:{1024*f}', f'wd{i}')
def P4_wd_lds(k, i):
    k.e(f's_lshl_b32 s7, s3, 12\ns_add_u32 s7, s7, {WDL[LDSI.index(i)]}\ns_mov_b32 m0, s7\ns_lshl_b32 s6, s{48+i}, 1\ns_add_u32 s6, s6, s64')
    for f in range(4): k.vm_op(f'buffer_load_dwordx4 v3, s[12:15], s6 offen offset:{1024*f} lds', f'wd{i}')
def P4_hh(k, i, rl):
    k.e(f's_add_u32 s6, s{48+i}, s{62+rl}')
    for a_ in range(2): k.vm_op(f'buffer_load_dwordx4 {a(16*i+8*rl+4*a_,4)}, v9, s[12:15], s6 offen offset:{1024*a_} sc1', f'h{i}_{rl}')
def P4_x1(k):
    k.e(f'''s_lshl_b32 s6, s35, 2
    s_sub_u32 s7, 29, s6
    s_cmp_le_u32 s35, 3
    s_cselect_b32 s67, s6, s7
    s_add_u32 s68, s6, 2
    s_sub_u32 s69, s7, 2
    s_cmp_le_u32 s35, 2
    s_cselect_b32 s68, s68, s69
    s_sub_u32 s69, s7, 4
    s_cmp_le_u32 s35, 3
    s_cselect_b32 s69, 1, s69
    s_cmp_eq_u32 s35, 3
    s_cselect_b32 s68, 13, s68
    v_and_b32 v10, 15, v2
    v_lshlrev_b32 v10, 4, v10
    v_lshrrev_b32 v11, 4, v2
    v_lshl_add_u32 v10, v11, 9, v10
    s_mul_i32 s70, s65, {28*1024}
    s_lshl_b32 s6, s66, 8
    s_add_u32 s70, s70, s6
    s_add_u32 s70, s70, {WS_X1}
    s_mul_i32 s71, s3, 3072
    s_add_u32 s71, s71, {X1L}
    ''')
    for b in range(3):
        k.e(f's_add_u32 s7, s71, {1024*b}\ns_mov_b32 m0, s7\ns_lshl_b32 s6, s{67+b}, 11\ns_add_u32 s6, s6, s70')
        k.vm_op('buffer_load_dwordx4 v10, s[12:15], s6 offen sc1 lds', 'x1')
    k.e(f's_lshl_b32 s6, s35, 8\ns_add_u32 s6, s6, {WS_MOD+GB_N}\nv_lshlrev_b32 v10, 3, v4')
    k.vm_op('buffer_load_dwordx2 v[14:15], v10, s[12:15], s6 offen', 'gb')
def P4_x1addr(k):
    T = ET
    for t in range(2):
        k.e(f'''s_lshl_b32 s6, s35, 6
        s_add_u32 s6, s6, {t}
        v_lshl_add_u32 v{T}, v4, 1, s6       ; col
        v_sub_u32 v{T+1}, 448, v{T}
        v_cmp_le_u32 vcc, 224, v{T}
        v_cndmask_b32 v{T+1}, v{T}, v{T+1}, vcc
        v_cndmask_b32 v{T+2}, 0, 1, vcc
        v_cmp_eq_u32 vcc, 224, v{T+1}
        v_cndmask_b32 v{T+1}, v{T+1}, 0, vcc
        v_lshrrev_b32 v{T+3}, 5, v{T+1}
        v_lshl_add_u32 v{T+3}, v{T+3}, 1, v{T+2}   ; beta
        v_mov_b32 v{T+2}, 2
        v_cmp_eq_u32 vcc, s68, v{T+3}
        v_cndmask_b32 v{T+2}, v{T+2}, 1, vcc
        v_cmp_eq_u32 vcc, s67, v{T+3}
        v_cndmask_b32 v{T+2}, v{T+2}, 0, vcc
        v_lshlrev_b32 v{T+2}, 10, v{T+2}
        v_bfe_u32 v{T+3}, v{T+1}, 4, 1
        v_lshl_add_u32 v{T+2}, v{T+3}, 9, v{T+2}
        v_bfe_u32 v{T+3}, v{T+1}, 2, 1
        v_lshl_add_u32 v{T+2}, v{T+3}, 8, v{T+2}
        v_bfe_u32 v{T+3}, v{T+1}, 3, 1
        v_lshl_add_u32 v{T+2}, v{T+3}, 3, v{T+2}
        v_and_b32 v{T+3}, 3, v{T+1}
        v_lshl_add_u32 v{T+2}, v{T+3}, 1, v{T+2}
        v_lshl_add_u32 v{T+2}, v5, 6, v{T+2}
        v_add_u32 v{12+t}, s71, v{T+2}
        ''')
    for r in range(16): k.e(f'v_mov_b32 v{XR+r}, 0')
def P4_x1read(k):
    k.wait(vm='x1')
    for t in range(2):
        for r in range(8): k.ds_op(f'ds_read_u16_d16_hi v{XR+8*t+r}, v{12+t} offset:{16*DELT[r]}', 'xr')
def acc4(rl, t): return ACC0 + 32*rl + 16*t
EARLY = [(2,0),(2,1),(0,1),(1,0),(3,0),(3,1),(4,1),(5,0),(6,0),(6,1),(7,0),(7,1),(8,1),(9,0),(10,0),(10,1),(11,0),(11,1),(12,1),(13,0)]
LATE = [(1,1),(5,1),(9,1),(13,1),(0,0),(4,0),(8,0),(12,0)]
def P4_main(k, hooks={}):
    started = set()
    k.e(f's_lshl_b32 s6, s3, 12\nv_add_u32 v10, s6, v3\nv_add_u32 v11, {WDL[0]}, v10')
    order = EARLY + LATE
    def ldsread(i):
        slot = LDSI.index(i)
        base, off = ('v11', WDL[slot]-WDL[0]) if slot < 2 else ('v10', WDL[slot])
        k.wait(vm=f'wd{i}')
        for f in range(4): k.ds_op(f'ds_read_b128 {v(RING+4*f,4)}, {base} offset:{off+1024*f}', f'wl{i}_{f}')
    redw = []
    for n, (i, rl) in enumerate(order):
        if n in hooks: hooks[n]()
        if i in LDSI and rl == 0: ldsread(i)
        if n == len(order)-4:
            for rh in range(2):
                for t in range(2):
                    for q in range(2):
                        redw.append(f'ds_write_b128 v{6+1+rh}, {v(acc4(1,t)+8*rh+4*q,4)} offset:{(2*t+q)*1024}')
        cnt = 0
        for a_ in range(2):
            for t in range(2):
                f = 2*a_+t
                if i in LDSI: B = v(RING+4*f, 4); k.wait(vm=f'h{i}_{rl}', lg=f'wl{i}_{f}')
                else: B = wdreg(i, f); k.wait(vm=[f'h{i}_{rl}', f'wd{i}'])
                c = v(acc4(rl,t),16) if (rl,t) in started else '0'
                started.add((rl,t))
                k.e(f'v_mfma_f32_32x32x16_bf16 {v(acc4(rl,t),16)}, {a(16*i+8*rl+4*a_,4)}, {B}, {c}')
                if redw and n > len(order)-4: k.ds_op(redw.pop(0))
    assert not redw
    for t in range(2):
        for q in range(2): k.ds_op(f'ds_write_b128 v6, {v(acc4(0,t)+8+4*q,4)} offset:{(2*t+q)*1024}')
    k.wait(lg='all'); k.e('s_barrier')
    R = 144
    for sl in range(3):
        for f in range(4): k.ds_op(f'ds_read_b128 {v(R+16*sl+4*f,4)}, v1 offset:{sl*4096+f*1024}', f'rr{sl}')
    for sl in range(3):
        k.wait(lg=f'rr{sl}')
        for t in range(2):
            for r in range(8): k.e(f'v_add_f32 v{acc4(0,t)+r}, v{acc4(0,t)+r}, v{R+16*sl+8*t+r}')
    k.wait(vm='gb')
    for r in range(8):
        k.e(f'''v_fma_f32 v{XR+r}, v{acc4(0,0)+r}, v14, v{XR+r}
        v_fma_f32 v{XR+8+r}, v{acc4(0,1)+r}, v15, v{XR+8+r}
        v_cvt_pk_bf16_f32 v{XR+r}, v{XR+r}, v{XR+8+r}
        s_add_u32 s6, s72, {DELT[r]*64*896}''')
        k.vm_op(f'buffer_store_dword v{XR+r}, v0, s[8:11], s6 offen sc1')
def P4_outaddr(k):
    for sl in range(3):
        k.e(f's_xor_b32 s6, s3, {sl+1}\ns_mul_i32 s6, s6, 12288\ns_add_u32 s6, s6, {RED+4096*sl}\nv_add_u32 v{6+sl}, s6, v3')
    k.e(f'''s_mul_i32 s6, s3, 12288
    s_add_u32 s6, s6, {RED}
    v_add_u32 v1, s6, v3
    s_lshr_b32 s6, s65, 1
    s_and_b32 s7, s65, 1''')
    t1_of(k, 's72', 's6', 's7', 's73')
    k.e(f'''s_lshl_b32 s6, s66, 10
    s_add_u32 s72, s72, s6
    s_mul_i32 s72, s72, 896
    s_lshl_b32 s6, s35, 7
    s_add_u32 s72, s72, s6
    v_mul_u32_u24 v0, {4*64*896}, v5
    v_lshl_add_u32 v0, v4, 2, v0''')
    srd(k, 8, 26, 2048*896)

def gen_k4():
    k = K(); prologue(k, 'K4', 0)
    P4_setup(k); k.e('s_waitcnt lgkmcnt(0)'); srd(k, 12, 30, WS_END)
    order = EARLY + LATE
    issued = set()
    def issue(n):
        i, rl = order[n]
        if i not in issued:
            issued.add(i); (P4_wd_lds if i in LDSI else P4_wd_reg)(k, i)
        P4_hh(k, i, rl)
    AH = 10
    for n in range(AH): issue(n)
    P4_x1(k); P4_x1addr(k); P4_outaddr(k)
    hooks = {n: (lambda n=n: issue(n+AH)) for n in range(len(order)-AH)}
    hooks[20] = lambda: P4_x1read(k)
    P4_main(k, hooks)
    k.e('K4_END:\ns_endpgm'); return k.L
```

```python
WS_U    = 0x000000
WS_CP   = 0x1C0000
WS_ZF   = 0x224000
WS_MOD  = 0x226000
WS_FLAG = 0x228000
WS_WEXT = 0x230000
WS_ST   = 0x250000
WS_W3P  = 0x290000
WS_WDP  = 0x5A0000
WS_X1C  = 0x728000
WS_X1   = 0x8E8000
WS_HH   = 0xAA8000
WS_END  = 0x11A8000
GA_P, CB1_P, GB_N, CB1_K, SB_K = 0, 2048, 4096, 6144, 7168
```

```python
import sys
from asmlib import *
from k1 import *
from k234 import *
HEAD = open('adaLN_cond__spectral_fnet__glu_gated_glu__prompt.s.ref').read().split('; Override launch')[0]
def build(kerns, launches):
    out = HEAD
    for n, g, b, l in launches: out += f'; @launch kernel={n} grid=({g},1,1) block=({b},1,1) lds={l}\n'
    out += '.amdgcn_target "amdgcn-amd-amdhsa--gfx950"\n.text\n'
    descs = ''
    for n, L, nv, na, ns in kerns:
        c, d = kernel_text(n, L, nv, na, ns); out += c; descs += d
    out += '.section .rodata,"a"\n' + descs
    return out
if __name__ == '__main__':
    kerns = [('k1_kernel', gen_k1(), 108, 0, 64), ('k2_kernel', gen_k2(), 256, 0, 102), ('k3_kernel', gen_k3(), 256, 256, 102), ('k4_kernel', gen_k4(), 256, 256, 102)]
    launches = [('k1_kernel', K1_GRID, 512, K1_LDS), ('k2_kernel', NMAIN+NSIDE, 256, 139264), ('k3_kernel', NMAIN, 256, LDS_ALL), ('k4_kernel', NMAIN, 256, LDS_ALL)]
    open(sys.argv[1], 'w').write(build(kerns, launches))
```

```python
import re

TRANS = ('v_exp_f32','v_log_f32','v_rcp_f32','v_rsq_f32','v_sqrt_f32','v_sin_f32','v_cos_f32')

def _regs(op):
    op = op.strip()
    if op.startswith('-'): op = op[1:]
    m = re.fullmatch(r'abs\((.*)\)', op) or re.fullmatch(r'\|(.*)\|', op)
    if m: op = m.group(1)
    m = re.fullmatch(r'([vas])(\d+)', op)
    if m: return {(m.group(1), int(m.group(2)))}
    m = re.fullmatch(r'([vas])\[(\d+):(\d+)\]', op)
    if m: return {(m.group(1), i) for i in range(int(m.group(2)), int(m.group(3))+1)}
    if op in ('vcc','vcc_lo','vcc_hi'): return {('x','vcc')}
    if op in ('exec','exec_lo','exec_hi'): return {('x','exec')}
    if op == 'm0': return {('x','m0')}
    return set()

class Ins:
    def __init__(self, text):
        self.text = text
        t = text.split(';')[0].strip()
        self.label = t.endswith(':')
        self.kind = 'other'; self.w = set(); self.r = set()
        self.states = 1
        self.dpp = False; self.trans = False; self.dot = False; self.perm = False
        self.A = self.B = self.C = set(); self.passes = 0
        self.store_data = set(); self.ldsdma = False; self.rdlane = False
        if self.label or not t or t.startswith('.'):
            self.kind = 'none'; self.states = 0; return
        parts = t.split(None, 1)
        mn = parts[0]; self.mn = mn
        rest = parts[1] if len(parts) > 1 else ''
        ops = []; cur = ''; depth = 0
        for ch in rest:
            if ch in '[(': depth += 1
            if ch in '])': depth -= 1
            if ch == ',' and depth == 0: ops.append(cur.strip()); cur = ''
            else: cur += ch
        if cur.strip(): ops.append(cur.strip())
        mods = ''
        if ops:
            last = ops[-1].split(None, 1)
            ops[-1] = last[0]; mods = last[1] if len(last) > 1 else ''
        R = [_regs(o) for o in ops]
        allbut0 = set().union(*R[1:]) if len(R) > 1 else set()
        if mn == 's_nop':
            self.kind = 'nop'; self.states = int(ops[0], 0) + 1
        elif mn.startswith('v_mfma'):
            self.kind = 'mfma'; self.w = R[0]; self.A = R[1]; self.B = R[2]; self.C = R[3]
            self.r = self.A | self.B | self.C
            self.passes = 8 if '32x32x16' in mn else 4 if '16x16x32' in mn else None
            assert self.passes
        elif mn.startswith('v_'):
            self.kind = 'valu'
            base = re.sub(r'_(e32|e64|dpp|sdwa)$', '', mn)
            self.w = set(R[0]); self.r = set(allbut0)
            self.trans = base in TRANS
            self.dpp = mn.endswith('_dpp') or 'quad_perm' in mods or 'row_' in mods
            self.dot = base.startswith('v_dot')
            if self.dpp: self.r |= R[0]
            if base.startswith(('v_fmac','v_dot2c','v_pk_fmac')): self.r |= R[0]
            if base.startswith('v_permlane'):
                self.perm = True; self.w = R[0] | R[1]; self.r = R[0] | R[1]
            if base.startswith(('v_add_co','v_sub_co','v_addc_co','v_subb_co')):
                self.w |= R[1]; self.r = set().union(*R[2:])
            if base in ('v_readfirstlane_b32','v_readlane_b32'): self.rdlane = True
            if base.startswith('v_cmpx'): self.w |= {('x','exec')}
        elif mn.startswith(('buffer_','global_')):
            self.kind = 'vmem'
            if mn in ('buffer_inv','buffer_wbl2'): return
            lds = ' lds' in (' '+mods) or '_lds_' in mn
            if lds:
                self.ldsdma = True; self.r = set().union(*R) | {('x','m0')}
            elif '_load' in mn:
                self.w = R[0]; self.r = allbut0
                if 'd16' in mn: self.r |= R[0]
            else:
                self.r = set().union(*R)
                di = 0 if mn.startswith('buffer_') else 1
                if 'atomic' in mn and 'sc0' in mods:
                    self.w = R[0]
                if mn.endswith(('x3','x4')): self.store_data = R[di]
        elif mn.startswith('ds_'):
            self.kind = 'ds'
            if mn.startswith(('ds_read','ds_bpermute','ds_permute','ds_swizzle')):
                self.w = R[0]; self.r = allbut0
                if 'd16' in mn: self.r |= R[0]
            else: self.r = set().union(*R)
        elif mn.startswith('s_'):
            self.kind = 'salu'
            if mn.startswith(('s_cmp','s_waitcnt','s_barrier','s_cbranch','s_branch','s_endpgm','s_sleep','s_setprio','s_bitcmp')):
                self.r = set().union(*R) if R else set()
            else:
                self.w = set(R[0]) if R else set(); self.r = allbut0
                if 'saveexec' in mn: self.w |= {('x','exec')}
        else:
            raise ValueError(text)

def need(p, c):
    n = 0
    vw = {x for x in p.w if x[0] in 'va'}
    sw = {x for x in p.w if x[0] == 's' or x == ('x','vcc')}
    if p.kind == 'valu':
        if c.kind == 'mfma' and vw & c.r: n = max(n, 3 if p.dot else 2)
        if c.kind == 'valu':
            if c.dpp and vw & c.r: n = max(n, 2)
            if c.perm and vw & c.r: n = max(n, 2)
            if c.rdlane and vw & c.r: n = max(n, 1)
            if p.trans and not c.trans and vw & c.r: n = max(n, 1)
            if sw & c.r: n = max(n, 4 if c.rdlane else 2)
            if 'sdwa' in p.mn and vw & (c.r | c.w): n = max(n, 1)
        if p.trans and c.kind in ('vmem','ds') and vw & c.r: n = max(n, 1)
        if p.dot and vw & (c.r | c.w):
            same = c.kind == 'valu' and c.dot and c.mn == p.mn and vw <= c.w and not _dot_ab(c) & vw
            if not same: n = max(n, 3)
        if c.kind == 'vmem' and sw & c.r: n = max(n, 5)
        if c.kind == 'salu' and sw & c.r: n = max(n, 1)
        if ('x','exec') in p.w:
            if c.kind == 'mfma' or c.perm or c.rdlane: n = max(n, 4)
            if c.dpp: n = max(n, 5)
    if p.kind in ('vmem','ds') and c.kind == 'valu' and c.dpp and vw & c.r: n = max(n, 2)
    if p.kind == 'salu' and ('x','m0') in p.w and c.ldsdma: n = max(n, 1)
    if p.store_data and c.w & p.store_data: n = max(n, 2 if c.kind in ('valu','mfma') else 1)
    if p.kind == 'mfma':
        big = {4: 8, 8: 12}[p.passes]
        if c.kind == 'mfma':
            if p.w & (c.A | c.B): n = max(n, big)
            if p.w & c.C:
                if not (p.w == c.C and p.passes == c.passes): n = max(n, big - 2)
            elif p.w & c.w: n = max(n, big)
        elif c.kind in ('valu','vmem','ds'):
            if p.w & (c.r | c.w): n = max(n, big)
            if c.kind == 'valu' and p.C & c.w: n = max(n, {4: 3, 8: 7}[p.passes])
    return n

def _dot_ab(c):
    t = c.text.split(';')[0].split(None,1)[1].split(',')
    return _regs(t[1]) | _regs(t[2].split()[0])

def pad_hazards(lines):
    out = []; win = []
    added = 0
    for ln in lines:
        c = Ins(ln)
        if c.kind == 'none':
            out.append(ln); continue
        k = 0
        for p, d in win: k = max(k, need(p, c) - d)
        while k > 0:
            s = min(k, 16); out.append(f'    s_nop {s-1}'); added += 1
            for e in win: e[1] += s
            k -= s
        out.append(ln)
        for e in win: e[1] += c.states
        win = [e for e in win if e[1] < 24]
        win.append([c, 0])
        if c.kind == 'salu' and c.mn in ('s_branch','s_endpgm'): win = []
    return out

class K:
    def __init__(self):
        self.L = []; self.vm = []; self.lg = []; self.uid = 0
    def e(self, s):
        for x in s.strip().split('\n'):
            x = x.strip()
            if x: self.L.append(x if x.endswith(':') else '    ' + x)
    STAMPS = False
    NAMES = None
    CLK = 's_memrealtime'
    def st(self, name):
        if K.STAMPS and K.NAMES and name in K.NAMES: self.stamp(K.NAMES.index(name)+1)
    def stamp(self, i):
        if K.STAMPS:
            r = self.sreg(i); self.e(f'{K.CLK} s[{r}:{r+1}]'); self.nst = max(getattr(self,'nst',0), i+1)
    def sreg(self, i): return 100 - 2*i
    def stamp_out(self, kid, n, allwaves=False):
        if not K.STAMPS: return
        lab = self.label('STO')
        self.e(f's_waitcnt vmcnt(0) lgkmcnt(0)')
        self.stamp(n-1)
        self.e(f's_waitcnt lgkmcnt(0)\ns_mov_b64 exec, 1\ns_lshl_b32 s6, s2, 3\ns_add_u32 s6, s6, s3\ns_lshl_b32 s6, s6, 6\ns_add_u32 s6, s6, {0x1200000 + kid*0x40000}\ns_mov_b32 s14, 0x2000000\nv_mov_b32 v1, 0')
        for i in range(n): self.e(f'v_mov_b32 v2, s{self.sreg(i)}\nbuffer_store_dword v2, v1, s[12:15], s6 offen offset:{4*i}')
    def label(self, base):
        self.uid += 1; return f'{base}_{self.uid}'
    def reset_counts(self): self.vm = []; self.lg = []
    def vm_op(self, s, tag=None, maybe=False):
        self.e(s); self.vm.append((tag, maybe))
    def ds_op(self, s, tag=None, maybe=False):
        self.e(s); self.lg.append((tag, maybe))
    @staticmethod
    def _cnt(q, tags):
        if not isinstance(tags, (list, tuple, set)): tags = [tags]
        idx = [i for i, (t, _) in enumerate(q) if t in tags]
        if not idx: return None
        return max(idx), sum(1 for t, m in q[max(idx)+1:] if not m)
    def wait(self, vm=None, lg=None):
        parts = []
        if vm is not None:
            if vm == 'all': parts.append('vmcnt(0)'); self.vm = []
            else:
                r = self._cnt(self.vm, vm)
                if r is not None:
                    i, n = r
                    parts.append(f'vmcnt({min(n,63)})'); self.vm = self.vm[i+1:]
        if lg is not None:
            if lg == 'all': parts.append('lgkmcnt(0)'); self.lg = []
            else:
                r = self._cnt(self.lg, lg)
                if r is not None:
                    i, n = r
                    parts.append(f'lgkmcnt({min(n,15)})'); self.lg = self.lg[i+1:]
        if parts: self.e('s_waitcnt ' + ' '.join(parts))

def v(a, n=1): return f'v{a}' if n == 1 else f'v[{a}:{a+n-1}]'
def a(i, n=1): return f'a{i}' if n == 1 else f'a[{i}:{i+n-1}]'
def s(i, n=1): return f's{i}' if n == 1 else f's[{i}:{i+n-1}]'
import struct
def f2h(x): return '0x%08x' % struct.unpack('<I', struct.pack('<f', x))[0]

def kernel_text(name, lines, nvgpr, nagpr=0, nsgpr=96):
    acc = max(4, (nvgpr + 3)//4*4)
    nfv = acc + nagpr if nagpr else nvgpr
    body = '\n'.join(pad_hazards(lines))
    code = f""".globl {name}
.p2align 8
.type {name},@function
{name}:
{body}
"""
    desc = f""".p2align 6
.amdhsa_kernel {name}
  .amdhsa_next_free_vgpr {nfv}
  .amdhsa_next_free_sgpr {nsgpr}
  .amdhsa_accum_offset {acc}
  .amdhsa_group_segment_fixed_size 0
  .amdhsa_kernarg_size 112
  .amdhsa_user_sgpr_count 2
  .amdhsa_user_sgpr_kernarg_segment_ptr 1
  .amdhsa_system_sgpr_workgroup_id_x 1
  .amdhsa_float_denorm_mode_32 3
.end_amdhsa_kernel
"""
    return code, desc
```

```python
from asmlib import *
from layout2 import *
import math
NSIDE = 32; NMAIN = 224; GRID = 256
LDS_ALL = 163840
SPIN_MAX = 1 << 20
DELT = [16*a + 8*(n >> 2) + (n & 3) for a in range(2) for n in range(8)]
LOG2E = math.log2(math.e)
CFG = dict(p1_w3_ld=1, p1_w3_a=2, p1_w3_b=2, p1_w3_c=2, wd_chunk=4, r2_b=3, r2_pre=1, pollA_at=8, wd_flag=16,
           epi_span=24, epi_span3=16, sigB01=8, pollB01=20, p4_epi=56, p4_pre=8, p4_sig3=1, p4_c2=3, p4_poll3=7, p4_c3=10)

class Q:
    def __init__(self, k): self.k = k; self.q = []; self.debt = 0
    def add(self, *atoms): self.q.extend(atoms)
    def lines(self, txt): self.q.extend([l.strip() for l in txt.strip().split('\n') if l.strip()])
    def vm(self, pre, txt, tag=None):
        if pre: self.q.append(lambda: (self.k.e(pre), self.k.vm_op(txt, tag)))
        else: self.q.append(('vm', txt, tag))
    def emit(self, n=1):
        c = 0
        while self.q and c < n:
            x = self.q.pop(0)
            if isinstance(x, tuple):
                (self.k.vm_op if x[0] == 'vm' else self.k.ds_op)(x[1], x[2]); c += 1
            elif callable(x): x(); c += 1
            else: self.k.e(x); c += len(x.strip().split('\n'))
    def cyc(self, budget):
        self.debt += budget
        while self.q and self.debt > 0:
            n0 = len(self.k.L); self.emit(1)
            for l in self.k.L[n0:]:
                mn = l.split()[0]
                self.debt -= 8 if mn in TRANS else 12 if mn.startswith('buffer_') else 4
        if not self.q: self.debt = 0
    def cost(self):
        return sum((12 if isinstance(x, tuple) else 8 if x.split()[0] in TRANS else 4) for x in self.q)
    def flush(self): self.emit(1 << 30)
    def __len__(self): return len(self.q)

def t1_txt(dst, g, b, tmp):
    return f'''s_sub_u32 {tmp}, 64, {g}
    s_cmp_eq_u32 {g}, 0
    s_cselect_b32 {tmp}, 32, {tmp}
    s_cmp_eq_u32 {b}, 0
    s_cselect_b32 {dst}, {g}, {tmp}'''
def srd_txt(d, base, size): return f's_mov_b32 s{d}, s{base}\ns_and_b32 s{d+1}, s{base+1}, 0xffff\ns_mov_b32 s{d+2}, {size}\ns_mov_b32 s{d+3}, 0x20000'
P = lambda r: v(r, 2)

def signal(k, off, wave=0):
    l = k.label('SIG')
    k.e(f's_cmp_lg_u32 s3, {wave}\ns_cbranch_scc1 {l}\ns_mov_b32 s74, 1\ns_atomic_add s74, s[24:25], {off}\n{l}:')
def poll_issue(k, off, r='s0', wave=0):
    l = k.label('PI')
    k.e(f's_cmp_lg_u32 s3, {wave}\ns_cbranch_scc1 {l}\ns_mov_b32 {r}, 0\ns_atomic_add {r}, s[24:25], {off} glc\n{l}:')
def poll_check(k, off, target, r='s0', wave=0):
    l, d = k.label('PC'), k.label('PD')
    k.e(f'''s_cmp_lg_u32 s3, {wave}
    s_cbranch_scc1 {d}
    s_mov_b32 s1, 0
{l}:
    s_waitcnt lgkmcnt(0)
    s_cmp_eq_u32 {r}, {target}
    s_cbranch_scc1 {d}
    s_add_u32 s1, s1, 1
    s_cmp_gt_u32 s1, {SPIN_MAX}
    s_cbranch_scc1 {d}
    s_mov_b32 {r}, 0
    s_atomic_add {r}, s[24:25], {off} glc
    s_branch {l}
{d}:''')
def ready_issue(k, vz, vr, tag):
    k.e(f'v_mov_b32 v{vz}, 0'); k.vm_op(f'global_load_dword v{vr}, v{vz}, s[28:29] sc1', tag)
def bar_signal(k, soff, va, vb, vz=None, vr=None):
    l, d, g = k.label('BS'), k.label('BD'), k.label('BG')
    k.e(f's_cmp_lg_u32 s3, 0\ns_cbranch_scc1 {d}')
    if vz is not None:
        k.e(f'''s_mov_b32 s1, 0
{l}:
    v_readfirstlane_b32 s75, v{vr}
    s_cmp_eq_u32 s75, 1
    s_cbranch_scc1 {g}
    s_add_u32 s1, s1, 1
    s_cmp_gt_u32 s1, {SPIN_MAX}
    s_cbranch_scc1 {g}
    s_sleep 8
    global_load_dword v{vr}, v{vz}, s[28:29] sc1
    s_waitcnt vmcnt(0)
    s_branch {l}
{g}:''')
    k.vm_op(f'buffer_atomic_add v{vb}, v{va}, s[12:15], {soff} offen sc1', maybe=True)
    k.e(f'{d}:')
def bar_regs(va, vb):
    return f'''v_lshlrev_b32 v{va}, 10, v2
    v_cmp_gt_u32 vcc, {NREP}, v2
    v_mov_b32 v{vb}, 0x7fff0000
    v_cndmask_b32 v{va}, v{vb}, v{va}, vcc
    v_mov_b32 v{vb}, 1'''

P2_U, P2_CP, P2_X, P2_XI, P2_GC = 0, 57344, 114688, 126976, 139264
IMG = 29696; KSP = 4*IMG
ACC0 = 16; RING = 80; WX = 96; ET = 104
REGI = [0, 1, 4, 5, 8, 9, 12, 13, 2]; LDSI = [3, 6, 7, 10, 11]
WDL = [120832, 120832+16384, 0, 16384, 32768]
X1L = 59392; RED = 71680; XR = 128
R1N = 18; R1L = 10240; R2L = IMG
VD, VM, VS, TB = 208, 209, 210, 211
def wdreg(i, f):
    n = REGI.index(i)*4 + f
    return v(144+4*n, 4) if n < 28 else a(224+4*(n-28), 4)
def acc4(rl, t): return ACC0 + 32*rl + 16*t

def gen_kp(cfg=None):
    C = dict(CFG); C.update(cfg or {})
    k = K(); k.stamp(0)
    k.e(f'''
    s_load_dwordx2 s[4:5], s[0:1], 0
    s_load_dwordx16 s[16:31], s[0:1], 48
    v_lshrrev_b32 v1, 6, v0
    v_and_b32 v2, 63, v0
    v_readfirstlane_b32 s3, v1
    s_cmp_ge_u32 s2, {GRID}
    s_cbranch_scc1 KP_END
    v_lshlrev_b32 v3, 4, v2          ; lane*16
    v_and_b32 v4, 31, v2             ; lane&31
    v_lshrrev_b32 v5, 5, v2          ; h
    s_mov_b32 s14, {WS_END}
    s_mov_b32 s15, 0x20000
    s_cmp_lt_u32 s2, {NSIDE-1}
    s_cbranch_scc1 KP_SIDE
    s_cmp_gt_u32 s2, {NSIDE-1}
    s_cbranch_scc1 KP_MAIN
    s_cmp_lg_u32 s3, 0
    s_cbranch_scc1 KP_SIDE
    v_lshlrev_b32 v6, 9, v2
    v_mov_b32 v7, 0
    s_mov_b32 s6, {WS_FLAG}
    s_waitcnt lgkmcnt(0)
    s_mov_b32 s12, s30
    s_and_b32 s13, s31, 0xffff
    buffer_store_dword v7, v6, s[12:15], s6 offen sc1
    buffer_store_dword v7, v6, s[12:15], s6 offen offset:128 sc1
    buffer_store_dword v7, v6, s[12:15], s6 offen offset:256 sc1
    buffer_store_dword v7, v6, s[12:15], s6 offen offset:384 sc1
    s_mov_b32 s74, 1
    s_waitcnt vmcnt(0)
    s_atomic_add s74, s[28:29], 0x0
    s_branch KP_SIDE
KP_MAIN:
    s_and_b32 s34, s2, 1             ; hi
    s_lshr_b32 s35, s2, 3
    s_sub_u32 s35, s35, {NSIDE//8}
    s_mul_i32 s33, s35, 37
    s_lshr_b32 s33, s33, 8           ; gl = q/7
    s_and_b32 s6, s2, 7
    s_lshl_b32 s6, s6, 1
    s_lshr_b32 s7, s33, 1
    s_add_u32 s6, s6, s7             ; pair p
    s_sub_u32 s7, 32, s6
    s_cmp_eq_u32 s6, 0
    s_cselect_b32 s7, 16, s7
    s_bitcmp1_b32 s33, 0
    s_cselect_b32 s36, s7, s6        ; g
    s_and_b32 s32, s2, 6
    s_lshl_b32 s32, s32, 1
    s_add_u32 s32, s32, s33          ; G
    s_mul_i32 s33, s33, 7
    s_sub_u32 s35, s35, s33          ; lo
    s_mul_i32 s33, s34, 7
    s_add_u32 s33, s33, s35          ; mem
    ''')
    f = P1(k, C)
    P2(k, C, f)
    P3(k, C)
    P4(k, C)
    k.stamp_out(0, len(K.NAMES or [])+2)
    k.e('s_endpgm\nKP_SIDE:'); k.reset_counts(); side(k, C)
    k.e('KP_END:\ns_endpgm\nKP_LAST:')
    return k.L

def w3_dma(k, lo, hi, ldsbase):
    q = Q(k)
    for ks in range(lo, hi):
        j, mu, a_ = ks >> 2, (ks >> 1) & 1, ks & 1
        row = 32*j + 16*a_ if not mu else 433 - 32*j - 16*a_
        vo = VS if ks == 2 else VM if mu else VD
        so = '0' if ks in (0, 2) else 's61'
        pre = f's_add_u32 m0, s60, {ldsbase + (ks-lo)*8192}\n' + (f's_mov_b32 s61, {row*3584}' if so != '0' else 's_nop 0')
        q.vm(pre, f'buffer_load_dwordx4 v{vo}, s[16:19], {so} offen lds')
        q.vm(None, f'buffer_load_dwordx4 v{vo}, s[20:23], {so} offen offset:1024 lds', f'w3_{ks}')
    return q
def w3_tr(k, lo, hi):
    q = Q(k)
    for ks in range(lo, hi):
        n = ks - lo
        for mt in range(2):
            for hf in range(2):
                q.add(('ds', f'ds_read_b64_tr_b16 {a(8*ks+4*mt+2*hf,2)}, v{TB+(n>>3)} offset:{(n&7)*8192+mt*1024+hf*4096}', 'tr'))
    return q

def P1(k, C):
    X = 16; UP = 72; M = 88; T = 96; WL = 112; WO = 120; BF = 128; AC = 160
    k.e(f'''
    v_lshrrev_b32 v6, 3, v2
    s_lshl_b32 s6, s3, 4
    v_add_u32 v6, s6, v6
    v_and_b32 v7, 7, v2
    v_mul_u32_u24 v8, {32*896}, v6
    v_lshl_add_u32 v8, v7, 4, v8
    v_add_u32 v9, {8*32*896}, v8     ; set 1
    s_mul_i32 s39, s36, 896
    s_lshl_b32 s40, s35, 7
    s_mov_b32 s10, {2048*896}
    s_mov_b32 s11, 0x20000
    s_add_u32 s41, s39, s40
    s_add_u32 s42, s39, 896
    ''')
    f = Q(k)
    f.lines(f'''
    s_sub_u32 s6, s2, {NSIDE}
    s_lshl_b32 s6, s6, 2
    s_add_u32 s6, s6, s3             ; unit
    s_mul_i32 s7, s6, 9363
    s_lshr_b32 s7, s7, 16            ; rb = u/7
    s_mul_i32 s43, s7, 7
    s_sub_u32 s43, s6, s43           ; jt
    s_mul_i32 s44, s7, {16*896}
    s_lshl_b32 s45, s43, 7
    s_add_u32 s44, s44, s45
    s_add_u32 s45, s44, {8*896}
    v_mul_u32_u24 v10, {4*896}, v5
    v_lshl_add_u32 v10, v4, 2, v10
    s_lshl_b32 s43, s43, 2
    s_bfe_u32 s46, s7, 0x20001
    s_add_u32 s43, s43, s46
    s_mul_i32 s43, s43, 14
    s_lshr_b32 s46, s7, 3
    s_add_u32 s43, s43, s46
    s_lshl_b32 s43, s43, 1
    s_and_b32 s46, s7, 1
    s_add_u32 s43, s43, s46
    s_lshl_b32 s43, s43, 11
    s_add_u32 s43, s43, {WS_WDP}''')
    f.add('s_cmp_lt_u32 s6, 784\ns_cselect_b32 s43, s43, 0x7fff0000')
    f.lines(f'''
    v_lshrrev_b32 v{T}, 4, v2
    v_bfe_u32 v{T+1}, v2, 2, 2
    v_xor_b32 v{T+1}, v{T+1}, v{T}
    v_and_b32 v{T+2}, 3, v2
    v_lshlrev_b32 v{T+2}, 4, v{T+2}
    v_lshl_add_u32 v{T+1}, v{T+1}, 6, v{T+2}
    s_lshl_b32 s6, s33, 8
    v_add_u32 v{T+1}, s6, v{T+1}
    s_lshl_b32 s6, s3, 2
    v_add_u32 v{T}, s6, v{T}
    v_mul_u32_u24 v{VD}, 3584, v{T}
    v_sub_u32 v{VM}, {15*3584}, v{VD}
    v_add_u32 v{VD}, v{VD}, v{T+1}
    v_add_u32 v{VM}, v{VM}, v{T+1}
    v_cmp_eq_u32 vcc, 0, v{T}
    v_mov_b32 v{T+1}, {433*3584}
    v_mov_b32 v{T+2}, {(433-224)*3584}
    v_cndmask_b32 v{T+1}, v{T+1}, v{T+2}, vcc
    v_add_u32 v{VS}, v{VM}, v{T+1}
    s_lshl_b32 s60, s3, 11
    ''')
    nearly = len(f)
    f.lines(f'''
    s_and_b32 s46, s3, 1
    s_lshl_b32 s46, s46, 4
    s_lshr_b32 s47, s3, 1            ; isI
    v_and_b32 v11, 15, v2
    v_add_u32 v12, s46, v11          ; g row
    v_cvt_f32_u32 v13, v12''')
    f.add(f'''s_cmp_eq_u32 s47, 1
    s_cselect_b32 s6, {f2h(0.25)}, 0
    s_cselect_b32 s7, {f2h(32.0)}, 0''')
    f.lines(f'''
    v_cmp_eq_u32 vcc, 0, v12
    v_mov_b32 v{T}, s6
    v_mov_b32 v{T+1}, s7
    v_cndmask_b32 v13, v13, v{T+1}, vcc
    v_cndmask_b32 v{T}, v{T}, 0, vcc
    v_mul_f32 v13, {f2h(1/64)}, v13
    v_lshrrev_b32 v14, 4, v2
    v_lshlrev_b32 v14, 2, v14
    v_cvt_f32_u32 v{T+1}, v14
    v_fma_f32 v{T}, v13, v{T+1}, v{T}
    ''')
    for ks in range(2):
        for n in range(8): f.add(f'v_fmamk_f32 v{T+2+n}, v13, {f2h(32*ks + 16*(n >> 2) + (n & 3))}, v{T}')
        for n in range(8): f.add(f'v_cos_f32 v{T+2+n}, v{T+2+n}')
        for r in range(4): f.add(f'v_cvt_pk_bf16_f32 v{M+4*ks+r}, v{T+2+2*r}, v{T+3+2*r}')
    f.lines(f'''
    v_mul_u32_u24 v6, 160, v6
    v_lshl_add_u32 v6, v7, 4, v6
    v_lshrrev_b32 v7, 2, v2
    v_mul_u32_u24 v7, 160, v7
    v_and_b32 v12, 3, v2
    v_lshl_add_u32 v7, v12, 3, v7
    v_add_u32 v14, s46, v14
    v_mul_u32_u24 v14, {2*32*896}, v14
    v_lshl_add_u32 v14, v11, 3, v14  ; U voffset
    s_mul_i32 s47, s47, {32*896}
    s_add_u32 s47, s47, s39
    s_add_u32 s47, s47, s40          ; U soffset
    s_mov_b32 s46, 0x3f803f80
    s_mov_b32 s37, 0x05040100
    s_mov_b32 s38, 0x07060302
    ''')
    for i in range(0, 8, 2): f.add(f'v_mov_b64 {P(T+i)}, 0')
    f.emit(30)
    k.e('s_waitcnt lgkmcnt(0)\ns_mov_b32 s8, s4\ns_and_b32 s9, s5, 0xffff')
    for i in range(7):
        for st in range(2): k.vm_op(f'buffer_load_dwordx4 {v(X+28*st+4*i,4)}, v{8+st}, s[8:11], s41 offen', f'x{i}{st}')
        if i == 0: k.e(srd_txt(56, 20, 1792*896) + f'\ns_mov_b32 s12, s30\ns_and_b32 s13, s31, 0xffff')
        if i == 1: k.e(f's_sub_u32 s20, s18, 1024\ns_subb_u32 s21, s19, 0\ns_and_b32 s21, s21, 0xffff\ns_mov_b32 s22, {448*3584+1024}\ns_mov_b32 s23, 0x20000\ns_and_b32 s17, s17, 0xffff\ns_mov_b32 s18, {448*3584}\ns_mov_b32 s19, 0x20000')
        if i >= 2: f.cyc(72)
        if i < 6: k.e('s_add_u32 s41, s41, 128\ns_cmp_ge_u32 s41, s42\ns_cselect_b32 s41, s39, s41')
    for n in range(8):
        k.vm_op(f'buffer_load_dword v{WL+n}, v10, s[56:59], s{44+(n>>2)} offen offset:{896*(n&3)}', 'wl')
        f.cyc(40)
    f.flush()
    k.st('p1iss')
    w3 = w3_dma(k, 0, R1N, R1L)
    for i in range(7):
        for st in range(2):
            k.wait(vm=f'x{i}{st}')
            for d in range(4):
                r = X+28*st+4*i+d; t = T+4*st+(d & 1)
                k.e(f'v_dot2_f32_bf16 v{t}, v{r}, s46, v{t}\nv_dot2_f32_bf16 v{t+2}, v{r}, v{r}, v{t+2}')
            if i == 0:
                for d in range(4): k.e(f'v_lshlrev_b32 v{UP+8*st+2*d}, 16, v{X+28*st+d}\nv_and_b32 v{UP+8*st+2*d+1}, 0xffff0000, v{X+28*st+d}')
            if (i, st) != (6, 1): w3.emit(C['p1_w3_ld'])
    k.st('p1dat')
    for t in (T, T+2, T+4, T+6): k.e(f'v_add_f32 v{t}, v{t}, v{t+1}')
    for m in ('quad_perm:[1,0,3,2]', 'quad_perm:[2,3,0,1]', 'row_half_mirror'):
        for t in (T, T+2, T+4, T+6): k.e(f'v_add_f32_dpp v{t}, v{t}, v{t} {m} row_mask:0xf bank_mask:0xf')
    for txt in (f'v_mul_f32 v#0, {f2h(-1/448)}, v#0', f'v_mul_f32 v#2, {f2h(1/448)}, v#2', 'v_fma_f32 v#2, -v#0, v#0, v#2', 'v_max_f32 v#2, 0, v#2',
                f'v_add_f32 v#2, {f2h(1e-5)}, v#2', 'v_rsq_f32 v#2, v#2', 'v_mul_f32 v#0, v#0, v#2'):
        for st in range(2): k.e(txt.replace('#0', str(T+4*st)).replace('#2', str(T+4*st+2)))
    for st in range(2):
        t = T+4*st
        for d in range(4): k.e(f'v_pk_fma_f32 {P(UP+8*st+2*d)}, {P(UP+8*st+2*d)}, {P(t+2)}, {P(t)} op_sel_hi:[1,0,0]')
        for d in range(4): k.e(f'v_cvt_pk_bf16_f32 v{X+4*st+d}, v{UP+8*st+2*d}, v{UP+8*st+2*d+1}')
        k.ds_op(f'ds_write_b128 v6, {v(X+4*st,4)} offset:{8*160*st}')
    w3.emit(C['p1_w3_a'])
    k.wait(lg='all'); k.e('s_barrier'); k.st('p1bar')
    for ks in range(2):
        for t in range(4):
            for hf in range(2):
                k.ds_op(f'ds_read_b64_tr_b16 {v(BF+16*ks+4*t+2*hf,2)}, v7 offset:{ks*32*160+hf*16*160+t*32}', f'b{ks}{t}')
    k.wait(vm='wl')
    pq = Q(k)
    for t in range(2):
        for r in range(4): pq.add(f'v_perm_b32 v{WO+4*t+r}, v{WL+2*r+1}, v{WL+2*r}, s{37+t}')
        pq.vm(None, f'buffer_store_dwordx4 {v(WO+4*t,4)}, v3, s[12:15], s43 offen offset:{1024*t} sc1')
    for ks in range(2):
        for t in range(4):
            k.wait(lg=f'b{ks}{t}')
            c = '0' if ks == 0 else v(AC+4*t,4)
            k.e(f'v_mfma_f32_16x16x32_bf16 {v(AC+4*t,4)}, {v(M+4*ks,4)}, {v(BF+16*ks+4*t,4)}, {c}')
            pq.emit(1)
    pq.flush()
    for r in range(4):
        k.e(f'v_cvt_pk_bf16_f32 v{X+2*r}, v{AC+r}, v{AC+4+r}\nv_cvt_pk_bf16_f32 v{X+2*r+1}, v{AC+8+r}, v{AC+12+r}')
        k.vm_op(f'buffer_store_dwordx2 {v(X+2*r,2)}, v14, s[12:15], s47 offen sc1', 'ust')
        if r < 3: k.e(f's_add_u32 s47, s47, {2*32*896}')
    k.st('p1st')
    ready_issue(k, UP+2, UP+3, 'ust')
    k.e(bar_regs(UP, UP+1) + f'\ns_add_u32 s40, s40, {WS_FLAG+FL_BAR}')
    f2 = P2_pre(k)
    n = 0
    while len(w3) and n < C.get('p1_w3_drain', 16): w3.emit(1); f2.cyc(44); n += 1
    k.wait(vm='ust'); k.e('s_barrier'); k.st('sig1')
    bar_signal(k, 's40', UP, UP+1, UP+2, UP+3)
    while len(w3): w3.emit(1); f2.cyc(44)
    f2.flush()
    k.wait(vm=f'w3_{R1N-1}'); k.e('s_barrier'); k.st('r1land')
    w3_tr(k, 0, R1N).flush()
    k.wait(lg='all'); k.e('s_barrier'); k.st('r1tr')
    return None

ACC = 16; FB = 32; CC = 96; SG = 104; IC = 112; RS = 120; IS = 128; XV = 136; GA = 152; CB = 168; ZF = 184; ZB = 188; T2 = 192
def P2_pre(k):
    T = T2; f = Q(k)
    f.lines(f'''
    v_bfe_u32 v{TB}, v2, 2, 2
    v_xor_b32 v{T}, s3, v{TB}
    v_lshlrev_b32 v{TB}, 8, v{TB}
    v_lshl_add_u32 v{TB}, v{T}, 6, v{TB}
    v_bfe_u32 v{T}, v2, 4, 1
    v_lshl_add_u32 v{TB}, v{T}, 5, v{TB}
    v_and_b32 v{T}, 3, v2
    v_lshl_add_u32 v{TB}, v{T}, 3, v{TB}
    v_lshl_add_u32 v{TB}, v5, 11, v{TB}
    v_add_u32 v{TB}, {R1L}, v{TB}
    v_add_u32 v{TB+1}, 0x10000, v{TB}
    v_add_u32 v{TB+2}, 0x20000, v{TB}
    s_and_b32 s48, s3, 1
    s_lshr_b32 s49, s3, 1
    v_lshrrev_b32 v6, 3, v2
    s_lshl_b32 s6, s3, 4
    v_add_u32 v6, s6, v6
    v_mul_u32_u24 v6, 896, v6
    v_lshrrev_b32 v{T+8}, 4, v2
    v_xor_b32 v{T+8}, v{T+8}, v2
    v_and_b32 v{T+8}, 7, v{T+8}
    v_xor_b32 v{T+9}, 4, v{T+8}
    v_lshl_add_u32 v{T+9}, v{T+9}, 4, v6
    v_add_u32 v{T+9}, {8*896-1024}, v{T+9}
    v_lshl_add_u32 v{T+8}, v{T+8}, 4, v6
    s_mul_i32 s52, s36, 57344        ; U soffset
    s_mul_i32 s54, s49, 28
    s_lshl_b32 s55, s48, 1
    s_add_u32 s54, s54, s55
    s_lshl_b32 s54, s54, 10
    s_mul_i32 s55, s35, 57344
    s_add_u32 s55, s55, s54
    s_add_u32 s55, s55, {WS_CP}
    s_lshl_b32 s24, s32, 9
    s_add_u32 s24, s24, {WS_FLAG}
    ''')
    f.add('s_add_u32 s24, s24, s30\ns_addc_u32 s25, s31, 0')
    f.lines(f'''s_lshl_b32 s53, s32, 9
    s_lshl_b32 s6, s3, 8
    s_add_u32 s53, s53, s6
    s_add_u32 s53, s53, {FL_BAR}
    s_add_u32 s56, s53, 128''')
    f.add(t1_txt('s50', 's36', 's48', 's6'))
    f.lines(f'''s_lshl_b32 s51, s35, 1
    s_add_u32 s51, s51, s49          ; beta
    s_lshl_b32 s41, s51, 7
    s_add_u32 s41, s41, {WS_MOD+GA_P}
    v_lshlrev_b32 v{T+13}, 2, v4
    v_lshl_add_u32 v{T+13}, v5, 11, v{T+13}
    s_lshl_b32 s42, s3, 8
    s_add_u32 s42, s42, {P2_GC}
    v_lshl_add_u32 v{T+14}, v5, 4, s42''')
    f.add(f'''s_lshl_b32 s7, s35, 6
    s_sub_u32 s6, 832, s7
    s_cmp_eq_u32 s49, 0
    s_cselect_b32 s7, s7, s6
    s_add_u32 s6, s7, 64
    s_cmp_eq_u32 s6, 896
    s_cselect_b32 s6, 448, s6
    s_cmp_eq_u32 s49, 0
    s_cselect_b32 s6, 0x7fff0000, s6
    v_mov_b32 v{T+3}, s6''')
    f.lines(f's_mul_i32 s43, s50, 896\ns_mul_i32 s44, s3, 3072\ns_add_u32 s44, s44, {P2_XI}')
    for t in range(3):
        f.lines(f'''v_add_u32 v{T}, {64*t}, v2
        v_mul_u32_u24 v{T+1}, 205, v{T}
        v_lshrrev_b32 v{T+1}, 10, v{T+1}
        v_mul_u32_u24 v{T+2}, 5, v{T+1}
        v_sub_u32 v{T}, v{T}, v{T+2}
        v_cmp_eq_u32 vcc, 4, v{T}
        v_lshl_add_u32 v{T}, v{T}, 4, s7
        v_mul_u32_u24 v{T+1}, {64*896}, v{T+1}
        v_cndmask_b32 v{T}, v{T}, v{T+3}, vcc
        v_add_u32 v{T+10+t}, v{T}, v{T+1}''')
    f.lines(f'''
    v_lshlrev_b32 v{T}, 6, v4
    v_add_u32 v{T}, s50, v{T}
    v_cmp_eq_u32 vcc, 0, v{T}
    v_mov_b32 v{ZB}, 0x45004500
    v_cvt_f32_u32 v{T}, v{T}
    v_cndmask_b32 v{ZB}, 0, v{ZB}, vcc
    v_mov_b32 v{ZB+1}, v{ZB}
    v_mov_b32 v{ZB+2}, v{ZB}
    v_mov_b32 v{ZB+3}, v{ZB}
    v_mul_f32 v{T}, {f2h(1/2048)}, v{T}
    v_lshlrev_b32 v{T+1}, 2, v5
    v_cvt_f32_u32 v{T+1}, v{T+1}
    v_mul_f32 v{T+1}, v{T}, v{T+1}
    s_lshl_b32 s6, s48, 12
    v_lshlrev_b32 v9, 7, v4
    v_add_u32 v9, s6, v9
    v_bfe_u32 v{T+2}, v2, 1, 3
    v_xor_b32 v{T+2}, v{T+2}, v5
    v_lshl_add_u32 v9, v{T+2}, 4, v9
    v_xor_b32 v10, 32, v9
    v_xor_b32 v11, 64, v9
    v_xor_b32 v12, 96, v9
    s_mul_i32 s6, s49, {28*1024}
    s_add_u32 s6, s6, {P2_CP}
    v_add_u32 v13, s6, v3
    ''')
    for r in range(8):
        f.lines(f'''v_fmamk_f32 v{T+2}, v{T}, {f2h(DELT[2*r])}, v{T+1}
        v_fmamk_f32 v{T+3}, v{T}, {f2h(DELT[2*r+1])}, v{T+1}
        v_cos_f32 v{T+4}, v{T+2}
        v_cos_f32 v{T+5}, v{T+3}
        v_sin_f32 v{T+2}, v{T+2}
        v_sin_f32 v{T+3}, v{T+3}
        v_cvt_pk_bf16_f32 v{CC+r}, v{T+4}, v{T+5}
        v_cvt_pk_bf16_f32 v{SG+r}, v{T+2}, v{T+3}''')
    f.add(f'''s_cmp_eq_u32 s36, 0
    s_cselect_b32 s6, 0, -1
    s_cselect_b32 s46, s48, 0
    v_mov_b32 v{T}, s6
    s_cmp_eq_u32 s48, 1
    s_cselect_b32 s6, 0x80008000, 0
    s_cmp_eq_u32 s49, 1
    s_cselect_b32 s7, 0, 0x80008000
    s_xor_b32 s45, s6, s7
    s_xor_b32 s45, s45, 0x80008000''')
    for r in range(8):
        f.lines(f'''v_bitop3_b32 v{IC+r}, v{SG+r}, s6, v{T} bitop3:0x28
        v_xor_b32 v{RS+r}, s7, v{SG+r}
        v_bitop3_b32 v{IS+r}, v{CC+r}, s45, v{T} bitop3:0x28''')
    f.lines(f's_add_u32 s6, s60, {P2_X}\nv_add_u32 v0, s6, v3')
    for r in range(0, 16, 2): f.add(f'v_mov_b64 {P(XV+r)}, 0')
    f.add(f'''s_cmp_eq_u32 s51, 1
    s_cselect_b32 s6, 4096, 0
    s_cselect_b32 s45, 7, s35
    v_mov_b32 v{T}, s6''')
    f.lines(f'''v_cmp_eq_u32 vcc, 0, v4
    v_add_u32 v15, {P2_X+4096}, v3
    v_mul_u32_u24 v1, 80, v4
    v_cndmask_b32 v{T}, 0, v{T}, vcc
    v_add_u32 v14, v0, v{T}
    v_lshl_add_u32 v7, v{T}, 1, v3
    v_add_u32 v7, {P2_X}, v7
    s_lshl_b32 s6, s46, 11
    v_add_u32 v6, s6, v7
    v_add_u32 v8, s6, v15
    v_add_u32 v1, s44, v1
    v_lshlrev_b32 v{T}, 3, v5
    v_sub_u32 v{T+1}, 10, v{T}
    s_lshl_b32 s45, s45, 10
    s_add_u32 s45, s45, {WS_ZF}''')
    f.add(f'''s_cmp_eq_u32 s49, 0
    s_cselect_b64 vcc, -1, 0
    v_cndmask_b32 v{T}, v{T+1}, v{T}, vcc
    v_add_u32 v1, v1, v{T}''')
    f.lines(f'''
    s_lshl_b32 s6, s32, 1
    s_add_u32 s6, s6, s34
    s_lshl_b32 s6, s6, 1
    s_add_u32 s6, s6, s48            ; rho
    s_mul_i32 s57, s6, 14
    s_add_u32 s57, s57, s51
    s_lshl_b32 s58, s57, 8
    s_add_u32 s58, s58, {WS_ST}
    s_lshl_b32 s57, s57, 11
    s_add_u32 s59, s57, {WS_X1}
    s_add_u32 s57, s57, {WS_X1C}
    v_lshlrev_b32 v{T+15}, 3, v4
    v_lshl_add_u32 v{T+15}, v5, 2, v{T+15}
    s_lshl_b32 s62, s34, 1
    s_xor_b32 s62, s62, s49
    s_lshl_b32 s6, s35, 2
    s_add_u32 s6, s6, s3
    s_mul_i32 s6, s6, {56*1024}
    s_add_u32 s6, s6, {WS_WDP}
    v_add_u32 v{VS}, s6, v3
    ''')
    for n, i in enumerate((9, 12, 13, 2)): f.lines(f's_xor_b32 s6, s{62 if i < 12 else 49}, {i}\ns_lshl_b32 s{63+n}, s6, 12')
    return f

def P2(k, C, _):
    T = T2
    k.ds_op(f'ds_write_b128 v0, {v(XV,4)}'); k.ds_op(f'ds_write_b128 v0, {v(XV,4)} offset:1024')
    for t in range(3):
        k.e(f's_add_u32 m0, s44, {1024*t}')
        k.vm_op(f'buffer_load_dwordx4 v{T+10+t}, s[8:11], s43 offen lds', 'xi')
    k.e(f'v_add_u32 v{TB}, {R2L-R1L}, v{TB}\nv_add_u32 v{TB+1}, {R2L-R1L}, v{TB+1}')
    l, d = k.label('B1'), k.label('B1D')
    k.e(f'''s_cmp_eq_u32 s3, 3
    s_cselect_b32 s7, s53, s56
    s_mov_b32 s1, 0
{l}:
    s_mov_b32 s0, 0
    s_mov_b32 s6, 0
    s_atomic_add s0, s[24:25], s53 glc
    s_atomic_add s6, s[24:25], s7 glc
    s_add_u32 s1, s1, 1
    s_cmp_gt_u32 s1, {SPIN_MAX}
    s_cbranch_scc1 {d}
    s_waitcnt lgkmcnt(0)
    s_add_u32 s0, s0, s6
    s_cmp_eq_u32 s0, 72
    s_cbranch_scc0 {l}
{d}:
    s_mov_b32 m0, s60
    s_barrier''')
    k.lg = []; k.st('bar1')
    dq = Q(k)
    for c in range(7):
        dq.vm(f's_add_u32 m0, s60, {8192*c}\ns_add_u32 s52, s52, 128' if c else None, f'buffer_load_dwordx4 v{T+8}, s[12:15], s52 offen sc1 lds')
        dq.vm(None, f'buffer_load_dwordx4 v{T+9}, s[12:15], s52 offen offset:1024 sc1 lds')
        dq.vm(f's_add_u32 m0, s54, {P2_CP+4096*c}' + ('\ns_add_u32 s55, s55, 4096' if c else ''), 'buffer_load_dwordx4 v3, s[12:15], s55 offen sc1 lds')
        dq.vm(None, 'buffer_load_dwordx4 v3, s[12:15], s55 offen offset:1024 sc1 lds', f'ch{c}')
    dq.vm('s_mov_b32 m0, s42', f'buffer_load_dword v{T+13}, s[12:15], s41 offen sc1 lds', 'gc')
    dq.vm(None, f'buffer_load_dwordx4 {v(ZF,4)}, v3, s[12:15], s45 offen sc1', 'zf')
    wd = Q(k)
    for n, i in enumerate((9, 12, 13, 2)):
        for f in range(4): wd.vm(None, f'buffer_load_dwordx4 {wdreg(i,f)}, v{VS}, s[12:15], s{63+n} offen offset:{1024*f} sc1', f'wd{i}')
    dq.emit(6)
    poll_issue(k, 's56', 's47', 3)
    k.wait(vm='xi')
    la, lb = k.label('P2xa'), k.label('P2xb')
    k.e(f's_cmp_eq_u32 s49, 0\ns_cbranch_scc0 {la}')
    for r in range(16): k.e(f'ds_read_u16_d16_hi v{XV+r}, v1 offset:{2*DELT[r]}')
    k.e(f's_branch {lb}\n{la}:')
    for r in range(16): k.ds_op(f'ds_read_u16_d16_hi v{XV+r}, v1 offset:{2*DELT[15-r]}', 'xv')
    k.e(f'{lb}:')
    dq.emit(12)
    def rdk(c, kk):
        b = FB + 32*(c & 1)
        k.ds_op(f'ds_read_b128 {v(b+8*kk,4)}, v{9+kk} offset:{P2_U+8192*c}')
        k.ds_op(f'ds_read_b128 {v(b+8*kk+4,4)}, v13 offset:{(4*c+kk)*1024}', f'r{c}{kk}')
    def mfk(c, kk):
        b = FB + 32*(c & 1)
        k.wait(lg=f'r{c}{kk}')
        cc = '0' if c == 0 and kk == 0 else v(ACC,16)
        k.e(f'v_mfma_f32_32x32x16_bf16 {v(ACC,16)}, {v(b+8*kk,4)}, {v(b+8*kk+4,4)}, {cc}')
    k.st('issued')
    for c in range(7):
        if c == 2: assert len(dq) >= 2; poll_check(k, 's56', 32, 's47', 3)
        k.wait(vm=f'ch{c}'); k.e('s_barrier'); k.st(f'c{c}')
        for kk in range(4):
            if c: mfk(c-1, kk)
            rdk(c, kk)
            if len(dq): dq.emit(1)
            elif kk < C['wd_chunk']: wd.emit(1)
    assert not len(dq)
    k.st('A6')
    k.wait(vm='zf')
    for kk in range(4):
        mfk(6, kk)
        k.ds_op(f'ds_read_b128 {v(GA+4*kk,4)}, v{T+14} offset:{32*kk}'); k.ds_op(f'ds_read_b128 {v(CB+4*kk,4)}, v{T+14} offset:{128+32*kk}', 'gcr')
    wd.flush()
    for hf in range(2):
        for r in range(4*hf, 4*hf+4): k.e(f'v_cvt_pk_bf16_f32 v{T+r}, v{ACC+2*r}, v{ACC+2*r+1}')
        k.ds_op(f'ds_write_b128 v14, {v(T+4*hf,4)} offset:{1024*hf}')
    k.e(f'v_mfma_f32_32x32x16_bf16 {v(ACC,16)}, {v(ZF,4)}, {v(ZB,4)}, 0')
    k.wait(lg='all'); k.e('s_barrier'); k.st('Xbar')
    k.r2 = r2 = w3_dma(k, R1N, 28, R2L)
    kinds = [('v6', 0, CC), ('v7', 2048, IC), ('v8', 0, RS), ('v15', 2048, IS)]
    rb = [(f'ds_read_b128 {v(FB+8*i+4*a_,4)}, {ad} offset:{off+1024*a_}', f'x{i}{a_}') for i, (ad, off, _) in enumerate(kinds) for a_ in range(2)]
    for x in rb[:4]: k.ds_op(*x)
    r2.emit(C['r2_pre'])
    for n in range(8):
        i, a_ = n >> 1, n & 1
        k.wait(lg=f'x{i}{a_}')
        k.e(f'v_mfma_f32_32x32x16_bf16 {v(ACC,16)}, {v(FB+8*i+4*a_,4)}, {v(kinds[i][2]+4*a_,4)}, {v(ACC,16)}')
        if n < 2: k.ds_op(*rb[4+2*n]); k.ds_op(*rb[5+2*n])
        elif (n & 1) and (n >> 1) <= C['r2_b']: r2.emit(1)
    for hf in range(2):
        R = range(8*hf, 8*hf+8, 2)
        for r in R: k.e(f'v_pk_fma_f32 {P(XV+r)}, {P(ACC+r)}, {P(GA+r)}, {P(XV+r)}')
        for r in R: k.e(f'v_pk_mul_f32 {P(CB+r)}, {P(CB+r)}, {P(XV+r)}')
        for r in range(4*hf, 4*hf+4): k.e(f'v_cvt_pk_bf16_f32 v{FB+r}, v{CB+2*r}, v{CB+2*r+1}')
        k.vm_op(f'buffer_store_dwordx4 {v(FB+4*hf,4)}, v3, s[12:15], s57 offen offset:{1024*hf} sc1')
    k.e(f'v_pk_add_f32 {P(T)}, {P(XV)}, {P(XV+2)}\nv_pk_mul_f32 {P(T+2)}, {P(XV)}, {P(XV)}')
    for r in range(2, 16, 2):
        if r >= 4: k.e(f'v_pk_add_f32 {P(T)}, {P(T)}, {P(XV+r)}')
        k.e(f'v_pk_fma_f32 {P(T+2)}, {P(XV+r)}, {P(XV+r)}, {P(T+2)}')
    k.e(f'''v_add_f32 v{T}, v{T}, v{T+1}
    v_add_f32 v{T+1}, v{T+2}, v{T+3}
    v_cvt_pk_bf16_f32 v{FB+8}, v{XV}, v{XV+1}
    v_cvt_pk_bf16_f32 v{FB+9}, v{XV+2}, v{XV+3}
    v_permlane32_swap_b32 v{T}, v{T+1}
    v_add_f32 v{T}, v{T}, v{T+1}''')
    k.vm_op(f'buffer_store_dword v{T}, v{T+15}, s[12:15], s58 offen sc1', 'p2st')
    k.st('p2st')
    for hf in range(2):
        for r in range(max(2, 4*hf), 4*hf+4): k.e(f'v_cvt_pk_bf16_f32 v{FB+8+r}, v{XV+2*r}, v{XV+2*r+1}')
        k.vm_op(f'buffer_store_dwordx4 {v(FB+8+4*hf,4)}, v3, s[12:15], s59 offen offset:{1024*hf} sc1')

SM = 48
def sm(i): return f's{SM+i}' if i < 12 else f's{64+i-12}'
VH0, VH1, VWD, VA0, VA1 = 9, 142, 143, 14, 15
def setup34(k):
    q = Q(k); T = ET
    q.lines(f'''s_lshr_b32 s63, s3, 1            ; sw
    v_mov_b32 v{VWD}, v{VS}''')
    for i in range(12): q.lines(f's_xor_b32 s6, s62, {i}\ns_lshl_b32 s{SM+i}, s6, 12')
    q.lines(f'''
    s_lshl_b32 s39, s33, 7
    s_lshl_b32 s6, s32, 9
    s_sub_u32 s39, s39, s6
    s_add_u32 s39, s39, {FL_SIDE}
    s_lshl_b32 s7, s32, 2''')
    for st in range(4):
        q.lines(f'''s_xor_b32 s6, s33, {3^st}
        s_and_b32 s6, s6, 3
        s_add_u32 s6, s6, s7             ; rho
        s_mul_i32 s{44+st}, s6, {28*1024}
        s_add_u32 s{44+st}, s{44+st}, {WS_X1C}
        s_and_b32 s{40+st}, s6, 1
        s_lshr_b32 s6, s6, 1
        s_lshl_b32 s6, s6, 2
        s_add_u32 s6, s6, s3
        s_mul_i32 s6, s6, 14
        s_add_u32 s6, s6, s33
        s_lshl_b32 s6, s6, 1
        s_add_u32 s6, s6, s{40+st}
        s_lshl_b32 s6, s6, 11
        s_add_u32 s{40+st}, s6, {WS_HH}''')
    q.lines(f'''
    s_xor_b32 s6, s33, s3
    s_xor_b32 s6, s6, 3
    s_and_b32 s6, s6, 3
    s_add_u32 s6, s6, s7
    s_mul_i32 s37, s6, 3584
    s_add_u32 s37, s37, {WS_ST}
    s_lshl_b32 s6, s33, 2
    s_add_u32 s6, s6, s3
    s_lshl_b32 s38, s6, 11
    s_add_u32 s38, s38, {WS_WEXT}
    v_lshlrev_b32 v6, 3, v2
    v_add_u32 v7, {2*IMG}, v3
    v_add_u32 v8, {KSP}, v6
    s_mul_i32 s66, s3, 7168
    v_add_u32 v{VA0}, s66, v3
    v_add_u32 v{VA1}, 4096, v{VA0}
    s_add_u32 s70, s7, s62
    s_lshl_b32 s6, s32, 1
    s_add_u32 s6, s6, s34
    s_lshl_b32 s6, s6, 2
    s_add_u32 s6, s6, s3
    s_mul_i32 s6, s6, {56*1024}
    s_add_u32 s6, s6, {WS_HH}
    s_lshl_b32 s67, s63, 11
    s_add_u32 s6, s6, s67
    s_and_b32 s72, s3, 1
    s_lshl_b32 s67, s72, 8
    v_xor_b32 v{VH0}, s67, v3
    v_add_u32 v{VH0}, s6, v{VH0}
    v_xor_b32 v{VH1}, 2048, v{VH0}
    s_lshl_b32 s73, s3, 12
    v_add_u32 v10, s73, v3
    v_add_u32 v11, {WDL[0]}, v10
    s_mul_i32 s70, s70, {28*1024}
    s_add_u32 s70, s70, s67
    s_add_u32 s70, s70, {WS_X1}''')
    q.add(f'''s_lshl_b32 s6, s35, 2
    s_sub_u32 s7, 29, s6
    s_cmp_le_u32 s35, 3
    s_cselect_b32 s67, s6, s7
    s_add_u32 s68, s6, 2
    s_sub_u32 s69, s7, 2
    s_cmp_le_u32 s35, 2
    s_cselect_b32 s68, s68, s69
    s_sub_u32 s69, s7, 4
    s_cmp_le_u32 s35, 3
    s_cselect_b32 s69, 1, s69
    s_cmp_eq_u32 s35, 3
    s_cselect_b32 s68, 13, s68''')
    q.lines(f'''v_and_b32 v127, 15, v2
    v_lshlrev_b32 v127, 4, v127
    v_lshrrev_b32 v{T}, 4, v2
    v_lshl_add_u32 v127, v{T}, 9, v127
    v_add_u32 v127, s70, v127
    s_mul_i32 s71, s3, 3072
    s_add_u32 s71, s71, {X1L}''')
    for t in range(2):
        q.lines(f'''s_lshl_b32 s6, s35, 6
        s_add_u32 s6, s6, {t}
        v_lshl_add_u32 v{T}, v4, 1, s6
        v_cmp_le_u32 vcc, 224, v{T}
        v_sub_u32 v{T+1}, 448, v{T}
        v_cndmask_b32 v{T+1}, v{T}, v{T+1}, vcc
        v_cndmask_b32 v{T+2}, 0, 1, vcc
        v_cmp_eq_u32 vcc, 224, v{T+1}
        v_cndmask_b32 v{T+1}, v{T+1}, 0, vcc
        v_lshrrev_b32 v{T+3}, 5, v{T+1}
        v_lshl_add_u32 v{T+3}, v{T+3}, 1, v{T+2}
        v_cmp_eq_u32 vcc, s68, v{T+3}
        v_mov_b32 v{T+2}, 2
        v_cndmask_b32 v{T+2}, v{T+2}, 1, vcc
        v_cmp_eq_u32 vcc, s67, v{T+3}
        v_bfe_u32 v{T+3}, v{T+1}, 4, 1
        v_cndmask_b32 v{T+2}, v{T+2}, 0, vcc
        v_lshlrev_b32 v{T+2}, 10, v{T+2}
        v_lshl_add_u32 v{T+2}, v{T+3}, 9, v{T+2}
        v_bfe_u32 v{T+3}, v{T+1}, 2, 1
        v_lshl_add_u32 v{T+2}, v{T+3}, 8, v{T+2}
        v_bfe_u32 v{T+3}, v{T+1}, 3, 1
        v_lshl_add_u32 v{T+2}, v{T+3}, 3, v{T+2}
        v_and_b32 v{T+3}, 3, v{T+1}
        v_lshl_add_u32 v{T+2}, v{T+3}, 1, v{T+2}
        v_lshl_add_u32 v{T+2}, v5, 6, v{T+2}
        v_add_u32 v{12+t}, s71, v{T+2}''')
    for b in range(3): q.add(f's_lshl_b32 s{67+b}, s{67+b}, 11')
    for sl in range(3):
        q.lines(f's_xor_b32 s6, s3, {sl+1}\ns_mul_i32 s6, s6, 12288\ns_add_u32 s6, s6, {RED+4096*sl}\nv_add_u32 v{124+sl}, s6, v3')
    q.lines(f'''s_mul_i32 s6, s3, 12288
    s_add_u32 s6, s6, {RED}
    v_add_u32 v1, s6, v3''')
    q.add(t1_txt('s7', 's36', 's63', 's6'))
    q.lines(f'''s_lshl_b32 s72, s72, 10
    s_add_u32 s72, s72, s7
    s_mul_i32 s72, s72, 896
    s_lshl_b32 s6, s35, 7
    s_add_u32 s72, s72, s6
    v_mul_u32_u24 v0, {4*64*896}, v5
    v_lshl_add_u32 v0, v4, 2, v0
    s_mov_b32 s8, s26
    s_and_b32 s9, s27, 0xffff''')
    return q

def epi3(k, acc, st):
    q = Q(k)
    K1 = ET + 2*(st & 1); SS = K1 + 1; T = ET + 4; PK = ET + 12
    for qq in range(4):
        rr = range(4*qq, 4*qq+4); t = T + 4*(qq & 1)
        for r in rr: q.add(f'v_mul_f32 v{t+(r&3)}, v{acc+r}, v{K1}')
        for r in rr: q.add(f'v_exp_f32 v{t+(r&3)}, v{t+(r&3)}')
        for r in rr: q.add(f'v_fma_f32 v{t+(r&3)}, v{t+(r&3)}, v{SS}, v{SS}')
        for r in rr: q.add(f'v_rcp_f32 v{t+(r&3)}, v{t+(r&3)}')
        for r in rr: q.add(f'v_mul_f32 v{t+(r&3)}, v{t+(r&3)}, v{acc+16+r}')
        q.add(f'v_cvt_pk_bf16_f32 v{PK+2*qq}, v{t}, v{t+1}', f'v_cvt_pk_bf16_f32 v{PK+2*qq+1}, v{t+2}, v{t+3}')
        if qq & 1: q.add(('vm', f'buffer_store_dwordx4 {v(PK+4*(qq>>1),4)}, v3, s[12:15], s{40+st} offen offset:{1024*(qq>>1)} sc1', f'hh{st}'))
    return q

def P3(k, C):
    su = setup34(k); r2 = k.r2
    def wd_reg(q, i):
        for f in range(4): q.vm(None, f'buffer_load_dwordx4 {wdreg(i,f)}, v{VWD}, s[12:15], {sm(i)} offen offset:{1024*f} sc1', f'wd{i}')
    def wd_lds(q, i):
        for f in range(4): q.vm(f's_add_u32 m0, s73, {WDL[LDSI.index(i)]}' if f == 0 else None, f'buffer_load_dwordx4 v{VWD}, s[12:15], {sm(i)} offen offset:{1024*f} sc1 lds', f'wd{i}')
    def a_dma(q, st):
        for i in range(7):
            pre = f's_add_u32 m0, s66, {st*IMG+1024*i}' if i in (0, 4) else None
            q.vm(pre, f'buffer_load_dwordx4 v{VA0 if i < 4 else VA1}, s[12:15], s{44+st} offen offset:{1024*(i&3)} sc1 lds', f'a{st}')
    while len(r2): r2.emit(1); su.cyc(44)
    k.wait(vm='p2st'); k.e('s_barrier'); k.st('sigA')
    signal(k, 0)
    poll_issue(k, 's39', 's75')
    wq = Q(k)
    for i in REGI[0:4]: wd_reg(wq, i)
    for n in range(C['wd_flag']):
        wq.emit(1); su.cyc(48)
        if n+1 == C['pollA_at']: poll_issue(k, 0)
    su.flush()
    if C['wd_flag'] < C['pollA_at']: poll_issue(k, 0)
    k.st('w3done')
    k.e(f's_add_u32 s6, s44, s60\ns_mul_i32 s7, s3, 5120\ns_add_u32 s7, s7, 8192\ns_mov_b32 m0, s60\ns_add_u32 s61, s7, s44')
    poll_check(k, 0, 14)
    k.wait(vm='w3_27'); k.e('s_barrier'); k.st('flagA')
    for i in range(2): k.vm_op(f'buffer_load_dwordx4 v3, s[12:15], s6 offen offset:{1024*i} sc1 lds', 'a0a')
    tr = w3_tr(k, R1N, 28)
    k.e('s_mov_b32 m0, s7')
    for i in range(5):
        if i == 4: k.e('s_add_u32 m0, s7, 4096\ns_add_u32 s61, s61, 4096')
        k.vm_op(f'buffer_load_dwordx4 v3, s[12:15], s61 offen offset:{1024*(i&3)} sc1 lds', 'a0b')
        tr.emit(4)
    for i in range(7):
        k.vm_op(f'buffer_load_dwordx2 {v(128+2*i,2)}, v6, s[12:15], s37 offen offset:{512*i} sc1', 'st'); tr.emit(3)
    tr.flush()
    vq = [Q(k) for _ in range(4)]
    a_dma(vq[0], 1)
    for mt in range(2): vq[0].vm(None, f'buffer_load_dwordx4 {v(WX+4*mt,4)}, v3, s[12:15], s38 offen offset:{1024*mt} sc1', 'wx')
    vq[0].q += wq.q
    wd_lds(vq[0], LDSI[0])
    a_dma(vq[1], 2); wd_lds(vq[1], LDSI[1]); wd_lds(vq[1], LDSI[2])
    a_dma(vq[2], 3); wd_lds(vq[2], LDSI[3]); wd_lds(vq[2], LDSI[4])
    wd_reg(vq[3], REGI[4])
    vq[3].vm(f's_lshl_b32 s6, s35, 8\ns_add_u32 s6, s6, {WS_MOD+GB_N}\nv_lshlrev_b32 v14, 3, v4', 'buffer_load_dwordx2 v[14:15], v14, s[12:15], s6 offen sc1', 'gb')
    sq = Q(k)
    for i in range(1, 7): sq.lines(f'v_add_f32 v128, v128, v{128+2*i}\nv_add_f32 v129, v129, v{129+2*i}')
    sq.lines(f'''v_mov_b32 v130, v128
    v_mov_b32 v131, v129
    s_mul_i32 s6, s3, {IMG}
    v_add_u32 v138, s6, v3
    v_permlane32_swap_b32 v128, v130
    v_permlane32_swap_b32 v129, v131
    v_add_f32 v128, v128, v130
    v_add_f32 v129, v129, v131
    v_mul_f32 v128, {f2h(-1/448)}, v128
    v_mul_f32 v129, {f2h(1/448)}, v129
    v_fma_f32 v129, -v128, v128, v129
    v_max_f32 v129, 0, v129
    v_add_f32 v129, {f2h(1e-5)}, v129
    v_rsq_f32 v130, v129
    v_sqrt_f32 v131, v129
    v_cvt_pk_bf16_f32 v132, v128, v128
    v_mul_f32 v130, {f2h(-LOG2E)}, v130
    v_cvt_pk_bf16_f32 v136, v131, v131
    v_and_b32 v137, 0xffff0000, v132
    v_and_b32 v136, 0xffff0000, v136
    v_sub_f32 v137, v128, v137
    v_sub_f32 v136, v131, v136
    v_cmp_eq_u32 vcc, 0, v5
    v_cvt_pk_bf16_f32 v133, v137, v131
    v_cvt_pk_bf16_f32 v134, v131, v136
    v_mov_b32 v135, 0
    v_cndmask_b32 v132, 0, v132, vcc
    v_cndmask_b32 v133, 0, v133, vcc
    v_cndmask_b32 v134, 0, v134, vcc
    s_lshl_b32 s6, s3, 9
    v_add_u32 v137, s6, v8''')
    sq.add(('ds', 'ds_write_b128 v138, v[132:135] offset:28672', 'stw'), ('ds', 'ds_write_b64 v137, v[130:131]', 'stw'))
    seq = [(st, ks) for st in range(4) for ks in range(29)]
    def rd(n):
        st, ks = seq[n]
        base, off = ('v3', st*IMG) if st < 2 else ('v7', (st-2)*IMG)
        k.ds_op(f'ds_read_b128 {v(RING+4*(n&3),4)}, {base} offset:{off+1024*ks}', f'b{n}')
    PD = 3
    k.wait(vm='a0a', lg='all'); k.e('s_barrier'); k.st('P3go')
    for n in range(PD): rd(n)
    fill = Q(k); rate = 0
    for n, (st, ks) in enumerate(seq):
        acc = ACC0 + 32*(st & 1)
        nn = n + PD
        if nn < len(seq):
            s2, k2 = seq[nn]
            if (s2, k2) == (0, 8): poll_check(k, 's39', 2, 's75'); k.wait(vm='a0b'); k.e('s_barrier')
            elif (s2, k2) == (0, 28):
                assert not len(sq); k.wait(vm='a1', lg='stw'); k.e('s_barrier')
                k.ds_op(f'ds_read_b64 {v(ET,2)}, v8', 'ks0')
            elif k2 == 0 and s2 >= 2: k.wait(vm=f'a{s2}'); k.e('s_barrier')
            rd(nn)
        if ks == 27 and st: k.ds_op(f'ds_read_b64 {v(ET+2*(st&1),2)}, v8 offset:{512*st}', f'ks{st}')
        if ks == 2 and st > 0:
            fill = epi3(k, ACC0 + 32*((st-1) & 1), st-1)
            rate = fill.cost() / (2*(C['epi_span'] if st < 3 else C['epi_span3']))
        if (st, ks) == (0, 8): k.wait(vm='st'); fill = sq; rate = 8
        if (st, ks) == (3, C['sigB01']): k.wait(vm='hh1'); k.e('s_barrier'); signal(k, 128)
        if (st, ks) == (3, C['pollB01']): poll_issue(k, 128)
        for mt in range(2):
            if ks < 28: A = a(8*ks+4*mt, 4); k.wait(lg=f'b{n}')
            else: A = v(WX+4*mt, 4); k.wait(vm='wx', lg=f'b{n}')
            c = '0' if ks == 0 else v(acc+16*mt, 16)
            k.e(f'v_mfma_f32_32x32x16_bf16 {v(acc+16*mt,16)}, {A}, {v(RING+4*(n&3),4)}, {c}')
            if mt == 0 and (st == 0 or (ks & 1) == 0): vq[st].emit(1)
            fill.cyc(rate)
        if ks == 28:
            assert not len(fill) and not len(vq[st]), (st, len(fill), len(vq[st]))
            k.st(f'S{st}')

C01 = [(2,0),(2,1),(3,0),(3,1),(6,0),(6,1),(7,0),(7,1),(10,0),(10,1),(11,0),(11,1)]
C2 = [(1,0),(0,1),(5,0),(4,1),(9,0),(8,1),(13,0),(12,1)]
C3 = [(1,1),(5,1),(9,1),(13,1),(0,0),(4,0),(8,0),(12,0)]
def P4(k, C):
    XQ = 112
    XRG = list(range(128, 142)) + [122, 123]
    def hh(q, L):
        for i, rl in L:
            for a_ in range(2): q.vm(None, f'buffer_load_dwordx4 {a(16*i+8*rl+4*a_,4)}, v{VH1 if rl else VH0}, s[12:15], {sm(i)} offen offset:{1024*a_} sc1', f'h{i}_{rl}')
    lq = Q(k); hh(lq, C01)
    for b in range(3): lq.vm(f's_add_u32 m0, s71, {1024*b}', f'buffer_load_dwordx4 v127, s[12:15], s{67+b} offen sc1 lds', 'x1')
    poll_check(k, 128, 14)
    k.wait(vm='hh2', lg='all'); k.e('s_barrier'); signal(k, 256); k.st('sigB2')
    ep = epi3(k, ACC0+32, 3)
    lq.emit(1)
    while len(ep):
        ep.cyc(C['p4_epi'])
        if len(ep): lq.emit(1)
    k.st('epi3')
    RG = [RING, WX]
    def ldsread(i):
        slot = LDSI.index(i)
        base, off = ('v11', WDL[slot]-WDL[0]) if slot < 2 else ('v10', WDL[slot])
        for f in range(4): k.ds_op(f'ds_read_b128 {v(RG[slot&1]+4*f,4)}, {base} offset:{off+1024*f}', f'wl{i}_{f}')
    ldsread(LDSI[0])
    for n in range(C['p4_pre']):
        lq.emit(1); k.e(f'v_mov_b64 {P(XRG[2*n])}, 0')
    assert C['p4_pre'] == 8
    poll_issue(k, 256)
    started = set(); order = C01 + C2 + C3; redw = Q(k)
    for n, (i, rl) in enumerate(order):
        if n == C['p4_sig3']: k.wait(vm='hh3'); k.e('s_barrier'); signal(k, 384); k.st('sigB3')
        if n == C['p4_c2']:
            poll_check(k, 256, 14); k.e('s_barrier'); hh(lq, C2); k.st('B2ok')
        if n == C['p4_poll3']: poll_issue(k, 384)
        if n == C['p4_c3']:
            poll_check(k, 384, 14); k.e('s_barrier'); hh(lq, C3); k.st('B3ok')
        if n == 14:
            k.wait(vm='x1')
            for t in range(2):
                for r in range(8): redw.add(('ds', f'ds_read_u16_d16_hi v{XRG[8*t+r]}, v{12+t} offset:{16*DELT[r]}', 'xr'))
        if i in LDSI and rl == 0 and LDSI.index(i) < 4: ldsread(LDSI[LDSI.index(i)+1])
        if n == len(order)-3:
            for rh in range(2):
                for t in range(2):
                    for q in range(2): redw.add(('ds', f'ds_write_b128 v{125+rh}, {v(acc4(1,t)+8*rh+4*q,4)} offset:{(2*t+q)*1024}', None))
        for a_ in range(2):
            for t in range(2):
                f = 2*a_+t
                if i in LDSI: B = v(RG[LDSI.index(i)&1]+4*f, 4); k.wait(vm=f'h{i}_{rl}', lg=f'wl{i}_{f}')
                else: B = wdreg(i, f); k.wait(vm=f'h{i}_{rl}')
                assert not any(isinstance(x, tuple) and x[2] == f'h{i}_{rl}' for x in lq.q), (i, rl)
                c = v(acc4(rl,t),16) if (rl,t) in started else '0'
                started.add((rl,t))
                k.e(f'v_mfma_f32_32x32x16_bf16 {v(acc4(rl,t),16)}, {a(16*i+8*rl+4*a_,4)}, {B}, {c}')
                if t == 0: lq.emit(1)
                redw.emit(1)
    assert not len(redw) and not len(lq)
    k.st('P4mf')
    for t in range(2):
        for q in range(2): k.ds_op(f'ds_write_b128 v124, {v(acc4(0,t)+8+4*q,4)} offset:{(2*t+q)*1024}')
    k.wait(lg='all'); k.e('s_barrier')
    R = 144
    for q in range(2):
        for t in range(2):
            for sl in range(3): k.ds_op(f'ds_read_b128 {v(R+16*sl+8*t+4*q,4)}, v1 offset:{sl*4096+(2*t+q)*1024}', f'rr{q}{t}')
    for q in range(2):
        for t in range(2):
            k.wait(lg=f'rr{q}{t}')
            for r in (4*q, 4*q+2):
                A = acc4(0,t)+r; b = R+8*t+r
                k.e(f'v_pk_add_f32 {P(A)}, {P(A)}, {P(b)}\nv_pk_add_f32 {P(b+16)}, {P(b+16)}, {P(b+32)}')
            for r in (4*q, 4*q+2):
                A = acc4(0,t)+r; b = R+8*t+r
                k.e(f'v_pk_add_f32 {P(A)}, {P(A)}, {P(b+16)}')
            for r in (4*q, 4*q+2):
                x = XRG[8*t+r]
                k.e(f'v_pk_fma_f32 {P(x)}, {P(acc4(0,t)+r)}, v[14:15], {P(x)} op_sel:[0,{t},0] op_sel_hi:[1,{t},1]')
        for r in range(4*q, 4*q+4):
            k.e(f's_add_u32 s6, s72, {DELT[r]*64*896}\nv_cvt_pk_bf16_f32 v{XRG[r]}, v{XRG[r]}, v{XRG[8+r]}')
            k.vm_op(f'buffer_store_dword v{XRG[r]}, v0, s[8:11], s6 offen sc1')

S_W = 8192
def side(k, C):
    W = 16; SL = 128; AC = 142; T = 150; DF = 160; CS = 176
    k.e(f'''
    s_cmp_lg_u32 s3, 3
    s_cbranch_scc1 SD_NOPF
    s_getpc_b64 s[6:7]
SD_PC:
    s_sub_u32 s6, s6, SD_PC-KP_BASE
    s_subb_u32 s7, s7, 0
    s_lshr_b32 s33, s2, 3
    s_lshl_b32 s33, s33, 13
    v_lshlrev_b32 v6, 7, v2
    v_add_u32 v6, s33, v6
    v_min_u32 v6, KP_LAST-KP_BASE-4, v6
    global_load_dword v240, v6, s[6:7]
SD_NOPF:
    s_and_b32 s32, s2, 7             ; x
    s_lshr_b32 s33, s2, 3            ; qt
    s_add_u32 s34, s32, 7
    s_mul_i32 s35, s33, 7
    s_add_u32 s35, s35, s32
    s_add_u32 s35, s35, 14
    s_lshl_b32 s6, s33, 1
    s_add_u32 s7, s6, 1
    s_cmp_eq_u32 s32, 7
    s_cselect_b32 s34, s6, s34
    s_cselect_b32 s35, s7, s35
    s_mul_i32 s39, s3, 112
    v_lshrrev_b32 v6, 3, v2
    v_add_u32 v7, s39, v6
    v_mul_u32_u24 v7, 5376, v7
    v_and_b32 v8, 7, v2
    v_lshl_add_u32 v7, v8, 4, v7
    v_add_u32 v9, s39, v2
    v_lshlrev_b32 v9, 1, v9          ; c voffset
    s_lshl_b32 s40, s34, 7
    s_lshl_b32 s41, s35, 7
    s_waitcnt lgkmcnt(0)
    s_mov_b32 s12, s30
    s_and_b32 s13, s31, 0xffff
    ''')
    k.e(srd_txt(44, 22, 896)); k.e(srd_txt(8, 24, 448*5376))
    k.vm_op('buffer_load_ushort v10, v9, s[44:47], 0 offen', 'c')
    k.vm_op('buffer_load_ushort v11, v9, s[44:47], 0 offen offset:112', 'c')
    for t in range(2):
        for i in range(14):
            k.vm_op(f'buffer_load_dwordx4 {v(W+56*t+4*i,4)}, v7, s[8:11], s{40+t} offen', f'w{t}_{i}')
            if i < 13: k.e(f's_add_u32 s{40+t}, s{40+t}, {8*5376}')
    k.e(f'''
    s_lshr_b32 s36, s32, 1
    s_lshl_b32 s6, s33, 2
    s_add_u32 s36, s36, s6           ; idx
    s_and_b32 s6, s32, 1
    s_mul_i32 s6, s6, 14
    s_add_u32 s37, s6, s36           ; 2m+half
    s_and_b32 s42, s3, 1             ; mat
    s_lshr_b32 s43, s3, 1
    s_mov_b32 s52, {f2h(1/448)}
    s_mov_b32 s53, {f2h(-448.0)}
    s_cmp_eq_u32 s32, 7
    s_cbranch_scc1 SD_ZP
    ''')
    def ang0(dst, step, ef, df, ph):
        k.e(f'''v_mul_f32 v{dst}, v{ef}, v{df}
        v_mul_f32 v{step}, s52, v{dst}
        v_floor_f32 v{step}, v{step}
        v_fma_f32 v{dst}, v{step}, s53, v{dst}
        v_fma_f32 v{dst}, v{dst}, s52, {ph}
        v_mul_f32 v{step}, s52, v{ef}''')
    k.e(f'''
    s_lshl_b32 s6, s33, 2
    v_lshl_add_u32 v12, v5, 1, s6    ; 4kk+2h
    s_lshl_b32 s6, s32, 6
    v_add_u32 v{T}, s6, v12
    v_cvt_f32_u32 v{T}, v{T}         ; d0
    v_lshlrev_b32 v12, 2, v12
    s_lshl_b32 s6, s43, 5
    v_add_u32 v{T+1}, s6, v4
    v_cmp_eq_u32 vcc, 0, v{T+1}
    v_cvt_f32_u32 v{T+1}, v{T+1}
    s_cmp_eq_u32 s42, 1
    s_cselect_b32 s6, {f2h(-0.25)}, 0
    s_cselect_b32 s7, {f2h(224.0)}, 0
    v_mov_b32 v{T+2}, s6
    v_mov_b32 v{T+3}, s7
    v_cndmask_b32 v{T+3}, v{T+1}, v{T+3}, vcc
    v_cndmask_b32 v{T+4}, v{T+2}, 0, vcc
    ''')
    for jj in range(4):
        if jj: k.e(f'v_add_f32 v{T+1}, {f2h(64.0)}, v{T+1}')
        ang0(T+5, T+6, T+3 if jj == 0 else T+1, T, f'v{T+4}' if jj == 0 else f'v{T+2}')
        for n in range(8): k.e(f'v_fmamk_f32 v{CS+8*jj+n}, v{T+6}, {f2h(16*(n&3)+(n>>2))}, v{T+5}')
        for n in range(8): k.e(f'v_cos_f32 v{CS+8*jj+n}, v{CS+8*jj+n}')
    k.e(f'''s_branch SD_G
SD_ZP:
    v_cvt_f32_u32 v{T+1}, v0
    s_lshl_b32 s6, s34, 6
    v_cvt_f32_u32 v{T}, s6
    ''')
    ang0(T+5, T+6, T+1, T, '0')
    k.e(f's_mov_b32 s6, 0\nv_mov_b32 v13, v{T+5}\nv_mov_b32 v14, v{T+6}')
    def zcos():
        for n in range(64): k.e(f'v_fmamk_f32 v{CS+n}, v14, {f2h(n)}, v13\nv_cos_f32 v{CS+n}, v{CS+n}')
    zcos()
    k.e(f'v_add_f32 v{T}, {f2h(64.0)}, v{T}'); ang0(13, 14, T+1, T, '0')
    k.e('SD_G:')
    k.e(f'''
    s_cmp_eq_u32 s42, 0
    s_cselect_b32 s48, s16, s18
    s_cselect_b32 s49, s17, s19
    s_and_b32 s49, s49, 0xffff
    s_cmp_lt_u32 s36, 14
    s_cselect_b32 s50, {448*3584}, 0
    s_mov_b32 s51, 0x20000
    v_bfe_u32 v{T}, v2, 4, 1
    v_lshlrev_b32 v{T}, 2, v{T}
    v_xor_b32 v{T}, v{T}, v8
    v_mul_u32_u24 v15, 3584, v6
    v_lshl_add_u32 v15, v{T}, 4, v15
    s_mul_i32 s54, s43, {224*3584}
    s_lshl_b32 s6, s37, 7
    s_add_u32 s54, s54, s6
    s_mul_i32 s55, s42, 57344
    s_mul_i32 s6, s43, 28672
    s_add_u32 s56, s55, s6
    s_add_u32 m0, s56, {S_W}
    ''')
    wq = Q(k)
    for i in range(28): wq.vm(f's_add_u32 m0, m0, 1024\ns_add_u32 s54, s54, {8*3584}' if i else None, 'buffer_load_dwordx4 v15, s[48:51], s54 offen lds', 'wst')
    k.wait(vm='c')
    for r in (10, 11):
        k.e(f'''v_lshlrev_b32 v{r}, 16, v{r}
        v_mul_f32 v{T}, {f2h(-LOG2E)}, v{r}
        v_exp_f32 v{T}, v{T}
        v_add_f32 v{T}, 1.0, v{T}
        v_rcp_f32 v{T}, v{T}
        v_mul_f32 v{r}, v{r}, v{T}
        v_mov_b32 v{T}, 0
        v_cvt_pk_bf16_f32 v{r}, v{r}, v{T}''')
    k.e(f'v_lshlrev_b32 v{T}, 2, v6')
    for i in range(14): k.ds_op(f'ds_bpermute_b32 v{SL+i}, v{T}, v{10+i//7} offset:{32*(i%7)}')
    k.e(f'''v_lshlrev_b32 v{T}, 3, v8
    v_add_u32 v{T}, v{T}, v6
    v_lshlrev_b32 v{T}, 2, v{T}
    s_lshl_b32 s57, s3, 8
    v_add_u32 v9, s57, v{T}
    v_lshlrev_b32 v10, 2, v2
    ''')
    k.e(bar_regs(6, 7))
    k.wait(lg='all')
    def gemv(t):
        for i in range(0, 8, 2): k.e(f'v_mov_b64 {P(AC+i)}, 0')
        for i in range(14):
            k.wait(vm=f'w{t}_{i}')
            k.e(f'v_lshlrev_b32 v{T}, 16, v{SL+i}')
            for d in range(4): k.e(f'v_dot2_f32_bf16 v{AC+2*d}, v{W+56*t+4*i+d}, v{SL+i}, v{AC+2*d}')
            for d in range(4): k.e(f'v_dot2_f32_bf16 v{AC+2*d+1}, v{W+56*t+4*i+d}, v{T}, v{AC+2*d+1}')
            if t == 1: wq.emit(1)
        for i in range(4): k.e(f'v_permlane32_swap_b32 v{AC+i}, v{AC+4+i}')
        for i in range(4): k.e(f'v_add_f32 v{AC+i}, v{AC+i}, v{AC+4+i}')
        for i in range(2): k.e(f'v_permlane16_swap_b32 v{AC+i}, v{AC+2+i}')
        for i in range(2): k.e(f'v_add_f32 v{AC+i}, v{AC+i}, v{AC+2+i}')
        k.e(f'''v_add_f32_dpp v{AC+2}, v{AC}, v{AC} row_ror:8 row_mask:0xf bank_mask:0xf
        v_add_f32_dpp v{AC+2}, v{AC+1}, v{AC+1} row_ror:8 row_mask:0xf bank_mask:0xc''')
        k.ds_op(f'ds_write_b32 v9, v{AC+2} offset:{1024*t}')
    def gemv_fin(t):
        for i in range(2): k.ds_op(f'ds_read2st64_b32 {P(AC+2*i)}, v10 offset0:{4*t+2*i} offset1:{4*t+2*i+1}')
        k.wait(lg='all')
        k.e(f'''v_pk_add_f32 {P(AC)}, {P(AC)}, {P(AC+2)}
        v_add_f32 v{AC}, v{AC}, v{AC+1}
        v_cvt_pk_bf16_f32 v{AC}, v{AC}, v{AC}
        v_and_b32 v{AC}, 0xffff0000, v{AC}
        v_add_f32 v{AC+1}, 1.0, v{AC}
        v_cvt_pk_bf16_f32 v{AC+1}, v{AC+1}, v{AC+1}
        v_and_b32 v{AC+1}, 0xffff0000, v{AC+1}''')
    def zfin(t, jd):
        k.e(f'v_add_u32 v{T}, s57, v10\nv_mov_b32 v{T+1}, s57')
        k.e(f'ds_write_b32 v{T}, v{AC} offset:4096')
        for h2 in range(2):
            for i in range(8): k.e(f'ds_read_b128 {v(W+4*i,4)}, v{T+1} offset:{4096+128*h2+16*i}')
            k.e('s_waitcnt lgkmcnt(0)')
            for i in range(16):
                x = AC+2+2*(i & 1)
                if h2 == 0 and i < 2: k.e(f'v_pk_mul_f32 {P(x)}, {P(CS+2*i)}, {P(W+2*i)}')
                else: k.e(f'v_pk_fma_f32 {P(x)}, {P(CS+32*h2+2*i)}, {P(W+2*i)}, {P(x)}')
        k.e(f'''v_pk_add_f32 {P(AC+2)}, {P(AC+2)}, {P(AC+4)}
        v_add_f32 v{AC+2}, v{AC+2}, v{AC+3}
        s_cmp_gt_u32 {jd}, 6
        s_cselect_b32 s6, 0, -1
        v_and_b32 v{AC+2}, s6, v{AC+2}
        v_cvt_pk_bf16_f32 v{AC+3}, v{AC+2}, v{AC+2}
        v_and_b32 v{AC+3}, 0xffff0000, v{AC+3}
        v_sub_f32 v{AC+3}, v{AC+2}, v{AC+3}
        v_cvt_pk_bf16_f32 v{AC+2}, v{AC+2}, v{AC+3}
        s_lshr_b32 s6, {jd}, 2
        s_lshl_b32 s6, s6, 9
        s_and_b32 s7, {jd}, 3
        s_lshl_b32 s7, s7, 2
        s_add_u32 s6, s6, s7
        s_add_u32 s6, s6, {WS_ZF}
        v_lshrrev_b32 v{T}, 5, v0
        v_lshlrev_b32 v{T+1}, 4, v4
        v_lshl_add_u32 v{T}, v{T}, 10, v{T+1}
        v_cmp_ge_u32 vcc, 224, v0
        v_mov_b32 v{T+2}, 0x7fff0000
        v_add_u32 v{T+1}, 7168, v{T+1}
        v_cndmask_b32 v{T}, v{T+2}, v{T}, vcc
        v_subrev_u32 v{T+3}, 1, v0
        v_cmp_gt_u32 vcc, 31, v{T+3}
        v_cndmask_b32 v{T+1}, v{T+2}, v{T+1}, vcc''')
        k.vm_op(f'buffer_store_dword v{AC+2}, v{T}, s[12:15], s6 offen sc1', maybe=True)
        k.vm_op(f'buffer_store_dword v{AC+2}, v{T+1}, s[12:15], s6 offen sc1', maybe=True)
    gemv(0); k.wait(lg='all'); k.e('s_barrier'); gemv_fin(0)
    k.e('s_cmp_eq_u32 s32, 7\ns_cbranch_scc1 SD_Z1')
    for n in range(8): k.e(f'ds_bpermute_b32 v{DF+n}, v12, v{AC+1} offset:{4*(16*(n&3)+(n>>2))}')
    k.e(f'''
    s_mul_i32 s6, s3, 28
    s_lshl_b32 s7, s32, 2
    s_add_u32 s6, s6, s7
    s_add_u32 s6, s6, s33
    s_lshl_b32 s6, s6, 10
    s_add_u32 s6, s6, {WS_CP}
    s_waitcnt lgkmcnt(0)
    ''')
    for jj in range(4):
        if jj == 3: k.e('s_cmp_eq_u32 s43, 1\ns_cbranch_scc1 SD_G2')
        for n in range(0, 8, 2): k.e(f'v_pk_mul_f32 {P(CS+8*jj+n)}, {P(CS+8*jj+n)}, {P(DF+n)}')
        for r in range(4): k.e(f'v_cvt_pk_bf16_f32 v{W+4*jj+r}, v{CS+8*jj+2*r}, v{CS+8*jj+2*r+1}')
        k.vm_op(f'buffer_store_dwordx4 {v(W+4*jj,4)}, v3, s[12:15], s6 offen sc1', 'cp', maybe=True)
        if jj < 3: k.e(f's_add_u32 s6, s6, {4*28*1024}')
    k.e('s_branch SD_G2\nSD_Z1:')
    zfin(0, 's34'); k.vm.append(('cp', True)); zcos()
    k.e('SD_G2:'); k.stamp(1); ready_issue(k, 242, 243, 'cp')
    gemv(1)
    k.wait(vm='cp', lg='all'); k.e('s_barrier')
    k.e(f's_lshl_b32 s6, s32, 7\ns_add_u32 s6, s6, {WS_FLAG+FL_BAR}\ns_cmp_eq_u32 s32, 7\ns_cselect_b32 s6, 0x7fff0000, s6')
    bar_signal(k, 's6', 6, 7, 242, 243); k.stamp(2)
    gemv_fin(1)
    k.e('s_cmp_eq_u32 s32, 7\ns_cbranch_scc1 SD_Z2')
    k.e(f'''s_cmp_lg_u32 s3, 0
    s_cbranch_scc1 SD_G3
    s_lshl_b32 s6, s32, 6
    v_add_u32 v{T}, s6, v2           ; col
    v_cmp_le_u32 vcc, 224, v{T}
    v_sub_u32 v{T+1}, 448, v{T}
    v_cndmask_b32 v{T+1}, v{T}, v{T+1}, vcc
    v_cndmask_b32 v{T+2}, 0, 32, vcc
    v_cmp_eq_u32 vcc, 224, v{T+1}
    v_cndmask_b32 v{T+1}, v{T+1}, 0, vcc
    v_lshrrev_b32 v{T+3}, 5, v{T+1}
    v_lshl_add_u32 v{T+2}, v{T+3}, 6, v{T+2}
    v_and_b32 v{T+1}, 31, v{T+1}
    v_add_u32 v{T+1}, v{T+1}, v{T+2} ; position
    s_mov_b32 s6, {WS_MOD+GA_P}
    s_cmp_eq_u32 s33, 3
    s_cselect_b64 vcc, -1, 0
    s_cselect_b32 s6, {WS_MOD+GB_N}, s6
    v_cndmask_b32 v{T+1}, v{T+1}, v{T}, vcc
    s_cmp_eq_u32 s33, 2
    s_cselect_b64 vcc, -1, 0
    s_cselect_b32 s6, {WS_MOD+CB1_P}, s6
    s_mov_b32 s7, 0x7fff0000
    s_cselect_b32 s7, {WS_MOD+CB1_K}, s7
    v_cndmask_b32 v{AC}, v{AC}, v{AC+1}, vcc
    s_cmp_eq_u32 s33, 1
    s_cselect_b32 s7, {WS_MOD+SB_K}, s7
    s_cselect_b32 s6, 0x7fff0000, s6
    v_lshlrev_b32 v{T+1}, 2, v{T+1}
    v_lshlrev_b32 v{T}, 1, v{T}
    buffer_store_dword v{AC}, v{T+1}, s[12:15], s6 offen sc1
    buffer_store_short_d16_hi v{AC}, v{T}, s[12:15], s7 offen sc1
    s_branch SD_G3
SD_Z2:''')
    zfin(1, 's35')
    k.e('SD_G3:'); k.vm.append(('t2', True))
    wq.flush()
    k.e(f'''s_mov_b32 s6, {WS_FLAG+FL_BAR+7*128}
    s_lshr_b32 s24, s37, 1
    s_lshl_b32 s38, s24, 7
    s_add_u32 s38, s38, {FL_SIDE}
    s_and_b32 s39, s32, 1
    s_lshl_b32 s39, s39, 10
    s_add_u32 s39, s39, {FL_BAR+16*1024+7*128}
    s_add_u32 s24, s30, {WS_FLAG}
    s_addc_u32 s25, s31, 0
    ''')
    k.wait(vm='t2'); k.e('s_barrier')
    bar_signal(k, 's6', 6, 7); k.stamp(3)
    k.e('s_cmp_lt_u32 s36, 14\ns_cbranch_scc0 KP_END')
    poll_issue(k, 's39')
    k.e(f'''v_bfe_u32 v{T}, v2, 2, 2
    v_lshl_add_u32 v{T+1}, v5, 3, v{T}
    v_lshlrev_b32 v8, 7, v{T+1}
    v_lshrrev_b32 v{T}, 1, v{T}
    v_xor_b32 v{T}, s43, v{T}
    v_lshl_add_u32 v8, v{T}, 6, v8
    v_bfe_u32 v{T}, v2, 4, 1
    v_lshl_add_u32 v8, v{T}, 5, v8
    v_and_b32 v{T}, 3, v2
    v_lshl_add_u32 v8, v{T}, 3, v8
    s_add_u32 s55, s55, {S_W}
    v_add_u32 v8, s55, v8
    v_and_b32 v9, 1, v2
    v_lshlrev_b32 v9, 10, v9
    v_lshl_add_u32 v9, v5, 4, v9
    s_lshl_b32 s19, s37, 2
    s_add_u32 s19, s19, s3
    s_lshl_b32 s19, s19, 10
    s_add_u32 s19, s19, {WS_WEXT}
    ''')
    k.wait(vm='all'); k.e('s_barrier')
    for ks in range(28):
        for hf in range(2): k.ds_op(f'ds_read_b64_tr_b16 {a(4*ks+2*hf,2)}, v8 offset:{2048*ks+512*hf}')
    poll_check(k, 's39', 32)
    k.e(f's_cmp_lg_u32 s3, 0\ns_cbranch_scc1 SD_V\ns_mov_b32 m0, 4096\ns_mov_b32 s6, {WS_MOD+CB1_K}')
    k.e('buffer_load_dwordx4 v3, s[12:15], s6 offen sc1 lds\nbuffer_load_dwordx4 v3, s[12:15], s6 offen offset:1024 sc1 lds\ns_waitcnt vmcnt(0)\nSD_V:\ns_barrier'); k.stamp(4)
    for ks in range(28): k.ds_op(f'ds_read_b128 {v(W+4*ks,4)}, v9 offset:{4096+32*ks}', f'a{ks}')
    A2 = 240
    for ks in range(28):
        k.wait(lg=f'a{ks}')
        c = '0' if ks == 0 else v(A2,16)
        k.e(f'v_mfma_f32_32x32x16_bf16 {v(A2,16)}, {v(W+4*ks,4)}, {a(4*ks,4)}, {c}')
    k.e(f'''
    v_cvt_pk_bf16_f32 v9, v{A2}, v{A2+1}
    v_lshlrev_b32 v12, 16, v9
    v_and_b32 v13, 0xffff0000, v9
    v_sub_f32 v12, v{A2}, v12
    v_sub_f32 v13, v{A2+1}, v13
    v_cmp_eq_u32 vcc, 0, v5
    v_cvt_pk_bf16_f32 v8, v{A2}, v12
    v_cvt_pk_bf16_f32 v10, v13, v{A2+1}
    v_mov_b32 v11, 0
    v_cndmask_b32 v8, 0, v8, vcc
    v_cndmask_b32 v9, 0, v9, vcc
    v_cndmask_b32 v10, 0, v10, vcc
    ''')
    k.vm_op('buffer_store_dwordx4 v[8:11], v3, s[12:15], s19 offen sc1')
    k.wait(vm='all'); k.e('s_barrier'); signal(k, 's38')
    k.stamp_out(0, 6)
```

```python
WS_U    = 0x000000
WS_CP   = 0x1C0000
WS_ZF   = 0x224000
WS_MOD  = 0x226000
WS_FLAG = 0x228000
WS_WEXT = 0x230000
WS_ST   = 0x250000
WS_WDP  = 0x288000
WS_X1C  = 0x410000
WS_X1   = 0x5D0000
WS_HH   = 0x790000
WS_END  = 0xE90000
GA_P, CB1_P, GB_N, CB1_K, SB_K = 0, 2048, 4096, 6144, 7168
FL_SIDE = 8192; FL_BAR = 12288; NREP = 18
```

```python
import sys, os
from asmlib import *
from kp import *
NAME = 'adaLN_cond__spectral_fnet__glu_gated_glu__prompt_kernel'
HEAD = open('adaLN_cond__spectral_fnet__glu_gated_glu__prompt.s.ref').read().split('; Override launch')[0]
def build(cfg=None, aslist=False):
    out = HEAD + (f'; @launch kernel={NAME} ' if aslist else '; @launch ') + f'grid=({GRID},1,1) block=(256,1,1) lds={LDS_ALL}\n'
    c, d = kernel_text(NAME, ['KP_BASE:'] + gen_kp(cfg), 256, 256, 102)
    return out + '.amdgcn_target "amdgcn-amd-amdhsa--gfx950"\n.text\n' + c + '.section .rodata,"a"\n' + d
if __name__ == '__main__':
    K.STAMPS = '--stamps' in sys.argv
    K.NAMES = os.environ.get('ST','p1st,sig1,r1tr,bar1,A6,p2st,sigA,flagA,P3go,S3,P4mf').split(',')
    K.MARK = os.environ.get('MARK')
    assert len(K.NAMES) <= 11
    if '--cyc' in sys.argv: K.CLK = 's_memtime'
    open(sys.argv[1], 'w').write(build(eval(os.environ.get('CFG','{}')), '--list' in sys.argv))
```

```python
import re

TRANS = ('v_exp_f32','v_log_f32','v_rcp_f32','v_rsq_f32','v_sqrt_f32','v_sin_f32','v_cos_f32')

def _regs(op):
    op = op.strip()
    if op.startswith('-'): op = op[1:]
    m = re.fullmatch(r'abs\((.*)\)', op) or re.fullmatch(r'\|(.*)\|', op)
    if m: op = m.group(1)
    m = re.fullmatch(r'([vas])(\d+)', op)
    if m: return {(m.group(1), int(m.group(2)))}
    m = re.fullmatch(r'([vas])\[(\d+):(\d+)\]', op)
    if m: return {(m.group(1), i) for i in range(int(m.group(2)), int(m.group(3))+1)}
    if op in ('vcc','vcc_lo','vcc_hi'): return {('x','vcc')}
    if op in ('exec','exec_lo','exec_hi'): return {('x','exec')}
    if op == 'm0': return {('x','m0')}
    return set()

class Ins:
    def __init__(self, text):
        self.text = text
        t = text.split(';')[0].strip()
        self.label = t.endswith(':')
        self.kind = 'other'; self.w = set(); self.r = set()
        self.states = 1
        self.dpp = False; self.trans = False; self.dot = False; self.perm = False
        self.A = self.B = self.C = set(); self.passes = 0
        self.store_data = set(); self.ldsdma = False; self.rdlane = False
        if self.label or not t or t.startswith('.'):
            self.kind = 'none'; self.states = 0; return
        parts = t.split(None, 1)
        mn = parts[0]; self.mn = mn
        rest = parts[1] if len(parts) > 1 else ''
        ops = []; cur = ''; depth = 0
        for ch in rest:
            if ch in '[(': depth += 1
            if ch in '])': depth -= 1
            if ch == ',' and depth == 0: ops.append(cur.strip()); cur = ''
            else: cur += ch
        if cur.strip(): ops.append(cur.strip())
        mods = ''
        if ops:
            last = ops[-1].split(None, 1)
            ops[-1] = last[0]; mods = last[1] if len(last) > 1 else ''
        R = [_regs(o) for o in ops]
        allbut0 = set().union(*R[1:]) if len(R) > 1 else set()
        if mn == 's_nop':
            self.kind = 'nop'; self.states = int(ops[0], 0) + 1
        elif mn.startswith('v_mfma'):
            self.kind = 'mfma'; self.w = R[0]; self.A = R[1]; self.B = R[2]; self.C = R[3]
            self.r = self.A | self.B | self.C
            self.passes = 8 if '32x32x16' in mn else 4 if '16x16x32' in mn else None
            assert self.passes
        elif mn.startswith('v_'):
            self.kind = 'valu'
            base = re.sub(r'_(e32|e64|dpp|sdwa)$', '', mn)
            self.w = set(R[0]); self.r = set(allbut0)
            self.trans = base in TRANS
            self.dpp = mn.endswith('_dpp') or 'quad_perm' in mods or 'row_' in mods
            self.dot = base.startswith('v_dot')
            if self.dpp: self.r |= R[0]
            if base.startswith(('v_fmac','v_dot2c','v_pk_fmac')): self.r |= R[0]
            if base.startswith('v_permlane'):
                self.perm = True; self.w = R[0] | R[1]; self.r = R[0] | R[1]
            if base.startswith(('v_add_co','v_sub_co','v_addc_co','v_subb_co')):
                self.w |= R[1]; self.r = set().union(*R[2:])
            if base in ('v_readfirstlane_b32','v_readlane_b32'): self.rdlane = True
            if base.startswith('v_cmpx'): self.w |= {('x','exec')}
        elif mn.startswith(('buffer_','global_')):
            self.kind = 'vmem'
            if mn in ('buffer_inv','buffer_wbl2'): return
            lds = ' lds' in (' '+mods) or '_lds_' in mn
            if lds:
                self.ldsdma = True; self.r = set().union(*R) | {('x','m0')}
            elif '_load' in mn:
                self.w = R[0]; self.r = allbut0
                if 'd16' in mn: self.r |= R[0]
            else:
                self.r = set().union(*R)
                di = 0 if mn.startswith('buffer_') else 1
                if 'atomic' in mn and 'sc0' in mods:
                    self.w = R[0]
                if mn.endswith(('x3','x4')): self.store_data = R[di]
        elif mn.startswith('ds_'):
            self.kind = 'ds'
            if mn.startswith(('ds_read','ds_bpermute','ds_permute','ds_swizzle')):
                self.w = R[0]; self.r = allbut0
                if 'd16' in mn: self.r |= R[0]
            else: self.r = set().union(*R)
        elif mn.startswith('s_'):
            self.kind = 'salu'
            if mn.startswith(('s_cmp','s_waitcnt','s_barrier','s_cbranch','s_branch','s_endpgm','s_sleep','s_setprio','s_bitcmp')):
                self.r = set().union(*R) if R else set()
            else:
                self.w = set(R[0]) if R else set(); self.r = allbut0
                if 'saveexec' in mn: self.w |= {('x','exec')}
        else:
            raise ValueError(text)

def need(p, c):
    n = 0
    vw = {x for x in p.w if x[0] in 'va'}
    sw = {x for x in p.w if x[0] == 's' or x == ('x','vcc')}
    if p.kind == 'valu':
        if c.kind == 'mfma' and vw & c.r: n = max(n, 3 if p.dot else 2)
        if c.kind == 'valu':
            if c.dpp and vw & c.r: n = max(n, 2)
            if c.perm and vw & c.r: n = max(n, 2)
            if c.rdlane and vw & c.r: n = max(n, 1)
            if p.trans and not c.trans and vw & c.r: n = max(n, 1)
            if sw & c.r: n = max(n, 4 if c.rdlane else 2)
            if 'sdwa' in p.mn and vw & (c.r | c.w): n = max(n, 1)
        if p.trans and c.kind in ('vmem','ds') and vw & c.r: n = max(n, 1)
        if p.dot and vw & (c.r | c.w):
            same = c.kind == 'valu' and c.dot and c.mn == p.mn and vw <= c.w and not _dot_ab(c) & vw
            if not same: n = max(n, 3)
        if c.kind == 'vmem' and sw & c.r: n = max(n, 5)
        if c.kind == 'salu' and sw & c.r: n = max(n, 1)
        if ('x','exec') in p.w:
            if c.kind == 'mfma' or c.perm or c.rdlane: n = max(n, 4)
            if c.dpp: n = max(n, 5)
    if p.kind in ('vmem','ds') and c.kind == 'valu' and c.dpp and vw & c.r: n = max(n, 2)
    if p.kind == 'salu' and ('x','m0') in p.w and c.ldsdma: n = max(n, 1)
    if p.store_data and c.w & p.store_data: n = max(n, 2 if c.kind in ('valu','mfma') else 1)
    if p.kind == 'mfma':
        big = {4: 8, 8: 12}[p.passes]
        if c.kind == 'mfma':
            if p.w & (c.A | c.B): n = max(n, big)
            if p.w & c.C:
                if not (p.w == c.C and p.passes == c.passes): n = max(n, big - 2)
            elif p.w & c.w: n = max(n, big)
        elif c.kind in ('valu','vmem','ds'):
            if p.w & (c.r | c.w): n = max(n, big)
            if c.kind == 'valu' and p.C & c.w: n = max(n, {4: 3, 8: 7}[p.passes])
    return n

def _dot_ab(c):
    t = c.text.split(';')[0].split(None,1)[1].split(',')
    return _regs(t[1]) | _regs(t[2].split()[0])

def pad_hazards(lines):
    out = []; win = []
    added = 0
    for ln in lines:
        c = Ins(ln)
        if c.kind == 'none':
            out.append(ln); continue
        k = 0
        for p, d in win: k = max(k, need(p, c) - d)
        while k > 0:
            s = min(k, 16); out.append(f'    s_nop {s-1}'); added += 1
            for e in win: e[1] += s
            k -= s
        out.append(ln)
        for e in win: e[1] += c.states
        win = [e for e in win if e[1] < 24]
        win.append([c, 0])
        if c.kind == 'salu' and c.mn in ('s_branch','s_endpgm'): win = []
    return out

class K:
    def __init__(self):
        self.L = []; self.vm = []; self.lg = []; self.uid = 0
    def e(self, s):
        for x in s.strip().split('\n'):
            x = x.strip()
            if x: self.L.append(x if x.endswith(':') else '    ' + x)
    STAMPS = False
    NAMES = None
    CLK = 's_memrealtime'
    MARK = None
    def mark_spin(self):
        if K.MARK:
            l, d = self.label('MS'), self.label('MD')
            self.e(f's_waitcnt lgkmcnt(0)\ns_mov_b32 s7, 0\n{l}:\ns_memrealtime s[0:1]\ns_waitcnt lgkmcnt(0)\ns_sub_u32 s0, s0, s100\ns_add_u32 s7, s7, 1\ns_cmp_gt_u32 s7, 100000\ns_cbranch_scc1 {d}\ns_cmp_lt_u32 s0, 3000\ns_cbranch_scc1 {l}\n{d}:')
    def st(self, name):
        if K.MARK == name: self.e('s_memrealtime s[100:101]')
        if K.STAMPS and K.NAMES and name in K.NAMES: self.stamp(K.NAMES.index(name)+1)
    def stamp(self, i):
        if K.STAMPS:
            r = self.sreg(i); self.e(f'{K.CLK} s[{r}:{r+1}]'); self.nst = max(getattr(self,'nst',0), i+1)
    def sreg(self, i): return 100 - 2*i
    def stamp_out(self, kid, n, allwaves=False):
        if not K.STAMPS: return
        lab = self.label('STO')
        self.e(f's_waitcnt vmcnt(0) lgkmcnt(0)')
        self.stamp(n-1)
        self.e(f's_waitcnt lgkmcnt(0)\ns_mov_b64 exec, 1\ns_lshl_b32 s6, s2, 3\ns_add_u32 s6, s6, s3\ns_lshl_b32 s6, s6, 6\ns_add_u32 s6, s6, {0x1200000 + kid*0x40000}\ns_mov_b32 s14, 0x2000000\nv_mov_b32 v1, 0')
        for i in range(n): self.e(f'v_mov_b32 v2, s{self.sreg(i)}\nbuffer_store_dword v2, v1, s[12:15], s6 offen offset:{4*i}')
    def label(self, base):
        self.uid += 1; return f'{base}_{self.uid}'
    def reset_counts(self): self.vm = []; self.lg = []
    def vm_op(self, s, tag=None, maybe=False):
        self.e(s); self.vm.append((tag, maybe))
    def ds_op(self, s, tag=None, maybe=False):
        self.e(s); self.lg.append((tag, maybe))
    @staticmethod
    def _cnt(q, tags):
        if not isinstance(tags, (list, tuple, set)): tags = [tags]
        idx = [i for i, (t, _) in enumerate(q) if t in tags]
        if not idx: return None
        return max(idx), sum(1 for t, m in q[max(idx)+1:] if not m)
    def wait(self, vm=None, lg=None):
        parts = []
        if vm is not None:
            if vm == 'all': parts.append('vmcnt(0)'); self.vm = []
            else:
                r = self._cnt(self.vm, vm)
                if r is not None:
                    i, n = r
                    parts.append(f'vmcnt({min(n,63)})'); self.vm = self.vm[i+1:]
        if lg is not None:
            if lg == 'all': parts.append('lgkmcnt(0)'); self.lg = []
            else:
                r = self._cnt(self.lg, lg)
                if r is not None:
                    i, n = r
                    parts.append(f'lgkmcnt({min(n,15)})'); self.lg = self.lg[i+1:]
        if parts: self.e('s_waitcnt ' + ' '.join(parts))

def v(a, n=1): return f'v{a}' if n == 1 else f'v[{a}:{a+n-1}]'
def a(i, n=1): return f'a{i}' if n == 1 else f'a[{i}:{i+n-1}]'
def s(i, n=1): return f's{i}' if n == 1 else f's[{i}:{i+n-1}]'
import struct
def f2h(x): return '0x%08x' % struct.unpack('<I', struct.pack('<f', x))[0]

def kernel_text(name, lines, nvgpr, nagpr=0, nsgpr=96):
    acc = max(4, (nvgpr + 3)//4*4)
    nfv = acc + nagpr if nagpr else nvgpr
    body = '\n'.join(pad_hazards(lines))
    code = f""".globl {name}
.p2align 8
.type {name},@function
{name}:
{body}
"""
    desc = f""".p2align 6
.amdhsa_kernel {name}
  .amdhsa_next_free_vgpr {nfv}
  .amdhsa_next_free_sgpr {nsgpr}
  .amdhsa_accum_offset {acc}
  .amdhsa_group_segment_fixed_size 0
  .amdhsa_kernarg_size 112
  .amdhsa_user_sgpr_count 2
  .amdhsa_user_sgpr_kernarg_segment_ptr 1
  .amdhsa_system_sgpr_workgroup_id_x 1
  .amdhsa_float_denorm_mode_32 3
.end_amdhsa_kernel
"""
    return code, desc
```

```python
from asmlib import *
from layout2 import *
import math
NSIDE = 32; NMAIN = 224; GRID = 256
LDS_ALL = 163840
SPIN_MAX = 1 << 20
DELT = [16*a + 8*(n >> 2) + (n & 3) for a in range(2) for n in range(8)]
LOG2E = math.log2(math.e)
CFG = dict(p1_fill=90, p1_w3_drain=12, p1_fill_drain=56, r2_drain=10, r2_fill=60, p1_w3_ld=1, p1_w3_a=2, p1_w3_b=2, p1_w3_c=2, wd_chunk=4, r2_b=3, r2_pre=1, pollA_at=8, wd_flag=16,
           epi_span=24, epi_span3=16, sigB01=8, pollB01=20, p4_epi=56, p4_pre=8, p4_sig3=1, p4_c2=3, p4_poll3=7, p4_c3=10)

class Q:
    def __init__(self, k): self.k = k; self.q = []; self.debt = 0
    def add(self, *atoms): self.q.extend(atoms)
    def lines(self, txt): self.q.extend([l.strip() for l in txt.strip().split('\n') if l.strip()])
    def vm(self, pre, txt, tag=None):
        if pre: self.q.append(lambda: (self.k.e(pre), self.k.vm_op(txt, tag)))
        else: self.q.append(('vm', txt, tag))
    def emit(self, n=1):
        c = 0
        while self.q and c < n:
            x = self.q.pop(0)
            if isinstance(x, tuple):
                (self.k.vm_op if x[0] == 'vm' else self.k.ds_op)(x[1], x[2]); c += 1
            elif callable(x): x(); c += 1
            else: self.k.e(x); c += len(x.strip().split('\n'))
    def cyc(self, budget):
        self.debt += budget
        while self.q and self.debt > 0:
            n0 = len(self.k.L); self.emit(1)
            for l in self.k.L[n0:]:
                mn = l.split()[0]
                self.debt -= 8 if mn in TRANS else 12 if mn.startswith('buffer_') else 4
        if not self.q: self.debt = 0
    def cost(self):
        return sum((12 if isinstance(x, tuple) else 8 if x.split()[0] in TRANS else 4) for x in self.q)
    def flush(self): self.emit(1 << 30)
    def __len__(self): return len(self.q)

def t1_txt(dst, g, b, tmp):
    return f'''s_sub_u32 {tmp}, 64, {g}
    s_cmp_eq_u32 {g}, 0
    s_cselect_b32 {tmp}, 32, {tmp}
    s_cmp_eq_u32 {b}, 0
    s_cselect_b32 {dst}, {g}, {tmp}'''
def srd_txt(d, base, size): return f's_mov_b32 s{d}, s{base}\ns_and_b32 s{d+1}, s{base+1}, 0xffff\ns_mov_b32 s{d+2}, {size}\ns_mov_b32 s{d+3}, 0x20000'
P = lambda r: v(r, 2)

def signal(k, off, wave=0):
    l = k.label('SIG')
    k.e(f's_cmp_lg_u32 s3, {wave}\ns_cbranch_scc1 {l}\ns_mov_b32 s74, 1\ns_atomic_add s74, s[24:25], {off}\n{l}:')
def poll_issue(k, off, r='s0', wave=0):
    l = k.label('PI')
    k.e(f's_cmp_lg_u32 s3, {wave}\ns_cbranch_scc1 {l}\ns_mov_b32 {r}, 0\ns_atomic_add {r}, s[24:25], {off} glc\n{l}:')
def poll_check(k, off, target, r='s0', wave=0):
    l, d = k.label('PC'), k.label('PD')
    k.e(f'''s_cmp_lg_u32 s3, {wave}
    s_cbranch_scc1 {d}
    s_mov_b32 s1, 0
{l}:
    s_waitcnt lgkmcnt(0)
    s_cmp_eq_u32 {r}, {target}
    s_cbranch_scc1 {d}
    s_add_u32 s1, s1, 1
    s_cmp_gt_u32 s1, {SPIN_MAX}
    s_cbranch_scc1 {d}
    s_mov_b32 {r}, 0
    s_atomic_add {r}, s[24:25], {off} glc
    s_branch {l}
{d}:''')
def ready_issue(k, vz, vr, tag):
    k.e(f'v_mov_b32 v{vz}, 0'); k.vm_op(f'global_load_dword v{vr}, v{vz}, s[28:29] sc1', tag)
def bar_signal(k, soff, va, vb, vz=None, vr=None):
    l, d, g = k.label('BS'), k.label('BD'), k.label('BG')
    k.e(f's_cmp_lg_u32 s3, 0\ns_cbranch_scc1 {d}')
    if vz is not None:
        k.e(f'''s_mov_b32 s1, 0
{l}:
    v_readfirstlane_b32 s75, v{vr}
    s_cmp_lg_u32 s75, 0
    s_cbranch_scc1 {g}
    s_add_u32 s1, s1, 1
    s_cmp_gt_u32 s1, {SPIN_MAX}
    s_cbranch_scc1 {g}
    s_sleep 8
    global_load_dword v{vr}, v{vz}, s[28:29] sc1
    s_waitcnt vmcnt(0)
    s_branch {l}
{g}:''')
    k.vm_op(f'buffer_atomic_add v{vb}, v{va}, s[12:15], {soff} offen sc1', maybe=True)
    k.e(f'{d}:')
def bar_regs(va, vb):
    return f'''v_lshlrev_b32 v{va}, 10, v2
    v_cmp_gt_u32 vcc, {NREP}, v2
    v_mov_b32 v{vb}, 0x7fff0000
    v_cndmask_b32 v{va}, v{vb}, v{va}, vcc
    v_mov_b32 v{vb}, 1'''

P2_U, P2_CP, P2_X, P2_XI, P2_GC = 0, 57344, 114688, 126976, 139264
IMG = 29696; KSP = 4*IMG
ACC0 = 16; RING = 80; WX = 96; ET = 104
REGI = [0, 1, 4, 5, 8, 9, 12, 13, 2]; LDSI = [3, 6, 7, 10, 11]
WDL = [120832, 120832+16384, 0, 16384, 32768]
X1L = 59392; RED = 71680; XR = 128
R1N = 18; R1L = 10240; R2L = IMG
VD, VM, VS, TB = 208, 209, 210, 211
def wdreg(i, f):
    n = REGI.index(i)*4 + f
    return v(144+4*n, 4) if n < 28 else a(224+4*(n-28), 4)
def acc4(rl, t): return ACC0 + 32*rl + 16*t

def gen_kp(cfg=None):
    C = dict(CFG); C.update(cfg or {})
    k = K(); k.stamp(0); k.st('start')
    k.e(f'''
    s_load_dwordx16 s[16:31], s[0:1], 48
    s_cmp_lt_u32 s2, {NSIDE}
    s_cbranch_scc1 KP_SIDE
    s_load_dwordx2 s[4:5], s[0:1], 0
    s_cmp_ge_u32 s2, {GRID}
    s_cbranch_scc1 KP_END
    v_lshrrev_b32 v1, 6, v0
    v_and_b32 v2, 63, v0
    v_readfirstlane_b32 s3, v1
    v_lshlrev_b32 v3, 4, v2          ; lane*16
    v_and_b32 v4, 31, v2             ; lane&31
    v_lshrrev_b32 v5, 5, v2          ; h
    s_mov_b32 s14, {WS_END}
    s_mov_b32 s15, 0x20000
    s_and_b32 s34, s2, 1             ; hi
    s_lshr_b32 s35, s2, 3
    s_sub_u32 s35, s35, {NSIDE//8}
    s_mul_i32 s33, s35, 37
    s_lshr_b32 s33, s33, 8           ; gl = q/7
    s_and_b32 s6, s2, 7
    s_lshl_b32 s6, s6, 1
    s_lshr_b32 s7, s33, 1
    s_add_u32 s6, s6, s7             ; pair p
    s_sub_u32 s7, 32, s6
    s_cmp_eq_u32 s6, 0
    s_cselect_b32 s7, 16, s7
    s_bitcmp1_b32 s33, 0
    s_cselect_b32 s36, s7, s6        ; g
    s_and_b32 s32, s2, 6
    s_lshl_b32 s32, s32, 1
    s_add_u32 s32, s32, s33          ; G
    s_mul_i32 s33, s33, 7
    s_sub_u32 s35, s35, s33          ; lo
    s_mul_i32 s33, s34, 7
    s_add_u32 s33, s33, s35          ; mem
    ''')
    f = P1(k, C)
    P2(k, C, f)
    P3(k, C)
    P4(k, C)
    k.st('end')
    if K.MARK and not K.MARK.startswith('sd'): k.mark_spin()
    k.stamp_out(0, len(K.NAMES or [])+2)
    k.e('s_endpgm\nKP_SIDE:'); k.reset_counts(); side(k, C)
    k.e('KP_END:\ns_endpgm\nKP_LAST:')
    return k.L

def w3_dma(k, lo, hi, ldsbase):
    q = Q(k)
    for ks in range(lo, hi):
        j, mu, a_ = ks >> 2, (ks >> 1) & 1, ks & 1
        row = 32*j + 16*a_ if not mu else 433 - 32*j - 16*a_
        vo = VS if ks == 2 else VM if mu else VD
        so = '0' if ks in (0, 2) else 's61'
        pre = f's_add_u32 m0, s60, {ldsbase + (ks-lo)*8192}\n' + (f's_mov_b32 s61, {row*3584}' if so != '0' else 's_nop 0')
        q.vm(pre, f'buffer_load_dwordx4 v{vo}, s[16:19], {so} offen lds')
        q.vm(None, f'buffer_load_dwordx4 v{vo}, s[20:23], {so} offen offset:1024 lds', f'w3_{ks}')
    return q
def w3_tr(k, lo, hi):
    q = Q(k)
    for ks in range(lo, hi):
        n = ks - lo
        for mt in range(2):
            for hf in range(2):
                q.add(('ds', f'ds_read_b64_tr_b16 {a(8*ks+4*mt+2*hf,2)}, v{TB+(n>>3)} offset:{(n&7)*8192+mt*1024+hf*4096}', 'tr'))
    return q

def P1(k, C):
    X = 16; UP = 72; M = 88; T = 96; WL = 112; WO = 120; BF = 128; AC = 160
    k.e(f'''
    v_lshrrev_b32 v6, 3, v2
    s_lshl_b32 s6, s3, 4
    v_add_u32 v6, s6, v6
    v_and_b32 v7, 7, v2
    v_mul_u32_u24 v8, {32*896}, v6
    v_lshl_add_u32 v8, v7, 4, v8
    v_add_u32 v9, {8*32*896}, v8     ; set 1
    s_mul_i32 s39, s36, 896
    s_lshl_b32 s40, s35, 7
    s_mov_b32 s10, {2048*896}
    s_mov_b32 s11, 0x20000
    s_add_u32 s41, s39, s40
    s_add_u32 s42, s39, 896
    ''')
    f = Q(k)
    f.lines(f'''
    s_sub_u32 s6, s2, {NSIDE}
    s_lshl_b32 s6, s6, 2
    s_add_u32 s6, s6, s3             ; unit
    s_mul_i32 s7, s6, 9363
    s_lshr_b32 s7, s7, 16            ; rb = u/7
    s_mul_i32 s43, s7, 7
    s_sub_u32 s43, s6, s43           ; jt
    s_mul_i32 s44, s7, {16*896}
    s_lshl_b32 s45, s43, 7
    s_add_u32 s44, s44, s45
    s_add_u32 s45, s44, {8*896}
    v_mul_u32_u24 v10, {4*896}, v5
    v_lshl_add_u32 v10, v4, 2, v10
    s_lshl_b32 s43, s43, 2
    s_bfe_u32 s46, s7, 0x20001
    s_add_u32 s43, s43, s46
    s_mul_i32 s43, s43, 14
    s_lshr_b32 s46, s7, 3
    s_add_u32 s43, s43, s46
    s_lshl_b32 s43, s43, 1
    s_and_b32 s46, s7, 1
    s_add_u32 s43, s43, s46
    s_lshl_b32 s43, s43, 11
    s_add_u32 s43, s43, {WS_WDP}''')
    f.add('s_cmp_lt_u32 s6, 784\ns_cselect_b32 s43, s43, 0x7fff0000')
    f.lines(f'''
    v_lshrrev_b32 v{T}, 4, v2
    v_bfe_u32 v{T+1}, v2, 2, 2
    v_xor_b32 v{T+1}, v{T+1}, v{T}
    v_and_b32 v{T+2}, 3, v2
    v_lshlrev_b32 v{T+2}, 4, v{T+2}
    v_lshl_add_u32 v{T+1}, v{T+1}, 6, v{T+2}
    s_lshl_b32 s6, s33, 8
    v_add_u32 v{T+1}, s6, v{T+1}
    s_lshl_b32 s6, s3, 2
    v_add_u32 v{T}, s6, v{T}
    v_mul_u32_u24 v{VD}, 3584, v{T}
    v_sub_u32 v{VM}, {15*3584}, v{VD}
    v_add_u32 v{VD}, v{VD}, v{T+1}
    v_add_u32 v{VM}, v{VM}, v{T+1}
    v_cmp_eq_u32 vcc, 0, v{T}
    v_mov_b32 v{T+1}, {433*3584}
    v_mov_b32 v{T+2}, {(433-224)*3584}
    v_cndmask_b32 v{T+1}, v{T+1}, v{T+2}, vcc
    v_add_u32 v{VS}, v{VM}, v{T+1}
    s_lshl_b32 s60, s3, 11
    ''')
    nearly = len(f)
    f.lines(f'''
    s_and_b32 s46, s3, 1
    s_lshl_b32 s46, s46, 4
    s_lshr_b32 s47, s3, 1            ; isI
    v_and_b32 v11, 15, v2
    v_add_u32 v12, s46, v11          ; g row
    v_cvt_f32_u32 v13, v12''')
    f.add(f'''s_cmp_eq_u32 s47, 1
    s_cselect_b32 s6, {f2h(0.25)}, 0
    s_cselect_b32 s7, {f2h(32.0)}, 0''')
    f.lines(f'''
    v_cmp_eq_u32 vcc, 0, v12
    v_mov_b32 v{T}, s6
    v_mov_b32 v{T+1}, s7
    v_cndmask_b32 v13, v13, v{T+1}, vcc
    v_cndmask_b32 v{T}, v{T}, 0, vcc
    v_mul_f32 v13, {f2h(1/64)}, v13
    v_lshrrev_b32 v14, 4, v2
    v_lshlrev_b32 v14, 2, v14
    v_cvt_f32_u32 v{T+1}, v14
    v_fma_f32 v{T}, v13, v{T+1}, v{T}
    ''')
    for ks in range(2):
        for n in range(8): f.add(f'v_fmamk_f32 v{T+2+n}, v13, {f2h(32*ks + 16*(n >> 2) + (n & 3))}, v{T}')
        for n in range(8): f.add(f'v_cos_f32 v{T+2+n}, v{T+2+n}')
        for r in range(4): f.add(f'v_cvt_pk_bf16_f32 v{M+4*ks+r}, v{T+2+2*r}, v{T+3+2*r}')
    f.lines(f'''
    v_mul_u32_u24 v6, 160, v6
    v_lshl_add_u32 v6, v7, 4, v6
    v_lshrrev_b32 v7, 2, v2
    v_mul_u32_u24 v7, 160, v7
    v_and_b32 v12, 3, v2
    v_lshl_add_u32 v7, v12, 3, v7
    v_add_u32 v14, s46, v14
    v_mul_u32_u24 v14, {2*32*896}, v14
    v_lshl_add_u32 v14, v11, 3, v14  ; U voffset
    s_mul_i32 s47, s47, {32*896}
    s_add_u32 s47, s47, s39
    s_add_u32 s47, s47, s40          ; U soffset
    s_mov_b32 s46, 0x3f803f80
    s_mov_b32 s37, 0x05040100
    s_mov_b32 s38, 0x07060302
    ''')
    for i in range(0, 8, 2): f.add(f'v_mov_b64 {P(T+i)}, 0')
    f.emit(30)
    k.e('s_waitcnt lgkmcnt(0)\ns_mov_b32 s8, s4\ns_and_b32 s9, s5, 0xffff')
    for i in range(7):
        for st in range(2): k.vm_op(f'buffer_load_dwordx4 {v(X+28*st+4*i,4)}, v{8+st}, s[8:11], s41 offen', f'x{i}{st}')
        if i == 0: k.e(srd_txt(56, 20, 1792*896) + f'\ns_mov_b32 s12, s30\ns_and_b32 s13, s31, 0xffff')
        if i == 1: k.e(f's_sub_u32 s20, s18, 1024\ns_subb_u32 s21, s19, 0\ns_and_b32 s21, s21, 0xffff\ns_mov_b32 s22, {448*3584+1024}\ns_mov_b32 s23, 0x20000\ns_and_b32 s17, s17, 0xffff\ns_mov_b32 s18, {448*3584}\ns_mov_b32 s19, 0x20000')
        if i >= 2: f.cyc(C['p1_fill'])
        if i < 6: k.e('s_add_u32 s41, s41, 128\ns_cmp_ge_u32 s41, s42\ns_cselect_b32 s41, s39, s41')
    f.flush()
    k.st('p1iss')
    w3 = w3_dma(k, 0, R1N, R1L)
    w3.q[0:0] = [('vm', f'buffer_load_dword v{WL+n}, v10, s[56:59], s{44+(n>>2)} offen offset:{896*(n&3)}', 'wl') for n in range(8)]
    for i in range(7):
        for st in range(2):
            k.wait(vm=f'x{i}{st}')
            for d in range(4):
                r = X+28*st+4*i+d; t = T+4*st+(d & 1)
                k.e(f'v_dot2_f32_bf16 v{t}, v{r}, s46, v{t}\nv_dot2_f32_bf16 v{t+2}, v{r}, v{r}, v{t+2}')
            if i == 0:
                for d in range(4): k.e(f'v_lshlrev_b32 v{UP+8*st+2*d}, 16, v{X+28*st+d}\nv_and_b32 v{UP+8*st+2*d+1}, 0xffff0000, v{X+28*st+d}')
            if (i, st) != (6, 1): w3.emit(C['p1_w3_ld'])
    k.st('p1dat')
    for t in (T, T+2, T+4, T+6): k.e(f'v_add_f32 v{t}, v{t}, v{t+1}')
    for m in ('quad_perm:[1,0,3,2]', 'quad_perm:[2,3,0,1]', 'row_half_mirror'):
        for t in (T, T+2, T+4, T+6): k.e(f'v_add_f32_dpp v{t}, v{t}, v{t} {m} row_mask:0xf bank_mask:0xf')
    for txt in (f'v_mul_f32 v#0, {f2h(-1/448)}, v#0', f'v_mul_f32 v#2, {f2h(1/448)}, v#2', 'v_fma_f32 v#2, -v#0, v#0, v#2', 'v_max_f32 v#2, 0, v#2',
                f'v_add_f32 v#2, {f2h(1e-5)}, v#2', 'v_rsq_f32 v#2, v#2', 'v_mul_f32 v#0, v#0, v#2'):
        for st in range(2): k.e(txt.replace('#0', str(T+4*st)).replace('#2', str(T+4*st+2)))
    for st in range(2):
        t = T+4*st
        for d in range(4): k.e(f'v_pk_fma_f32 {P(UP+8*st+2*d)}, {P(UP+8*st+2*d)}, {P(t+2)}, {P(t)} op_sel_hi:[1,0,0]')
        for d in range(4): k.e(f'v_cvt_pk_bf16_f32 v{X+4*st+d}, v{UP+8*st+2*d}, v{UP+8*st+2*d+1}')
        k.ds_op(f'ds_write_b128 v6, {v(X+4*st,4)} offset:{8*160*st}')
    w3.emit(C['p1_w3_a'])
    k.wait(lg='all'); k.e('s_barrier'); k.st('p1bar')
    for ks in range(2):
        for t in range(4):
            for hf in range(2):
                k.ds_op(f'ds_read_b64_tr_b16 {v(BF+16*ks+4*t+2*hf,2)}, v7 offset:{ks*32*160+hf*16*160+t*32}', f'b{ks}{t}')
    w3.emit(C['p1_w3_b'])
    k.wait(vm='wl')
    pq = Q(k)
    for t in range(2):
        for r in range(4): pq.add(f'v_perm_b32 v{WO+4*t+r}, v{WL+2*r+1}, v{WL+2*r}, s{37+t}')
        pq.vm(None, f'buffer_store_dwordx4 {v(WO+4*t,4)}, v3, s[12:15], s43 offen offset:{1024*t} sc1')
    for ks in range(2):
        for t in range(4):
            k.wait(lg=f'b{ks}{t}')
            c = '0' if ks == 0 else v(AC+4*t,4)
            k.e(f'v_mfma_f32_16x16x32_bf16 {v(AC+4*t,4)}, {v(M+4*ks,4)}, {v(BF+16*ks+4*t,4)}, {c}')
            pq.emit(1)
    pq.flush()
    for r in range(4):
        k.e(f'v_cvt_pk_bf16_f32 v{X+2*r}, v{AC+r}, v{AC+4+r}\nv_cvt_pk_bf16_f32 v{X+2*r+1}, v{AC+8+r}, v{AC+12+r}')
        k.vm_op(f'buffer_store_dwordx2 {v(X+2*r,2)}, v14, s[12:15], s47 offen sc1', 'ust')
        if r < 3: k.e(f's_add_u32 s47, s47, {2*32*896}')
    k.st('p1st')
    ready_issue(k, UP+2, UP+3, 'ust')
    k.e(bar_regs(UP, UP+1) + f'\ns_add_u32 s40, s40, {WS_FLAG+FL_BAR}')
    f2 = P2_pre(k)
    n1 = R1N - (len(w3)+1)//2
    for n in range(C['p1_w3_drain']): w3.emit(1); f2.cyc(C['p1_fill_drain'])
    n2 = R1N - (len(w3)+1)//2
    k.wait(vm='ust'); k.e('s_barrier'); k.st('sig1')
    bar_signal(k, 's40', UP, UP+1, UP+2, UP+3)
    tr = w3_tr(k, 0, R1N)
    while len(w3):
        w3.emit(1); f2.cyc(24)
        if 4*R1N - len(tr) < 4*n1: tr.emit(2)
    tr.emit(4*n1 - (4*R1N - len(tr)))
    f2.flush()
    if n2 < R1N:
        k.wait(vm=f'w3_{n2-1}'); k.e('s_barrier')
        tr.emit(4*(n2-n1))
    k.wait(vm=f'w3_{R1N-1}'); k.e('s_barrier'); k.st('r1land')
    tr.flush()
    k.wait(lg='all'); k.e('s_barrier'); k.st('r1tr')
    return None

ACC = 16; FB = 32; CC = 96; SG = 104; IC = 112; RS = 120; IS = 128; XV = 136; GA = 152; CB = 168; ZF = 184; ZB = 188; T2 = 192
def P2_pre(k):
    T = T2; f = Q(k)
    f.lines(f'''
    v_bfe_u32 v{TB}, v2, 2, 2
    v_xor_b32 v{T}, s3, v{TB}
    v_lshlrev_b32 v{TB}, 8, v{TB}
    v_lshl_add_u32 v{TB}, v{T}, 6, v{TB}
    v_bfe_u32 v{T}, v2, 4, 1
    v_lshl_add_u32 v{TB}, v{T}, 5, v{TB}
    v_and_b32 v{T}, 3, v2
    v_lshl_add_u32 v{TB}, v{T}, 3, v{TB}
    v_lshl_add_u32 v{TB}, v5, 11, v{TB}
    v_add_u32 v{TB}, {R1L}, v{TB}
    v_add_u32 v{TB+1}, 0x10000, v{TB}
    v_add_u32 v{TB+2}, 0x20000, v{TB}
    s_and_b32 s48, s3, 1
    s_lshr_b32 s49, s3, 1
    v_lshrrev_b32 v6, 3, v2
    s_lshl_b32 s6, s3, 4
    v_add_u32 v6, s6, v6
    v_mul_u32_u24 v6, 896, v6
    v_lshrrev_b32 v{T+8}, 4, v2
    v_xor_b32 v{T+8}, v{T+8}, v2
    v_and_b32 v{T+8}, 7, v{T+8}
    v_xor_b32 v{T+9}, 4, v{T+8}
    v_lshl_add_u32 v{T+9}, v{T+9}, 4, v6
    v_add_u32 v{T+9}, {8*896-1024}, v{T+9}
    v_lshl_add_u32 v{T+8}, v{T+8}, 4, v6
    s_mul_i32 s52, s36, 57344        ; U soffset
    s_mul_i32 s54, s49, 28
    s_lshl_b32 s55, s48, 1
    s_add_u32 s54, s54, s55
    s_lshl_b32 s54, s54, 10
    s_mul_i32 s55, s35, 57344
    s_add_u32 s55, s55, s54
    s_add_u32 s55, s55, {WS_CP}
    s_lshl_b32 s24, s32, 9
    s_add_u32 s24, s24, {WS_FLAG}
    ''')
    f.add('s_add_u32 s24, s24, s30\ns_addc_u32 s25, s31, 0')
    f.lines(f'''s_lshl_b32 s53, s32, 9
    s_lshl_b32 s6, s3, 8
    s_add_u32 s53, s53, s6
    s_add_u32 s53, s53, {FL_BAR}
    s_add_u32 s56, s53, 128''')
    f.add(t1_txt('s50', 's36', 's48', 's6'))
    f.lines(f'''s_lshl_b32 s51, s35, 1
    s_add_u32 s51, s51, s49          ; beta
    s_lshl_b32 s41, s51, 7
    s_add_u32 s41, s41, {WS_MOD+GA_P}
    v_lshlrev_b32 v{T+13}, 2, v4
    v_lshl_add_u32 v{T+13}, v5, 11, v{T+13}
    s_lshl_b32 s42, s3, 8
    s_add_u32 s42, s42, {P2_GC}
    v_lshl_add_u32 v{T+14}, v5, 4, s42''')
    f.add(f'''s_lshl_b32 s7, s35, 6
    s_sub_u32 s6, 832, s7
    s_cmp_eq_u32 s49, 0
    s_cselect_b32 s7, s7, s6
    s_add_u32 s6, s7, 64
    s_cmp_eq_u32 s6, 896
    s_cselect_b32 s6, 448, s6
    s_cmp_eq_u32 s49, 0
    s_cselect_b32 s6, 0x7fff0000, s6
    v_mov_b32 v{T+3}, s6''')
    f.lines(f's_mul_i32 s43, s50, 896\ns_mul_i32 s44, s3, 3072\ns_add_u32 s44, s44, {P2_XI}')
    for t in range(3):
        f.lines(f'''v_add_u32 v{T}, {64*t}, v2
        v_mul_u32_u24 v{T+1}, 205, v{T}
        v_lshrrev_b32 v{T+1}, 10, v{T+1}
        v_mul_u32_u24 v{T+2}, 5, v{T+1}
        v_sub_u32 v{T}, v{T}, v{T+2}
        v_cmp_eq_u32 vcc, 4, v{T}
        v_lshl_add_u32 v{T}, v{T}, 4, s7
        v_mul_u32_u24 v{T+1}, {64*896}, v{T+1}
        v_cndmask_b32 v{T}, v{T}, v{T+3}, vcc
        v_add_u32 v{T+10+t}, v{T}, v{T+1}''')
    f.lines(f'''
    v_lshlrev_b32 v{T}, 6, v4
    v_add_u32 v{T}, s50, v{T}
    v_cmp_eq_u32 vcc, 0, v{T}
    v_mov_b32 v{ZB}, 0x45004500
    v_cvt_f32_u32 v{T}, v{T}
    v_cndmask_b32 v{ZB}, 0, v{ZB}, vcc
    v_mov_b32 v{ZB+1}, v{ZB}
    v_mov_b32 v{ZB+2}, v{ZB}
    v_mov_b32 v{ZB+3}, v{ZB}
    v_mul_f32 v{T}, {f2h(1/2048)}, v{T}
    v_lshlrev_b32 v{T+1}, 2, v5
    v_cvt_f32_u32 v{T+1}, v{T+1}
    v_mul_f32 v{T+1}, v{T}, v{T+1}
    s_lshl_b32 s6, s48, 12
    v_lshlrev_b32 v9, 7, v4
    v_add_u32 v9, s6, v9
    v_bfe_u32 v{T+2}, v2, 1, 3
    v_xor_b32 v{T+2}, v{T+2}, v5
    v_lshl_add_u32 v9, v{T+2}, 4, v9
    v_xor_b32 v10, 32, v9
    v_xor_b32 v11, 64, v9
    v_xor_b32 v12, 96, v9
    s_mul_i32 s6, s49, {28*1024}
    s_add_u32 s6, s6, {P2_CP}
    v_add_u32 v13, s6, v3
    ''')
    for r in range(8):
        f.lines(f'''v_fmamk_f32 v{T+2}, v{T}, {f2h(DELT[2*r])}, v{T+1}
        v_fmamk_f32 v{T+3}, v{T}, {f2h(DELT[2*r+1])}, v{T+1}
        v_cos_f32 v{T+4}, v{T+2}
        v_cos_f32 v{T+5}, v{T+3}
        v_sin_f32 v{T+2}, v{T+2}
        v_sin_f32 v{T+3}, v{T+3}
        v_cvt_pk_bf16_f32 v{CC+r}, v{T+4}, v{T+5}
        v_cvt_pk_bf16_f32 v{SG+r}, v{T+2}, v{T+3}''')
    f.add(f'''s_cmp_eq_u32 s36, 0
    s_cselect_b32 s6, 0, -1
    s_cselect_b32 s46, s48, 0
    v_mov_b32 v{T}, s6
    s_cmp_eq_u32 s48, 1
    s_cselect_b32 s6, 0x80008000, 0
    s_cmp_eq_u32 s49, 1
    s_cselect_b32 s7, 0, 0x80008000
    s_xor_b32 s45, s6, s7
    s_xor_b32 s45, s45, 0x80008000''')
    for r in range(8):
        f.lines(f'''v_bitop3_b32 v{IC+r}, v{SG+r}, s6, v{T} bitop3:0x28
        v_xor_b32 v{RS+r}, s7, v{SG+r}
        v_bitop3_b32 v{IS+r}, v{CC+r}, s45, v{T} bitop3:0x28''')
    f.lines(f's_add_u32 s6, s60, {P2_X}\nv_add_u32 v0, s6, v3')
    for r in range(0, 16, 2): f.add(f'v_mov_b64 {P(XV+r)}, 0')
    f.add(f'''s_cmp_eq_u32 s51, 1
    s_cselect_b32 s6, 4096, 0
    s_cselect_b32 s45, 7, s35
    v_mov_b32 v{T}, s6''')
    f.lines(f'''v_cmp_eq_u32 vcc, 0, v4
    v_add_u32 v15, {P2_X+4096}, v3
    v_mul_u32_u24 v1, 80, v4
    v_cndmask_b32 v{T}, 0, v{T}, vcc
    v_add_u32 v14, v0, v{T}
    v_lshl_add_u32 v7, v{T}, 1, v3
    v_add_u32 v7, {P2_X}, v7
    s_lshl_b32 s6, s46, 11
    v_add_u32 v6, s6, v7
    v_add_u32 v8, s6, v15
    v_add_u32 v1, s44, v1
    v_lshlrev_b32 v{T}, 3, v5
    v_sub_u32 v{T+1}, 10, v{T}
    s_lshl_b32 s45, s45, 10
    s_add_u32 s45, s45, {WS_ZF}''')
    f.add(f'''s_cmp_eq_u32 s49, 0
    s_cselect_b64 vcc, -1, 0
    v_cndmask_b32 v{T}, v{T+1}, v{T}, vcc
    v_add_u32 v1, v1, v{T}''')
    f.lines(f'''
    s_lshl_b32 s6, s32, 1
    s_add_u32 s6, s6, s34
    s_lshl_b32 s6, s6, 1
    s_add_u32 s6, s6, s48            ; rho
    s_mul_i32 s57, s6, 14
    s_add_u32 s57, s57, s51
    s_lshl_b32 s58, s57, 8
    s_add_u32 s58, s58, {WS_ST}
    s_lshl_b32 s57, s57, 11
    s_add_u32 s59, s57, {WS_X1}
    s_add_u32 s57, s57, {WS_X1C}
    v_lshlrev_b32 v{T+15}, 3, v4
    v_lshl_add_u32 v{T+15}, v5, 2, v{T+15}
    s_lshl_b32 s62, s34, 1
    s_xor_b32 s62, s62, s49
    s_lshl_b32 s6, s35, 2
    s_add_u32 s6, s6, s3
    s_mul_i32 s6, s6, {56*1024}
    s_add_u32 s6, s6, {WS_WDP}
    v_add_u32 v{VS}, s6, v3
    ''')
    for n, i in enumerate((9, 12, 13, 2)): f.lines(f's_xor_b32 s6, s{62 if i < 12 else 49}, {i}\ns_lshl_b32 s{63+n}, s6, 12')
    return f

def P2(k, C, _):
    T = T2
    k.ds_op(f'ds_write_b128 v0, {v(XV,4)}'); k.ds_op(f'ds_write_b128 v0, {v(XV,4)} offset:1024')
    for t in range(3):
        k.e(f's_add_u32 m0, s44, {1024*t}')
        k.vm_op(f'buffer_load_dwordx4 v{T+10+t}, s[8:11], s43 offen lds', 'xi')
    k.e(f'v_add_u32 v{TB}, {R2L-R1L}, v{TB}\nv_add_u32 v{TB+1}, {R2L-R1L}, v{TB+1}')
    l, d = k.label('B1'), k.label('B1D')
    k.e(f'''s_cmp_eq_u32 s3, 3
    s_cselect_b32 s7, s53, s56
    s_mov_b32 s1, 0
{l}:
    s_mov_b32 s0, 0
    s_mov_b32 s6, 0
    s_atomic_add s0, s[24:25], s53 glc
    s_atomic_add s6, s[24:25], s7 glc
    s_add_u32 s1, s1, 1
    s_cmp_gt_u32 s1, {SPIN_MAX}
    s_cbranch_scc1 {d}
    s_waitcnt lgkmcnt(0)
    s_add_u32 s0, s0, s6
    s_cmp_eq_u32 s0, 72
    s_cbranch_scc0 {l}
{d}:
    s_mov_b32 m0, s60
    s_barrier''')
    k.lg = []; k.st('bar1')
    dq = Q(k)
    for c in range(7):
        dq.vm(f's_add_u32 m0, s60, {8192*c}\ns_add_u32 s52, s52, 128' if c else None, f'buffer_load_dwordx4 v{T+8}, s[12:15], s52 offen sc1 lds')
        dq.vm(None, f'buffer_load_dwordx4 v{T+9}, s[12:15], s52 offen offset:1024 sc1 lds')
        dq.vm(f's_add_u32 m0, s54, {P2_CP+4096*c}' + ('\ns_add_u32 s55, s55, 4096' if c else ''), 'buffer_load_dwordx4 v3, s[12:15], s55 offen sc1 lds')
        dq.vm(None, 'buffer_load_dwordx4 v3, s[12:15], s55 offen offset:1024 sc1 lds', f'ch{c}')
    dq.vm('s_mov_b32 m0, s42', f'buffer_load_dword v{T+13}, s[12:15], s41 offen sc1 lds', 'gc')
    dq.vm(None, f'buffer_load_dwordx4 {v(ZF,4)}, v3, s[12:15], s45 offen sc1', 'zf')
    wd = Q(k)
    for n, i in enumerate((9, 12, 13, 2)):
        for f in range(4): wd.vm(None, f'buffer_load_dwordx4 {wdreg(i,f)}, v{VS}, s[12:15], s{63+n} offen offset:{1024*f} sc1', f'wd{i}')
    dq.emit(6)
    poll_issue(k, 's56', 's47', 3)
    k.wait(vm='xi')
    la, lb = k.label('P2xa'), k.label('P2xb')
    k.e(f's_cmp_eq_u32 s49, 0\ns_cbranch_scc0 {la}')
    for r in range(16): k.e(f'ds_read_u16_d16_hi v{XV+r}, v1 offset:{2*DELT[r]}')
    k.e(f's_branch {lb}\n{la}:')
    for r in range(16): k.ds_op(f'ds_read_u16_d16_hi v{XV+r}, v1 offset:{2*DELT[15-r]}', 'xv')
    k.e(f'{lb}:')
    dq.emit(12)
    def rdk(c, kk):
        b = FB + 32*(c & 1)
        k.ds_op(f'ds_read_b128 {v(b+8*kk,4)}, v{9+kk} offset:{P2_U+8192*c}')
        k.ds_op(f'ds_read_b128 {v(b+8*kk+4,4)}, v13 offset:{(4*c+kk)*1024}', f'r{c}{kk}')
    def mfk(c, kk):
        b = FB + 32*(c & 1)
        k.wait(lg=f'r{c}{kk}')
        cc = '0' if c == 0 and kk == 0 else v(ACC,16)
        k.e(f'v_mfma_f32_32x32x16_bf16 {v(ACC,16)}, {v(b+8*kk,4)}, {v(b+8*kk+4,4)}, {cc}')
    k.st('issued')
    for c in range(7):
        if c == 2: assert len(dq) >= 2; poll_check(k, 's56', 32, 's47', 3)
        k.wait(vm=f'ch{c}'); k.e('s_barrier'); k.st(f'c{c}')
        for kk in range(4):
            if c: mfk(c-1, kk)
            rdk(c, kk)
            if len(dq): dq.emit(1)
            elif kk < C['wd_chunk']: wd.emit(1)
    assert not len(dq)
    k.st('A6')
    k.wait(vm='zf')
    for kk in range(4):
        mfk(6, kk)
        k.ds_op(f'ds_read_b128 {v(GA+4*kk,4)}, v{T+14} offset:{32*kk}'); k.ds_op(f'ds_read_b128 {v(CB+4*kk,4)}, v{T+14} offset:{128+32*kk}', 'gcr')
    wd.flush()
    for hf in range(2):
        for r in range(4*hf, 4*hf+4): k.e(f'v_cvt_pk_bf16_f32 v{T+r}, v{ACC+2*r}, v{ACC+2*r+1}')
        k.ds_op(f'ds_write_b128 v14, {v(T+4*hf,4)} offset:{1024*hf}')
    k.e(f'v_mfma_f32_32x32x16_bf16 {v(ACC,16)}, {v(ZF,4)}, {v(ZB,4)}, 0')
    k.wait(lg='all'); k.e('s_barrier'); k.st('Xbar')
    k.r2 = r2 = w3_dma(k, R1N, 28, R2L)
    kinds = [('v6', 0, CC), ('v7', 2048, IC), ('v8', 0, RS), ('v15', 2048, IS)]
    rb = [(f'ds_read_b128 {v(FB+8*i+4*a_,4)}, {ad} offset:{off+1024*a_}', f'x{i}{a_}') for i, (ad, off, _) in enumerate(kinds) for a_ in range(2)]
    for x in rb[:4]: k.ds_op(*x)
    r2.emit(C['r2_pre'])
    for n in range(8):
        i, a_ = n >> 1, n & 1
        k.wait(lg=f'x{i}{a_}')
        k.e(f'v_mfma_f32_32x32x16_bf16 {v(ACC,16)}, {v(FB+8*i+4*a_,4)}, {v(kinds[i][2]+4*a_,4)}, {v(ACC,16)}')
        if n < 2: k.ds_op(*rb[4+2*n]); k.ds_op(*rb[5+2*n])
        elif (n & 1) and (n >> 1) <= C['r2_b']: r2.emit(1)
    for hf in range(2):
        R = range(8*hf, 8*hf+8, 2)
        for r in R: k.e(f'v_pk_fma_f32 {P(XV+r)}, {P(ACC+r)}, {P(GA+r)}, {P(XV+r)}')
        for r in R: k.e(f'v_pk_mul_f32 {P(CB+r)}, {P(CB+r)}, {P(XV+r)}')
        for r in range(4*hf, 4*hf+4): k.e(f'v_cvt_pk_bf16_f32 v{FB+r}, v{CB+2*r}, v{CB+2*r+1}')
        k.vm_op(f'buffer_store_dwordx4 {v(FB+4*hf,4)}, v3, s[12:15], s57 offen offset:{1024*hf} sc1')
    k.e(f'v_pk_add_f32 {P(T)}, {P(XV)}, {P(XV+2)}\nv_pk_mul_f32 {P(T+2)}, {P(XV)}, {P(XV)}')
    for r in range(2, 16, 2):
        if r >= 4: k.e(f'v_pk_add_f32 {P(T)}, {P(T)}, {P(XV+r)}')
        k.e(f'v_pk_fma_f32 {P(T+2)}, {P(XV+r)}, {P(XV+r)}, {P(T+2)}')
    k.e(f'''v_add_f32 v{T}, v{T}, v{T+1}
    v_add_f32 v{T+1}, v{T+2}, v{T+3}
    v_cvt_pk_bf16_f32 v{FB+8}, v{XV}, v{XV+1}
    v_cvt_pk_bf16_f32 v{FB+9}, v{XV+2}, v{XV+3}
    v_permlane32_swap_b32 v{T}, v{T+1}
    v_add_f32 v{T}, v{T}, v{T+1}''')
    k.vm_op(f'buffer_store_dword v{T}, v{T+15}, s[12:15], s58 offen sc1', 'p2st')
    k.st('p2st')
    for hf in range(2):
        for r in range(max(2, 4*hf), 4*hf+4): k.e(f'v_cvt_pk_bf16_f32 v{FB+8+r}, v{XV+2*r}, v{XV+2*r+1}')
        k.vm_op(f'buffer_store_dwordx4 {v(FB+8+4*hf,4)}, v3, s[12:15], s59 offen offset:{1024*hf} sc1')

SM = 48
def sm(i): return f's{SM+i}' if i < 12 else f's{64+i-12}'
VH0, VH1, VWD, VA0, VA1 = 9, 142, 143, 14, 15
def setup34(k):
    q = Q(k); T = ET
    q.lines(f'''s_lshr_b32 s63, s3, 1            ; sw
    v_mov_b32 v{VWD}, v{VS}''')
    for i in range(12): q.lines(f's_xor_b32 s6, s62, {i}\ns_lshl_b32 s{SM+i}, s6, 12')
    q.lines(f'''
    s_lshl_b32 s39, s33, 7
    s_lshl_b32 s6, s32, 9
    s_sub_u32 s39, s39, s6
    s_add_u32 s39, s39, {FL_SIDE}
    s_lshl_b32 s7, s32, 2''')
    for st in range(4):
        q.lines(f'''s_xor_b32 s6, s33, {3^st}
        s_and_b32 s6, s6, 3
        s_add_u32 s6, s6, s7             ; rho
        s_mul_i32 s{44+st}, s6, {28*1024}
        s_add_u32 s{44+st}, s{44+st}, {WS_X1C}
        s_and_b32 s{40+st}, s6, 1
        s_lshr_b32 s6, s6, 1
        s_lshl_b32 s6, s6, 2
        s_add_u32 s6, s6, s3
        s_mul_i32 s6, s6, 14
        s_add_u32 s6, s6, s33
        s_lshl_b32 s6, s6, 1
        s_add_u32 s6, s6, s{40+st}
        s_lshl_b32 s6, s6, 11
        s_add_u32 s{40+st}, s6, {WS_HH}''')
    q.lines(f'''
    s_xor_b32 s6, s33, s3
    s_xor_b32 s6, s6, 3
    s_and_b32 s6, s6, 3
    s_add_u32 s6, s6, s7
    s_mul_i32 s37, s6, 3584
    s_add_u32 s37, s37, {WS_ST}
    s_lshl_b32 s6, s33, 2
    s_add_u32 s6, s6, s3
    s_lshl_b32 s38, s6, 11
    s_add_u32 s38, s38, {WS_WEXT}
    v_lshlrev_b32 v6, 3, v2
    v_add_u32 v7, {2*IMG}, v3
    v_add_u32 v8, {KSP}, v6
    s_mul_i32 s66, s3, 7168
    v_add_u32 v{VA0}, s66, v3
    v_add_u32 v{VA1}, 4096, v{VA0}
    s_add_u32 s70, s7, s62
    s_lshl_b32 s6, s32, 1
    s_add_u32 s6, s6, s34
    s_lshl_b32 s6, s6, 2
    s_add_u32 s6, s6, s3
    s_mul_i32 s6, s6, {56*1024}
    s_add_u32 s6, s6, {WS_HH}
    s_lshl_b32 s67, s63, 11
    s_add_u32 s6, s6, s67
    s_and_b32 s72, s3, 1
    s_lshl_b32 s67, s72, 8
    v_xor_b32 v{VH0}, s67, v3
    v_add_u32 v{VH0}, s6, v{VH0}
    v_xor_b32 v{VH1}, 2048, v{VH0}
    s_lshl_b32 s73, s3, 12
    v_add_u32 v10, s73, v3
    v_add_u32 v11, {WDL[0]}, v10
    s_mul_i32 s70, s70, {28*1024}
    s_add_u32 s70, s70, s67
    s_add_u32 s70, s70, {WS_X1}''')
    q.add(f'''s_lshl_b32 s6, s35, 2
    s_sub_u32 s7, 29, s6
    s_cmp_le_u32 s35, 3
    s_cselect_b32 s67, s6, s7
    s_add_u32 s68, s6, 2
    s_sub_u32 s69, s7, 2
    s_cmp_le_u32 s35, 2
    s_cselect_b32 s68, s68, s69
    s_sub_u32 s69, s7, 4
    s_cmp_le_u32 s35, 3
    s_cselect_b32 s69, 1, s69
    s_cmp_eq_u32 s35, 3
    s_cselect_b32 s68, 13, s68''')
    q.lines(f'''v_and_b32 v127, 15, v2
    v_lshlrev_b32 v127, 4, v127
    v_lshrrev_b32 v{T}, 4, v2
    v_lshl_add_u32 v127, v{T}, 9, v127
    v_add_u32 v127, s70, v127
    s_mul_i32 s71, s3, 3072
    s_add_u32 s71, s71, {X1L}''')
    for t in range(2):
        q.lines(f'''s_lshl_b32 s6, s35, 6
        s_add_u32 s6, s6, {t}
        v_lshl_add_u32 v{T}, v4, 1, s6
        v_cmp_le_u32 vcc, 224, v{T}
        v_sub_u32 v{T+1}, 448, v{T}
        v_cndmask_b32 v{T+1}, v{T}, v{T+1}, vcc
        v_cndmask_b32 v{T+2}, 0, 1, vcc
        v_cmp_eq_u32 vcc, 224, v{T+1}
        v_cndmask_b32 v{T+1}, v{T+1}, 0, vcc
        v_lshrrev_b32 v{T+3}, 5, v{T+1}
        v_lshl_add_u32 v{T+3}, v{T+3}, 1, v{T+2}
        v_cmp_eq_u32 vcc, s68, v{T+3}
        v_mov_b32 v{T+2}, 2
        v_cndmask_b32 v{T+2}, v{T+2}, 1, vcc
        v_cmp_eq_u32 vcc, s67, v{T+3}
        v_bfe_u32 v{T+3}, v{T+1}, 4, 1
        v_cndmask_b32 v{T+2}, v{T+2}, 0, vcc
        v_lshlrev_b32 v{T+2}, 10, v{T+2}
        v_lshl_add_u32 v{T+2}, v{T+3}, 9, v{T+2}
        v_bfe_u32 v{T+3}, v{T+1}, 2, 1
        v_lshl_add_u32 v{T+2}, v{T+3}, 8, v{T+2}
        v_bfe_u32 v{T+3}, v{T+1}, 3, 1
        v_lshl_add_u32 v{T+2}, v{T+3}, 3, v{T+2}
        v_and_b32 v{T+3}, 3, v{T+1}
        v_lshl_add_u32 v{T+2}, v{T+3}, 1, v{T+2}
        v_lshl_add_u32 v{T+2}, v5, 6, v{T+2}
        v_add_u32 v{12+t}, s71, v{T+2}''')
    for b in range(3): q.add(f's_lshl_b32 s{67+b}, s{67+b}, 11')
    for sl in range(3):
        q.lines(f's_xor_b32 s6, s3, {sl+1}\ns_mul_i32 s6, s6, 12288\ns_add_u32 s6, s6, {RED+4096*sl}\nv_add_u32 v{124+sl}, s6, v3')
    q.lines(f'''s_mul_i32 s6, s3, 12288
    s_add_u32 s6, s6, {RED}
    v_add_u32 v1, s6, v3''')
    q.add(t1_txt('s7', 's36', 's63', 's6'))
    q.lines(f'''s_lshl_b32 s72, s72, 10
    s_add_u32 s72, s72, s7
    s_mul_i32 s72, s72, 896
    s_lshl_b32 s6, s35, 7
    s_add_u32 s72, s72, s6
    v_mul_u32_u24 v0, {4*64*896}, v5
    v_lshl_add_u32 v0, v4, 2, v0
    s_mov_b32 s8, s26
    s_and_b32 s9, s27, 0xffff''')
    return q

def epi3(k, acc, st):
    q = Q(k)
    K1 = ET + 2*(st & 1); SS = K1 + 1; T = ET + 4; PK = ET + 12
    for qq in range(4):
        rr = range(4*qq, 4*qq+4); t = T + 4*(qq & 1)
        for r in rr: q.add(f'v_mul_f32 v{t+(r&3)}, v{acc+r}, v{K1}')
        for r in rr: q.add(f'v_exp_f32 v{t+(r&3)}, v{t+(r&3)}')
        for r in rr: q.add(f'v_fma_f32 v{t+(r&3)}, v{t+(r&3)}, v{SS}, v{SS}')
        for r in rr: q.add(f'v_rcp_f32 v{t+(r&3)}, v{t+(r&3)}')
        for r in rr: q.add(f'v_mul_f32 v{t+(r&3)}, v{t+(r&3)}, v{acc+16+r}')
        q.add(f'v_cvt_pk_bf16_f32 v{PK+2*qq}, v{t}, v{t+1}', f'v_cvt_pk_bf16_f32 v{PK+2*qq+1}, v{t+2}, v{t+3}')
        if qq & 1: q.add(('vm', f'buffer_store_dwordx4 {v(PK+4*(qq>>1),4)}, v3, s[12:15], s{40+st} offen offset:{1024*(qq>>1)} sc1', f'hh{st}'))
    return q

def P3(k, C):
    su = setup34(k); r2 = k.r2
    def wd_reg(q, i):
        for f in range(4): q.vm(None, f'buffer_load_dwordx4 {wdreg(i,f)}, v{VWD}, s[12:15], {sm(i)} offen offset:{1024*f} sc1', f'wd{i}')
    def wd_lds(q, i):
        for f in range(4): q.vm(f's_add_u32 m0, s73, {WDL[LDSI.index(i)]}' if f == 0 else None, f'buffer_load_dwordx4 v{VWD}, s[12:15], {sm(i)} offen offset:{1024*f} sc1 lds', f'wd{i}')
    def a_dma(q, st):
        for i in range(7):
            pre = f's_add_u32 m0, s66, {st*IMG+1024*i}' if i in (0, 4) else None
            q.vm(pre, f'buffer_load_dwordx4 v{VA0 if i < 4 else VA1}, s[12:15], s{44+st} offen offset:{1024*(i&3)} sc1 lds', f'a{st}')
    for n in range(C['r2_drain']): r2.emit(1); su.cyc(C['r2_fill'])
    k.wait(vm='p2st'); k.e('s_barrier'); k.st('sigA')
    signal(k, 0)
    poll_issue(k, 's39', 's75')
    wq = Q(k)
    for i in REGI[0:4]: wd_reg(wq, i)
    assert len(r2) <= C['wd_flag']
    wq.q[0:0] = r2.q; r2.q = []
    for n in range(C['wd_flag']):
        wq.emit(1); su.cyc(48)
        if n+1 == C['pollA_at']: poll_issue(k, 0)
    su.flush()
    if C['wd_flag'] < C['pollA_at']: poll_issue(k, 0)
    k.st('w3done')
    k.e(f's_add_u32 s6, s44, s60\ns_mul_i32 s7, s3, 5120\ns_add_u32 s7, s7, 8192\ns_mov_b32 m0, s60\ns_add_u32 s61, s7, s44')
    poll_check(k, 0, 14)
    k.wait(vm='w3_27'); k.e('s_barrier'); k.st('flagA')
    for i in range(2): k.vm_op(f'buffer_load_dwordx4 v3, s[12:15], s6 offen offset:{1024*i} sc1 lds', 'a0a')
    tr = w3_tr(k, R1N, 28)
    k.e('s_mov_b32 m0, s7')
    for i in range(5):
        if i == 4: k.e('s_add_u32 m0, s7, 4096\ns_add_u32 s61, s61, 4096')
        k.vm_op(f'buffer_load_dwordx4 v3, s[12:15], s61 offen offset:{1024*(i&3)} sc1 lds', 'a0b')
        tr.emit(4)
    for i in range(7):
        k.vm_op(f'buffer_load_dwordx2 {v(128+2*i,2)}, v6, s[12:15], s37 offen offset:{512*i} sc1', 'st'); tr.emit(3)
    tr.flush()
    vq = [Q(k) for _ in range(4)]
    a_dma(vq[0], 1)
    for mt in range(2): vq[0].vm(None, f'buffer_load_dwordx4 {v(WX+4*mt,4)}, v3, s[12:15], s38 offen offset:{1024*mt} sc1', 'wx')
    vq[0].q += wq.q
    wd_lds(vq[0], LDSI[0])
    a_dma(vq[1], 2); wd_lds(vq[1], LDSI[1]); wd_lds(vq[1], LDSI[2])
    a_dma(vq[2], 3); wd_lds(vq[2], LDSI[3]); wd_lds(vq[2], LDSI[4])
    wd_reg(vq[3], REGI[4])
    vq[3].vm(f's_lshl_b32 s6, s35, 8\ns_add_u32 s6, s6, {WS_MOD+GB_N}\nv_lshlrev_b32 v14, 3, v4', 'buffer_load_dwordx2 v[14:15], v14, s[12:15], s6 offen sc1', 'gb')
    sq = Q(k)
    for i in range(1, 7): sq.lines(f'v_add_f32 v128, v128, v{128+2*i}\nv_add_f32 v129, v129, v{129+2*i}')
    sq.lines(f'''v_mov_b32 v130, v128
    v_mov_b32 v131, v129
    s_mul_i32 s6, s3, {IMG}
    v_add_u32 v138, s6, v3
    v_permlane32_swap_b32 v128, v130
    v_permlane32_swap_b32 v129, v131
    v_add_f32 v128, v128, v130
    v_add_f32 v129, v129, v131
    v_mul_f32 v128, {f2h(-1/448)}, v128
    v_mul_f32 v129, {f2h(1/448)}, v129
    v_fma_f32 v129, -v128, v128, v129
    v_max_f32 v129, 0, v129
    v_add_f32 v129, {f2h(1e-5)}, v129
    v_rsq_f32 v130, v129
    v_sqrt_f32 v131, v129
    v_cvt_pk_bf16_f32 v132, v128, v128
    v_mul_f32 v130, {f2h(-LOG2E)}, v130
    v_cvt_pk_bf16_f32 v136, v131, v131
    v_and_b32 v137, 0xffff0000, v132
    v_and_b32 v136, 0xffff0000, v136
    v_sub_f32 v137, v128, v137
    v_sub_f32 v136, v131, v136
    v_cmp_eq_u32 vcc, 0, v5
    v_cvt_pk_bf16_f32 v133, v137, v131
    v_cvt_pk_bf16_f32 v134, v131, v136
    v_mov_b32 v135, 0
    v_cndmask_b32 v132, 0, v132, vcc
    v_cndmask_b32 v133, 0, v133, vcc
    v_cndmask_b32 v134, 0, v134, vcc
    s_lshl_b32 s6, s3, 9
    v_add_u32 v137, s6, v8''')
    sq.add(('ds', 'ds_write_b128 v138, v[132:135] offset:28672', 'stw'), ('ds', 'ds_write_b64 v137, v[130:131]', 'stw'))
    seq = [(st, ks) for st in range(4) for ks in range(29)]
    def rd(n):
        st, ks = seq[n]
        base, off = ('v3', st*IMG) if st < 2 else ('v7', (st-2)*IMG)
        k.ds_op(f'ds_read_b128 {v(RING+4*(n&3),4)}, {base} offset:{off+1024*ks}', f'b{n}')
    PD = 3
    k.wait(vm='a0a', lg='all'); k.e('s_barrier'); k.st('P3go')
    for n in range(PD): rd(n)
    fill = Q(k); rate = 0
    for n, (st, ks) in enumerate(seq):
        acc = ACC0 + 32*(st & 1)
        nn = n + PD
        if nn < len(seq):
            s2, k2 = seq[nn]
            if (s2, k2) == (0, 8): poll_check(k, 's39', 2, 's75'); k.wait(vm='a0b'); k.e('s_barrier')
            elif (s2, k2) == (0, 28):
                assert not len(sq); k.wait(vm='a1', lg='stw'); k.e('s_barrier')
                k.ds_op(f'ds_read_b64 {v(ET,2)}, v8', 'ks0')
            elif k2 == 0 and s2 >= 2: k.wait(vm=f'a{s2}'); k.e('s_barrier')
            rd(nn)
        if ks == 27 and st: k.ds_op(f'ds_read_b64 {v(ET+2*(st&1),2)}, v8 offset:{512*st}', f'ks{st}')
        if ks == 2 and st > 0:
            fill = epi3(k, ACC0 + 32*((st-1) & 1), st-1)
            rate = fill.cost() / (2*(C['epi_span'] if st < 3 else C['epi_span3']))
        if (st, ks) == (0, 8): k.wait(vm='st'); fill = sq; rate = 8
        if (st, ks) == (3, C['sigB01']): k.wait(vm='hh1'); k.e('s_barrier'); signal(k, 128)
        if (st, ks) == (3, C['pollB01']): poll_issue(k, 128)
        for mt in range(2):
            if ks < 28: A = a(8*ks+4*mt, 4); k.wait(lg=f'b{n}')
            else: A = v(WX+4*mt, 4); k.wait(vm='wx', lg=f'b{n}')
            c = '0' if ks == 0 else v(acc+16*mt, 16)
            k.e(f'v_mfma_f32_32x32x16_bf16 {v(acc+16*mt,16)}, {A}, {v(RING+4*(n&3),4)}, {c}')
            if mt == 0 and (st == 0 or (ks & 1) == 0): vq[st].emit(1)
            fill.cyc(rate)
        if ks == 28:
            assert not len(fill) and not len(vq[st]), (st, len(fill), len(vq[st]))
            k.st(f'S{st}')

C01 = [(2,0),(2,1),(3,0),(3,1),(6,0),(6,1),(7,0),(7,1),(10,0),(10,1),(11,0),(11,1)]
C2 = [(1,0),(0,1),(5,0),(4,1),(9,0),(8,1),(13,0),(12,1)]
C3 = [(1,1),(5,1),(9,1),(13,1),(0,0),(4,0),(8,0),(12,0)]
def P4(k, C):
    XQ = 112
    XRG = list(range(128, 142)) + [122, 123]
    def hh(q, L):
        for i, rl in L:
            for a_ in range(2): q.vm(None, f'buffer_load_dwordx4 {a(16*i+8*rl+4*a_,4)}, v{VH1 if rl else VH0}, s[12:15], {sm(i)} offen offset:{1024*a_} sc1', f'h{i}_{rl}')
    lq = Q(k); hh(lq, C01)
    for b in range(3): lq.vm(f's_add_u32 m0, s71, {1024*b}', f'buffer_load_dwordx4 v127, s[12:15], s{67+b} offen sc1 lds', 'x1')
    poll_check(k, 128, 14)
    k.wait(vm='hh2', lg='all'); k.e('s_barrier'); signal(k, 256); k.st('sigB2')
    ep = epi3(k, ACC0+32, 3)
    lq.emit(1)
    while len(ep):
        ep.cyc(C['p4_epi'])
        if len(ep): lq.emit(1)
    k.st('epi3')
    RG = [RING, WX]
    def ldsread(i):
        slot = LDSI.index(i)
        base, off = ('v11', WDL[slot]-WDL[0]) if slot < 2 else ('v10', WDL[slot])
        for f in range(4): k.ds_op(f'ds_read_b128 {v(RG[slot&1]+4*f,4)}, {base} offset:{off+1024*f}', f'wl{i}_{f}')
    ldsread(LDSI[0])
    for n in range(C['p4_pre']):
        lq.emit(1); k.e(f'v_mov_b64 {P(XRG[2*n])}, 0')
    assert C['p4_pre'] == 8
    poll_issue(k, 256)
    started = set(); order = C01 + C2 + C3; redw = Q(k)
    for n, (i, rl) in enumerate(order):
        if n == C['p4_sig3']: k.wait(vm='hh3'); k.e('s_barrier'); signal(k, 384); k.st('sigB3')
        if n == C['p4_c2']:
            poll_check(k, 256, 14); k.e('s_barrier'); hh(lq, C2); k.st('B2ok')
        if n == C['p4_poll3']: poll_issue(k, 384)
        if n == C['p4_c3']:
            poll_check(k, 384, 14); k.e('s_barrier'); hh(lq, C3); k.st('B3ok')
        if n == 14:
            k.wait(vm='x1')
            for t in range(2):
                for r in range(8): redw.add(('ds', f'ds_read_u16_d16_hi v{XRG[8*t+r]}, v{12+t} offset:{16*DELT[r]}', 'xr'))
        if i in LDSI and rl == 0 and LDSI.index(i) < 4: ldsread(LDSI[LDSI.index(i)+1])
        if n == len(order)-3:
            for rh in range(2):
                for t in range(2):
                    for q in range(2): redw.add(('ds', f'ds_write_b128 v{125+rh}, {v(acc4(1,t)+8*rh+4*q,4)} offset:{(2*t+q)*1024}', None))
        for a_ in range(2):
            for t in range(2):
                f = 2*a_+t
                if i in LDSI: B = v(RG[LDSI.index(i)&1]+4*f, 4); k.wait(vm=f'h{i}_{rl}', lg=f'wl{i}_{f}')
                else: B = wdreg(i, f); k.wait(vm=f'h{i}_{rl}')
                assert not any(isinstance(x, tuple) and x[2] == f'h{i}_{rl}' for x in lq.q), (i, rl)
                c = v(acc4(rl,t),16) if (rl,t) in started else '0'
                started.add((rl,t))
                k.e(f'v_mfma_f32_32x32x16_bf16 {v(acc4(rl,t),16)}, {a(16*i+8*rl+4*a_,4)}, {B}, {c}')
                if t == 0: lq.emit(1)
                redw.emit(1)
    assert not len(redw) and not len(lq)
    k.st('P4mf')
    for t in range(2):
        for q in range(2): k.ds_op(f'ds_write_b128 v124, {v(acc4(0,t)+8+4*q,4)} offset:{(2*t+q)*1024}')
    k.wait(lg='all'); k.e('s_barrier')
    R = 144
    for q in range(2):
        for t in range(2):
            for sl in range(3): k.ds_op(f'ds_read_b128 {v(R+16*sl+8*t+4*q,4)}, v1 offset:{sl*4096+(2*t+q)*1024}', f'rr{q}{t}')
    for q in range(2):
        for t in range(2):
            k.wait(lg=f'rr{q}{t}')
            for r in (4*q, 4*q+2):
                A = acc4(0,t)+r; b = R+8*t+r
                k.e(f'v_pk_add_f32 {P(A)}, {P(A)}, {P(b)}\nv_pk_add_f32 {P(b+16)}, {P(b+16)}, {P(b+32)}')
            for r in (4*q, 4*q+2):
                A = acc4(0,t)+r; b = R+8*t+r
                k.e(f'v_pk_add_f32 {P(A)}, {P(A)}, {P(b+16)}')
            for r in (4*q, 4*q+2):
                x = XRG[8*t+r]
                k.e(f'v_pk_fma_f32 {P(x)}, {P(acc4(0,t)+r)}, v[14:15], {P(x)} op_sel:[0,{t},0] op_sel_hi:[1,{t},1]')
        for r in range(4*q, 4*q+4):
            k.e(f's_add_u32 s6, s72, {DELT[r]*64*896}\nv_cvt_pk_bf16_f32 v{XRG[r]}, v{XRG[r]}, v{XRG[8+r]}')
            k.vm_op(f'buffer_store_dword v{XRG[r]}, v0, s[8:11], s6 offen sc1')

S_W = 8192
def side(k, C):
    W = 16; SL = 128; AC = 142; T = 150; DF = 160; CS = 176
    k.e(f'''
    v_lshrrev_b32 v1, 6, v0
    v_and_b32 v2, 63, v0
    v_readfirstlane_b32 s3, v1
    v_lshlrev_b32 v3, 4, v2          ; lane*16
    v_and_b32 v4, 31, v2             ; lane&31
    v_lshrrev_b32 v5, 5, v2          ; h
    s_mov_b32 s14, {WS_END}
    s_mov_b32 s15, 0x20000
    s_cmp_lg_u32 s3, 3
    s_cbranch_scc1 SD_NOPF
    s_getpc_b64 s[6:7]
SD_PC:
    s_sub_u32 s6, s6, SD_PC-KP_BASE
    s_subb_u32 s7, s7, 0
    s_lshr_b32 s33, s2, 3
    s_lshl_b32 s33, s33, 13
    v_lshlrev_b32 v6, 7, v2
    v_add_u32 v6, s33, v6
    v_min_u32 v6, KP_LAST-KP_BASE-4, v6
    global_load_dword v240, v6, s[6:7]
SD_NOPF:
    s_and_b32 s32, s2, 7             ; x
    s_lshr_b32 s33, s2, 3            ; qt
    s_add_u32 s34, s32, 7
    s_mul_i32 s35, s33, 7
    s_add_u32 s35, s35, s32
    s_add_u32 s35, s35, 14
    s_lshl_b32 s6, s33, 1
    s_add_u32 s7, s6, 1
    s_cmp_eq_u32 s32, 7
    s_cselect_b32 s34, s6, s34
    s_cselect_b32 s35, s7, s35
    s_mul_i32 s39, s3, 112
    v_lshrrev_b32 v6, 3, v2
    v_add_u32 v7, s39, v6
    v_mul_u32_u24 v7, 5376, v7
    v_and_b32 v8, 7, v2
    v_lshl_add_u32 v7, v8, 4, v7
    v_add_u32 v9, s39, v2
    v_lshlrev_b32 v9, 1, v9          ; c voffset
    s_lshl_b32 s40, s34, 7
    s_lshl_b32 s41, s35, 7
    s_waitcnt lgkmcnt(0)
    s_mov_b32 s12, s30
    s_and_b32 s13, s31, 0xffff
    ''')
    k.e(srd_txt(44, 22, 896)); k.e(srd_txt(8, 24, 448*5376))
    k.e(f'''s_lshl_b32 s6, s2, 2
    s_add_u32 s6, s6, s3
    s_cmp_lg_u32 s6, {4*(NSIDE-1)}
    s_cbranch_scc1 SD_NZ
    v_lshlrev_b32 v10, 9, v2
    v_mov_b32 v11, 0
    s_mov_b32 s6, {WS_FLAG}
    buffer_store_dword v11, v10, s[12:15], s6 offen sc1
    buffer_store_dword v11, v10, s[12:15], s6 offen offset:128 sc1
    buffer_store_dword v11, v10, s[12:15], s6 offen offset:256 sc1
    buffer_store_dword v11, v10, s[12:15], s6 offen offset:384 sc1
    s_mov_b32 s74, 1
    s_waitcnt vmcnt(0)
    s_atomic_or s74, s[28:29], 0x0
SD_NZ:''')
    k.vm_op('buffer_load_ushort v10, v9, s[44:47], 0 offen', 'c')
    k.vm_op('buffer_load_ushort v11, v9, s[44:47], 0 offen offset:112', 'c')
    def wloads(t):
        q = Q(k)
        for i in range(14): q.vm(f's_add_u32 s{40+t}, s{40+t}, {8*5376}' if i else None, f'buffer_load_dwordx4 {v(W+56*t+4*i,4)}, v7, s[8:11], s{40+t} offen', f'w{t}_{i}')
        return q
    l0 = wloads(0); l0.emit(4)
    k.e(f'''
    s_and_b32 s42, s3, 1             ; mat
    s_lshr_b32 s43, s3, 1
    s_mov_b32 s52, {f2h(1/448)}
    s_mov_b32 s53, {f2h(-448.0)}
    s_cmp_eq_u32 s32, 7
    s_cbranch_scc1 SD_ZP
    ''')
    def ang0(dst, step, ef, df, ph):
        return f'''v_mul_f32 v{dst}, v{ef}, v{df}
        v_mul_f32 v{step}, s52, v{dst}
        v_floor_f32 v{step}, v{step}
        v_fma_f32 v{dst}, v{step}, s53, v{dst}
        v_fma_f32 v{dst}, v{dst}, s52, {ph}
        v_mul_f32 v{step}, s52, v{ef}'''
    f = Q(k)
    f.lines(f'''
    s_lshl_b32 s6, s33, 2
    v_lshl_add_u32 v12, v5, 1, s6    ; 4kk+2h
    s_lshl_b32 s6, s32, 6
    v_add_u32 v{T}, s6, v12
    v_cvt_f32_u32 v{T}, v{T}         ; d0
    v_lshlrev_b32 v12, 2, v12
    s_lshl_b32 s6, s43, 5
    v_add_u32 v{T+1}, s6, v4
    v_cmp_eq_u32 vcc, 0, v{T+1}
    v_cvt_f32_u32 v{T+1}, v{T+1}''')
    f.add(f'''s_cmp_eq_u32 s42, 1
    s_cselect_b32 s6, {f2h(-0.25)}, 0
    s_cselect_b32 s7, {f2h(224.0)}, 0''')
    f.lines(f'''v_mov_b32 v{T+2}, s6
    v_mov_b32 v{T+3}, s7
    v_cndmask_b32 v{T+3}, v{T+1}, v{T+3}, vcc
    v_cndmask_b32 v{T+4}, v{T+2}, 0, vcc''')
    for jj in range(4):
        if jj: f.add(f'v_add_f32 v{T+1}, {f2h(64.0)}, v{T+1}')
        f.lines(ang0(T+5, T+6, T+3 if jj == 0 else T+1, T, f'v{T+4}' if jj == 0 else f'v{T+2}'))
        for n in range(8): f.add(f'v_fmamk_f32 v{CS+8*jj+n}, v{T+6}, {f2h(16*(n&3)+(n>>2))}, v{T+5}')
        for n in range(8): f.add(f'v_cos_f32 v{CS+8*jj+n}, v{CS+8*jj+n}')
    save = (list(l0.q), list(k.vm))
    while len(l0): f.cyc(48); l0.emit(1)
    f.flush()
    k.e('s_branch SD_G\nSD_ZP:')
    l0.q, k.vm = save
    def zcos():
        q = Q(k)
        for n in range(64): q.lines(f'v_fmamk_f32 v{CS+n}, v14, {f2h(n)}, v13\nv_cos_f32 v{CS+n}, v{CS+n}')
        return q
    k.e(f'v_cvt_f32_u32 v{T+1}, v0\ns_lshl_b32 s6, s34, 6\nv_cvt_f32_u32 v{T}, s6\n' + ang0(13, 14, T+1, T, '0'))
    f = zcos()
    while len(l0): f.cyc(48); l0.emit(1)
    f.flush()
    k.e(f'v_add_f32 v{T}, {f2h(64.0)}, v{T}\n' + ang0(13, 14, T+1, T, '0'))
    k.e('SD_G:')
    k.wait(vm='c')
    for txt in ('v_lshlrev_b32 v#, 16, v#', f'v_mul_f32 v@, {f2h(-LOG2E)}, v#', 'v_exp_f32 v@, v@', 'v_add_f32 v@, 1.0, v@', 'v_rcp_f32 v@, v@', 'v_mul_f32 v#, v#, v@', f'v_cvt_pk_bf16_f32 v#, v#, v{T+2}'):
        for r in range(2): k.e(txt.replace('#', str(10+r)).replace('@', str(T+r)))
        if 'exp' in txt: k.e(f'v_mov_b32 v{T+2}, 0')
        if 'rcp' in txt: k.e(f'v_lshlrev_b32 v{T+3}, 2, v6')
    for i in range(14): k.ds_op(f'ds_bpermute_b32 v{SL+i}, v{T+3}, v{10+i//7} offset:{32*(i%7)}', f'sl{i}')
    k.e(f'''v_lshlrev_b32 v{T}, 3, v8
    v_add_u32 v{T}, v{T}, v6
    v_lshlrev_b32 v{T}, 2, v{T}
    s_lshl_b32 s57, s3, 8
    v_add_u32 v9, s57, v{T}
    v_lshlrev_b32 v241, 2, v2
    ''')
    l1 = wloads(1)
    def gemv(t):
        for i in range(0, 8, 2): k.e(f'v_mov_b64 {P(AC+i)}, 0')
        for i in range(14):
            k.wait(vm=f'w{t}_{i}', lg=f'sl{i}')
            k.e(f'v_lshlrev_b32 v{T}, 16, v{SL+i}')
            for d in range(4): k.e(f'v_dot2_f32_bf16 v{AC+2*d}, v{W+56*t+4*i+d}, v{SL+i}, v{AC+2*d}')
            for d in range(4): k.e(f'v_dot2_f32_bf16 v{AC+2*d+1}, v{W+56*t+4*i+d}, v{T}, v{AC+2*d+1}')
            if t == 0: l1.emit(1)
        for i in range(4): k.e(f'v_permlane32_swap_b32 v{AC+i}, v{AC+4+i}')
        for i in range(4): k.e(f'v_add_f32 v{AC+i}, v{AC+i}, v{AC+4+i}')
        for i in range(2): k.e(f'v_permlane16_swap_b32 v{AC+i}, v{AC+2+i}')
        for i in range(2): k.e(f'v_add_f32 v{AC+i}, v{AC+i}, v{AC+2+i}')
        k.e(f'''v_add_f32_dpp v{AC+2}, v{AC}, v{AC} row_ror:8 row_mask:0xf bank_mask:0xf
        v_add_f32_dpp v{AC+2}, v{AC+1}, v{AC+1} row_ror:8 row_mask:0xf bank_mask:0xc''')
        k.ds_op(f'ds_write_b32 v9, v{AC+2} offset:{1024*t}')
    def gemv_fin(t):
        for i in range(2): k.ds_op(f'ds_read2st64_b32 {P(AC+2*i)}, v241 offset0:{4*t+2*i} offset1:{4*t+2*i+1}')
        k.wait(lg='all')
        k.e(f'''v_pk_add_f32 {P(AC)}, {P(AC)}, {P(AC+2)}
        v_add_f32 v{AC}, v{AC}, v{AC+1}
        v_cvt_pk_bf16_f32 v{AC}, v{AC}, v{AC}
        v_and_b32 v{AC}, 0xffff0000, v{AC}
        v_add_f32 v{AC+1}, 1.0, v{AC}
        v_cvt_pk_bf16_f32 v{AC+1}, v{AC+1}, v{AC+1}
        v_and_b32 v{AC+1}, 0xffff0000, v{AC+1}''')
    def zfin(t, jd):
        k.e(f'v_add_u32 v{T}, s57, v241\nv_mov_b32 v{T+1}, s57')
        k.e(f'ds_write_b32 v{T}, v{AC} offset:4096')
        for h2 in range(2):
            for i in range(8): k.e(f'ds_read_b128 {v(W+4*i,4)}, v{T+1} offset:{4096+128*h2+16*i}')
            k.e('s_waitcnt lgkmcnt(0)')
            for i in range(16):
                x = AC+2+2*(i & 1)
                if h2 == 0 and i < 2: k.e(f'v_pk_mul_f32 {P(x)}, {P(CS+2*i)}, {P(W+2*i)}')
                else: k.e(f'v_pk_fma_f32 {P(x)}, {P(CS+32*h2+2*i)}, {P(W+2*i)}, {P(x)}')
        k.e(f'''v_pk_add_f32 {P(AC+2)}, {P(AC+2)}, {P(AC+4)}
        v_add_f32 v{AC+2}, v{AC+2}, v{AC+3}
        s_cmp_gt_u32 {jd}, 6
        s_cselect_b32 s6, 0, -1
        v_and_b32 v{AC+2}, s6, v{AC+2}
        v_cvt_pk_bf16_f32 v{AC+3}, v{AC+2}, v{AC+2}
        v_and_b32 v{AC+3}, 0xffff0000, v{AC+3}
        v_sub_f32 v{AC+3}, v{AC+2}, v{AC+3}
        v_cvt_pk_bf16_f32 v{AC+2}, v{AC+2}, v{AC+3}
        s_lshr_b32 s6, {jd}, 2
        s_lshl_b32 s6, s6, 9
        s_and_b32 s7, {jd}, 3
        s_lshl_b32 s7, s7, 2
        s_add_u32 s6, s6, s7
        s_add_u32 s6, s6, {WS_ZF}
        v_lshrrev_b32 v{T}, 5, v0
        v_lshlrev_b32 v{T+1}, 4, v4
        v_lshl_add_u32 v{T}, v{T}, 10, v{T+1}
        v_cmp_ge_u32 vcc, 224, v0
        v_mov_b32 v{T+2}, 0x7fff0000
        v_add_u32 v{T+1}, 7168, v{T+1}
        v_cndmask_b32 v{T}, v{T+2}, v{T}, vcc
        v_subrev_u32 v{T+3}, 1, v0
        v_cmp_gt_u32 vcc, 31, v{T+3}
        v_cndmask_b32 v{T+1}, v{T+2}, v{T+1}, vcc''')
        k.vm_op(f'buffer_store_dword v{AC+2}, v{T}, s[12:15], s6 offen sc1', maybe=True)
        k.vm_op(f'buffer_store_dword v{AC+2}, v{T+1}, s[12:15], s6 offen sc1', maybe=True)
    gemv(0); k.wait(lg='all'); k.e('s_barrier'); gemv_fin(0)
    k.e('s_cmp_eq_u32 s32, 7\ns_cbranch_scc1 SD_Z1')
    for n in range(8): k.e(f'ds_bpermute_b32 v{DF+n}, v12, v{AC+1} offset:{4*(16*(n&3)+(n>>2))}')
    k.e(f'''
    s_mul_i32 s6, s3, 28
    s_lshl_b32 s7, s32, 2
    s_add_u32 s6, s6, s7
    s_add_u32 s6, s6, s33
    s_lshl_b32 s6, s6, 10
    s_add_u32 s6, s6, {WS_CP}
    s_waitcnt lgkmcnt(0)
    ''')
    for jj in range(4):
        if jj == 3: k.e('s_cmp_eq_u32 s43, 1\ns_cselect_b32 s6, 0x7fff0000, s6')
        for n in range(0, 8, 2): k.e(f'v_pk_mul_f32 {P(CS+8*jj+n)}, {P(CS+8*jj+n)}, {P(DF+n)}')
        for r in range(4): k.e(f'v_cvt_pk_bf16_f32 v{W+4*jj+r}, v{CS+8*jj+2*r}, v{CS+8*jj+2*r+1}')
        k.vm_op(f'buffer_store_dwordx4 {v(W+4*jj,4)}, v3, s[12:15], s6 offen sc1', 'cp', maybe=True)
        if jj < 3: k.e(f's_add_u32 s6, s6, {4*28*1024}')
    k.e('s_waitcnt vmcnt(4)\ns_branch SD_G2\nSD_Z1:')
    zfin(0, 's34'); zcos().flush(); k.e('s_waitcnt vmcnt(2)')
    k.e('SD_G2:'); k.stamp(1); k.st('sd1'); ready_issue(k, 242, 243, 'cp')
    k.e(f'''
    s_lshr_b32 s36, s32, 1
    s_lshl_b32 s6, s33, 2
    s_add_u32 s36, s36, s6           ; idx
    s_and_b32 s6, s32, 1
    s_mul_i32 s6, s6, 14
    s_add_u32 s37, s6, s36           ; 2m+half
    s_cmp_eq_u32 s42, 0
    s_cselect_b32 s48, s16, s18
    s_cselect_b32 s49, s17, s19
    s_and_b32 s49, s49, 0xffff
    s_cmp_lt_u32 s36, 14
    s_cselect_b32 s50, {448*3584}, 0
    s_mov_b32 s51, 0x20000
    v_bfe_u32 v{T}, v2, 4, 1
    v_lshlrev_b32 v{T}, 2, v{T}
    v_xor_b32 v{T}, v{T}, v8
    v_mul_u32_u24 v15, 3584, v6
    v_lshl_add_u32 v15, v{T}, 4, v15
    s_mul_i32 s54, s43, {224*3584}
    s_lshl_b32 s6, s37, 7
    s_add_u32 s54, s54, s6
    s_mul_i32 s55, s42, 57344
    s_mul_i32 s6, s43, 28672
    s_add_u32 s56, s55, s6
    s_add_u32 m0, s56, {S_W}
    ''' + bar_regs(6, 7))
    wq = Q(k)
    for i in range(28): wq.vm(f's_add_u32 m0, m0, 1024\ns_add_u32 s54, s54, {8*3584}' if i else None, 'buffer_load_dwordx4 v15, s[48:51], s54 offen lds', 'wst')
    k.vm = [x for x in k.vm if not str(x[0]).startswith('w1_')]
    gemv(1)
    k.wait(vm='cp', lg='all'); k.e('s_barrier')
    k.e(f's_lshl_b32 s6, s32, 7\ns_add_u32 s6, s6, {WS_FLAG+FL_BAR}\ns_cmp_eq_u32 s32, 7\ns_cselect_b32 s6, 0x7fff0000, s6')
    bar_signal(k, 's6', 6, 7, 242, 243); k.stamp(2); k.st('sd2')
    gemv_fin(1)
    k.e('s_cmp_eq_u32 s32, 7\ns_cbranch_scc1 SD_Z2')
    k.e(f'''s_cmp_lg_u32 s3, 0
    s_cbranch_scc1 SD_G3
    s_lshl_b32 s6, s32, 6
    v_add_u32 v{T}, s6, v2           ; col
    v_cmp_le_u32 vcc, 224, v{T}
    v_sub_u32 v{T+1}, 448, v{T}
    v_cndmask_b32 v{T+1}, v{T}, v{T+1}, vcc
    v_cndmask_b32 v{T+2}, 0, 32, vcc
    v_cmp_eq_u32 vcc, 224, v{T+1}
    v_cndmask_b32 v{T+1}, v{T+1}, 0, vcc
    v_lshrrev_b32 v{T+3}, 5, v{T+1}
    v_lshl_add_u32 v{T+2}, v{T+3}, 6, v{T+2}
    v_and_b32 v{T+1}, 31, v{T+1}
    v_add_u32 v{T+1}, v{T+1}, v{T+2} ; position
    s_mov_b32 s6, {WS_MOD+GA_P}
    s_cmp_eq_u32 s33, 3
    s_cselect_b64 vcc, -1, 0
    s_cselect_b32 s6, {WS_MOD+GB_N}, s6
    v_cndmask_b32 v{T+1}, v{T+1}, v{T}, vcc
    s_cmp_eq_u32 s33, 2
    s_cselect_b64 vcc, -1, 0
    s_cselect_b32 s6, {WS_MOD+CB1_P}, s6
    s_mov_b32 s7, 0x7fff0000
    s_cselect_b32 s7, {WS_MOD+CB1_K}, s7
    v_cndmask_b32 v{AC}, v{AC}, v{AC+1}, vcc
    s_cmp_eq_u32 s33, 1
    s_cselect_b32 s7, {WS_MOD+SB_K}, s7
    s_cselect_b32 s6, 0x7fff0000, s6
    v_lshlrev_b32 v{T+1}, 2, v{T+1}
    v_lshlrev_b32 v{T}, 1, v{T}
    buffer_store_dword v{AC}, v{T+1}, s[12:15], s6 offen sc1
    buffer_store_short_d16_hi v{AC}, v{T}, s[12:15], s7 offen sc1
    s_branch SD_G3
SD_Z2:''')
    zfin(1, 's35')
    k.e('SD_G3:'); k.vm.append(('t2', True))
    wq.emit(10)
    k.e(f'''s_mov_b32 s6, {WS_FLAG+FL_BAR+7*128}
    s_lshr_b32 s24, s37, 1
    s_lshl_b32 s38, s24, 7
    s_add_u32 s38, s38, {FL_SIDE}
    s_and_b32 s39, s32, 1
    s_lshl_b32 s39, s39, 10
    s_add_u32 s39, s39, {FL_BAR+16*1024+7*128}
    s_add_u32 s24, s30, {WS_FLAG}
    s_addc_u32 s25, s31, 0
    ''')
    k.wait(vm='t2'); k.e('s_barrier')
    bar_signal(k, 's6', 6, 7); k.stamp(3); k.st('sd3')
    k.e('s_cmp_lt_u32 s36, 14\ns_cbranch_scc0 KP_END')
    wq.flush()
    poll_issue(k, 's39')
    k.e(f'''v_bfe_u32 v{T}, v2, 2, 2
    v_lshl_add_u32 v{T+1}, v5, 3, v{T}
    v_lshlrev_b32 v8, 7, v{T+1}
    v_lshrrev_b32 v{T}, 1, v{T}
    v_xor_b32 v{T}, s43, v{T}
    v_lshl_add_u32 v8, v{T}, 6, v8
    v_bfe_u32 v{T}, v2, 4, 1
    v_lshl_add_u32 v8, v{T}, 5, v8
    v_and_b32 v{T}, 3, v2
    v_lshl_add_u32 v8, v{T}, 3, v8
    s_add_u32 s55, s55, {S_W}
    v_add_u32 v8, s55, v8
    v_and_b32 v9, 1, v2
    v_lshlrev_b32 v9, 10, v9
    v_lshl_add_u32 v9, v5, 4, v9
    s_lshl_b32 s19, s37, 2
    s_add_u32 s19, s19, s3
    s_lshl_b32 s19, s19, 10
    s_add_u32 s19, s19, {WS_WEXT}
    ''')
    k.wait(vm='all'); k.e('s_barrier')
    for ks in range(28):
        for hf in range(2): k.ds_op(f'ds_read_b64_tr_b16 {a(4*ks+2*hf,2)}, v8 offset:{2048*ks+512*hf}')
    poll_check(k, 's39', 32)
    k.e(f's_cmp_lg_u32 s3, 0\ns_cbranch_scc1 SD_V\ns_mov_b32 m0, 4096\ns_mov_b32 s6, {WS_MOD+CB1_K}')
    k.e('buffer_load_dwordx4 v3, s[12:15], s6 offen sc1 lds\nbuffer_load_dwordx4 v3, s[12:15], s6 offen offset:1024 sc1 lds\ns_waitcnt vmcnt(0)\nSD_V:\ns_barrier'); k.stamp(4); k.st('sd4')
    for ks in range(28): k.ds_op(f'ds_read_b128 {v(W+4*ks,4)}, v9 offset:{4096+32*ks}', f'a{ks}')
    A2 = 240
    for ks in range(28):
        k.wait(lg=f'a{ks}')
        c = '0' if ks == 0 else v(A2,16)
        k.e(f'v_mfma_f32_32x32x16_bf16 {v(A2,16)}, {v(W+4*ks,4)}, {a(4*ks,4)}, {c}')
    k.e(f'''
    v_cvt_pk_bf16_f32 v9, v{A2}, v{A2+1}
    v_lshlrev_b32 v12, 16, v9
    v_and_b32 v13, 0xffff0000, v9
    v_sub_f32 v12, v{A2}, v12
    v_sub_f32 v13, v{A2+1}, v13
    v_cmp_eq_u32 vcc, 0, v5
    v_cvt_pk_bf16_f32 v8, v{A2}, v12
    v_cvt_pk_bf16_f32 v10, v13, v{A2+1}
    v_mov_b32 v11, 0
    v_cndmask_b32 v8, 0, v8, vcc
    v_cndmask_b32 v9, 0, v9, vcc
    v_cndmask_b32 v10, 0, v10, vcc
    ''')
    k.vm_op('buffer_store_dwordx4 v[8:11], v3, s[12:15], s19 offen sc1')
    k.wait(vm='all'); k.e('s_barrier'); signal(k, 's38')
    if K.MARK and K.MARK.startswith('sd'): k.mark_spin()
    k.stamp_out(0, 6)
```

```python
import re

TRANS = ('v_exp_f32','v_log_f32','v_rcp_f32','v_rsq_f32','v_sqrt_f32','v_sin_f32','v_cos_f32')

def _regs(op):
    op = op.strip()
    if op.startswith('-'): op = op[1:]
    m = re.fullmatch(r'abs\((.*)\)', op) or re.fullmatch(r'\|(.*)\|', op)
    if m: op = m.group(1)
    m = re.fullmatch(r'([vas])(\d+)', op)
    if m: return {(m.group(1), int(m.group(2)))}
    m = re.fullmatch(r'([vas])\[(\d+):(\d+)\]', op)
    if m: return {(m.group(1), i) for i in range(int(m.group(2)), int(m.group(3))+1)}
    if op in ('vcc','vcc_lo','vcc_hi'): return {('x','vcc')}
    if op in ('exec','exec_lo','exec_hi'): return {('x','exec')}
    if op == 'm0': return {('x','m0')}
    return set()

class Ins:
    def __init__(self, text):
        self.text = text
        t = text.split(';')[0].strip()
        self.label = t.endswith(':')
        self.kind = 'other'; self.w = set(); self.r = set()
        self.states = 1
        self.dpp = False; self.trans = False; self.dot = False; self.perm = False
        self.A = self.B = self.C = set(); self.passes = 0
        self.store_data = set(); self.ldsdma = False; self.rdlane = False
        if self.label or not t or t.startswith('.'):
            self.kind = 'none'; self.states = 0; return
        parts = t.split(None, 1)
        mn = parts[0]; self.mn = mn
        rest = parts[1] if len(parts) > 1 else ''
        ops = []; cur = ''; depth = 0
        for ch in rest:
            if ch in '[(': depth += 1
            if ch in '])': depth -= 1
            if ch == ',' and depth == 0: ops.append(cur.strip()); cur = ''
            else: cur += ch
        if cur.strip(): ops.append(cur.strip())
        mods = ''
        if ops:
            last = ops[-1].split(None, 1)
            ops[-1] = last[0]; mods = last[1] if len(last) > 1 else ''
        R = [_regs(o) for o in ops]
        allbut0 = set().union(*R[1:]) if len(R) > 1 else set()
        if mn == 's_nop':
            self.kind = 'nop'; self.states = int(ops[0], 0) + 1
        elif mn.startswith('v_mfma'):
            self.kind = 'mfma'; self.w = R[0]; self.A = R[1]; self.B = R[2]; self.C = R[3]
            self.r = self.A | self.B | self.C
            self.passes = 8 if '32x32x16' in mn else 4 if '16x16x32' in mn else None
            assert self.passes
        elif mn.startswith('v_'):
            self.kind = 'valu'
            base = re.sub(r'_(e32|e64|dpp|sdwa)$', '', mn)
            self.w = set(R[0]); self.r = set(allbut0)
            self.trans = base in TRANS
            self.dpp = mn.endswith('_dpp') or 'quad_perm' in mods or 'row_' in mods
            self.dot = base.startswith('v_dot')
            if self.dpp: self.r |= R[0]
            if base.startswith(('v_fmac','v_dot2c','v_pk_fmac')): self.r |= R[0]
            if base.startswith('v_permlane'):
                self.perm = True; self.w = R[0] | R[1]; self.r = R[0] | R[1]
            if base.startswith(('v_add_co','v_sub_co','v_addc_co','v_subb_co')):
                self.w |= R[1]; self.r = set().union(*R[2:])
            if base in ('v_readfirstlane_b32','v_readlane_b32'): self.rdlane = True
            if base.startswith('v_cmpx'): self.w |= {('x','exec')}
        elif mn.startswith(('buffer_','global_')):
            self.kind = 'vmem'
            if mn in ('buffer_inv','buffer_wbl2'): return
            lds = ' lds' in (' '+mods) or '_lds_' in mn
            if lds:
                self.ldsdma = True; self.r = set().union(*R) | {('x','m0')}
            elif '_load' in mn:
                self.w = R[0]; self.r = allbut0
                if 'd16' in mn: self.r |= R[0]
            else:
                self.r = set().union(*R)
                di = 0 if mn.startswith('buffer_') else 1
                if 'atomic' in mn and 'sc0' in mods:
                    self.w = R[0]
                if mn.endswith(('x3','x4')): self.store_data = R[di]
        elif mn.startswith('ds_'):
            self.kind = 'ds'
            if mn.startswith(('ds_read','ds_bpermute','ds_permute','ds_swizzle')):
                self.w = R[0]; self.r = allbut0
                if 'd16' in mn: self.r |= R[0]
            else: self.r = set().union(*R)
        elif mn.startswith('s_'):
            self.kind = 'salu'
            if mn.startswith(('s_cmp','s_waitcnt','s_barrier','s_cbranch','s_branch','s_endpgm','s_sleep','s_setprio','s_bitcmp')):
                self.r = set().union(*R) if R else set()
            else:
                self.w = set(R[0]) if R else set(); self.r = allbut0
                if 'saveexec' in mn: self.w |= {('x','exec')}
        else:
            raise ValueError(text)

def need(p, c):
    n = 0
    vw = {x for x in p.w if x[0] in 'va'}
    sw = {x for x in p.w if x[0] == 's' or x == ('x','vcc')}
    if p.kind == 'valu':
        if c.kind == 'mfma' and vw & c.r: n = max(n, 3 if p.dot else 2)
        if c.kind == 'valu':
            if c.dpp and vw & c.r: n = max(n, 2)
            if c.perm and vw & c.r: n = max(n, 2)
            if c.rdlane and vw & c.r: n = max(n, 1)
            if p.trans and not c.trans and vw & c.r: n = max(n, 1)
            if sw & c.r: n = max(n, 4 if c.rdlane else 2)
            if 'sdwa' in p.mn and vw & (c.r | c.w): n = max(n, 1)
        if p.trans and c.kind in ('vmem','ds') and vw & c.r: n = max(n, 1)
        if p.dot and vw & (c.r | c.w):
            same = c.kind == 'valu' and c.dot and c.mn == p.mn and vw <= c.w and not _dot_ab(c) & vw
            if not same: n = max(n, 3)
        if c.kind == 'vmem' and sw & c.r: n = max(n, 5)
        if c.kind == 'salu' and sw & c.r: n = max(n, 1)
        if ('x','exec') in p.w:
            if c.kind == 'mfma' or c.perm or c.rdlane: n = max(n, 4)
            if c.dpp: n = max(n, 5)
    if p.kind in ('vmem','ds') and c.kind == 'valu' and c.dpp and vw & c.r: n = max(n, 2)
    if p.kind == 'salu' and ('x','m0') in p.w and c.ldsdma: n = max(n, 1)
    if p.store_data and c.w & p.store_data: n = max(n, 2 if c.kind in ('valu','mfma') else 1)
    if p.kind == 'mfma':
        big = {4: 8, 8: 12}[p.passes]
        if c.kind == 'mfma':
            if p.w & (c.A | c.B): n = max(n, big)
            if p.w & c.C:
                if not (p.w == c.C and p.passes == c.passes): n = max(n, big - 2)
            elif p.w & c.w: n = max(n, big)
        elif c.kind in ('valu','vmem','ds'):
            if p.w & (c.r | c.w): n = max(n, big)
            if c.kind == 'valu' and p.C & c.w: n = max(n, {4: 3, 8: 7}[p.passes])
    return n

def _dot_ab(c):
    t = c.text.split(';')[0].split(None,1)[1].split(',')
    return _regs(t[1]) | _regs(t[2].split()[0])

def pad_hazards(lines):
    out = []; win = []
    pend = {}
    for ln in lines:
        c = Ins(ln)
        if c.kind == 'none':
            if c.label:
                for snap in pend.pop(ln.strip()[:-1], []):
                    for p, d in snap:
                        e = [x for x in win if x[0] is p]
                        if e: e[0][1] = min(e[0][1], d)
                        else: win.append([p, d])
            out.append(ln); continue
        k = 0
        for p, d in win: k = max(k, need(p, c) - d)
        while k > 0:
            s = min(k, 16); out.append(f'    s_nop {s-1}')
            for e in win: e[1] += s
            k -= s
        out.append(ln)
        for e in win: e[1] += c.states
        win = [e for e in win if e[1] < 24]
        win.append([c, 0])
        if c.kind == 'salu' and c.mn.startswith(('s_cbranch', 's_branch')):
            pend.setdefault(ln.split(';')[0].split()[1], []).append([(p, d) for p, d in win])
        if c.kind == 'salu' and c.mn in ('s_branch','s_endpgm'): win = []
    return out

class K:
    def __init__(self):
        self.L = []; self.vm = []; self.lg = []; self.uid = 0
    def e(self, s):
        for x in s.strip().split('\n'):
            x = x.strip()
            if x: self.L.append(x if x.endswith(':') else '    ' + x)
    STAMPS = False
    NAMES = None
    CLK = 's_memrealtime'
    MARK = None
    def mark_spin(self):
        if K.MARK:
            l, d = self.label('MS'), self.label('MD')
            self.e(f's_waitcnt lgkmcnt(0)\ns_mov_b32 s7, 0\n{l}:\ns_memrealtime s[0:1]\ns_waitcnt lgkmcnt(0)\ns_sub_u32 s0, s0, s100\ns_add_u32 s7, s7, 1\ns_cmp_gt_u32 s7, 100000\ns_cbranch_scc1 {d}\ns_cmp_lt_u32 s0, 3000\ns_cbranch_scc1 {l}\n{d}:')
    def st(self, name):
        if K.MARK == name: self.e('s_memrealtime s[100:101]')
        if K.STAMPS and K.NAMES and name in K.NAMES: self.stamp(K.NAMES.index(name)+1)
    def stamp(self, i):
        if K.STAMPS:
            r = self.sreg(i); self.e(f'{K.CLK} s[{r}:{r+1}]'); self.nst = max(getattr(self,'nst',0), i+1)
    def sreg(self, i): return 100 - 2*i
    def stamp_out(self, kid, n, allwaves=False):
        if not K.STAMPS: return
        lab = self.label('STO')
        self.e(f's_waitcnt vmcnt(0) lgkmcnt(0)')
        self.stamp(n-1)
        self.e(f's_waitcnt lgkmcnt(0)\ns_mov_b64 exec, 1\ns_lshl_b32 s6, s2, 3\ns_add_u32 s6, s6, s3\ns_lshl_b32 s6, s6, 6\ns_add_u32 s6, s6, {0x1200000 + kid*0x40000}\ns_mov_b32 s14, 0x2000000\nv_mov_b32 v1, 0')
        for i in range(n): self.e(f'v_mov_b32 v2, s{self.sreg(i)}\nbuffer_store_dword v2, v1, s[12:15], s6 offen offset:{4*i}')
    def label(self, base):
        self.uid += 1; return f'{base}_{self.uid}'
    def reset_counts(self): self.vm = []; self.lg = []
    def vm_op(self, s, tag=None, maybe=False):
        self.e(s); self.vm.append((tag, maybe))
    def ds_op(self, s, tag=None, maybe=False):
        self.e(s); self.lg.append((tag, maybe))
    @staticmethod
    def _cnt(q, tags):
        if not isinstance(tags, (list, tuple, set)): tags = [tags]
        idx = [i for i, (t, _) in enumerate(q) if t in tags]
        if not idx: return None
        return max(idx), sum(1 for t, m in q[max(idx)+1:] if not m)
    def wait(self, vm=None, lg=None):
        parts = []
        if vm is not None:
            if vm == 'all': parts.append('vmcnt(0)'); self.vm = []
            else:
                r = self._cnt(self.vm, vm)
                if r is not None:
                    i, n = r
                    parts.append(f'vmcnt({min(n,63)})'); self.vm = self.vm[i+1:]
        if lg is not None:
            if lg == 'all': parts.append('lgkmcnt(0)'); self.lg = []
            else:
                r = self._cnt(self.lg, lg)
                if r is not None:
                    i, n = r
                    parts.append(f'lgkmcnt({min(n,15)})'); self.lg = self.lg[i+1:]
        if parts: self.e('s_waitcnt ' + ' '.join(parts))

def v(a, n=1): return f'v{a}' if n == 1 else f'v[{a}:{a+n-1}]'
def a(i, n=1): return f'a{i}' if n == 1 else f'a[{i}:{i+n-1}]'
def s(i, n=1): return f's{i}' if n == 1 else f's[{i}:{i+n-1}]'
import struct
def f2h(x): return '0x%08x' % struct.unpack('<I', struct.pack('<f', x))[0]

def kernel_text(name, lines, nvgpr, nagpr=0, nsgpr=96):
    acc = max(4, (nvgpr + 3)//4*4)
    nfv = acc + nagpr if nagpr else nvgpr
    body = '\n'.join(pad_hazards(lines))
    code = f""".globl {name}
.p2align 8
.type {name},@function
{name}:
{body}
"""
    desc = f""".p2align 6
.amdhsa_kernel {name}
  .amdhsa_next_free_vgpr {nfv}
  .amdhsa_next_free_sgpr {nsgpr}
  .amdhsa_accum_offset {acc}
  .amdhsa_group_segment_fixed_size 0
  .amdhsa_kernarg_size 112
  .amdhsa_user_sgpr_count 2
  .amdhsa_user_sgpr_kernarg_segment_ptr 1
  .amdhsa_system_sgpr_workgroup_id_x 1
  .amdhsa_float_denorm_mode_32 3
.end_amdhsa_kernel
"""
    return code, desc
```

```python
from asmlib import *
from layout2 import *
import math, os
NSIDE = 32; NMAIN = 224; GRID = 256
LDS_ALL = 163840
RX = int(os.environ.get('RX', 0)); RSH = int(os.environ.get('RSH', 0)); NREP = 10 if RX else (16 >> RSH) + 2
SPIN_MAX = 1 << 20
DELT = [16*a + 8*(n >> 2) + (n & 3) for a in range(2) for n in range(8)]
LOG2E = math.log2(math.e)
CFG = dict(mp1=8, ld1=0, f3_post=0, r1sep=0, ssig=1, sd_split=99, sd_late=0, p1_fill0=30, p1_ld_pre=12, p1_fill=48, p1_w3_ld=1, p1_w3_a=1, p1_w3_b=1, p1_w3_c=0, p1_w3_drain=0, p1_fill_drain=56, p1_fill_drain2=300, poll1_at=11, f3_pre=0, p2_f3=16,
           p2_pre=4, p2_pre2=4, p2_rate=1, r2_from=9, wd_from=9, r2_a=2, r2_b=2, r2_c=2, p2_modi=-1, p2_mod=4, r2_pre=2, su_drain=700, r3_drain=6, pollA=(0,5,9), wd_flag=0, wd_st=(13,7,7),
           epi_span=(24,16,14), sigB01=None, pollB01=((3,2),(3,7)), c01_ks=16, sigB2=27, u_ld=1, e_ld=2, p4_burst0=6, sg_pk=2, sg_rate=28, p4_poll2=(-1,0,2), p4_c2=5, p4_sig3=6, p4_poll3=(6,8,10), p4_c3=14, p4_b0=2, p4_burst=8, out_pol='sc1')

class Q:
    def __init__(self, k): self.k = k; self.q = []; self.debt = 0
    def add(self, *atoms): self.q.extend(atoms)
    def lines(self, txt): self.q.extend([l.strip() for l in txt.strip().split('\n') if l.strip()])
    def vm(self, pre, txt, tag=None):
        if pre: self.q.append(lambda: (self.k.e(pre), self.k.vm_op(txt, tag)))
        else: self.q.append(('vm', txt, tag))
    def emit(self, n=1):
        c = 0
        while self.q and c < n:
            x = self.q.pop(0)
            if isinstance(x, tuple):
                (self.k.vm_op if x[0] == 'vm' else self.k.ds_op)(x[1], x[2]); c += 1
            elif callable(x): x(); c += 1
            else: self.k.e(x); c += len(x.strip().split('\n'))
    def cyc(self, budget):
        self.debt += budget
        while self.q and self.debt > 0:
            n0 = len(self.k.L); self.emit(1)
            for l in self.k.L[n0:]:
                mn = l.split()[0]
                self.debt -= 8 if mn in TRANS else 12 if mn.startswith('buffer_') else 4
        if not self.q: self.debt = 0
    def cost(self):
        return sum((12 if isinstance(x, tuple) else 8 if x.split()[0] in TRANS else 4*len(x.strip().split('\n'))) for x in self.q)
    def flush(self): self.emit(1 << 30)
    def __len__(self): return len(self.q)

def t1_txt(dst, g, b, tmp):
    return f'''s_sub_u32 {tmp}, 64, {g}
    s_cmp_eq_u32 {g}, 0
    s_cselect_b32 {tmp}, 32, {tmp}
    s_cmp_eq_u32 {b}, 0
    s_cselect_b32 {dst}, {g}, {tmp}'''
def srd_txt(d, base, size): return f's_mov_b32 s{d}, s{base}\ns_and_b32 s{d+1}, s{base+1}, 0xffff\ns_mov_b32 s{d+2}, {size}\ns_mov_b32 s{d+3}, 0x20000'
P = lambda r: v(r, 2)

def signal(k, off, wave=0):
    l = k.label('SIG')
    k.e(f's_cmp_lg_u32 s3, {wave}\ns_cbranch_scc1 {l}\ns_mov_b32 s74, 1\ns_atomic_add s74, s[24:25], {off}\n{l}:')
def poll_issue(k, off, r='s0', wave=0):
    l = k.label('PI')
    k.e(f's_cmp_lg_u32 s3, {wave}\ns_cbranch_scc1 {l}\ns_mov_b32 {r}, 0\ns_atomic_add {r}, s[24:25], {off} glc\n{l}:')
def poll_check(k, off, target, r='s0', wave=0):
    l, d = k.label('PC'), k.label('PD')
    k.e(f'''s_cmp_lg_u32 s3, {wave}
    s_cbranch_scc1 {d}
    s_mov_b32 s1, 0
{l}:
    s_waitcnt lgkmcnt(0)
    s_cmp_eq_u32 {r}, {target}
    s_cbranch_scc1 {d}
    s_add_u32 s1, s1, 1
    s_cmp_gt_u32 s1, {SPIN_MAX}
    s_cbranch_scc1 {d}
    s_mov_b32 {r}, 0
    s_atomic_add {r}, s[24:25], {off} glc
    s_branch {l}
{d}:''')
MP = [76, 77, 78]
def gsignal(k, off, wave=0):
    l = k.label('SIG')
    k.e(f's_bitcmp{1-wave}_b32 s3, 1\ns_cbranch_scc1 {l}\ns_atomic_add s74, s[24:25], s79 offset:{off}\n{l}:')
def mp_issue(k, off, j, wave):
    l = k.label('MI')
    k.e(f's_cmp_lg_u32 s3, {wave}\ns_cbranch_scc1 {l}\ns_mov_b32 s{MP[j]}, -1\ns_atomic_and s{MP[j]}, s[30:31], {off} glc\n{l}:')
def mp_check(k, off, target, wave, pace=4):
    l, d = k.label('MC'), k.label('MD'); r = [k.label('MR') for _ in MP]
    t = f's_cmp_lg_u32 s3, {wave}\ns_cbranch_scc1 {d}\ns_mov_b32 s1, -1\n{l}:\n'
    for p in MP: t += f's_cmp_eq_u32 s{p}, {target}\ns_cbranch_scc1 {d}\n'
    t += f's_add_u32 s1, s1, 1\ns_cmp_gt_u32 s1, {SPIN_MAX*4}\ns_cbranch_scc1 {d}\ns_and_b32 s0, s1, {pace-1}\ns_cbranch_scc1 {l}\n'
    for p, x in zip(MP, r): t += f's_cmp_lg_u32 s{p}, -1\ns_cbranch_scc1 {x}\n'
    t += f's_branch {l}\n'
    for p, x in zip(MP, r): t += f'{x}:\ns_cmp_eq_u32 s{p}, {target}\ns_cbranch_scc1 {d}\ns_mov_b32 s{p}, -1\ns_atomic_and s{p}, s[30:31], {off} glc\ns_branch {l}\n'
    k.e(t + f'{d}:')
def lds_pad(k, n, junk):
    for _ in range(n): k.ds_op(f'ds_read_b32 v{junk}, v6')
def ready_issue(k, vz, vr, tag):
    k.e(f'v_mov_b32 v{vz}, 0'); k.vm_op(f'global_load_dword v{vr}, v{vz}, s[28:29] sc1', tag)
def bar_signal(k, soff, va, vb, vz=None, vr=None):
    l, d, g = k.label('BS'), k.label('BD'), k.label('BG')
    k.e(f's_cmp_lg_u32 s3, 0\ns_cbranch_scc1 {d}')
    if vz is not None:
        k.e(f'''s_mov_b32 s1, 0
{l}:
    v_readfirstlane_b32 s75, v{vr}
    s_cmp_lg_u32 s75, 0
    s_cbranch_scc1 {g}
    s_add_u32 s1, s1, 1
    s_cmp_gt_u32 s1, {SPIN_MAX}
    s_cbranch_scc1 {g}
    s_sleep 8
    global_load_dword v{vr}, v{vz}, s[28:29] sc1
    s_waitcnt vmcnt(0)
    s_branch {l}
{g}:''')
    k.vm_op(f'buffer_atomic_add v{vb}, v{va}, s[12:15], {soff} offen sc1', maybe=True)
    k.e(f'{d}:')
def bar_regs(va, vb):
    return f'''v_lshlrev_b32 v{va}, 10, v2
    v_cmp_gt_u32 vcc, {NREP}, v2
    v_mov_b32 v{vb}, 0x7fff0000
    v_cndmask_b32 v{va}, v{vb}, v{va}, vcc
    v_mov_b32 v{vb}, 1'''

P2_X, P2_GC, P2_XI = 114688, 126976, 151552
IMG = 29696; KSP = 4*IMG
ACC0 = 16; RING = 80; WX = 96; ET = 104
REGI = [0, 1, 4, 5, 8, 9, 12, 13, 2]; LDSI = [3, 6, 7, 10, 11]
WDL = [120832, 120832+16384, 0, 16384, 32768]
X1L = 59392; RED = 71680; XR = 128
R1A = 6; R1N = int(os.environ.get('R1N', 14)); R1L = 16384
ROTMASK = int(os.environ.get('ROT', 0))
VD, VM, VS, TB = 208, 209, 210, 211
def wdreg(i, f):
    n = REGI.index(i)*4 + f
    return v(144+4*n, 4) if n < 28 else a(224+4*(n-28), 4)
def acc4(rl, t): return ACC0 + 32*rl + 16*t

def gen_kp(cfg=None):
    C = dict(CFG); C.update(cfg or {})
    k = K(); k.stamp(0); k.st('start')
    k.e(f'''
    s_load_dwordx16 s[16:31], s[0:1], 48
    s_getpc_b64 s[6:7]
KP_PC:
    s_lshr_b32 s33, s2, 3
    v_and_b32 v1, 15, v0
    v_lshl_add_u32 v1, s33, 4, v1
    v_lshlrev_b32 v1, 7, v1
    v_min_u32 v1, KP_LAST-KP_PC-4, v1
    global_load_dword a255, v1, s[6:7]
    s_andn2_b32 s32, s2, 24
    s_cmp_lt_u32 s32, 7
    s_cbranch_scc1 KP_SIDE
    s_cmp_eq_u32 s32, 7
    s_cbranch_scc1 SD_Z
    s_load_dwordx2 s[4:5], s[0:1], 0
    s_cmp_ge_u32 s2, {GRID}
    s_cbranch_scc1 KP_END
    v_lshrrev_b32 v1, 6, v0
    v_and_b32 v2, 63, v0
    v_readfirstlane_b32 s3, v1
    v_lshlrev_b32 v3, 4, v2          ; lane*16
    v_and_b32 v4, 31, v2             ; lane&31
    v_lshrrev_b32 v5, 5, v2          ; h
    s_mov_b32 s14, {WS_END}
    s_mov_b32 s15, 0x20000
    s_and_b32 s34, s2, 1             ; hi
    s_lshr_b32 s35, s2, 3
    s_sub_u32 s35, s35, {NSIDE//8}
    s_mul_i32 s33, s35, 37
    s_lshr_b32 s33, s33, 8           ; gl = q/7
    s_and_b32 s6, s2, 7
    s_lshl_b32 s6, s6, 1
    s_lshr_b32 s7, s33, 1
    s_add_u32 s6, s6, s7             ; pair p
    s_sub_u32 s7, 32, s6
    s_cmp_eq_u32 s6, 0
    s_cselect_b32 s7, 16, s7
    s_bitcmp1_b32 s33, 0
    s_cselect_b32 s36, s7, s6        ; g
    s_and_b32 s32, s2, 6
    s_lshl_b32 s32, s32, 1
    s_add_u32 s32, s32, s33          ; G
    s_mul_i32 s33, s33, 7
    s_sub_u32 s35, s35, s33          ; lo
    s_mul_i32 s33, s34, 7
    s_add_u32 s33, s33, s35          ; mem
    ''')
    f = P1(k, C)
    P2(k, C, f)
    P3(k, C)
    P4(k, C)
    k.st('end')
    if K.MARK and not K.MARK.startswith('sd'): k.mark_spin()
    k.stamp_out(0, len(K.NAMES or [])+2)
    k.e('s_endpgm\nKP_SIDE:'); k.reset_counts(); side(k, C)
    k.e('KP_END:\ns_endpgm\nKP_LAST:')
    return k.L

def w3_dma(k, lo, hi, ldsbase):
    q = Q(k)
    for ks in range(lo, hi):
        j, mu, a_ = ks >> 2, (ks >> 1) & 1, ks & 1
        row = 32*j + 16*a_ if not mu else 433 - 32*j - 16*a_
        vo = VS if ks == 2 else VM if mu else VD
        so = '0' if ks in (0, 2) else 's61'
        pre = f's_add_u32 m0, s60, {ldsbase + (ks-lo)*8192}\n' + (f's_mov_b32 s61, {row*3584}' if so != '0' else 's_nop 0')
        q.vm(pre, f'buffer_load_dwordx4 v{vo}, s[16:19], {so} offen lds')
        q.vm(None, f'buffer_load_dwordx4 v{vo}, s[20:23], {so} offen offset:1024 lds', f'w3_{ks}')
    return q
def w3_tr(k, lo, hi):
    q = Q(k)
    for ks in range(lo, hi):
        n = ks - lo
        for mt in range(2):
            for hf in range(2):
                q.add(('ds', f'ds_read_b64_tr_b16 {a(8*ks+4*mt+2*hf,2)}, v{TB+(n>>3)} offset:{(n&7)*8192+mt*1024+hf*4096}', 'tr'))
    return q

def P1(k, C):
    X = 16; UP = 72; M = 88; T = 96; WL = 216; WO = 224; BF = 128; AC = 160
    k.e(f'''
    v_lshrrev_b32 v6, 3, v2
    s_lshl_b32 s6, s3, 4
    v_add_u32 v6, s6, v6
    v_and_b32 v7, 7, v2
    v_mul_u32_u24 v8, {32*896}, v6
    v_lshl_add_u32 v8, v7, 4, v8
    v_add_u32 v9, {8*32*896}, v8     ; set 1
    s_mul_i32 s39, s36, 896
    s_lshl_b32 s40, s35, 7
    s_mov_b32 s10, {2048*896}
    s_mov_b32 s11, 0x20000
    s_add_u32 s41, s39, s40
    s_add_u32 s42, s39, 896
    ''')
    f = Q(k)
    wa = f'''
    s_sub_u32 s6, s2, {NSIDE}
    s_mul_i32 s7, s6, 9363
    s_lshr_b32 s7, s7, 16
    s_mul_i32 s64, s7, 7
    s_sub_u32 s64, s6, s64           ; jt
    s_lshl_b32 s7, s7, 2
    s_add_u32 s7, s7, s3             ; rb
    s_mul_i32 s65, s7, {16*896}
    s_lshl_b32 s67, s64, 7
    s_add_u32 s65, s65, s67
    s_add_u32 s66, s65, {8*896}
    v_mul_u32_u24 v{WO}, {4*896}, v5
    v_lshl_add_u32 v{WO}, v4, 2, v{WO}'''
    wb = f'''
    s_lshl_b32 s64, s64, 2
    s_bfe_u32 s65, s7, 0x20001
    s_add_u32 s64, s64, s65
    s_mul_i32 s64, s64, 14
    s_lshr_b32 s65, s7, 3
    s_add_u32 s64, s64, s65
    s_lshl_b32 s64, s64, 1
    s_and_b32 s65, s7, 1
    s_add_u32 s64, s64, s65
    s_lshl_b32 s64, s64, 11
    s_add_u32 s64, s64, {WS_WDP}
    s_lshl_b32 s65, s32, 9
    s_sub_u32 s67, s67, s65
    s_add_u32 s67, s67, {FL_WD}
    s_cmp_lt_u32 s6, 196
    s_cselect_b32 s64, s64, 0x7fff0000
    s_cselect_b32 s69, s3, 0
    s_mov_b32 s65, 0x05040100
    s_mov_b32 s66, 0x07060302'''
    f.lines(f'''
    v_lshrrev_b32 v{T}, 4, v2
    v_bfe_u32 v{T+1}, v2, 2, 2
    v_xor_b32 v{T+1}, v{T+1}, v{T}
    v_and_b32 v{T+2}, 3, v2
    v_lshlrev_b32 v{T+2}, 4, v{T+2}
    v_lshl_add_u32 v{T+1}, v{T+1}, 6, v{T+2}
    s_lshl_b32 s6, s33, 8
    v_add_u32 v{T+1}, s6, v{T+1}
    s_lshl_b32 s6, s3, 2
    v_add_u32 v{T}, s6, v{T}
    v_mul_u32_u24 v{VD}, 3584, v{T}
    v_sub_u32 v{VM}, {15*3584}, v{VD}
    v_add_u32 v{VD}, v{VD}, v{T+1}
    v_add_u32 v{VM}, v{VM}, v{T+1}
    v_cmp_eq_u32 vcc, 0, v{T}
    v_mov_b32 v{T+1}, {433*3584}
    v_mov_b32 v{T+2}, {(433-224)*3584}
    v_cndmask_b32 v{T+1}, v{T+1}, v{T+2}, vcc
    v_add_u32 v{VS}, v{VM}, v{T+1}
    s_lshl_b32 s60, s3, 11
    ''')
    nearly = len(f)
    f.lines(f'''
    s_and_b32 s46, s3, 1
    s_lshl_b32 s46, s46, 4
    s_lshr_b32 s47, s3, 1            ; isI
    v_and_b32 v11, 15, v2
    v_add_u32 v12, s46, v11          ; g row
    v_cvt_f32_u32 v13, v12''')
    f.add(f'''s_cmp_eq_u32 s47, 1
    s_cselect_b32 s6, {f2h(0.25)}, 0
    s_cselect_b32 s7, {f2h(32.0)}, 0''')
    f.lines(f'''
    v_cmp_eq_u32 vcc, 0, v12
    v_mov_b32 v{T}, s6
    v_mov_b32 v{T+1}, s7
    v_cndmask_b32 v13, v13, v{T+1}, vcc
    v_cndmask_b32 v{T}, v{T}, 0, vcc
    v_mul_f32 v13, {f2h(1/64)}, v13
    v_lshrrev_b32 v14, 4, v2
    v_lshlrev_b32 v14, 2, v14
    v_cvt_f32_u32 v{T+1}, v14
    v_fma_f32 v{T}, v13, v{T+1}, v{T}
    ''')
    for ks in range(2):
        for n in range(8): f.add(f'v_fmamk_f32 v{T+2+n}, v13, {f2h(32*ks + 16*(n >> 2) + (n & 3))}, v{T}')
        for n in range(8): f.add(f'v_cos_f32 v{T+2+n}, v{T+2+n}')
        for r in range(4): f.add(f'v_cvt_pk_bf16_f32 v{M+4*ks+r}, v{T+2+2*r}, v{T+3+2*r}')
    f.lines(f'''
    v_mul_u32_u24 v6, 160, v6
    v_lshl_add_u32 v6, v7, 4, v6
    v_lshrrev_b32 v7, 2, v2
    v_mul_u32_u24 v7, 160, v7
    v_and_b32 v12, 3, v2
    v_lshl_add_u32 v7, v12, 3, v7
    v_add_u32 v14, s46, v14
    v_mul_u32_u24 v14, {2*32*896}, v14
    v_lshl_add_u32 v14, v11, 3, v14  ; U voffset
    s_mul_i32 s47, s47, {32*896}
    s_add_u32 s47, s47, s39
    s_add_u32 s47, s47, s40          ; U soffset
    s_mov_b32 s46, 0x3f803f80
    ''')
    for i in range(0, 8, 2): f.add(f'v_mov_b64 {P(T+i)}, 0')
    f.emit(C['p1_fill0'])
    k.e('s_waitcnt lgkmcnt(0)\ns_mov_b32 s8, s4\ns_and_b32 s9, s5, 0xffff')
    xq = Q(k)
    for i in range(7):
        for st in range(2):
            xq.vm('s_add_u32 s41, s41, 128\ns_cmp_ge_u32 s41, s42\ns_cselect_b32 s41, s39, s41' if i and not st else None,
                  f'buffer_load_dwordx4 {v(X+28*st+4*i,4)}, v{8+st}, s[8:11], s41 offen', f'x{i}{st}')
    f.q[0:0] = [srd_txt(56, 20, 1792*896) + f'\ns_mov_b32 s12, s30\ns_and_b32 s13, s31, 0xffff',
                f's_sub_u32 s20, s18, 1024\ns_subb_u32 s21, s19, 0\ns_and_b32 s21, s21, 0xffff\ns_mov_b32 s22, {448*3584+1024}\ns_mov_b32 s23, 0x20000\ns_and_b32 s17, s17, 0xffff\ns_mov_b32 s18, {448*3584}\ns_mov_b32 s19, 0x20000']
    xq.emit(2)
    for n in range(C['p1_ld_pre']-2): f.cyc(C['p1_fill']); xq.emit(1)
    f.flush()
    k.st('p1iss')
    w3 = w3_dma(k, 0, R1N, R1L)
    for i in range(7):
        for st in range(2):
            k.wait(vm=f'x{i}{st}')
            if len(xq): xq.emit(1)
            elif C['p1_w3_ld']: w3.emit(1)
            for d in range(4):
                r = X+28*st+4*i+d; t = T+4*st+(d & 1)
                k.e(f'v_dot2_f32_bf16 v{t}, v{r}, s46, v{t}\nv_dot2_f32_bf16 v{t+2}, v{r}, v{r}, v{t+2}')
            if i == 0:
                for d in range(4): k.e(f'v_lshlrev_b32 v{UP+8*st+2*d}, 16, v{X+28*st+d}\nv_and_b32 v{UP+8*st+2*d+1}, 0xffff0000, v{X+28*st+d}')
    assert not len(xq)
    k.st('p1dat')
    for t in (T, T+2, T+4, T+6): k.e(f'v_add_f32 v{t}, v{t}, v{t+1}')
    for m in ('quad_perm:[1,0,3,2]', 'quad_perm:[2,3,0,1]', 'row_half_mirror'):
        for t in (T, T+2, T+4, T+6): k.e(f'v_add_f32_dpp v{t}, v{t}, v{t} {m} row_mask:0xf bank_mask:0xf')
    w3.emit(1)
    for txt in (f'v_mul_f32 v#0, {f2h(-1/448)}, v#0', f'v_mul_f32 v#2, {f2h(1/448)}, v#2', 'v_fma_f32 v#2, -v#0, v#0, v#2', 'v_max_f32 v#2, 0, v#2',
                f'v_add_f32 v#2, {f2h(1e-5)}, v#2', 'v_rsq_f32 v#2, v#2', 'v_mul_f32 v#0, v#0, v#2'):
        for st in range(2): k.e(txt.replace('#0', str(T+4*st)).replace('#2', str(T+4*st+2)))
    w3.emit(1)
    for st in range(2):
        t = T+4*st
        for d in range(4): k.e(f'v_pk_fma_f32 {P(UP+8*st+2*d)}, {P(UP+8*st+2*d)}, {P(t+2)}, {P(t)} op_sel_hi:[1,0,0]')
        for d in range(4): k.e(f'v_cvt_pk_bf16_f32 v{X+4*st+d}, v{UP+8*st+2*d}, v{UP+8*st+2*d+1}')
        k.ds_op(f'ds_write_b128 v6, {v(X+4*st,4)} offset:{8*160*st}')
    w3.emit(C['p1_w3_a'])
    k.wait(lg='all'); k.e('s_barrier'); k.st('p1bar')
    for ks in range(2):
        for t in range(4):
            for hf in range(2):
                k.ds_op(f'ds_read_b64_tr_b16 {v(BF+16*ks+4*t+2*hf,2)}, v7 offset:{ks*32*160+hf*16*160+t*32}', f'b{ks}{t}')
    w3.emit(C['p1_w3_b'])
    for ks in range(2):
        for t in range(4):
            k.wait(lg=f'b{ks}{t}')
            c = '0' if ks == 0 else v(AC+4*t,4)
            k.e(f'v_mfma_f32_16x16x32_bf16 {v(AC+4*t,4)}, {v(M+4*ks,4)}, {v(BF+16*ks+4*t,4)}, {c}')
    w3.emit(C['p1_w3_c'])
    for r in range(4):
        k.e(f'v_cvt_pk_bf16_f32 v{X+2*r}, v{AC+r}, v{AC+4+r}\nv_cvt_pk_bf16_f32 v{X+2*r+1}, v{AC+8+r}, v{AC+12+r}')
        k.vm_op(f'buffer_store_dwordx2 {v(X+2*r,2)}, v14, s[12:15], s47 offen sc1', 'ust')
        if r < 3: k.e(f's_add_u32 s47, s47, {2*32*896}')
    k.st('p1st')
    ready_issue(k, UP+2, UP+3, 'ust')
    if C['ssig']: k.e(f's_mul_i32 s0, s3, {(NREP-2)//4*1024}\ns_add_u32 s40, s40, s0\ns_lshl_b32 s0, s32, 9\ns_sub_u32 s40, s40, s0\ns_add_u32 s40, s40, {FL_BAR}')
    else: k.e(bar_regs(UP, UP+1) + f'\ns_add_u32 s40, s40, {WS_FLAG+FL_BAR}')
    k.e(wa)
    for n in range(8): k.vm_op(f'buffer_load_dword v{WL+n}, v{WO}, s[56:59], s{65+(n>>2)} offen offset:{896*(n&3)}', 'wl')
    k.e(wb)
    f2 = P2_pre(k)
    assert len(w3) <= 2*(R1N-R1A), len(w3)
    while not f2.xready(): f2.emit(1)
    assert len(w3) % 2 == 0
    for t in range(3):
        k.e(f's_add_u32 m0, s44, {1024*t}')
        k.vm_op(f'buffer_load_dwordx4 v{T2+10+t}, s[8:11], s43 offen lds', 'xi')
    for n in range(C['p1_w3_drain']): w3.emit(1); f2.cyc(C['p1_fill_drain'])
    f2.cyc(C['p1_fill_drain2'])
    k.wait(vm='ust'); k.e('s_barrier'); k.st('sig1')
    if C['ssig']:
        l, g = k.label('BS'), k.label('BG'); per = (NREP-2)//4
        k.e(f'''s_mov_b32 s1, 0
{l}:
    v_readfirstlane_b32 s75, v{UP+3}
    s_cmp_lg_u32 s75, 0
    s_cbranch_scc1 {g}
    s_add_u32 s1, s1, 1
    s_cmp_gt_u32 s1, {SPIN_MAX}
    s_cbranch_scc1 {g}
    s_sleep 8
    global_load_dword v{UP+3}, v{UP+2}, s[28:29] sc1
    s_waitcnt vmcnt(0)
    s_branch {l}
{g}:''')
        for i in range(per): k.e(f's_atomic_add s74, s[24:25], s40 offset:{1024*i}')
    else: bar_signal(k, 's40', UP, UP+1, UP+2, UP+3)
    k.tr1 = tr = w3_tr(k, 0, R1N)
    k.st('w0')
    k.st('w1')
    n = 0
    while len(w3):
        if n == C['poll1_at'] and not C['ld1']:
            if C['mp1']:
                l = k.label('B0')
                k.e(f's_mov_b32 s76, -1\ns_atomic_and s76, s[24:25], s53 glc\ns_mov_b32 s78, 36\ns_mov_b32 s4, 0\ns_cmp_eq_u32 s3, 3\ns_cbranch_scc1 {l}\ns_mov_b32 s78, -1\ns_atomic_and s78, s[24:25], s56 glc\n{l}:')
            else: k.e('s_cmp_eq_u32 s3, 3\ns_cselect_b32 s5, s53, s56\ns_mov_b32 s0, 0\ns_mov_b32 s4, 0\ns_atomic_add s0, s[24:25], s53 glc\ns_atomic_add s4, s[24:25], s5 glc')
        w3.emit(1); f2.cyc(24); n += 1
        if len(tr) > 4*(R1N-R1A): tr.emit(2)
    tr.emit(len(tr) - 4*(R1N-R1A))
    if C['poll1_at'] >= n: k.e('s_cmp_eq_u32 s3, 3\ns_cselect_b32 s78, 36, 0\ns_mov_b32 s4, 0')
    k.st('r1iss')
    k.st('w4'); f2.flush(); k.st('w5')
    def wdst():
        k.wait(vm='wl')
        for t in range(2):
            for r in range(4): k.e(f'v_perm_b32 v{WO+4*t+r}, v{WL+2*r+1}, v{WL+2*r}, s{65+t}')
    wdst()
    k.wdq = Q(k)
    for t in range(2): k.wdq.vm(None, f'buffer_store_dwordx4 {v(WO+4*t,4)}, v3, s[12:15], s64 offen offset:{1024*t} sc1', 'wdst')
    if C['ld1'] == 1: k.e('s_cmp_eq_u32 s3, 3\ns_cselect_b32 s5, s53, s56\ns_load_dword s0, s[24:25], s53 glc\ns_load_dword s4, s[24:25], s5 glc')
    k.st('w7'); k.wait(vm='xi'); k.st('w8')
    la, lb = k.label('P2xa'), k.label('P2xb')
    k.e(f's_cmp_eq_u32 s49, 0\ns_cbranch_scc0 {la}')
    for r in range(16): k.e(f'ds_read_u16_d16_hi v{XV+r}, v1 offset:{2*DELT[r]}')
    k.e(f's_branch {lb}\n{la}:')
    for r in range(16): k.ds_op(f'ds_read_u16_d16_hi v{XV+r}, v1 offset:{2*DELT[15-r]}', 'xv')
    k.e(f'{lb}:'); k.f3.cyc(C['f3_pre']); k.st('w6')
    if C['ld1'] == 2: k.e('s_cmp_eq_u32 s3, 3\ns_cselect_b32 s5, s53, s56\ns_load_dword s0, s[24:25], s53 glc\ns_load_dword s4, s[24:25], s5 glc')
    k.f3.cyc(C['f3_post'])
    return None

ACC = 16; FB = 32; CC = 96; SG = 104; IC = 112; RS = 120; IS = 128; XV = 136; GA = 152; CB = 168; ZF = 184; ZB = 188; T2 = 192
def P2_pre(k):
    T = T2; f = Q(k)
    f.lines(f'''
    v_bfe_u32 v{TB}, v2, 2, 2
    v_xor_b32 v{T}, s3, v{TB}
    v_lshlrev_b32 v{TB}, 8, v{TB}
    v_lshl_add_u32 v{TB}, v{T}, 6, v{TB}
    v_bfe_u32 v{T}, v2, 4, 1
    v_lshl_add_u32 v{TB}, v{T}, 5, v{TB}
    v_and_b32 v{T}, 3, v2
    v_lshl_add_u32 v{TB}, v{T}, 3, v{TB}
    v_lshl_add_u32 v{TB}, v5, 11, v{TB}
    v_add_u32 v{TB}, {R1L}, v{TB}
    v_add_u32 v{TB+1}, 0x10000, v{TB}
    s_and_b32 s48, s3, 1
    s_lshr_b32 s49, s3, 1
    v_lshrrev_b32 v6, 3, v2
    s_lshl_b32 s6, s3, 4
    v_add_u32 v6, s6, v6
    v_mul_u32_u24 v6, 896, v6
    v_lshrrev_b32 v{T+8}, 4, v2
    v_xor_b32 v{T+8}, v{T+8}, v2
    v_and_b32 v{T+8}, 7, v{T+8}
    v_xor_b32 v{T+9}, 4, v{T+8}
    v_lshl_add_u32 v{T+9}, v{T+9}, 4, v6
    v_add_u32 v{T+9}, {8*896-1024}, v{T+9}
    v_lshl_add_u32 v{T+8}, v{T+8}, 4, v6
    s_mul_i32 s52, s36, 57344        ; U soffset
    s_mul_i32 s54, s49, 28
    s_lshl_b32 s55, s48, 1
    s_add_u32 s54, s54, s55
    s_lshl_b32 s54, s54, 10
    s_mul_i32 s55, s35, 57344
    s_add_u32 s55, s55, s54
    s_add_u32 s55, s55, {WS_CP}
    s_mov_b32 s70, s52
    s_mov_b32 s71, s55
    s_add_u32 s72, s52, 896
    s_and_b32 s6, s2, {ROTMASK}
    s_min_u32 s6, s6, 6
    s_lshl_b32 s6, s6, 7
    s_add_u32 s52, s52, s6
    s_lshl_b32 s6, s6, 5
    s_add_u32 s55, s55, s6
    s_lshl_b32 s24, s32, 9
    s_add_u32 s24, s24, {WS_FLAG}
    ''')
    f.add('s_add_u32 s24, s24, s30\ns_addc_u32 s25, s31, 0\ns_lshl_b32 s6, s34, 15\ns_add_u32 s30, s24, s6\ns_addc_u32 s31, s25, 0')
    f.lines('s_mov_b64 s[76:77], 0\ns_mov_b32 s78, 0\ns_lshl_b32 s79, s48, 15\ns_mov_b32 s74, 1')
    f.lines(('s_and_b32 s53, s2, 7' if RX else f's_lshr_b32 s53, s32, {RSH}') + f'''
    s_lshl_b32 s53, s53, 10
    s_lshl_b32 s6, s32, 9
    s_sub_u32 s53, s53, s6
    s_lshl_b32 s6, s3, 8
    s_add_u32 s53, s53, s6
    s_add_u32 s53, s53, {FL_BAR}     ; barrier counter offset (rel s[24:25]) of chunk 2w
    s_add_u32 s56, s53, 128''')
    f.add(t1_txt('s50', 's36', 's48', 's6'))
    f.lines(f'''s_lshl_b32 s51, s35, 1
    s_add_u32 s51, s51, s49          ; beta
    s_lshl_b32 s41, s51, 7
    s_add_u32 s41, s41, {WS_MOD+GA_P}
    v_lshlrev_b32 v{T+13}, 2, v4
    v_lshl_add_u32 v{T+13}, v5, 11, v{T+13}
    s_lshl_b32 s42, s3, 8
    s_add_u32 s42, s42, {P2_GC}
    v_lshl_add_u32 v{T+14}, v5, 4, s42''')
    f.add(f'''s_lshl_b32 s7, s35, 6
    s_sub_u32 s6, 832, s7
    s_cmp_eq_u32 s49, 0
    s_cselect_b32 s7, s7, s6
    s_add_u32 s6, s7, 64
    s_cmp_eq_u32 s6, 896
    s_cselect_b32 s6, 448, s6
    s_cmp_eq_u32 s49, 0
    s_cselect_b32 s6, 0x7fff0000, s6
    v_mov_b32 v{T+3}, s6''')
    f.lines(f's_mul_i32 s43, s50, 896\ns_mul_i32 s44, s3, 3072\ns_add_u32 s44, s44, {P2_XI}')
    for t in range(3):
        f.lines(f'''v_add_u32 v{T}, {64*t}, v2
        v_mul_u32_u24 v{T+1}, 205, v{T}
        v_lshrrev_b32 v{T+1}, 10, v{T+1}
        v_mul_u32_u24 v{T+2}, 5, v{T+1}
        v_sub_u32 v{T}, v{T}, v{T+2}
        v_cmp_eq_u32 vcc, 4, v{T}
        v_lshl_add_u32 v{T}, v{T}, 4, s7
        v_mul_u32_u24 v{T+1}, {64*896}, v{T+1}
        v_cndmask_b32 v{T}, v{T}, v{T+3}, vcc
        v_add_u32 v{T+10+t}, v{T}, v{T+1}''')
    nx = len(f)
    U = GA; k.f3 = f3 = Q(k)
    f3.lines(f'''
    v_lshlrev_b32 v{U}, 6, v4
    v_add_u32 v{U}, s50, v{U}
    v_or_b32 v{U+1}, v{U}, v5
    v_cmp_eq_u32 vcc, 0, v{U+1}
    v_lshlrev_b32 v{TB+2}, 2, v4
    v_mov_b32 v{ZB}, 0x45004500
    v_cvt_f32_u32 v{U}, v{U}
    v_cndmask_b32 v{ZB}, 0, v{ZB}, vcc
    v_mov_b32 v{ZB+1}, v{ZB}
    v_mov_b32 v{ZB+2}, v{ZB}
    v_mov_b32 v{ZB+3}, v{ZB}
    v_mul_f32 v{U}, {f2h(1/2048)}, v{U}
    v_lshlrev_b32 v{U+1}, 2, v5
    v_cvt_f32_u32 v{U+1}, v{U+1}
    v_mul_f32 v{U+1}, v{U}, v{U+1}''')
    for r in range(8):
        f3.lines(f'''v_fmamk_f32 v{U+2}, v{U}, {f2h(DELT[2*r])}, v{U+1}
        v_fmamk_f32 v{U+3}, v{U}, {f2h(DELT[2*r+1])}, v{U+1}
        v_cos_f32 v{U+4}, v{U+2}
        v_cos_f32 v{U+5}, v{U+3}
        v_sin_f32 v{U+2}, v{U+2}
        v_sin_f32 v{U+3}, v{U+3}
        v_cvt_pk_bf16_f32 v{CC+r}, v{U+4}, v{U+5}
        v_cvt_pk_bf16_f32 v{SG+r}, v{U+2}, v{U+3}''')
    f3.add(f'''s_cmp_eq_u32 s36, 0
    s_cselect_b32 s73, 0, -1''')
    f3.lines(f'''v_mov_b32 v{U}, s73
    s_mul_i32 s73, s48, 0x80008000
    s_mul_i32 s38, s49, 0x80008000
    s_xor_b32 s37, s38, 0x80008000
    s_xor_b32 s38, s38, s73''')
    for r in range(8):
        f3.lines(f'''v_bitop3_b32 v{IC+r}, v{SG+r}, s73, v{U} bitop3:0x28
        v_xor_b32 v{RS+r}, s37, v{SG+r}
        v_bitop3_b32 v{IS+r}, v{CC+r}, s38, v{U} bitop3:0x28''')
    f.lines(f'''
    s_lshl_b32 s6, s48, 12
    v_lshlrev_b32 v9, 7, v4
    v_add_u32 v9, s6, v9
    v_bfe_u32 v{T+2}, v2, 1, 3
    v_xor_b32 v{T+2}, v{T+2}, v5
    v_lshl_add_u32 v9, v{T+2}, 4, v9
    v_xor_b32 v10, 32, v9
    v_xor_b32 v11, 64, v9
    v_xor_b32 v12, 96, v9
    s_lshl_b32 s6, s49, 12
    s_add_u32 s6, s6, 8192
    v_add_u32 v13, s6, v3
    ''')
    f.add('s_cmp_eq_u32 s36, 0\ns_cselect_b32 s46, s48, 0')
    f.lines(f's_add_u32 s6, s60, {P2_X}\nv_add_u32 v0, s6, v3')
    for r in range(0, 16, 2): f.add(f'v_mov_b64 {P(XV+r)}, 0')
    f.add(f'''s_cmp_eq_u32 s51, 1
    s_cselect_b32 s6, 4096, 0
    s_cselect_b32 s45, 7, s35
    v_mov_b32 v{T}, s6''')
    f.lines(f'''v_cmp_eq_u32 vcc, 0, v4
    v_add_u32 v15, {P2_X+4096}, v3
    v_mul_u32_u24 v1, 80, v4
    v_cndmask_b32 v{T}, 0, v{T}, vcc
    v_add_u32 v14, v0, v{T}
    v_lshl_add_u32 v7, v{T}, 1, v3
    v_add_u32 v7, {P2_X}, v7
    s_lshl_b32 s6, s46, 11
    v_add_u32 v6, s6, v7
    v_add_u32 v8, s6, v15
    v_add_u32 v1, s44, v1
    v_lshlrev_b32 v{T}, 3, v5
    v_sub_u32 v{T+1}, 10, v{T}
    s_lshl_b32 s45, s45, 7
    s_add_u32 s45, s45, {WS_ZF}''')
    f.add(f'''s_cmp_eq_u32 s49, 0
    s_cselect_b64 vcc, -1, 0
    v_cndmask_b32 v{T}, v{T+1}, v{T}, vcc
    v_add_u32 v1, v1, v{T}''')
    f.lines(f'''
    s_lshl_b32 s6, s32, 1
    s_add_u32 s6, s6, s34
    s_lshl_b32 s6, s6, 1
    s_add_u32 s6, s6, s48            ; rho
    s_mul_i32 s57, s6, 14
    s_add_u32 s57, s57, s51
    s_lshl_b32 s58, s57, 8
    s_add_u32 s58, s58, {WS_ST}
    s_lshl_b32 s57, s57, 11
    s_add_u32 s59, s57, {WS_X1}
    s_add_u32 s57, s57, {WS_X1C}
    v_lshlrev_b32 v{T+15}, 3, v4
    v_lshl_add_u32 v{T+15}, v5, 2, v{T+15}
    s_lshl_b32 s62, s34, 1
    s_xor_b32 s62, s62, s49
    s_or_b32 s63, s36, s48
    v_mov_b64 {P(T)}, 0
    v_mov_b64 {P(T+2)}, 0
    ''')
    tot = len(f); f.xready = lambda: tot - len(f) >= nx
    return f

def P2(k, C, _):
    T = T2
    if C['mp1']:
        for _ in range(6 if C['ssig'] else 2): k.ds_op('ds_read_b32 v16, v3')
        k.wait(lg='xv')
        l, d, sb = k.label('B1'), k.label('B1D'), k.label('B1B'); pace = C['mp1']
        def re(p, t, off):
            x = k.label('B1S')
            return f's_cmp_eq_u32 {t}, 36\ns_cbranch_scc1 {x}\ns_cmp_ge_u32 {p}, 36\ns_cbranch_scc1 {x}\ns_mov_b32 {p}, -1\ns_atomic_and {p}, s[24:25], {off} glc\n{x}:\n'
        k.e(f'''s_mov_b32 s1, {pace-1}
{l}:
    s_max_i32 s6, s76, s77
    s_max_i32 s7, s78, s4
    s_min_i32 s0, s6, s7
    s_cmp_eq_u32 s0, 36
    s_cbranch_scc1 {d}
    s_add_u32 s1, s1, 1
    s_and_b32 s0, s1, {pace-1}
    s_cbranch_scc1 {l}
    s_cmp_gt_u32 s1, {SPIN_MAX*8}
    s_cbranch_scc1 {d}
    s_and_b32 s0, s1, {pace}
    s_cbranch_scc1 {sb}
''' + re('s76', 's6', 's53') + re('s78', 's7', 's56') + f's_branch {l}\n{sb}:\n' + re('s77', 's6', 's53') + re('s4', 's7', 's56') + f's_branch {l}\n{d}:\ns_mov_b32 m0, s60')
    else:
        l, d = k.label('B1'), k.label('B1D')
        k.e(f'''s_mov_b32 s1, 0
{l}:
    s_waitcnt lgkmcnt(0)
    s_add_u32 s0, s0, s4
    s_cmp_eq_u32 s0, 72
    s_cbranch_scc1 {d}
    s_add_u32 s1, s1, 1
    s_cmp_gt_u32 s1, {SPIN_MAX}
    s_cbranch_scc1 {d}
    s_mov_b32 s0, 0
    s_mov_b32 s4, 0
    s_atomic_add s0, s[24:25], s53 glc
    s_atomic_add s4, s[24:25], s5 glc
    s_branch {l}
{d}:
    s_mov_b32 m0, s60''')
    if not C['r1sep']: k.wait(vm=f'w3_{R1N-1}')
    k.e('s_barrier')
    k.lg = []; k.st('bar1')
    dq = Q(k)
    for c in range(7):
        dq.vm(f's_add_u32 m0, s60, {16384*c}\ns_add_u32 s52, s52, 128\ns_add_u32 s55, s55, 4096\ns_cmp_eq_u32 s52, s72\ns_cselect_b32 s52, s70, s52\ns_cselect_b32 s55, s71, s55' if c else None, f'buffer_load_dwordx4 v{T+8}, s[12:15], s52 offen sc1 lds')
        dq.vm(None, f'buffer_load_dwordx4 v{T+9}, s[12:15], s52 offen offset:1024 sc1 lds')
        dq.vm(f's_add_u32 m0, s60, {16384*c+8192}', 'buffer_load_dwordx4 v3, s[12:15], s55 offen sc1 lds')
        dq.vm(None, 'buffer_load_dwordx4 v3, s[12:15], s55 offen offset:1024 sc1 lds', f'ch{c}')
    gq = Q(k)
    gq.vm('s_mov_b32 m0, s42', f'buffer_load_dword v{T+13}, s[12:15], s41 offen sc1 lds', 'gc')
    k.r2 = r2 = w3_dma(k, R1N, 28, 0); NR2 = len(r2)
    tr = k.tr1
    dq.emit(C['p2_pre'])
    if C['r1sep']: k.wait(vm=f'w3_{R1N-1}'); k.e('s_barrier')
    f3 = k.f3
    while len(dq) > 12:
        if len(tr): tr.emit(4); f3.cyc(16)
        else: f3.cyc(40)
        dq.emit(1)
    assert not len(tr)
    if C['mp1']:
        for _ in range(4): k.ds_op('ds_read_b32 v16, v3')
    k.wait(lg='tr'); k.e('s_barrier')
    if C['p2_modi'] < 0: poll_issue(k, 's56', 's47', 3)
    for n in range(2):
        dq.emit(1); k.ds_op(f'ds_write_b128 v0, {v(T,4)} offset:{1024*n}'); k.e(f'v_subrev_u32 v{TB+n}, {R1L}, v{TB+n}')
    for n in range(C['p2_pre2']-2): f3.cyc(40); dq.emit(1)
    def rdk(c, kk):
        b = FB + 32*(c & 1)
        k.ds_op(f'ds_read_b128 {v(b+8*kk,4)}, v{9+kk} offset:{16384*(c&3)}')
        k.ds_op(f'ds_read_b128 {v(b+8*kk+4,4)}, v13 offset:{16384*(c&3)+1024*kk}', f'r{c}{kk}')
        if c == 3: k.e(f'v_add_u32 v{9+kk}, 0x10000, v{9+kk}' + ('\nv_add_u32 v13, 0x10000, v13' if kk == 3 else ''))
    def mfk(c, kk):
        b = FB + 32*(c & 1)
        k.wait(lg=f'r{c}{kk}')
        cc = '0' if c == 0 and kk == 0 else v(ACC,16)
        k.e(f'v_mfma_f32_32x32x16_bf16 {v(ACC,16)}, {v(b+8*kk,4)}, {v(b+8*kk+4,4)}, {cc}')
    k.st('issued')
    zl = [k.label('ZA'), k.label('ZB'), k.label('ZC'), k.label('ZD'), k.label('ZE')]
    for c in range(7):
        if c == C['p2_modi']: poll_issue(k, 's56', 's47', 3)
        if c == C['p2_mod']: poll_check(k, 's56', 28, 's47', 3)
        k.wait(vm=f'ch{c}'); k.e('s_barrier'); k.st(f'c{c}')
        for kk in range(4):
            if c: mfk(c-1, kk)
            f3.cyc(C['p2_f3'])
            if len(dq): dq.emit(C['p2_rate'])
            elif len(k.wdq) and c >= C['wd_from']: k.wdq.emit(1)
            else:
                if c == C['p2_mod'] and len(r2) % 2 == 0: gq.flush()
                if c >= C['r2_from'] and kk & 1: r2.emit(1)
            rdk(c, kk)
        if c == 2:
            k.e(f's_cmp_lg_u32 s63, 0\ns_cbranch_scc1 {zl[0]}\ns_mov_b32 s0, 0\ns_atomic_add s0, s[24:25], {FL_SIDE+14*128} glc\n{zl[0]}:')
    assert not len(dq) and not len(gq) and not len(tr) and not len(f3) and C['p2_mod'] >= 3
    k.st('A6')
    k.e(f'''s_cmp_lg_u32 s63, 0
    s_cbranch_scc1 {zl[1]}
    s_mov_b32 s1, 0
{zl[2]}:
    s_waitcnt lgkmcnt(0)
    s_cmp_eq_u32 s0, 4
    s_cbranch_scc1 {zl[3]}
    s_add_u32 s1, s1, 1
    s_cmp_gt_u32 s1, {SPIN_MAX}
    s_cbranch_scc1 {zl[3]}
    s_mov_b32 s0, 0
    s_atomic_add s0, s[24:25], {FL_SIDE+14*128} glc
    s_branch {zl[2]}
{zl[3]}:''')
    for i in range(4): k.vm_op(f'buffer_load_dword v{ZF+i}, v{TB+2}, s[12:15], s45 offen offset:{1024*i} sc1', 'zf', maybe=True)
    k.e(f'{zl[1]}:')
    for kk in range(4):
        mfk(6, kk)
        if len(k.wdq): k.wdq.emit(1)
        else: r2.emit(1)
    r2.emit(C['r2_a'])
    for hf in range(2):
        for r in range(4*hf, 4*hf+4): k.e(f'v_cvt_pk_bf16_f32 v{T+r}, v{ACC+2*r}, v{ACC+2*r+1}')
        k.ds_op(f'ds_write_b128 v14, {v(T+4*hf,4)} offset:{1024*hf}')
    r2.emit(C['r2_b']); assert NR2 - len(r2) <= 20
    k.wait(lg='all'); k.e('s_barrier'); k.st('Xbar')
    kinds = [('v6', 0, CC), ('v7', 2048, IC), ('v8', 0, RS), ('v15', 2048, IS)]
    rb = [(f'ds_read_b128 {v(FB+8*i+4*a_,4)}, {ad} offset:{off+1024*a_}', f'x{i}{a_}') for i, (ad, off, _) in enumerate(kinds) for a_ in range(2)]
    for x in rb[:4]: k.ds_op(*x)
    r2.emit(C['r2_pre'])
    for n in range(8):
        i, a_ = n >> 1, n & 1
        k.wait(lg=f'x{i}{a_}')
        k.e(f'v_mfma_f32_32x32x16_bf16 {v(ACC,16)}, {v(FB+8*i+4*a_,4)}, {v(kinds[i][2]+4*a_,4)}, {v(ACC,16) if n else 0}')
        if n < 2: k.ds_op(*rb[4+2*n]); k.ds_op(*rb[5+2*n])
        elif not n & 1: r2.emit(1)
        if 3 <= n < 7:
            k.wait(vm='gc'); kk = n-3
            k.ds_op(f'ds_read_b128 {v(GA+4*kk,4)}, v{T+14} offset:{32*kk}'); k.ds_op(f'ds_read_b128 {v(CB+4*kk,4)}, v{T+14} offset:{128+32*kk}', 'gcr')
    r2.emit(C['r2_c']); k.r2n = R1N + (NR2 - len(r2))//2; assert k.r2n >= R1N + 4
    k.e(f's_cmp_lg_u32 s63, 0\ns_cbranch_scc1 {zl[4]}')
    sv = list(k.vm); k.wait(vm='zf'); k.vm = sv
    k.e(f'v_mfma_f32_32x32x16_bf16 {v(ACC,16)}, {v(ZF,4)}, {v(ZB,4)}, {v(ACC,16)}\n{zl[4]}:')
    k.wait(lg='gcr')
    for hf in range(2):
        R = range(8*hf, 8*hf+8, 2)
        for r in R: k.e(f'v_pk_fma_f32 {P(XV+r)}, {P(ACC+r)}, {P(GA+r)}, {P(XV+r)}')
        for r in R: k.e(f'v_pk_mul_f32 {P(CB+r)}, {P(CB+r)}, {P(XV+r)}')
        for r in range(4*hf, 4*hf+4): k.e(f'v_cvt_pk_bf16_f32 v{FB+r}, v{CB+2*r}, v{CB+2*r+1}')
        k.vm_op(f'buffer_store_dwordx4 {v(FB+4*hf,4)}, v3, s[12:15], s57 offen offset:{1024*hf} sc1')
    k.e(f'v_pk_add_f32 {P(T)}, {P(XV)}, {P(XV+2)}\nv_pk_mul_f32 {P(T+2)}, {P(XV)}, {P(XV)}')
    for r in range(2, 16, 2):
        if r >= 4: k.e(f'v_pk_add_f32 {P(T)}, {P(T)}, {P(XV+r)}')
        k.e(f'v_pk_fma_f32 {P(T+2)}, {P(XV+r)}, {P(XV+r)}, {P(T+2)}')
    k.e(f'''v_add_f32 v{T}, v{T}, v{T+1}
    v_add_f32 v{T+1}, v{T+2}, v{T+3}
    v_cvt_pk_bf16_f32 v{FB+8}, v{XV}, v{XV+1}
    v_cvt_pk_bf16_f32 v{FB+9}, v{XV+2}, v{XV+3}
    v_permlane32_swap_b32 v{T}, v{T+1}
    v_add_f32 v{T}, v{T}, v{T+1}''')
    k.vm_op(f'buffer_store_dword v{T}, v{T+15}, s[12:15], s58 offen sc1', 'p2st')
    k.st('p2st')
    for r in range(2, 8): k.e(f'v_cvt_pk_bf16_f32 v{FB+8+r}, v{XV+2*r}, v{XV+2*r+1}')
    k.e(f's_mov_b64 s[76:77], 0\ns_mov_b32 s78, 0\ns_mov_b32 s5, s59\ns_lshl_b32 s4, s34, 3\ns_add_u32 s4, s4, s35\ns_lshl_b32 s4, s4, 7\ns_lshl_b32 s6, s32, 9\ns_sub_u32 s4, s4, s6\ns_add_u32 s4, s4, {FL_WD}\ns_mov_b32 s28, s67\ns_mov_b32 s29, s69')

SM = 48
def sm(i): return f's{SM+i}' if i < 12 else f's{64+i-12}'
VH0, VH1, VWD, VA0, VA1 = 9, 142, 143, 14, 15
def setup34(k):
    q = Q(k); T = ET
    q.lines(f'''s_lshr_b32 s63, s3, 1            ; sw
    s_and_b32 s72, s3, 1
    s_lshl_b32 s6, s35, 2
    s_add_u32 s6, s6, s72
    s_mul_i32 s6, s6, {56*1024}
    s_add_u32 s6, s6, {WS_WDP}
    v_add_u32 v{VWD}, s6, v3
    s_mul_i32 s66, s63, 28
    s_sub_u32 s67, 28, s66''')
    for i in range(14):
        x = i & 3 == 1
        q.lines(f's_xor_b32 s6, s{62 if i < 12 else 63}, {i - x}\ns_add_u32 s6, s6, s{67 if x else 66}\ns_lshl_b32 {sm(i)}, s6, 12')
    q.lines(f'''
    s_lshl_b32 s39, s33, 7
    s_lshl_b32 s6, s32, 9
    s_sub_u32 s39, s39, s6
    s_add_u32 s39, s39, {FL_SIDE}
    s_lshl_b32 s7, s32, 2''')
    for st in range(4):
        q.lines(f'''s_xor_b32 s6, s33, {3^st}
        s_and_b32 s6, s6, 3
        s_add_u32 s6, s6, s7             ; rho
        s_mul_i32 s{44+st}, s6, {28*1024}
        s_add_u32 s{44+st}, s{44+st}, {WS_X1C}
        s_and_b32 s{40+st}, s6, 1
        s_lshr_b32 s6, s6, 1
        s_lshl_b32 s6, s6, 2
        s_add_u32 s6, s6, s3
        s_mul_i32 s6, s6, 14
        s_add_u32 s6, s6, s33
        s_lshl_b32 s6, s6, 1
        s_add_u32 s6, s6, s{40+st}
        s_lshl_b32 s6, s6, 11
        s_add_u32 s{40+st}, s6, {WS_HH}''')
    q.lines(f'''
    s_xor_b32 s6, s33, s3
    s_xor_b32 s6, s6, 3
    s_and_b32 s6, s6, 3
    s_add_u32 s6, s6, s7
    s_mul_i32 s37, s6, 3584
    s_add_u32 s37, s37, {WS_ST}
    s_lshl_b32 s6, s33, 2
    s_add_u32 s6, s6, s3
    s_lshl_b32 s38, s6, 11
    s_add_u32 s38, s38, {WS_WEXT}
    v_lshlrev_b32 v6, 3, v2
    v_add_u32 v7, {2*IMG}, v3
    v_add_u32 v8, {KSP}, v6
    s_mul_i32 s66, s3, 7168
    v_add_u32 v{VA0}, s66, v3
    v_add_u32 v{VA1}, 4096, v{VA0}
    s_add_u32 s70, s7, s62
    s_lshl_b32 s6, s32, 1
    s_add_u32 s6, s6, s34
    s_lshl_b32 s6, s6, 2
    s_add_u32 s6, s6, s72
    s_mul_i32 s6, s6, {56*1024}
    s_add_u32 s6, s6, {WS_HH}
    s_lshl_b32 s67, s63, 11
    s_add_u32 s6, s6, s67
    s_lshl_b32 s67, s72, 8
    v_xor_b32 v{VH0}, s67, v3
    v_add_u32 v{VH0}, s6, v{VH0}
    v_xor_b32 v{VH1}, 2048, v{VH0}
    s_lshl_b32 s73, s3, 12
    v_add_u32 v10, s73, v3
    v_add_u32 v11, {WDL[0]}, v10
    s_mul_i32 s70, s70, {28*1024}
    s_add_u32 s70, s70, s67
    s_add_u32 s70, s70, {WS_X1}''')
    q.add(f'''s_lshl_b32 s6, s35, 2
    s_sub_u32 s7, 29, s6
    s_cmp_le_u32 s35, 3
    s_cselect_b32 s67, s6, s7
    s_add_u32 s68, s6, 2
    s_sub_u32 s69, s7, 2
    s_cmp_le_u32 s35, 2
    s_cselect_b32 s68, s68, s69
    s_sub_u32 s69, s7, 4
    s_cmp_le_u32 s35, 3
    s_cselect_b32 s69, 1, s69
    s_cmp_eq_u32 s35, 3
    s_cselect_b32 s68, 13, s68''')
    q.lines(f'''v_and_b32 v127, 15, v2
    v_lshlrev_b32 v127, 4, v127
    v_lshrrev_b32 v{T}, 4, v2
    v_lshl_add_u32 v127, v{T}, 9, v127
    v_add_u32 v127, s70, v127
    s_mul_i32 s71, s3, 3072
    s_add_u32 s71, s71, {X1L}''')
    for t in range(2):
        q.lines(f'''s_lshl_b32 s6, s35, 6
        s_add_u32 s6, s6, {t}
        v_lshl_add_u32 v{T}, v4, 1, s6
        v_cmp_le_u32 vcc, 224, v{T}
        v_sub_u32 v{T+1}, 448, v{T}
        v_cndmask_b32 v{T+1}, v{T}, v{T+1}, vcc
        v_cndmask_b32 v{T+2}, 0, 1, vcc
        v_cmp_eq_u32 vcc, 224, v{T+1}
        v_cndmask_b32 v{T+1}, v{T+1}, 0, vcc
        v_lshrrev_b32 v{T+3}, 5, v{T+1}
        v_lshl_add_u32 v{T+3}, v{T+3}, 1, v{T+2}
        v_cmp_eq_u32 vcc, s68, v{T+3}
        v_mov_b32 v{T+2}, 2
        v_cndmask_b32 v{T+2}, v{T+2}, 1, vcc
        v_cmp_eq_u32 vcc, s67, v{T+3}
        v_bfe_u32 v{T+3}, v{T+1}, 4, 1
        v_cndmask_b32 v{T+2}, v{T+2}, 0, vcc
        v_lshlrev_b32 v{T+2}, 10, v{T+2}
        v_lshl_add_u32 v{T+2}, v{T+3}, 9, v{T+2}
        v_bfe_u32 v{T+3}, v{T+1}, 2, 1
        v_lshl_add_u32 v{T+2}, v{T+3}, 8, v{T+2}
        v_bfe_u32 v{T+3}, v{T+1}, 3, 1
        v_lshl_add_u32 v{T+2}, v{T+3}, 3, v{T+2}
        v_and_b32 v{T+3}, 3, v{T+1}
        v_lshl_add_u32 v{T+2}, v{T+3}, 1, v{T+2}
        v_lshl_add_u32 v{T+2}, v5, 6, v{T+2}
        v_add_u32 v{12+t}, s71, v{T+2}''')
    for b in range(3): q.add(f's_lshl_b32 s{67+b}, s{67+b}, 11')
    for sl in range(3):
        q.lines(f's_xor_b32 s6, s3, {sl+1}\ns_mul_i32 s6, s6, 12288\ns_add_u32 s6, s6, {RED+4096*sl}\nv_add_u32 v{124+sl}, s6, v3')
    q.lines(f'''s_mul_i32 s6, s3, 12288
    s_add_u32 s6, s6, {RED}
    v_add_u32 v1, s6, v3''')
    q.add(t1_txt('s7', 's36', 's63', 's6'))
    q.lines(f'''s_lshl_b32 s72, s72, 10
    s_add_u32 s72, s72, s7
    s_mul_i32 s72, s72, 896
    s_lshl_b32 s6, s35, 7
    s_add_u32 s72, s72, s6
    v_mul_u32_u24 v0, {4*64*896}, v5
    v_lshl_add_u32 v0, v4, 2, v0
    s_mov_b32 s8, s26
    s_and_b32 s9, s27, 0xffff''')
    return q

C01 = [(2,0),(2,1),(3,0),(3,1),(6,0),(6,1),(7,0),(7,1),(10,0),(10,1),(11,0),(11,1)]
C2 = [(i,1) for i in (0,1,4,5,8,9,12,13)]
C3 = [(i,0) for i in (0,1,4,5,8,9,12,13)]
ORDER = C01 + C2 + C3
def hreg(i, rl, a_): return a(8*ORDER.index((i, rl)) + 4*a_, 4)
def hh(q, L):
    for i, rl in L:
        for a_ in range(2): q.vm(None, f'buffer_load_dwordx4 {hreg(i,rl,a_)}, v{VH1 if rl else VH0}, s[12:15], {sm(i)} offen offset:{1024*a_} sc1', f'h{i}_{rl}')
def epi3(k, acc, st, pk=False):
    q = Q(k)
    K1 = ET + 2*(st & 1); SS = K1 + 1; T = ET + 4; PK = ET + 12
    for qq in range(4):
        rr = range(4*qq, 4*qq+4); t = T + 4*(qq & 1)
        if pk: q.add(*[f'v_pk_mul_f32 {P(t+r)}, {P(acc+4*qq+r)}, {P(K1)} op_sel_hi:[1,0]' for r in (0, 2)])
        else: q.add(*[f'v_mul_f32 v{t+(r&3)}, v{acc+r}, v{K1}' for r in rr])
        for r in rr: q.add(f'v_exp_f32 v{t+(r&3)}, v{t+(r&3)}')
        if pk: q.add(*[f'v_pk_fma_f32 {P(t+r)}, {P(t+r)}, {P(K1)}, {P(K1)} op_sel:[0,1,1] op_sel_hi:[1,1,1]' for r in (0, 2)])
        else: q.add(*[f'v_fma_f32 v{t+(r&3)}, v{t+(r&3)}, v{SS}, v{SS}' for r in rr])
        for r in rr: q.add(f'v_rcp_f32 v{t+(r&3)}, v{t+(r&3)}')
        if pk: q.add(*[f'v_pk_mul_f32 {P(t+r)}, {P(t+r)}, {P(acc+16+4*qq+r)}' for r in (0, 2)])
        else: q.add(*[f'v_mul_f32 v{t+(r&3)}, v{t+(r&3)}, v{acc+16+r}' for r in rr])
        q.add(f'v_cvt_pk_bf16_f32 v{PK+2*qq}, v{t}, v{t+1}', f'v_cvt_pk_bf16_f32 v{PK+2*qq+1}, v{t+2}, v{t+3}')
        if qq & 1: q.add(('vm', f'buffer_store_dwordx4 {v(PK+4*(qq>>1),4)}, v3, s[12:15], s{40+st} offen offset:{1024*(qq>>1)} sc1', f'hh{st}'))
    return q

def P3(k, C):
    su = setup34(k)
    def wd_reg(q, i):
        for f in range(4): q.vm(None, f'buffer_load_dwordx4 {wdreg(i,f)}, v{VWD}, s[12:15], {sm(i)} offen offset:{1024*f} sc1', f'wd{i}')
    def wd_lds(q, i):
        for f in range(4): q.vm(f's_add_u32 m0, s73, {WDL[LDSI.index(i)]}' if f == 0 else None, f'buffer_load_dwordx4 v{VWD}, s[12:15], {sm(i)} offen offset:{1024*f} sc1 lds', f'wd{i}')
    def a_dma(q, st):
        for i in range(7):
            pre = f's_add_u32 m0, s66, {st*IMG+1024*i}' if i in (0, 4) else None
            q.vm(pre, f'buffer_load_dwordx4 v{VA0 if i < 4 else VA1}, s[12:15], s{44+st} offen offset:{1024*(i&3)} sc1 lds', f'a{st}')
    r3 = k.r2
    wq = Q(k)
    for i in REGI[0:4] + REGI[5:9] + REGI[4:5]: wd_reg(wq, i)
    for n in range(C['r3_drain']): su.cyc(C['su_drain']//(C['r3_drain']+1)); r3.emit(1)
    su.cyc(C['su_drain']//(C['r3_drain']+1))
    k.wait(vm='p2st'); k.e('s_barrier'); k.st('sigA')
    gsignal(k, 0, 1)
    if 0 in C['pollA']: mp_issue(k, 0, 0, 0)
    l = k.label('WS')
    k.e(f's_cmp_lg_u32 s29, 1\ns_cbranch_scc1 {l}\ns_mov_b32 s74, 1\ns_add_u32 s29, s28, 1024\ns_atomic_add s74, s[24:25], s28\ns_atomic_add s74, s[24:25], s29\n{l}:')
    assert C['wd_flag'] == 0
    def x1st():
        for hf in range(2): k.vm_op(f'buffer_store_dwordx4 {v(FB+8+4*hf,4)}, v3, s[12:15], s5 offen offset:{1024*hf} sc1')
    tr = w3_tr(k, R1N, 28); nl = 4*(28 - k.r2n)
    n = 0
    while len(r3):
        r3.emit(1); n += 1
        if n in C['pollA']: mp_issue(k, 0, C['pollA'].index(n), 0)
        if len(tr) > nl: tr.emit(min(4, len(tr)-nl))
        else: su.cyc(32)
    x1st()
    tr.emit(len(tr) - nl)
    su.flush()
    k.st('w3done')
    k.e(f's_add_u32 s6, s44, s60\ns_mul_i32 s7, s3, 5120\ns_add_u32 s7, s7, 8192\ns_mov_b32 m0, s60\ns_add_u32 s61, s7, s44')
    lds_pad(k, 3, 128); k.wait(lg='tr')
    mp_check(k, 0, 14, 0)
    k.wait(vm='w3_27'); k.e('s_barrier'); k.st('flagA')
    for i in range(2): k.vm_op(f'buffer_load_dwordx4 v3, s[12:15], s6 offen offset:{1024*i} sc1 lds', 'a0a')
    k.e('s_mov_b32 m0, s7')
    for i in range(5):
        if i == 4: k.e('s_add_u32 m0, s7, 4096\ns_add_u32 s61, s61, 4096')
        k.vm_op(f'buffer_load_dwordx4 v3, s[12:15], s61 offen offset:{1024*(i&3)} sc1 lds', 'a0b'); tr.emit(4)
    for i in range(7): k.vm_op(f'buffer_load_dwordx2 {v(128+2*i,2)}, v6, s[12:15], s37 offen offset:{512*i} sc1', 'st'); tr.emit(3)
    tr.flush(); lds_pad(k, 3, RING+12); k.wait(lg='tr')
    poll_issue(k, 's39', 's75', 2); poll_issue(k, 's4', 's75', 1)
    vq = [Q(k) for _ in range(4)]
    a_dma(vq[0], 1)
    for mt in range(2): vq[0].vm(None, f'buffer_load_dwordx4 {v(WX+4*mt,4)}, v3, s[12:15], s38 offen offset:{1024*mt} sc1', 'wx')
    wd_lds(vq[0], LDSI[0])
    a_dma(vq[1], 2); wd_lds(vq[1], LDSI[1]); wd_lds(vq[1], LDSI[2])
    a_dma(vq[2], 3); wd_lds(vq[2], LDSI[3]); wd_lds(vq[2], LDSI[4])
    for st in range(3): vq[st].q += wq.q[:C['wd_st'][st]]; wq.q = wq.q[C['wd_st'][st]:]
    vq[3].q += wq.q
    vq[3].vm(f's_lshl_b32 s6, s35, 8\ns_add_u32 s6, s6, {WS_MOD+GB_N}\nv_lshlrev_b32 v14, 3, v4', 'buffer_load_dwordx2 v[14:15], v14, s[12:15], s6 offen sc1', 'gb')
    sq = Q(k)
    for i in range(1, 7): sq.lines(f'v_add_f32 v128, v128, v{128+2*i}\nv_add_f32 v129, v129, v{129+2*i}')
    sq.lines(f'''v_mov_b32 v130, v128
    v_mov_b32 v131, v129
    s_mul_i32 s6, s3, {IMG}
    v_add_u32 v138, s6, v3
    v_permlane32_swap_b32 v128, v130
    v_permlane32_swap_b32 v129, v131
    v_add_f32 v128, v128, v130
    v_add_f32 v129, v129, v131
    v_mul_f32 v128, {f2h(-1/448)}, v128
    v_mul_f32 v129, {f2h(1/448)}, v129
    v_fma_f32 v129, -v128, v128, v129
    v_max_f32 v129, 0, v129
    v_add_f32 v129, {f2h(1e-5)}, v129
    v_rsq_f32 v130, v129
    v_sqrt_f32 v131, v129
    v_cvt_pk_bf16_f32 v132, v128, v128
    v_mul_f32 v130, {f2h(-LOG2E)}, v130
    v_cvt_pk_bf16_f32 v136, v131, v131
    v_and_b32 v137, 0xffff0000, v132
    v_and_b32 v136, 0xffff0000, v136
    v_sub_f32 v137, v128, v137
    v_sub_f32 v136, v131, v136
    v_cmp_eq_u32 vcc, 0, v5
    v_cvt_pk_bf16_f32 v133, v137, v131
    v_cvt_pk_bf16_f32 v134, v131, v136
    v_mov_b32 v135, 0
    v_cndmask_b32 v132, 0, v132, vcc
    v_cndmask_b32 v133, 0, v133, vcc
    v_cndmask_b32 v134, 0, v134, vcc
    s_lshl_b32 s6, s3, 9
    v_add_u32 v137, s6, v8''')
    sq.add(('ds', 'ds_write_b128 v138, v[132:135] offset:28672', 'stw'), ('ds', 'ds_write_b64 v137, v[130:131]', 'stw'))
    L = 8; KS = 29 - L
    seq = [(st, ks) for st in range(4) for ks in range(29)]
    def breg(n): return v(RING+4*(n&3),4) if n < 87+KS else v(ACC0+4*(n-87-KS),4)
    def rd(n):
        st, ks = seq[n]
        base, off = ('v3', st*IMG) if st < 2 else ('v7', (st-2)*IMG)
        k.ds_op(f'ds_read_b128 {breg(n)}, {base} offset:{off+1024*ks}', f'b{n}')
    PD = 3
    k.wait(vm='a0a'); k.e('s_barrier'); k.st('P3go')
    for n in range(PD): rd(n)
    k.lq = lq = Q(k); hh(lq, C01)
    for b in range(3): lq.vm(f's_add_u32 m0, s71, {1024*b}', f'buffer_load_dwordx4 v127, s[12:15], s{67+b} offen sc1 lds', 'x1')
    fill = Q(k); rate = 0; nv = [len(q) for q in vq]; assert max(nv) <= 28
    def mf(n, mt):
        st, ks = seq[n]; acc = ACC0 + 32*(st & 1)
        if ks < 28: A = a(8*ks+4*mt, 4); k.wait(lg=f'b{n}')
        else: A = v(WX+4*mt, 4); k.wait(vm='wx', lg=f'b{n}')
        c = '0' if ks == 0 else v(acc+16*mt, 16)
        k.e(f'v_mfma_f32_32x32x16_bf16 {v(acc+16*mt,16)}, {A}, {breg(n)}, {c}')
    def events(st, ks):
        if (st, ks) == C['sigB01']: k.wait(vm='hh1'); k.e('s_barrier'); gsignal(k, 128)
        if (st, ks) in C['pollB01']: mp_issue(k, 128, C['pollB01'].index((st, ks)), 3)
        if (st, ks) == (3, C['c01_ks']):
            assert not len(vq[3]); mp_check(k, 128, 14, 3); k.e('s_barrier'); k.st('B01ok')
        if (st, ks) == (3, C['sigB2']): k.wait(vm='hh2'); k.e('s_barrier'); gsignal(k, 256, 1); k.st('sigB2')
    nrd = PD
    for n, (st, ks) in enumerate(seq[:87+KS]):
        s2, k2 = seq[nrd]
        if (s2, k2) == (0, 8): poll_check(k, 's39', 2, 's75', 2); poll_check(k, 's4', 28, 's75', 1); k.wait(vm='a0b'); k.e('s_barrier')
        elif (s2, k2) == (0, 28):
            assert not len(sq); k.wait(vm='a1', lg='stw'); k.e('s_barrier')
            k.ds_op(f'ds_read_b64 {v(ET,2)}, v8', 'ks0')
        elif k2 == 0 and s2 >= 2:
            sg = s2 == 3 and C['sigB01'] is None
            k.wait(vm=[f'a{s2}'] + (['hh1'] if sg else [])); k.e('s_barrier')
            if sg: gsignal(k, 128)
        if nrd >= 87+KS: assert not len(fill)
        rd(nrd); nrd += 1
        if nrd > 87+KS: rd(nrd); nrd += 1
        if ks == (27 if st < 3 else 5) and st: k.ds_op(f'ds_read_b64 {v(ET+2*(st&1),2)}, v8 offset:{512*st}', f'ks{st}')
        if ks == 2 and st > 0:
            fill = epi3(k, ACC0 + 32*((st-1) & 1), st-1)
            rate = fill.cost() / (2*C['epi_span'][st-1])
        if (st, ks) == (0, 8): k.wait(vm='st'); fill = sq; rate = 8
        events(st, ks)
        for mt in range(2):
            mf(n, mt)
            if mt == 0 and len(vq[st]) > ((nv[st]*(27-ks))//28 if st < 3 else 0): vq[st].emit(1)
            if mt == 1 and st == 3 and ks >= C['c01_ks']: assert (27 - len(lq))//2 <= ks; lq.emit(1)
            fill.cyc(rate)
        if ks == 28:
            assert not len(fill) and not len(vq[st]), (st, len(fill), len(vq[st]))
            k.st(f'S{st}')
    G = ACC0+32; U = G+16; K1 = ET+2; PK = ET+12
    for j in range(L):
        if nrd < len(seq): rd(nrd); nrd += 1
        if not j & 1: events(3, KS + j//2)
        mf(87+KS+j, 0)
        if j & 1: lq.emit(1)
        if j < 7: k.e(f'v_mov_b64 {P(128+2*j)}, 0')
    sg = Q(k)
    for qq in range(4):
        rr = range(G+4*qq, G+4*qq+4); pk = qq >= C['sg_pk']
        if pk: sg.add(*[f'v_pk_mul_f32 {P(r)}, {P(r)}, {P(K1)} op_sel_hi:[1,0]' for r in rr[::2]])
        else: sg.add(*[f'v_mul_f32 v{r}, v{r}, v{K1}' for r in rr])
        sg.add(*[f'v_exp_f32 v{r}, v{r}' for r in rr])
        if pk: sg.add(*[f'v_pk_fma_f32 {P(r)}, {P(r)}, {P(K1)}, {P(K1)} op_sel:[0,1,1] op_sel_hi:[1,1,1]' for r in rr[::2]])
        else: sg.add(*[f'v_fma_f32 v{r}, v{r}, v{K1+1}, v{K1+1}' for r in rr])
        sg.add(*[f'v_rcp_f32 v{r}, v{r}' for r in rr])
    for j in range(L):
        if not j & 1: events(3, KS + (L+j)//2)
        mf(87+KS+j, 1)
        if j == 0: lq.emit(1); ldsread(k, LDSI[0])
        elif j == 1: lq.emit(1); k.e('s_nop 3')
        else:
            if j & 1 and C['u_ld']: lq.emit(1)
            sg.cyc(C['sg_rate'])
    k.st('S3')
    if -1 in C['p4_poll2']: mp_issue(k, 256, C['p4_poll2'].index(-1), 1)
    for n in range(C['e_ld']): sg.cyc(64); lq.emit(1)
    sg.flush()
    for hf in range(2):
        for r in range(8*hf, 8*hf+8, 2): k.e(f'v_pk_mul_f32 {P(G+r)}, {P(G+r)}, {P(U+r)}')
        for r in range(4*hf, 4*hf+4): k.e(f'v_cvt_pk_bf16_f32 v{PK+r}, v{G+2*r}, v{G+2*r+1}')
        k.vm_op(f'buffer_store_dwordx4 {v(PK+4*hf,4)}, v3, s[12:15], s43 offen offset:{1024*hf} sc1', 'hh3')
    k.st('epi3')
    if C['sigB2'] > 28: k.wait(vm='hh2'); k.e('s_barrier'); gsignal(k, 256, 1); k.st('sigB2')

RG = [RING, WX]
def ldsread(k, i):
    slot = LDSI.index(i)
    base, off = ('v11', WDL[slot]-WDL[0]) if slot < 2 else ('v10', WDL[slot])
    k.wait(vm=f'wd{i}')
    for f in range(4): k.ds_op(f'ds_read_b128 {v(RG[slot&1]+4*f,4)}, {base} offset:{off+1024*f}', f'wl{i}_{f}')
def P4(k, C):
    XRG = list(range(128, 142)) + [122, 123]
    lq = k.lq
    started = set(); order = ORDER; redw = Q(k); R = RING
    LT = 2; ml = []
    for n, (i, rl) in enumerate(order[:-LT]): ml += [(n, i, rl, a_, t) for a_ in range(2) for t in range(2)]
    for t in range(2): ml += [(len(order)-LT+j, i, rl, a_, t) for j, (i, rl) in enumerate(order[-LT:]) for a_ in range(2)]
    seen = set(); burst = C['p4_burst0']
    for m, (n, i, rl, a_, t) in enumerate(ml):
        if n not in seen:
            seen.add(n)
            if n == C['p4_sig3']: k.wait(vm='hh3'); k.e('s_barrier'); gsignal(k, 384); k.st('sigB3')
            if n in C['p4_poll2']: mp_issue(k, 256, C['p4_poll2'].index(n), 1)
            if n == 2: k.e('v_mov_b64 v[122:123], 0')
            if n == C['p4_c2']:
                mp_check(k, 256, 14, 1); k.e('s_barrier'); hh(lq, C2); k.st('B2ok')
            if n in C['p4_poll3']: mp_issue(k, 384, C['p4_poll3'].index(n), 2)
            if n == C['p4_c3']:
                mp_check(k, 384, 14, 2); k.e('s_barrier'); hh(lq, C3); k.st('B3ok'); lq.emit(C['p4_b0']); burst = C['p4_burst']
            if n == 12:
                k.wait(vm='x1')
                for tt in range(2):
                    for r in range(8): redw.add(('ds', f'ds_read_u16_d16_hi v{XRG[8*tt+r]}, v{12+tt} offset:{16*DELT[r]}', 'xr'))
            if i in LDSI and rl == 0 and LDSI.index(i) < 4:
                ldsread(k, LDSI[LDSI.index(i)+1])
                if LDSI.index(i) == 3: lds_pad(k, 4, 112)
        if m == 82:
            assert not len(redw)
            for rh in range(2):
                for tt in range(2):
                    for q in range(2): redw.add(('ds', f'ds_write_b128 v{125+rh}, {v(acc4(1,tt)+8*rh+4*q,4)} offset:{(2*tt+q)*1024}', 'rw'))
        if m == 100:
            assert not len(redw); k.wait(lg='rw'); k.e('s_barrier')
        f = 2*a_+t
        if i in LDSI: B = v(RG[LDSI.index(i)&1]+4*f, 4); k.wait(vm=f'h{i}_{rl}', lg=f'wl{i}_{f}')
        else: B = wdreg(i, f); k.wait(vm=f'h{i}_{rl}')
        assert not any(isinstance(x, tuple) and x[2] == f'h{i}_{rl}' for x in lq.q), (i, rl)
        c = v(acc4(rl,t),16) if (rl,t) in started else '0'
        started.add((rl,t))
        k.e(f'v_mfma_f32_32x32x16_bf16 {v(acc4(rl,t),16)}, {hreg(i,rl,a_)}, {B}, {c}')
        if burst > 0: lq.emit(1); burst -= 1
        elif not m & 1: lq.emit(1)
        if m & 1: redw.emit(1)
        if 100 <= m < 104:
            for sl in (1, 2): k.ds_op(f'ds_read_b128 {v(R+16*(sl-1)+4*(m-100),4)}, v1 offset:{sl*4096+(m-100)*1024}', f'r12_{m-100}')
        if 105 <= m < 109:
            k.wait(lg=f'r12_{m-105}')
            for r in range(4*(m-105), 4*(m-104)): k.e(f'v_add_f32 v{R+r}, v{R+r}, v{R+16+r}')
        if m >= 110: k.ds_op(f'ds_write_b128 v124, {v(acc4(0,0)+8+4*(m-110),4)} offset:{(m-110)*1024}')
    assert not len(redw) and not len(lq)
    k.st('P4mf')
    for r in range(0, 8, 2): k.e(f'v_pk_add_f32 {P(R+r)}, {P(R+r)}, {P(acc4(0,0)+r)}')
    for q in range(2): k.ds_op(f'ds_write_b128 v124, {v(acc4(0,1)+8+4*q,4)} offset:{(2+q)*1024}')
    for r in range(0, 8, 2): k.e(f'v_pk_add_f32 {P(R+8+r)}, {P(R+8+r)}, {P(acc4(0,1)+r)}')
    for t in range(2):
        for r in range(0, 8, 2): k.e(f'v_pk_fma_f32 {P(XRG[8*t+r])}, {P(R+8*t+r)}, v[14:15], {P(XRG[8*t+r])} op_sel:[0,{t},0] op_sel_hi:[1,{t},1]')
    k.wait(lg='all'); k.e('s_barrier')
    R0 = 144
    for q in range(2):
        for t in range(2): k.ds_op(f'ds_read_b128 {v(R0+8*t+4*q,4)}, v1 offset:{(2*t+q)*1024}', f'rr{q}')
    for r in range(8): k.e(f's_add_u32 s{48+r}, s72, {DELT[r]*64*896}')
    for q in range(2):
        k.wait(lg=f'rr{q}')
        for t in range(2):
            for r in (4*q, 4*q+2):
                x = XRG[8*t+r]
                k.e(f'v_pk_fma_f32 {P(x)}, {P(R0+8*t+r)}, v[14:15], {P(x)} op_sel:[0,{t},0] op_sel_hi:[1,{t},1]')
        for r in range(4*q, 4*q+4):
            k.e(f'v_cvt_pk_bf16_f32 v{XRG[r]}, v{XRG[r]}, v{XRG[8+r]}')
            k.vm_op(f'buffer_store_dword v{XRG[r]}, v0, s[8:11], s{48+r} offen {C["out_pol"]}')

S_W = 8192
def side(k, C):
    wq = side_head(k, False, C)
    side_tail(k, wq, C)
    k.e('s_endpgm\nSD_Z:'); k.reset_counts()
    side_head(k, True, C)
    k.e('s_branch SD_G3')

W = 16; SL = 128; AC = 142; TS = 150; DF = 160; CS = 176
def side_head(k, Z, C):
    T = TS; tg = 'Z' if Z else 'B'
    k.e(f'''
    v_lshrrev_b32 v1, 6, v0
    v_and_b32 v2, 63, v0
    v_readfirstlane_b32 s3, v1
    v_lshrrev_b32 v6, 3, v2
    v_and_b32 v8, 7, v2
    s_mul_i32 s39, s3, 112
    v_add_u32 v7, s39, v6
    v_mul_u32_u24 v7, 5376, v7
    v_lshl_add_u32 v7, v8, 4, v7
    v_add_u32 v9, s39, v2
    v_lshlrev_b32 v9, 1, v9          ; c voffset
    s_mov_b32 s10, {448*5376}
    s_mov_b32 s11, 0x20000
    s_mov_b32 s46, 896
    s_mov_b32 s47, 0x20000
    s_mov_b32 s14, {WS_END}
    s_mov_b32 s15, 0x20000
    ''')
    if Z: k.e('s_lshl_b32 s34, s33, 1\ns_add_u32 s35, s34, 1\ns_lshl_b32 s40, s34, 7\ns_lshl_b32 s41, s35, 7')
    else: k.e('s_add_u32 s40, s32, 7\ns_lshl_b32 s40, s40, 7\ns_add_u32 s41, s33, 1\ns_mul_i32 s41, s41, 896\ns_add_u32 s41, s41, s40')
    k.e(f'''
    v_lshlrev_b32 v3, 4, v2
    v_and_b32 v4, 31, v2
    v_lshrrev_b32 v5, 5, v2
    s_and_b32 s42, s3, 1             ; mat
    s_lshr_b32 s43, s3, 1
    s_mov_b32 s52, {f2h(1/448)}
    s_mov_b32 s53, {f2h(-448.0)}
    s_waitcnt lgkmcnt(0)
    s_mov_b32 s44, s22
    s_and_b32 s45, s23, 0xffff
    s_mov_b32 s8, s24
    s_and_b32 s9, s25, 0xffff
    s_mov_b32 s12, s30
    s_and_b32 s13, s31, 0xffff
    ''')
    if Z:
        k.e(f'''s_cmp_lg_u32 s2, {NSIDE-1}
    s_cbranch_scc1 SD_NZ
    v_lshlrev_b32 v10, 4, v0
    v_mov_b64 v[16:17], 0
    v_mov_b64 v[18:19], 0
    s_mov_b32 s6, {WS_FLAG}''')
        for i in range(10): k.e('buffer_store_dwordx4 v[16:19], v10, s[12:15], s6 offen sc1\ns_add_u32 s6, s6, 4096')
        k.e('''s_mov_b32 s74, 1
    s_waitcnt vmcnt(0)
    s_barrier
    s_cmp_lg_u32 s3, 0
    s_cbranch_scc1 SD_NZ
    s_atomic_or s74, s[28:29], 0x0
SD_NZ:''')
    k.stamp(1); k.st('sd0')
    k.vm_op('buffer_load_ushort v10, v9, s[44:47], 0 offen', 'c')
    k.vm_op('buffer_load_ushort v11, v9, s[44:47], 0 offen offset:112', 'c')
    lq = Q(k)
    for t in range(2):
        for i in range(14): lq.vm(f's_add_u32 s{40+t}, s{40+t}, {8*5376}' if i else None, f'buffer_load_dwordx4 {v(W+56*t+4*i,4)}, v7, s[8:11], s{40+t} offen', f'w{t}_{i}')
    lq.emit(2)
    def ang0(dst, step, ef, df, ph):
        return f'''v_mul_f32 v{dst}, v{ef}, v{df}
        v_mul_f32 v{step}, s52, v{dst}
        v_floor_f32 v{step}, v{step}
        v_fma_f32 v{dst}, v{step}, s53, v{dst}
        v_fma_f32 v{dst}, v{dst}, s52, {ph}
        v_mul_f32 v{step}, s52, v{ef}'''
    f = Q(k)
    f.lines(f'''v_lshlrev_b32 v{T}, 3, v8
    v_add_u32 v{T}, v{T}, v6
    v_lshlrev_b32 v{T}, 2, v{T}
    s_lshl_b32 s57, s3, 8
    v_add_u32 v9, s57, v{T}
    v_lshlrev_b32 v241, 2, v2
    v_lshlrev_b32 v244, 2, v6
    v_mov_b32 v245, 0''')
    for i in range(0, 8, 2): f.add(f'v_mov_b64 {P(AC+i)}, 0')
    if not Z:
        f.lines(f'''
        s_lshl_b32 s6, s33, 2
        v_lshl_add_u32 v12, v5, 1, s6    ; 4kk+2h
        s_lshl_b32 s6, s32, 6
        v_add_u32 v{T}, s6, v12
        v_cvt_f32_u32 v{T}, v{T}         ; d0
        v_lshlrev_b32 v12, 2, v12
        s_lshl_b32 s6, s43, 5
        v_add_u32 v{T+1}, s6, v4
        v_cmp_eq_u32 vcc, 0, v{T+1}
        v_cvt_f32_u32 v{T+1}, v{T+1}''')
        f.add(f'''s_cmp_eq_u32 s42, 1
        s_cselect_b32 s6, {f2h(-0.25)}, 0
        s_cselect_b32 s7, {f2h(224.0)}, 0''')
        f.lines(f'''v_mov_b32 v{T+2}, s6
        v_mov_b32 v{T+3}, s7
        v_cndmask_b32 v{T+3}, v{T+1}, v{T+3}, vcc
        v_cndmask_b32 v{T+4}, v{T+2}, 0, vcc''')
        for jj in range(4):
            if jj: f.add(f'v_add_f32 v{T+1}, {f2h(64.0)}, v{T+1}')
            f.lines(ang0(T+5, T+6, T+3 if jj == 0 else T+1, T, f'v{T+4}' if jj == 0 else f'v{T+2}'))
            for n in range(8): f.add(f'v_fmamk_f32 v{CS+8*jj+n}, v{T+6}, {f2h(16*(n&3)+(n>>2))}, v{T+5}')
            for n in range(8): f.add(f'v_cos_f32 v{CS+8*jj+n}, v{CS+8*jj+n}')
        f.lines(f'''s_mul_i32 s58, s3, 28
        s_lshl_b32 s7, s32, 2
        s_add_u32 s58, s58, s7
        s_add_u32 s58, s58, s33
        s_lshl_b32 s58, s58, 10
        s_add_u32 s58, s58, {WS_CP}''')
    else:
        f.lines(f'v_cvt_f32_u32 v{T+1}, v0\ns_lshl_b32 s6, s33, 7\nv_cvt_f32_u32 v{T}, s6')
        for t in range(2):
            f.lines(ang0(13, 14, T+1, T, '0') + f'\nv_add_f32 v{T}, {f2h(64.0)}, v{T}')
            for n in range(0, 64, 4):
                for i in range(4): f.add(f'v_fmamk_f32 v{T+2+i}, v14, {f2h(n+i)}, v13')
                for i in range(4): f.add(f'v_cos_f32 v{T+2+i}, v{T+2+i}')
                for i in range(2): f.add(f'v_cvt_pk_bf16_f32 v{CS+32*t+n//2+i}, v{T+2+2*i}, v{T+3+2*i}')
    for n in range(8): f.cyc(56); lq.emit(1)
    f.cyc(100)
    k.stamp(2)
    k.wait(vm='c')
    for txt in ('v_lshlrev_b32 v#, 16, v#', f'v_mul_f32 v@, {f2h(-LOG2E)}, v#', 'v_exp_f32 v@, v@', 'v_add_f32 v@, 1.0, v@', 'v_rcp_f32 v@, v@', 'v_mul_f32 v#, v#, v@', 'v_cvt_pk_bf16_f32 v#, v#, v245'):
        for r in range(2): k.e(txt.replace('#', str(10+r)).replace('@', str(246+r)))
    for i in range(14): k.ds_op(f'ds_bpermute_b32 v{SL+i}, v244, v{10+i//7} offset:{32*(i%7)}', f'sl{i}')
    lq.emit(2)
    if Z:
        while len(lq): f.cyc(56); lq.emit(1)
    f.flush()
    k.stamp(3)
    def gemv(t, split=99, mid=None):
        if t:
            for i in range(0, 8, 2): k.e(f'v_mov_b64 {P(AC+i)}, 0')
        for i in range(14):
            if i == split: mid()
            k.wait(vm=f'w{t}_{i}', lg=f'sl{i}')
            if len(lq) > 14 or (i in (2,4,5,7,8,10,11,13) and t == 0): lq.emit(1)
            k.e(f'v_lshlrev_b32 v{T}, 16, v{SL+i}')
            for d in range(4): k.e(f'v_dot2_f32_bf16 v{AC+2*d}, v{W+56*t+4*i+d}, v{SL+i}, v{AC+2*d}')
            for d in range(4): k.e(f'v_dot2_f32_bf16 v{AC+2*d+1}, v{W+56*t+4*i+d}, v{T}, v{AC+2*d+1}')
        for i in range(4): k.e(f'v_permlane32_swap_b32 v{AC+i}, v{AC+4+i}')
        for i in range(0, 4, 2): k.e(f'v_pk_add_f32 {P(AC+i)}, {P(AC+i)}, {P(AC+4+i)}')
        for i in range(2): k.e(f'v_permlane16_swap_b32 v{AC+i}, v{AC+2+i}')
        k.e(f'''v_pk_add_f32 {P(AC)}, {P(AC)}, {P(AC+2)}
        v_add_f32_dpp v{AC+2}, v{AC}, v{AC} row_ror:8 row_mask:0xf bank_mask:0xf
        v_add_f32_dpp v{AC+2}, v{AC+1}, v{AC+1} row_ror:8 row_mask:0xf bank_mask:0xc''')
        k.ds_op(f'ds_write_b32 v9, v{AC+2} offset:{1024*t}')
    def gemv_fin(t):
        for i in range(2): k.ds_op(f'ds_read2st64_b32 {P(AC+2*i)}, v241 offset0:{4*t+2*i} offset1:{4*t+2*i+1}')
        lq.emit(2)
        k.wait(lg='all')
        k.e(f'''v_pk_add_f32 {P(AC)}, {P(AC)}, {P(AC+2)}
        v_add_f32 v{AC}, v{AC}, v{AC+1}
        v_cvt_pk_bf16_f32 v{AC}, v{AC}, v{AC}
        v_and_b32 v{AC}, 0xffff0000, v{AC}''')
        if not Z: k.e(f'''v_add_f32 v{AC+1}, 1.0, v{AC}
        v_cvt_pk_bf16_f32 v{AC+1}, v{AC+1}, v{AC+1}
        v_and_b32 v{AC+1}, 0xffff0000, v{AC+1}''')
    def zfin():
        for t in range(2):
            gemv_fin(t)
            if t: k.e(f's_cmp_eq_u32 s33, 3\ns_cselect_b32 s6, 0, -1\nv_and_b32 v{AC}, s6, v{AC}')
            else: k.e(f'v_lshl_add_u32 v{T}, v2, 1, s57\nv_mov_b32 v{T+1}, s57')
            k.e(f'ds_write_b16_d16_hi v{T}, v{AC} offset:{4096+128*t}')
        for i in range(16): k.ds_op(f'ds_read_b128 {v(W+4*i,4)}, v{T+1} offset:{4096+16*i}', f'z{i}')
        k.e(f'''v_mov_b64 {P(AC+2)}, 0
        v_mov_b64 {P(AC+4)}, 0
        s_lshl_b32 s6, s33, 10
        s_add_u32 s6, s6, {WS_ZF}
        v_lshlrev_b32 v{T}, 2, v0
        v_cmp_ge_u32 vcc, 224, v0
        v_mov_b32 v{T+2}, 0x7fff0000
        v_add_u32 v{T+1}, 896, v{T}
        v_cndmask_b32 v{T}, v{T+2}, v{T}, vcc
        v_subrev_u32 v{T+3}, 1, v0
        v_cmp_gt_u32 vcc, 31, v{T+3}
        v_cndmask_b32 v{T+1}, v{T+2}, v{T+1}, vcc''')
        for i in range(16):
            k.wait(lg=f'z{i}')
            for d in range(4): k.e(f'v_dot2_f32_bf16 v{AC+2+d}, v{CS+4*i+d}, v{W+4*i+d}, v{AC+2+d}')
        k.e(f'''v_pk_add_f32 {P(AC+2)}, {P(AC+2)}, {P(AC+4)}
        v_add_f32 v{AC+2}, v{AC+2}, v{AC+3}
        v_cvt_pk_bf16_f32 v{AC+3}, v{AC+2}, v{AC+2}
        v_and_b32 v{AC+3}, 0xffff0000, v{AC+3}
        v_sub_f32 v{AC+3}, v{AC+2}, v{AC+3}
        v_cvt_pk_bf16_f32 v{AC+2}, v{AC+2}, v{AC+3}''')
        k.vm_op(f'buffer_store_dword v{AC+2}, v{T}, s[12:15], s6 offen sc1')
        k.vm_op(f'buffer_store_dword v{AC+2}, v{T+1}, s[12:15], s6 offen sc1')
    gemv(0); k.stamp(4)
    if not Z:
        lq.emit(2); k.wait(lg='all'); k.e('s_barrier'); gemv_fin(0); k.stamp(5)
        for n in range(8): k.e(f'ds_bpermute_b32 v{DF+n}, v12, v{AC+1} offset:{4*(16*(n&3)+(n>>2))}')
        lq.flush()
        k.e('s_waitcnt lgkmcnt(0)')
        for jj in range(4):
            if jj == 3: k.e('s_cmp_eq_u32 s43, 1\ns_cselect_b32 s58, 0x7fff0000, s58')
            for n in range(0, 8, 2): k.e(f'v_pk_mul_f32 {P(CS+8*jj+n)}, {P(CS+8*jj+n)}, {P(DF+n)}')
            for r in range(4): k.e(f'v_cvt_pk_bf16_f32 v{W+4*jj+r}, v{CS+8*jj+2*r}, v{CS+8*jj+2*r+1}')
            k.vm_op(f'buffer_store_dwordx4 {v(W+4*jj,4)}, v3, s[12:15], s58 offen sc1')
            if jj < 3: k.e(f's_add_u32 s58, s58, {4*28*1024}')
    else: k.stamp(5)
    k.stamp(6); k.st('sd1'); ready_issue(k, 242, 243, 'cp')
    k.e(f'''
    s_lshr_b32 s36, s32, 1
    s_lshl_b32 s6, s33, 2
    s_add_u32 s36, s36, s6           ; idx
    s_and_b32 s6, s32, 1
    s_mul_i32 s6, s6, 14
    s_add_u32 s37, s6, s36           ; 2m+half
    s_cmp_eq_u32 s42, 0
    s_cselect_b32 s48, s16, s18
    s_cselect_b32 s49, s17, s19
    s_and_b32 s49, s49, 0xffff
    s_cmp_lt_u32 s36, 14
    s_cselect_b32 s50, {448*3584}, 0
    s_mov_b32 s51, 0x20000
    v_bfe_u32 v{T}, v2, 4, 1
    v_lshlrev_b32 v{T}, 2, v{T}
    v_xor_b32 v{T}, v{T}, v8
    v_mul_u32_u24 v15, 3584, v6
    v_lshl_add_u32 v15, v{T}, 4, v15
    s_mul_i32 s54, s43, {224*3584}
    s_lshl_b32 s6, s37, 7
    s_add_u32 s54, s54, s6
    s_mul_i32 s55, s42, 57344
    s_mul_i32 s6, s43, 28672
    s_add_u32 s56, s55, s6
    s_add_u32 m0, s56, {S_W}
    s_lshl_b32 s58, s32, 7
    s_add_u32 s58, s58, {WS_FLAG+FL_BAR}
    ''' + bar_regs(248, 249))
    wq = Q(k)
    for i in range(28): wq.vm(f's_add_u32 m0, m0, 1024\ns_add_u32 s54, s54, {8*3584}' if i else None, 'buffer_load_dwordx4 v15, s[48:51], s54 offen lds', 'wst')
    if not Z: k.e(f'''
    s_lshl_b32 s6, s32, 6
    v_add_u32 v{DF}, s6, v2          ; col
    v_cmp_le_u32 vcc, 224, v{DF}
    v_sub_u32 v{DF+1}, 448, v{DF}
    v_cndmask_b32 v{DF+1}, v{DF}, v{DF+1}, vcc
    v_cndmask_b32 v{DF+2}, 0, 32, vcc
    v_cmp_eq_u32 vcc, 224, v{DF+1}
    v_cndmask_b32 v{DF+1}, v{DF+1}, 0, vcc
    v_lshrrev_b32 v{DF+3}, 5, v{DF+1}
    v_lshl_add_u32 v{DF+2}, v{DF+3}, 6, v{DF+2}
    v_and_b32 v{DF+1}, 31, v{DF+1}
    v_add_u32 v{DF+1}, v{DF+1}, v{DF+2} ; position
    s_mov_b32 s60, {WS_MOD+GA_P}
    s_cmp_eq_u32 s33, 3
    s_cselect_b64 vcc, -1, 0
    s_cselect_b32 s60, {WS_MOD+GB_N}, s60
    v_cndmask_b32 v{DF+1}, v{DF+1}, v{DF}, vcc
    s_mov_b32 s61, 0x7fff0000
    s_cmp_eq_u32 s33, 1
    s_cselect_b32 s61, {WS_MOD+SB_K}, s61
    s_cselect_b32 s60, 0x7fff0000, s60
    s_cmp_eq_u32 s33, 2
    s_cselect_b64 vcc, -1, 0
    s_cselect_b32 s60, {WS_MOD+CB1_P}, s60
    s_cselect_b32 s61, {WS_MOD+CB1_K}, s61
    v_lshlrev_b32 v{DF+1}, 2, v{DF+1}
    v_lshlrev_b32 v{DF}, 1, v{DF}
    s_mov_b32 s59, {WS_FLAG+FL_BAR+7*128}
    ''')
    def midsig():
        k.wait(vm='cp'); k.e('s_barrier'); bar_signal(k, 's58', 248, 249, 242, 243); k.stamp(7); k.st('sd2')
    split = C['sd_split'] if not Z else 99
    gemv(1, split, midsig)
    k.wait(vm='cp', lg='all'); k.e('s_barrier')
    if Z: k.e('s_mov_b32 s58, 0x7fff0000')
    if split > 13: bar_signal(k, 's58', 248, 249, 242, 243); k.stamp(7); k.st('sd2')
    if Z:
        zfin()
        k.e(f's_add_u32 s24, s30, {WS_FLAG}\ns_addc_u32 s25, s31, 0')
        k.wait(vm='all'); k.e('s_barrier'); signal(k, FL_SIDE+14*128)
        return
    k.e('s_cmp_lg_u32 s3, 0\ns_cbranch_scc1 SD_G3')
    gemv_fin(1)
    k.e(f'''v_cndmask_b32 v{AC}, v{AC}, v{AC+1}, vcc
    buffer_store_dword v{AC}, v{DF+1}, s[12:15], s60 offen sc1
    buffer_store_short_d16_hi v{AC}, v{DF}, s[12:15], s61 offen sc1
    s_waitcnt vmcnt(0)
    buffer_atomic_add v249, v248, s[12:15], s59 offen sc1
    ''')
    return wq

def side_tail(k, wq, C):
    T = TS
    k.e('SD_G3:'); k.vm = []; k.lg = []
    k.stamp(8); k.st('sd3')
    k.e('s_cmp_lt_u32 s36, 14\ns_cbranch_scc0 KP_END')
    f = Q(k)
    f.lines(f'''
    s_lshr_b32 s24, s37, 1
    s_lshl_b32 s38, s24, 7
    s_add_u32 s38, s38, {FL_SIDE}
    s_and_b32 s39, s32, 1
    s_lshl_b32 s39, s39, 10
    s_add_u32 s39, s39, {FL_BAR+(NREP-2)*1024+7*128}''')
    f.add(f's_add_u32 s24, s30, {WS_FLAG}\ns_addc_u32 s25, s31, 0')
    f.lines(f'''v_bfe_u32 v{T}, v2, 2, 2
    v_lshl_add_u32 v{T+1}, v5, 3, v{T}
    v_lshlrev_b32 v8, 7, v{T+1}
    v_lshrrev_b32 v{T}, 1, v{T}
    v_xor_b32 v{T}, s43, v{T}
    v_lshl_add_u32 v8, v{T}, 6, v8
    v_bfe_u32 v{T}, v2, 4, 1
    v_lshl_add_u32 v8, v{T}, 5, v8
    v_and_b32 v{T}, 3, v2
    v_lshl_add_u32 v8, v{T}, 3, v8
    s_add_u32 s55, s55, {S_W}
    v_add_u32 v8, s55, v8
    v_and_b32 v9, 1, v2
    v_lshlrev_b32 v9, 10, v9
    v_lshl_add_u32 v9, v5, 4, v9
    s_lshl_b32 s19, s37, 2
    s_add_u32 s19, s19, s3
    s_lshl_b32 s19, s19, 10
    s_add_u32 s19, s19, {WS_WEXT}''')
    if C['sd_late']:
        f.flush(); poll_issue(k, 's39', 's0', 1); poll_check(k, 's39', 28, 's0', 1); k.e('s_barrier')
    while len(wq): wq.emit(1); f.emit(3)
    if not C['sd_late']: poll_issue(k, 's39', 's0', 1); poll_check(k, 's39', 28, 's0', 1)
    k.e(f's_cmp_lg_u32 s3, 1\ns_cbranch_scc1 SD_V\ns_mov_b32 m0, 4096\ns_mov_b32 s6, {WS_MOD+CB1_K}')
    k.e('buffer_load_dwordx4 v3, s[12:15], s6 offen sc1 lds\nbuffer_load_dwordx4 v3, s[12:15], s6 offen offset:1024 sc1 lds\nSD_V:')
    k.wait(vm='all'); k.e('s_barrier'); k.stamp(9); k.st('sd4')
    A2 = 240
    def rd(ks):
        for hf in range(2): k.ds_op(f'ds_read_b64_tr_b16 {a(4*ks+2*hf,2)}, v8 offset:{2048*ks+512*hf}')
        k.ds_op(f'ds_read_b128 {v(W+4*ks,4)}, v9 offset:{4096+32*ks}', f'a{ks}')
    for ks in range(3): rd(ks)
    for ks in range(28):
        k.wait(lg=f'a{ks}')
        c = '0' if ks == 0 else v(A2,16)
        k.e(f'v_mfma_f32_32x32x16_bf16 {v(A2,16)}, {v(W+4*ks,4)}, {a(4*ks,4)}, {c}')
        if ks+3 < 28: rd(ks+3)
    k.e(f'''
    v_cvt_pk_bf16_f32 v9, v{A2}, v{A2+1}
    v_lshlrev_b32 v12, 16, v9
    v_and_b32 v13, 0xffff0000, v9
    v_sub_f32 v12, v{A2}, v12
    v_sub_f32 v13, v{A2+1}, v13
    v_cmp_eq_u32 vcc, 0, v5
    v_cvt_pk_bf16_f32 v8, v{A2}, v12
    v_cvt_pk_bf16_f32 v10, v13, v{A2+1}
    v_mov_b32 v11, 0
    v_cndmask_b32 v8, 0, v8, vcc
    v_cndmask_b32 v9, 0, v9, vcc
    v_cndmask_b32 v10, 0, v10, vcc
    ''')
    k.vm_op('buffer_store_dwordx4 v[8:11], v3, s[12:15], s19 offen sc1')
    k.wait(vm='all'); k.e('s_barrier'); signal(k, 's38')
    if K.MARK and K.MARK.startswith('sd'): k.mark_spin()
    k.stamp_out(0, 11)
```

```python
WS_U    = 0x000000
WS_CP   = 0x1C0000
WS_ZF   = 0x224000
WS_MOD  = 0x226000
WS_FLAG = 0x228000
WS_WEXT = 0x238000
WS_ST   = 0x258000
WS_WDP  = 0x290000
WS_X1C  = 0x418000
WS_X1   = 0x5d8000
WS_HH   = 0x798000
WS_END  = 0xe98000
GA_P, CB1_P, GB_N, CB1_K, SB_K = 0, 2048, 4096, 6144, 7168
FL_SIDE = 16384; FL_WD = 18432; FL_BAR = 20480
FL_Z = FL_BAR + 1024 + 896; FL_MODS = FL_BAR + 3*1024 + 896
FL_REP = 8192
FL_B = 0x20000
```

```python
import sys, os
from asmlib import *
from kp import *
NAME = 'adaLN_cond__spectral_fnet__glu_gated_glu__prompt_kernel'
HEAD = open('adaLN_cond__spectral_fnet__glu_gated_glu__prompt.s.ref').read().split('; Override launch')[0]
def build(cfg=None, aslist=False):
    out = HEAD + (f'; @launch kernel={NAME} ' if aslist else '; @launch ') + f'grid=({GRID},1,1) block=(256,1,1) lds={LDS_ALL}\n'
    if K.STAMPS: out += '; ST ' + ','.join(K.NAMES) + ' ' + str(cfg) + '\n'
    c, d = kernel_text(NAME, ['KP_BASE:'] + gen_kp(cfg), 256, 256, 102)
    return out + '.amdgcn_target "amdgcn-amd-amdhsa--gfx950"\n.text\n' + c + '.section .rodata,"a"\n' + d
if __name__ == '__main__':
    K.STAMPS = '--stamps' in sys.argv
    K.NAMES = os.environ.get('ST','sig1,bar1,A6,sigA,flagA,P3go,S3,P4mf').split(',')
    K.MARK = os.environ.get('MARK')
    assert len(K.NAMES) <= 9
    if '--cyc' in sys.argv: K.CLK = 's_memtime'
    open(sys.argv[1], 'w').write(build(eval(os.environ.get('CFG','{}')), '--list' in sys.argv))
```

```python
import re

TRANS = ('v_exp_f32','v_log_f32','v_rcp_f32','v_rsq_f32','v_sqrt_f32','v_sin_f32','v_cos_f32')

def _regs(op):
    op = op.strip()
    if op.startswith('-'): op = op[1:]
    m = re.fullmatch(r'abs\((.*)\)', op) or re.fullmatch(r'\|(.*)\|', op)
    if m: op = m.group(1)
    m = re.fullmatch(r'([vas])(\d+)', op)
    if m: return {(m.group(1), int(m.group(2)))}
    m = re.fullmatch(r'([vas])\[(\d+):(\d+)\]', op)
    if m: return {(m.group(1), i) for i in range(int(m.group(2)), int(m.group(3))+1)}
    if op in ('vcc','vcc_lo','vcc_hi'): return {('x','vcc')}
    if op in ('exec','exec_lo','exec_hi'): return {('x','exec')}
    if op == 'm0': return {('x','m0')}
    return set()

class Ins:
    def __init__(self, text):
        self.text = text
        t = text.split(';')[0].strip()
        self.label = t.endswith(':')
        self.kind = 'other'; self.w = set(); self.r = set()
        self.states = 1
        self.dpp = False; self.trans = False; self.dot = False; self.perm = False
        self.A = self.B = self.C = set(); self.passes = 0
        self.store_data = set(); self.ldsdma = False; self.rdlane = False
        if self.label or not t or t.startswith('.'):
            self.kind = 'none'; self.states = 0; return
        parts = t.split(None, 1)
        mn = parts[0]; self.mn = mn
        rest = parts[1] if len(parts) > 1 else ''
        ops = []; cur = ''; depth = 0
        for ch in rest:
            if ch in '[(': depth += 1
            if ch in '])': depth -= 1
            if ch == ',' and depth == 0: ops.append(cur.strip()); cur = ''
            else: cur += ch
        if cur.strip(): ops.append(cur.strip())
        mods = ''
        if ops:
            last = ops[-1].split(None, 1)
            ops[-1] = last[0]; mods = last[1] if len(last) > 1 else ''
        R = [_regs(o) for o in ops]
        allbut0 = set().union(*R[1:]) if len(R) > 1 else set()
        if mn == 's_nop':
            self.kind = 'nop'; self.states = int(ops[0], 0) + 1
        elif mn.startswith('v_mfma'):
            self.kind = 'mfma'; self.w = R[0]; self.A = R[1]; self.B = R[2]; self.C = R[3]
            self.r = self.A | self.B | self.C
            self.passes = 8 if '32x32x16' in mn else 4 if '16x16x32' in mn else None
            assert self.passes
        elif mn.startswith('v_'):
            self.kind = 'valu'
            base = re.sub(r'_(e32|e64|dpp|sdwa)$', '', mn)
            self.w = set(R[0]); self.r = set(allbut0)
            self.trans = base in TRANS
            self.dpp = mn.endswith('_dpp') or 'quad_perm' in mods or 'row_' in mods
            self.dot = base.startswith('v_dot')
            if self.dpp: self.r |= R[0]
            if base.startswith(('v_fmac','v_dot2c','v_pk_fmac')): self.r |= R[0]
            if base.startswith('v_permlane'):
                self.perm = True; self.w = R[0] | R[1]; self.r = R[0] | R[1]
            if base.startswith(('v_add_co','v_sub_co','v_addc_co','v_subb_co')):
                self.w |= R[1]; self.r = set().union(*R[2:])
            if base in ('v_readfirstlane_b32','v_readlane_b32'): self.rdlane = True
            if base.startswith('v_cmpx'): self.w |= {('x','exec')}
        elif mn.startswith(('buffer_','global_')):
            self.kind = 'vmem'
            if mn in ('buffer_inv','buffer_wbl2'): return
            lds = ' lds' in (' '+mods) or '_lds_' in mn
            if lds:
                self.ldsdma = True; self.r = set().union(*R) | {('x','m0')}
            elif '_load' in mn:
                self.w = R[0]; self.r = allbut0
                if 'd16' in mn: self.r |= R[0]
            else:
                self.r = set().union(*R)
                di = 0 if mn.startswith('buffer_') else 1
                if 'atomic' in mn and 'sc0' in mods:
                    self.w = R[0]
                if mn.endswith(('x3','x4')): self.store_data = R[di]
        elif mn.startswith('ds_'):
            self.kind = 'ds'
            if mn.startswith(('ds_read','ds_bpermute','ds_permute','ds_swizzle')):
                self.w = R[0]; self.r = allbut0
                if 'd16' in mn: self.r |= R[0]
            else: self.r = set().union(*R)
        elif mn.startswith('s_'):
            self.kind = 'salu'
            if mn.startswith(('s_cmp','s_waitcnt','s_barrier','s_cbranch','s_branch','s_endpgm','s_sleep','s_setprio','s_bitcmp')):
                self.r = set().union(*R) if R else set()
            else:
                self.w = set(R[0]) if R else set(); self.r = allbut0
                if 'saveexec' in mn: self.w |= {('x','exec')}
        else:
            raise ValueError(text)

def need(p, c):
    n = 0
    vw = {x for x in p.w if x[0] in 'va'}
    sw = {x for x in p.w if x[0] == 's' or x == ('x','vcc')}
    if p.kind == 'valu':
        if c.kind == 'mfma' and vw & c.r: n = max(n, 3 if p.dot else 2)
        if c.kind == 'valu':
            if c.dpp and vw & c.r: n = max(n, 2)
            if c.perm and vw & c.r: n = max(n, 2)
            if c.rdlane and vw & c.r: n = max(n, 1)
            if p.trans and not c.trans and vw & c.r: n = max(n, 1)
            if sw & c.r: n = max(n, 4 if c.rdlane else 2)
            if 'sdwa' in p.mn and vw & (c.r | c.w): n = max(n, 1)
        if p.trans and c.kind in ('vmem','ds') and vw & c.r: n = max(n, 1)
        if p.dot and vw & (c.r | c.w):
            same = c.kind == 'valu' and c.dot and c.mn == p.mn and vw <= c.w and not _dot_ab(c) & vw
            if not same: n = max(n, 3)
        if c.kind == 'vmem' and sw & c.r: n = max(n, 5)
        if c.kind == 'salu' and sw & c.r: n = max(n, 1)
        if ('x','exec') in p.w:
            if c.kind == 'mfma' or c.perm or c.rdlane: n = max(n, 4)
            if c.dpp: n = max(n, 5)
    if p.kind in ('vmem','ds') and c.kind == 'valu' and c.dpp and vw & c.r: n = max(n, 2)
    if p.kind == 'salu' and ('x','m0') in p.w and c.ldsdma: n = max(n, 1)
    if p.store_data and c.w & p.store_data: n = max(n, 2 if c.kind in ('valu','mfma') else 1)
    if p.kind == 'mfma':
        big = {4: 8, 8: 12}[p.passes]
        if c.kind == 'mfma':
            if p.w & (c.A | c.B): n = max(n, big)
            if p.w & c.C:
                if not (p.w == c.C and p.passes == c.passes): n = max(n, big - 2)
            elif p.w & c.w: n = max(n, big)
        elif c.kind in ('valu','vmem','ds'):
            if p.w & (c.r | c.w): n = max(n, big)
            if c.kind == 'valu' and p.C & c.w: n = max(n, {4: 3, 8: 7}[p.passes])
    return n

def _dot_ab(c):
    t = c.text.split(';')[0].split(None,1)[1].split(',')
    return _regs(t[1]) | _regs(t[2].split()[0])

def pad_hazards(lines):
    out = []; win = []
    pend = {}
    for ln in lines:
        c = Ins(ln)
        if c.kind == 'none':
            if c.label:
                for snap in pend.pop(ln.strip()[:-1], []):
                    for p, d in snap:
                        e = [x for x in win if x[0] is p]
                        if e: e[0][1] = min(e[0][1], d)
                        else: win.append([p, d])
            out.append(ln); continue
        k = 0
        for p, d in win: k = max(k, need(p, c) - d)
        while k > 0:
            s = min(k, 16); out.append(f'    s_nop {s-1}')
            for e in win: e[1] += s
            k -= s
        out.append(ln)
        for e in win: e[1] += c.states
        win = [e for e in win if e[1] < 24]
        win.append([c, 0])
        if c.kind == 'salu' and c.mn.startswith(('s_cbranch', 's_branch')):
            pend.setdefault(ln.split(';')[0].split()[1], []).append([(p, d) for p, d in win])
        if c.kind == 'salu' and c.mn in ('s_branch','s_endpgm'): win = []
    return out

class K:
    def __init__(self):
        self.L = []; self.vm = []; self.lg = []; self.uid = 0
    def e(self, s):
        for x in s.strip().split('\n'):
            x = x.strip()
            if x: self.L.append(x if x.endswith(':') else '    ' + x)
    STAMPS = False
    NAMES = None
    CLK = 's_memrealtime'
    MARK = None
    def mark_spin(self):
        if K.MARK:
            l, d = self.label('MS'), self.label('MD')
            self.e(f's_waitcnt lgkmcnt(0)\ns_sub_u32 s6, s98, s100\ns_mul_i32 s6, s6, 10\ns_add_u32 s6, s6, 3000\ns_mov_b32 s7, 0\n{l}:\ns_memrealtime s[0:1]\ns_waitcnt lgkmcnt(0)\ns_sub_u32 s0, s0, s100\ns_add_u32 s7, s7, 1\ns_cmp_gt_u32 s7, 100000\ns_cbranch_scc1 {d}\ns_cmp_lt_u32 s0, s6\ns_cbranch_scc1 {l}\n{d}:')
    def st(self, name):
        if K.MARK and name == 'start': self.e('s_memrealtime s[100:101]')
        if K.MARK == name: self.e('s_memrealtime s[98:99]')
        if K.STAMPS and K.NAMES and name in K.NAMES: self.stamp(K.NAMES.index(name)+1)
    def stamp(self, i):
        if K.STAMPS:
            r = self.sreg(i); self.e(f'{K.CLK} s[{r}:{r+1}]'); self.nst = max(getattr(self,'nst',0), i+1)
    def sreg(self, i): return 100 - 2*i
    def stamp_out(self, kid, n, allwaves=False):
        if not K.STAMPS: return
        lab = self.label('STO')
        self.e(f's_waitcnt vmcnt(0) lgkmcnt(0)')
        self.stamp(n-1)
        self.e(f's_waitcnt lgkmcnt(0)\ns_mov_b64 exec, 1\ns_lshl_b32 s6, s2, 3\ns_add_u32 s6, s6, s3\ns_lshl_b32 s6, s6, 6\ns_add_u32 s6, s6, {0x1200000 + kid*0x40000}\ns_mov_b32 s14, 0x2000000\nv_mov_b32 v1, 0')
        for i in range(n): self.e(f'v_mov_b32 v2, s{self.sreg(i)}\nbuffer_store_dword v2, v1, s[12:15], s6 offen offset:{4*i}')
    def label(self, base):
        self.uid += 1; return f'{base}_{self.uid}'
    def reset_counts(self): self.vm = []; self.lg = []
    def vm_op(self, s, tag=None, maybe=False):
        self.e(s); self.vm.append((tag, maybe))
    def ds_op(self, s, tag=None, maybe=False):
        self.e(s); self.lg.append((tag, maybe))
    @staticmethod
    def _cnt(q, tags):
        if not isinstance(tags, (list, tuple, set)): tags = [tags]
        idx = [i for i, (t, _) in enumerate(q) if t in tags]
        if not idx: return None
        return max(idx), sum(1 for t, m in q[max(idx)+1:] if not m)
    def wait(self, vm=None, lg=None):
        parts = []
        if vm is not None:
            if vm == 'all': parts.append('vmcnt(0)'); self.vm = []
            else:
                r = self._cnt(self.vm, vm)
                if r is not None:
                    i, n = r
                    parts.append(f'vmcnt({min(n,63)})'); self.vm = self.vm[i+1:]
        if lg is not None:
            if lg == 'all': parts.append('lgkmcnt(0)'); self.lg = []
            else:
                r = self._cnt(self.lg, lg)
                if r is not None:
                    i, n = r
                    parts.append(f'lgkmcnt({min(n,15)})'); self.lg = self.lg[i+1:]
        if parts: self.e('s_waitcnt ' + ' '.join(parts))

def v(a, n=1): return f'v{a}' if n == 1 else f'v[{a}:{a+n-1}]'
def a(i, n=1): return f'a{i}' if n == 1 else f'a[{i}:{i+n-1}]'
def s(i, n=1): return f's{i}' if n == 1 else f's[{i}:{i+n-1}]'
import struct
def f2h(x): return '0x%08x' % struct.unpack('<I', struct.pack('<f', x))[0]

def kernel_text(name, lines, nvgpr, nagpr=0, nsgpr=96, align=8):
    acc = max(4, (nvgpr + 3)//4*4)
    nfv = acc + nagpr if nagpr else nvgpr
    body = '\n'.join(pad_hazards(lines))
    code = f""".globl {name}
.p2align {align}
.p2align 8
.type {name},@function
{name}:
{body}
"""
    desc = f""".p2align 6
.amdhsa_kernel {name}
  .amdhsa_next_free_vgpr {nfv}
  .amdhsa_next_free_sgpr {nsgpr}
  .amdhsa_accum_offset {acc}
  .amdhsa_group_segment_fixed_size 0
  .amdhsa_kernarg_size 112
  .amdhsa_user_sgpr_count 2
  .amdhsa_user_sgpr_kernarg_segment_ptr 1
  .amdhsa_system_sgpr_workgroup_id_x 1
  .amdhsa_float_denorm_mode_32 3
.end_amdhsa_kernel
"""
    return code, desc
```

```python
from asmlib import *
from layout2 import *
import math, os
NSIDE = 32; NMAIN = 224; GRID = 256
LDS_ALL = 163840
RX = int(os.environ.get('RX', 0)); RSH = int(os.environ.get('RSH', 0)); NREP = 10 if RX else (16 >> RSH) + 2
SPIN_MAX = 1 << 20
DELT = [16*a + 8*(n >> 2) + (n & 3) for a in range(2) for n in range(8)]
LOG2E = math.log2(math.e)
CFG = dict(mp1=8, ld1=0, f3_post=0, r1sep=0, ssig=1, sd_split=0, sd_l1=0, p1_w3_t=0, sd_late=0, p1_fill0=40, p1_ld_pre=10, p1_fill=64, pf_ca=1, pf_mod=2, pf_a=2, c2_at=8, sd_l1b=12, wl_early=1, w3_at=8, cold_at=101, c2_bar=1, cq_from=2, cold_rate=3, cold_a=0, p1_f2=400, p1_fill_drain0=400, p1_w3_ld=0, p1_w3_a=0, p1_w3_b=0, p1_w3_c=0, p1_w3_drain=8, p1_fill_drain=32, p1_fill_drain2=0, poll1_at=11, f3_pre=0, p2_f3=16,
           p2_pre=4, p2_pre2=4, p2_rate=1, r2_from=2, r2_kk=(1,3), r2_sb=(2,4,6), r2_6=1, wd_from=9, r2_a=1, r2_b=2, r2_c=0, p2_modi=-1, p2_mod=4, r2_pre=1, su_drain=700, r3_drain=8, pollA=(0,5,9), wd_flag=0, pg5=(2,13), pg6=29, hrot=0, abl=(), a1_pre=4, a2_bar=0, st_ks=17, s0_chk=12, wd_st=(10,6,15),
           epi_span=(20,18,12), sigB0=(2,6), pollB0=((2,16),), c0_ks=6, sigB01=(3,6), pollB01=((3,10),(3,14)), c01_ks=22, sigB2=28, u_ld=1, e_ld=2, p4_burst0=4, sg_pk=2, sg_rate=28, p4_poll2=(-1,1,3), p4_c2=6, p4_sig3=6, p4_poll3=(6,8,10), p4_c3=14, p4_b0=0, p4_burst=0, out_pol='sc1')

ABL = set()
class Q:
    def __init__(self, k): self.k = k; self.q = []; self.debt = 0
    def add(self, *atoms): self.q.extend(atoms)
    def lines(self, txt): self.q.extend([l.strip() for l in txt.strip().split('\n') if l.strip()])
    def vm(self, pre, txt, tag=None):
        if pre: self.q.append(lambda: (self.k.e(pre), self.k.vm_op(txt, tag)))
        else: self.q.append(('vm', txt, tag))
    def emit(self, n=1):
        c = 0
        while self.q and c < n:
            x = self.q.pop(0)
            if isinstance(x, tuple):
                (self.k.vm_op if x[0] == 'vm' else self.k.ds_op)(x[1], x[2]); c += 1
            elif callable(x): x(); c += 1
            else: self.k.e(x); c += len(x.strip().split('\n'))
    def cyc(self, budget):
        self.debt += budget
        while self.q and self.debt > 0:
            n0 = len(self.k.L); self.emit(1)
            for l in self.k.L[n0:]:
                mn = l.split()[0]
                self.debt -= 8 if mn in TRANS else 12 if mn.startswith('buffer_') else 4
        if not self.q: self.debt = 0
    def cost(self):
        return sum((12 if isinstance(x, tuple) else 8 if x.split()[0] in TRANS else 4*len(x.strip().split('\n'))) for x in self.q)
    def flush(self): self.emit(1 << 30)
    def __len__(self): return len(self.q)

PAGES = int(os.environ.get('PAGES', 1))
def page(k, n, ret=None, touch=None):
    if not PAGES: return
    for w, p in (touch or {}).items(): k.e(f's_cmp_eq_u32 s3, {w}\ns_cbranch_scc1 PT_{p}')
    k.e(f's_branch PL_{n}\nPE_{n}:\n.p2align 12\nPT_{n}:')
    if ret is not None: k.e(f's_branch PL_{ret}\ns_nop 0')
    k.e(f'PL_{n}:')
def t1_txt(dst, g, b, tmp):
    return f'''s_sub_u32 {tmp}, 64, {g}
    s_cmp_eq_u32 {g}, 0
    s_cselect_b32 {tmp}, 32, {tmp}
    s_cmp_eq_u32 {b}, 0
    s_cselect_b32 {dst}, {g}, {tmp}'''
def srd_txt(d, base, size): return f's_mov_b32 s{d}, s{base}\ns_and_b32 s{d+1}, s{base+1}, 0xffff\ns_mov_b32 s{d+2}, {size}\ns_mov_b32 s{d+3}, 0x20000'
P = lambda r: v(r, 2)

def signal(k, off, wave=0):
    l = k.label('SIG')
    k.e(f's_cmp_lg_u32 s3, {wave}\ns_cbranch_scc1 {l}\ns_mov_b32 s74, 1\ns_atomic_add s74, s[24:25], {off}\n{l}:')
def poll_issue(k, off, r='s0', wave=0):
    l = k.label('PI')
    k.e(f's_cmp_lg_u32 s3, {wave}\ns_cbranch_scc1 {l}\ns_mov_b32 {r}, 0\ns_atomic_add {r}, s[24:25], {off} glc\n{l}:')
def poll_check(k, off, target, r='s0', wave=0):
    l, d = k.label('PC'), k.label('PD')
    k.e(f'''s_cmp_lg_u32 s3, {wave}
    s_cbranch_scc1 {d}
    s_mov_b32 s1, 0
{l}:
    s_waitcnt lgkmcnt(0)
    s_cmp_ge_u32 {r}, {target}
    s_cbranch_scc1 {d}
    s_add_u32 s1, s1, 1
    s_cmp_gt_u32 s1, {SPIN_MAX}
    s_cbranch_scc1 {d}
    s_mov_b32 {r}, 0
    s_atomic_add {r}, s[24:25], {off} glc
    s_branch {l}
{d}:''')
MP = [76, 77, 78]
def gsignal(k, off, wave):
    l = k.label('SIG')
    k.e(f's_cmp_lg_u32 s3, {wave}\ns_cbranch_scc1 {l}\ns_atomic_add s74, s[30:31], {off}\n{l}:')
def fladdr(off, other): return f's[24:25], s79 offset:{off}' if other else f's[30:31], {off}'
def mp_issue(k, off, j, wave, other=False):
    l = k.label('MI')
    k.e(f's_cmp_lg_u32 s3, {wave}\ns_cbranch_scc1 {l}\ns_mov_b32 s{MP[j]}, -1\ns_atomic_and s{MP[j]}, {fladdr(off, other)} glc\n{l}:')
def mp_check(k, off, target, wave, other=False, pace=4):
    if 'chk' in ABL and (off, target) != (0, 7): return
    l, d = k.label('MC'), k.label('MD'); r = [k.label('MR') for _ in MP]
    t = f's_cmp_lg_u32 s3, {wave}\ns_cbranch_scc1 {d}\ns_mov_b32 s1, -1\n{l}:\n'
    for p in MP: t += f's_cmp_ge_i32 s{p}, {target}\ns_cbranch_scc1 {d}\n'
    t += f's_add_u32 s1, s1, 1\ns_cmp_gt_u32 s1, {SPIN_MAX*4}\ns_cbranch_scc1 {d}\ns_and_b32 s0, s1, {pace-1}\ns_cbranch_scc1 {l}\n'
    for p, x in zip(MP, r): t += f's_cmp_lg_u32 s{p}, -1\ns_cbranch_scc1 {x}\n'
    t += f's_branch {l}\n'
    for p, x in zip(MP, r): t += f'{x}:\ns_cmp_ge_i32 s{p}, {target}\ns_cbranch_scc1 {d}\ns_mov_b32 s{p}, -1\ns_atomic_and s{p}, {fladdr(off, other)} glc\ns_branch {l}\n'
    k.e(t + f'{d}:')
def lds_pad(k, n, junk):
    for _ in range(n): k.ds_op(f'ds_read_b32 v{junk}, v6')
def ready_issue(k, vz, vr, tag):
    k.e(f'v_mov_b32 v{vz}, 0'); k.vm_op(f'global_load_dword v{vr}, v{vz}, s[28:29] sc1', tag)
def bar_signal(k, soff, va, vb, vz=None, vr=None):
    l, d, g = k.label('BS'), k.label('BD'), k.label('BG')
    k.e(f's_cmp_lg_u32 s3, 0\ns_cbranch_scc1 {d}')
    if vz is not None:
        k.e(f'''s_mov_b32 s1, 0
{l}:
    v_readfirstlane_b32 s75, v{vr}
    s_cmp_lg_u32 s75, 0
    s_cbranch_scc1 {g}
    s_add_u32 s1, s1, 1
    s_cmp_gt_u32 s1, {SPIN_MAX}
    s_cbranch_scc1 {g}
    s_sleep 8
    global_load_dword v{vr}, v{vz}, s[28:29] sc1
    s_waitcnt vmcnt(0)
    s_branch {l}
{g}:''')
    k.vm_op(f'buffer_atomic_add v{vb}, v{va}, s[12:15], {soff} offen sc1', maybe=True)
    k.e(f'{d}:')
def bar_regs(va, vb):
    return f'''v_lshlrev_b32 v{va}, 10, v2
    v_cmp_gt_u32 vcc, {NREP}, v2
    v_mov_b32 v{vb}, 0x7fff0000
    v_cndmask_b32 v{va}, v{vb}, v{va}, vcc
    v_mov_b32 v{vb}, 1'''

P2_X, P2_GC, P2_XI = 114688, 126976, 151552
IMG = 29696; KSP = 4*IMG
ACC0 = 16; RING = 80; WX = 96; ET = 104
REGI = [0, 1, 4, 5, 8, 9, 12, 13, 2]; LDSI = [3, 6, 7, 10, 11]
WDL = [120832, 120832+16384, 0, 16384, 32768]
X1L = 59392; RED = 71680; XR = 128
R1A = int(os.environ.get('R1A', 0)); R1N = int(os.environ.get('R1N', 10)); R1L = 65536 - 8192*R1A
ROTMASK = int(os.environ.get('ROT', 0))
TLB_OFF = 0x23000
VD, VM, VS, TB = 208, 209, 210, 211
def wdreg(i, f):
    n = REGI.index(i)*4 + f
    return v(144+4*n, 4) if n < 28 else a(224+4*(n-28), 4)
def acc4(rl, t): return ACC0 + 32*rl + 16*t

def gen_kp(cfg=None):
    C = dict(CFG); C.update(cfg or {}); ABL.clear(); ABL.update(C['abl'])
    k = K(); k.stamp(0); k.st('start')
    k.e(f'''
    s_load_dwordx16 s[16:31], s[0:1], 48
    s_getpc_b64 s[6:7]
KP_PC:
    s_lshr_b32 s33, s2, 3
    v_and_b32 v1, 15, v0
    v_lshl_add_u32 v1, s33, 4, v1
    v_lshlrev_b32 v1, 7, v1
    v_min_u32 v1, KP_LAST-KP_PC-4, v1
    global_load_dword a255, v1, s[6:7]
    s_andn2_b32 s32, s2, 24
    s_cmp_lt_u32 s32, 7
    s_cbranch_scc1 KP_SIDE
    s_cmp_eq_u32 s32, 7
    s_cbranch_scc1 SD_Z
    s_load_dwordx2 s[4:5], s[0:1], 0
    s_cmp_ge_u32 s2, {GRID}
    s_cbranch_scc1 KP_END
    v_lshrrev_b32 v1, 6, v0
    v_and_b32 v2, 63, v0
    v_readfirstlane_b32 s3, v1
    v_lshlrev_b32 v3, 4, v2          ; lane*16
    v_and_b32 v4, 31, v2             ; lane&31
    v_lshrrev_b32 v5, 5, v2          ; h
    s_mov_b32 s14, {WS_END}
    s_mov_b32 s15, 0x20000
    s_and_b32 s34, s2, 1             ; hi
    s_lshr_b32 s35, s2, 3
    s_sub_u32 s35, s35, {NSIDE//8}
    s_mul_i32 s33, s35, 37
    s_lshr_b32 s33, s33, 8           ; gl = q/7
    s_and_b32 s6, s2, 7
    s_lshl_b32 s6, s6, 1
    s_lshr_b32 s7, s33, 1
    s_add_u32 s6, s6, s7             ; pair p
    s_sub_u32 s7, 32, s6
    s_cmp_eq_u32 s6, 0
    s_cselect_b32 s7, 16, s7
    s_bitcmp1_b32 s33, 0
    s_cselect_b32 s36, s7, s6        ; g
    s_and_b32 s32, s2, 6
    s_lshl_b32 s32, s32, 1
    s_add_u32 s32, s32, s33          ; G
    s_mul_i32 s33, s33, 7
    s_sub_u32 s35, s35, s33          ; lo
    s_mul_i32 s33, s34, 7
    s_add_u32 s33, s33, s35          ; mem
    ''')
    f = P1(k, C)
    P2(k, C, f)
    P3(k, C)
    P4(k, C)
    k.st('end')
    if K.MARK and not K.MARK.startswith('sd'): k.mark_spin()
    k.stamp_out(0, len(K.NAMES or [])+2)
    k.e('s_endpgm\nPE_7:\n' + ('.p2align 12\n' if PAGES else '') + 'KP_SIDE:'); k.reset_counts(); side(k, C)
    k.e('KP_END:\ns_endpgm\nKP_LAST:')
    return k.L

def w3slot(n, lo): return n if lo == 0 or n < 14 else n + 2
def w3_dma(k, lo, hi, ldsbase):
    q = Q(k)
    for ks in range(lo, hi):
        j, mu, a_ = ks >> 2, (ks >> 1) & 1, ks & 1
        row = 32*j + 16*a_ if not mu else 433 - 32*j - 16*a_
        vo = VS if ks == 2 else VM if mu else VD
        so = '0' if ks in (0, 2) else 's61'
        pre = f's_add_u32 m0, s60, {ldsbase + w3slot(ks-lo, lo)*8192}\n' + (f's_mov_b32 s61, {row*3584}' if so != '0' else 's_nop 0')
        q.vm(pre, f'buffer_load_dwordx4 v{vo}, s[16:19], {so} offen lds')
        q.vm(None, f'buffer_load_dwordx4 v{vo}, s[20:23], {so} offen offset:1024 lds', f'w3_{ks}')
    return q
def w3_tr(k, lo, hi):
    q = Q(k)
    for ks in range(lo, hi):
        n = w3slot(ks - lo, lo)
        for mt in range(2):
            for hf in range(2):
                q.add(('ds', f'ds_read_b64_tr_b16 {a(8*ks+4*mt+2*hf,2)}, v{TB+(n>>3)} offset:{(n&7)*8192+mt*1024+hf*4096}', 'tr'))
    return q

def P1(k, C):
    X = 16; UP = 72; M = 88; T = 96; WL = 216; WO = 224; BF = 40; AC = 160
    k.e(f'''
    v_lshrrev_b32 v6, 3, v2
    s_lshl_b32 s6, s3, 4
    v_add_u32 v6, s6, v6
    v_and_b32 v7, 7, v2
    v_mul_u32_u24 v246, {32*896}, v6
    v_lshl_add_u32 v246, v7, 4, v246
    v_add_u32 v247, {8*32*896}, v246 ; set 1
    s_mul_i32 s39, s36, 896
    s_lshl_b32 s40, s35, 7
    s_mov_b32 s10, {2048*896}
    s_mov_b32 s11, 0x20000
    s_add_u32 s37, s39, s40
    s_add_u32 s38, s39, 896
    ''')
    f = Q(k)
    wa = f'''
    s_sub_u32 s6, s2, {NSIDE}
    s_mul_i32 s7, s6, 9363
    s_lshr_b32 s7, s7, 16
    s_mul_i32 s64, s7, 7
    s_sub_u32 s64, s6, s64           ; jt
    s_lshl_b32 s7, s7, 2
    s_add_u32 s7, s7, s3             ; rb
    s_min_u32 s65, s7, 111
    s_mul_i32 s65, s65, {16*896}
    s_lshl_b32 s67, s64, 7
    s_add_u32 s65, s65, s67
    v_mul_u32_u24 v{WO}, {4*896}, v5
    v_lshl_add_u32 v{WO}, v4, 2, v{WO}
    v_add_u32 v{WO}, s65, v{WO}
    v_add_u32 v{WO+1}, {8*896}, v{WO}'''
    wb = f'''
    s_lshl_b32 s64, s64, 2
    s_bfe_u32 s65, s7, 0x20001
    s_add_u32 s64, s64, s65
    s_mul_i32 s64, s64, 14
    s_lshr_b32 s65, s7, 3
    s_add_u32 s64, s64, s65
    s_lshl_b32 s64, s64, 1
    s_and_b32 s65, s7, 1
    s_add_u32 s64, s64, s65
    s_lshl_b32 s64, s64, 11
    s_add_u32 s64, s64, {WS_WDP}
    s_lshl_b32 s65, s32, 9
    s_sub_u32 s67, s67, s65
    s_add_u32 s67, s67, {FL_WD}
    s_cmp_lt_u32 s6, 196
    s_cselect_b32 s64, s64, 0x7fff0000
    s_cselect_b32 s69, s3, 0
    s_mov_b32 s65, 0x05040100
    s_mov_b32 s66, 0x07060302'''
    f.lines(f'''
    s_and_b32 s6, s2, 7
    s_mul_i32 s7, s3, 7
    s_add_u32 s7, s7, s6
    s_add_u32 s7, s7, 14
    s_lshl_b32 s43, s3, 1
    s_add_u32 s43, s43, 1''')
    f.add('s_cmp_eq_u32 s6, 7\ns_cselect_b32 s7, s43, s7')
    f.lines(f'''s_lshl_b32 s7, s7, 7
    s_lshr_b32 s6, s2, 3
    s_sub_u32 s6, s6, {NSIDE//8}
    s_mul_i32 s6, s6, {16*5376}
    s_add_u32 s7, s7, s6
    v_mul_u32_u24 v250, 5376, v2
    s_and_b32 s43, s2, 7
    s_add_u32 s43, s43, 7
    s_lshl_b32 s43, s43, 7
    s_add_u32 s43, s43, s6
    s_mul_i32 s6, s3, {4*5376}
    s_add_u32 s43, s43, s6
    v_add_u32 v249, s43, v250
    v_add_u32 v250, s7, v250
    s_lshr_b32 s7, s3, 1
    s_mul_i32 s7, s7, 1792
    v_lshl_add_u32 v252, v2, 7, s7
    s_sub_u32 s6, s2, {NSIDE}''')
    f.add(f'''s_add_u32 s7, s6, 224
    s_cmp_eq_u32 s6, 128
    s_cselect_b32 s7, 224, s7
    s_cmp_lt_u32 s6, 128
    s_cselect_b32 s7, s6, s7
    s_mul_i32 s7, s7, 3584
    v_add_u32 v251, s7, v252
    s_cmp_ge_u32 s6, 96
    s_addc_u32 s6, s6, 128
    s_mul_i32 s6, s6, 3584
    v_add_u32 v252, s6, v252''')
    npf = len(f)
    def pf_mod(): k.e('s_mov_b64 exec, 0xffff'); k.vm_op('global_load_dword a254, v250, s[0:1]'); k.e('s_mov_b64 exec, -1')
    def pf_ca(): k.e('s_mov_b64 exec, 15'); k.vm_op('global_load_dword a251, v249, s[24:25]'); k.e('s_mov_b64 exec, -1')
    def pf_w3(h): k.e('s_mov_b64 exec, 0x3fff'); k.vm_op(f'global_load_dword a{253-h}, v{251+h}, s[26:27]'); k.e('s_mov_b64 exec, -1')
    f.lines(f'''
    v_lshrrev_b32 v{T}, 4, v2
    v_bfe_u32 v{T+1}, v2, 2, 2
    v_xor_b32 v{T+1}, v{T+1}, v{T}
    v_and_b32 v{T+2}, 3, v2
    v_lshlrev_b32 v{T+2}, 4, v{T+2}
    v_lshl_add_u32 v{T+1}, v{T+1}, 6, v{T+2}
    s_lshl_b32 s6, s33, 8
    v_add_u32 v{T+1}, s6, v{T+1}
    s_lshl_b32 s6, s3, 2
    v_add_u32 v{T}, s6, v{T}         ; row in k-step
    v_mul_u32_u24 v{VD}, 3584, v{T}
    v_sub_u32 v{VM}, {15*3584}, v{VD}
    v_add_u32 v{VD}, v{VD}, v{T+1}
    v_add_u32 v{VM}, v{VM}, v{T+1}
    v_cmp_eq_u32 vcc, 0, v{T}
    v_mov_b32 v{T+1}, {433*3584}
    v_mov_b32 v{T+2}, {(433-224)*3584}
    v_cndmask_b32 v{T+1}, v{T+1}, v{T+2}, vcc
    v_add_u32 v{VS}, v{VM}, v{T+1}
    s_lshl_b32 s60, s3, 11
    ''')
    nearly = len(f)
    f.lines(f'''
    s_and_b32 s46, s3, 1
    s_lshl_b32 s46, s46, 4
    s_lshr_b32 s47, s3, 1            ; isI
    v_and_b32 v11, 15, v2
    v_add_u32 v12, s46, v11          ; g row
    v_cvt_f32_u32 v13, v12''')
    f.add(f'''s_cmp_eq_u32 s47, 1
    s_cselect_b32 s6, {f2h(0.25)}, 0
    s_cselect_b32 s7, {f2h(32.0)}, 0''')
    f.lines(f'''
    v_cmp_eq_u32 vcc, 0, v12
    v_mov_b32 v{T}, s6
    v_mov_b32 v{T+1}, s7
    v_cndmask_b32 v13, v13, v{T+1}, vcc
    v_cndmask_b32 v{T}, v{T}, 0, vcc
    v_mul_f32 v13, {f2h(1/64)}, v13
    v_lshrrev_b32 v14, 4, v2
    v_lshlrev_b32 v14, 2, v14
    v_cvt_f32_u32 v{T+1}, v14
    v_fma_f32 v{T}, v13, v{T+1}, v{T}
    ''')
    for ks in range(2):
        for n in range(8): f.add(f'v_fmamk_f32 v{T+2+n}, v13, {f2h(32*ks + 16*(n >> 2) + (n & 3))}, v{T}')
        for n in range(8): f.add(f'v_cos_f32 v{T+2+n}, v{T+2+n}')
        for r in range(4): f.add(f'v_cvt_pk_bf16_f32 v{M+4*ks+r}, v{T+2+2*r}, v{T+3+2*r}')
    f.lines(f'''
    v_mul_u32_u24 v6, 160, v6
    v_lshl_add_u32 v244, v7, 4, v6
    v_lshrrev_b32 v7, 2, v2
    v_mul_u32_u24 v7, 160, v7
    v_and_b32 v12, 3, v2
    v_lshl_add_u32 v245, v12, 3, v7
    v_add_u32 v14, s46, v14
    v_mul_u32_u24 v14, {2*32*896}, v14
    v_lshl_add_u32 v248, v11, 3, v14 ; U voffset
    s_mul_i32 s47, s47, {32*896}
    s_add_u32 s47, s47, s39
    s_add_u32 s47, s47, s40          ; U soffset
    s_mov_b32 s73, 0x3f803f80
    ''')
    for i in range(0, 8, 2): f.add(f'v_mov_b64 {P(T+i)}, 0')
    f.lines(wa); f.add(wb)
    f.lines(f's_mul_i32 s6, s3, {(NREP-2)//4*1024}\ns_add_u32 s40, s40, s6\ns_lshl_b32 s6, s32, 9\ns_sub_u32 s40, s40, s6\ns_add_u32 s40, s40, {FL_BAR}')
    f2 = P2_pre(k)
    ntot = len(f); f.emit(C['p1_fill0'])
    k.e('s_waitcnt lgkmcnt(0)\ns_mov_b32 s8, s4\ns_and_b32 s9, s5, 0xffff')
    xq = Q(k)
    for i in range(7):
        for st in range(2):
            xq.vm('s_add_u32 s37, s37, 128\ns_cmp_ge_u32 s37, s38\ns_cselect_b32 s37, s39, s37' if i and not st else None,
                  f'buffer_load_dwordx4 {v(X+28*st+4*i,4)}, v{246+st}, s[8:11], s37 offen', f'x{i}{st}')
    f.q[0:0] = [f's_mov_b64 s[82:83], s[20:21]\ns_mov_b32 s12, s30\ns_and_b32 s13, s31, 0xffff',
                f's_sub_u32 s20, s18, 1024\ns_subb_u32 s21, s19, 0\ns_and_b32 s21, s21, 0xffff\ns_mov_b32 s22, {448*3584+1024}\ns_mov_b32 s23, 0x20000\ns_and_b32 s17, s17, 0xffff\ns_mov_b32 s18, {448*3584}\ns_mov_b32 s19, 0x20000']
    assert ntot - len(f) + 2 >= npf
    if C['pf_ca'] == 1: pf_ca()
    xq.emit(2)
    if C['pf_ca'] == 2: pf_ca()
    k.e('s_mov_b64 s[0:1], s[24:25]')
    k.e('s_mov_b64 s[80:81], s[26:27]\ns_bitcmp1_b32 s3, 0\ns_cselect_b64 s[26:27], s[18:19], s[16:17]')
    if C['pf_mod'] == 1: pf_mod()
    if C['pf_a'] == 1: pf_w3(0)
    for n in range(C['p1_ld_pre']-2): f.cyc(C['p1_fill']); xq.emit(1)
    f.flush(); f2.cyc(C['p1_f2'])
    k.st('p1iss'); page(k, 1, None, {1: 2, 2: 3, 3: 4})
    wlq = [('vm', f'global_load_dword v{WL+n}, v{WO+(n>>2)}, s[82:83] offset:{896*(n&3)}', 'wl') for n in range(8)]
    assert C['wl_early']; cq = Q(k)
    c2 = Q(k)
    if C['pf_mod'] == 2: c2.add(pf_mod)
    if C['pf_a'] == 2: c2.add(lambda: pf_w3(0))
    cq.add(lambda: pf_w3(1))
    cq.q += wlq
    w3 = w3_dma(k, 0, R1N, R1L)
    for i in range(7):
        for st in range(2):
            k.wait(vm=f'x{i}{st}')
            if len(xq): xq.emit(1)
            elif len(c2) and 2*i+st >= C['c2_at']:
                if 2*i+st == C['c2_at'] and C['c2_bar']: k.e('s_barrier')
                c2.emit(1)
            elif len(cq) and 2*i+st >= C['cold_at']: cq.emit(C['cold_rate'])
            elif 2*i+st < C['w3_at']: pass
            elif 2*R1N - len(w3) < C['p1_w3_ld']: w3.emit(1)
            for d in range(4):
                r = X+28*st+4*i+d; t = T+4*st+(d & 1)
                k.e(f'v_dot2_f32_bf16 v{t}, v{r}, s73, v{t}\nv_dot2_f32_bf16 v{t+2}, v{r}, v{r}, v{t+2}')
            if i == 0:
                for d in range(4): k.e(f'v_lshlrev_b32 v{UP+8*st+2*d}, 16, v{X+28*st+d}\nv_and_b32 v{UP+8*st+2*d+1}, 0xffff0000, v{X+28*st+d}')
    assert not len(xq) and not len(c2)
    k.st('p1dat')
    for t in (T, T+2, T+4, T+6): k.e(f'v_add_f32 v{t}, v{t}, v{t+1}')
    for m in ('quad_perm:[1,0,3,2]', 'quad_perm:[2,3,0,1]', 'row_half_mirror'):
        for t in (T, T+2, T+4, T+6): k.e(f'v_add_f32_dpp v{t}, v{t}, v{t} {m} row_mask:0xf bank_mask:0xf')
    w3.emit(C['p1_w3_t'])
    for txt in (f'v_mul_f32 v#0, {f2h(-1/448)}, v#0', f'v_mul_f32 v#2, {f2h(1/448)}, v#2', 'v_fma_f32 v#2, -v#0, v#0, v#2', 'v_max_f32 v#2, 0, v#2',
                f'v_add_f32 v#2, {f2h(1e-5)}, v#2', 'v_rsq_f32 v#2, v#2', 'v_mul_f32 v#0, v#0, v#2'):
        for st in range(2): k.e(txt.replace('#0', str(T+4*st)).replace('#2', str(T+4*st+2)))
    w3.emit(C['p1_w3_t'])
    for st in range(2):
        t = T+4*st
        for d in range(4): k.e(f'v_pk_fma_f32 {P(UP+8*st+2*d)}, {P(UP+8*st+2*d)}, {P(t+2)}, {P(t)} op_sel_hi:[1,0,0]')
        for d in range(4): k.e(f'v_cvt_pk_bf16_f32 v{X+4*st+d}, v{UP+8*st+2*d}, v{UP+8*st+2*d+1}')
        k.ds_op(f'ds_write_b128 v244, {v(X+4*st,4)} offset:{8*160*st}')
    w3.emit(C['p1_w3_a']); cq.emit(C['cold_a'])
    k.wait(lg='all'); k.e('s_barrier'); k.st('p1bar')
    for ks in range(2):
        for t in range(4):
            for hf in range(2):
                k.ds_op(f'ds_read_b64_tr_b16 {v(BF+16*ks+4*t+2*hf,2)}, v245 offset:{ks*32*160+hf*16*160+t*32}', f'b{ks}{t}')
    w3.emit(C['p1_w3_b'])
    if C['cold_at'] < 99: cq.flush()
    for ks in range(2):
        for t in range(4):
            k.wait(lg=f'b{ks}{t}')
            c = '0' if ks == 0 else v(AC+4*t,4)
            k.e(f'v_mfma_f32_16x16x32_bf16 {v(AC+4*t,4)}, {v(M+4*ks,4)}, {v(BF+16*ks+4*t,4)}, {c}')
    w3.emit(C['p1_w3_c'])
    for r in range(4):
        k.e(f'v_cvt_pk_bf16_f32 v{X+2*r}, v{AC+r}, v{AC+4+r}\nv_cvt_pk_bf16_f32 v{X+2*r+1}, v{AC+8+r}, v{AC+12+r}')
        k.vm_op(f'buffer_store_dwordx2 {v(X+2*r,2)}, v248, s[12:15], s47 offen sc1', 'ust')
        if r < 3: k.e(f's_add_u32 s47, s47, {2*32*896}')
    k.st('p1st')
    k.e(f's_load_dword s75, s[28:29], 0x0\nv_mov_b32 v{UP+2}, 0')
    assert C['ssig'] and len(w3) % 2 == 0
    n1 = R1N - len(w3)//2
    while not f2.xready(): f2.emit(1)
    for t in range(3):
        k.e(f's_add_u32 m0, s44, {1024*t}')
        k.vm_op(f'buffer_load_dwordx4 v{T2+10+t}, s[8:11], s43 offen lds', 'xi')
    if C['cold_at'] == 99: cq.flush()
    f2.q += k.f3.q; k.f3.q = []
    f2.cyc(C['p1_fill_drain0'])
    for n in range(C['p1_w3_drain']): w3.emit(1); f2.cyc(C['p1_fill_drain'])
    f2.cyc(C['p1_fill_drain2'])
    if C['cold_at'] == 100: cq.flush()
    k.wait(vm='ust', lg='all'); k.e('s_barrier'); k.st('sig1')
    if C['ssig']:
        l, g = k.label('BS'), k.label('BG'); per = (NREP-2)//4
        k.e(f'''s_mov_b32 s1, 0
{l}:
    s_cmp_lg_u32 s75, 0
    s_cbranch_scc1 {g}
    s_add_u32 s1, s1, 1
    s_cmp_gt_u32 s1, {SPIN_MAX}
    s_cbranch_scc1 {g}
    s_sleep 8
    global_load_dword v{UP+3}, v{UP+2}, s[28:29] sc1
    s_waitcnt vmcnt(0)
    v_readfirstlane_b32 s75, v{UP+3}
    s_nop 0
    s_branch {l}
{g}:''')
        for i in range(per): k.e(f's_atomic_add s74, s[24:25], s40 offset:{1024*i}')
    else: bar_signal(k, 's40', UP, UP+1, UP+2, UP+3)
    k.tr1 = tr = w3_tr(k, 0, R1N)
    k.st('w0')
    k.st('w1')
    n = 0
    while len(w3):
        if n == C['poll1_at'] and not C['ld1']:
            if C['mp1']:
                l = k.label('B0')
                k.e(f's_mov_b32 s76, -1\ns_atomic_and s76, s[24:25], s53 glc\ns_mov_b32 s78, 36\ns_mov_b32 s4, 0\ns_cmp_eq_u32 s3, 3\ns_cbranch_scc1 {l}\ns_mov_b32 s78, -1\ns_atomic_and s78, s[24:25], s56 glc\n{l}:')
            else: k.e('s_cmp_eq_u32 s3, 3\ns_cselect_b32 s5, s53, s56\ns_mov_b32 s0, 0\ns_mov_b32 s4, 0\ns_atomic_add s0, s[24:25], s53 glc\ns_atomic_add s4, s[24:25], s5 glc')
        w3.emit(1); f2.cyc(24); n += 1
        if len(tr) > 4*(R1N-min(n1, R1A)): tr.emit(2)
    if C['cold_at'] == 101: k.e('s_barrier'); cq.flush()
    k.cq = cq
    if n1 < R1A: k.wait(vm=f'w3_{R1A-1}'); k.e('s_barrier')
    tr.emit(len(tr) - 4*(R1N-R1A))
    if C['poll1_at'] >= n: k.e('s_cmp_eq_u32 s3, 3\ns_cselect_b32 s78, 36, 0\ns_mov_b32 s4, 0')
    k.st('r1iss')
    k.f3.q = f2.q; assert len(k.f3) <= k.nf3
    def wdst():
        k.wait(vm='wl')
        for t in range(2):
            for r in range(4): k.e(f'v_perm_b32 v{WO+4*t+r}, v{WL+2*r+1}, v{WL+2*r}, s{65+t}')
    k.wdq = Q(k)
    if C['cold_at'] < 99: wdst()
    else: k.wdq.add(wdst)
    for t in range(2): k.wdq.vm(None, f'buffer_store_dwordx4 {v(WO+4*t,4)}, v3, s[12:15], s64 offen offset:{1024*t} sc1', 'wdst')
    if C['ld1'] == 1: k.e('s_cmp_eq_u32 s3, 3\ns_cselect_b32 s5, s53, s56\ns_load_dword s0, s[24:25], s53 glc\ns_load_dword s4, s[24:25], s5 glc')
    k.st('w7'); k.wait(vm='xi'); k.st('w8')
    la, lb = k.label('P2xa'), k.label('P2xb')
    k.e(f's_cmp_eq_u32 s49, 0\ns_cbranch_scc0 {la}')
    for r in range(16): k.e(f'ds_read_u16_d16_hi v{XV+r}, v1 offset:{2*DELT[r]}')
    k.e(f's_branch {lb}\n{la}:')
    for r in range(16): k.ds_op(f'ds_read_u16_d16_hi v{XV+r}, v1 offset:{2*DELT[15-r]}', 'xv')
    k.e(f'{lb}:'); k.f3.cyc(C['f3_pre']); k.st('w6'); page(k, 2, 1, {2: 5, 3: 6})
    if C['ld1'] == 2: k.e('s_cmp_eq_u32 s3, 3\ns_cselect_b32 s5, s53, s56\ns_load_dword s0, s[24:25], s53 glc\ns_load_dword s4, s[24:25], s5 glc')
    k.f3.cyc(C['f3_post'])
    return None

ACC = 16; FB = 32; CC = 96; SG = 104; IC = 112; RS = 120; IS = 128; XV = 136; GA = 152; CB = 168; ZF = 184; ZB = 188; T2 = 192
def P2_pre(k):
    T = T2; f = Q(k)
    f.lines(f'''
    v_bfe_u32 v{TB}, v2, 2, 2
    v_xor_b32 v{T}, s3, v{TB}
    v_lshlrev_b32 v{TB}, 8, v{TB}
    v_lshl_add_u32 v{TB}, v{T}, 6, v{TB}
    v_bfe_u32 v{T}, v2, 4, 1
    v_lshl_add_u32 v{TB}, v{T}, 5, v{TB}
    v_and_b32 v{T}, 3, v2
    v_lshl_add_u32 v{TB}, v{T}, 3, v{TB}
    v_lshl_add_u32 v{TB}, v5, 11, v{TB}
    v_add_u32 v{TB}, {R1L}, v{TB}
    v_add_u32 v{TB+1}, 0x10000, v{TB}
    s_and_b32 s48, s3, 1
    s_lshr_b32 s49, s3, 1
    v_lshrrev_b32 v6, 3, v2
    s_lshl_b32 s6, s3, 4
    v_add_u32 v6, s6, v6
    v_mul_u32_u24 v6, 896, v6
    v_lshrrev_b32 v{T+8}, 4, v2
    v_xor_b32 v{T+8}, v{T+8}, v2
    v_and_b32 v{T+8}, 7, v{T+8}
    v_xor_b32 v{T+9}, 4, v{T+8}
    v_lshl_add_u32 v{T+9}, v{T+9}, 4, v6
    v_add_u32 v{T+9}, {8*896-1024}, v{T+9}
    v_lshl_add_u32 v{T+8}, v{T+8}, 4, v6
    s_mul_i32 s52, s36, 57344        ; U soffset
    s_mul_i32 s54, s49, 28
    s_lshl_b32 s55, s48, 1
    s_add_u32 s54, s54, s55
    s_lshl_b32 s54, s54, 10
    s_mul_i32 s55, s35, 57344
    s_add_u32 s55, s55, s54
    s_add_u32 s55, s55, {WS_CP}
    s_mov_b32 s70, s52
    s_mov_b32 s71, s55
    s_add_u32 s72, s52, 896
    s_and_b32 s6, s2, {ROTMASK}
    s_min_u32 s6, s6, 6
    s_lshl_b32 s6, s6, 7
    s_add_u32 s52, s52, s6
    s_lshl_b32 s6, s6, 5
    s_add_u32 s55, s55, s6
    s_lshl_b32 s24, s32, 9
    s_add_u32 s24, s24, {WS_FLAG}
    ''')
    f.add('s_add_u32 s24, s24, s30\ns_addc_u32 s25, s31, 0\ns_lshl_b32 s6, s34, 15\ns_add_u32 s30, s24, s6\ns_addc_u32 s31, s25, 0')
    f.lines('s_mov_b64 s[76:77], 0\ns_mov_b32 s78, 0\ns_xor_b32 s79, s34, 1\ns_lshl_b32 s79, s79, 15\ns_mov_b32 s74, 1')
    f.lines(('s_and_b32 s53, s2, 7' if RX else f's_lshr_b32 s53, s32, {RSH}') + f'''
    s_lshl_b32 s53, s53, 10
    s_lshl_b32 s6, s32, 9
    s_sub_u32 s53, s53, s6
    s_lshl_b32 s6, s3, 8
    s_add_u32 s53, s53, s6
    s_add_u32 s53, s53, {FL_BAR}     ; barrier counter offset (rel s[24:25]) of chunk 2w
    s_add_u32 s56, s53, 128
    s_and_b32 s6, s32, 1
    s_lshl_b32 s6, s6, 10
    s_sub_u32 s68, s56, s6           ; mod counter (even replicas only; used by wave 3)''')
    f.add(t1_txt('s50', 's36', 's48', 's6'))
    f.lines(f'''s_lshl_b32 s51, s35, 1
    s_add_u32 s51, s51, s49          ; beta
    s_lshl_b32 s41, s51, 7
    s_add_u32 s41, s41, {WS_MOD+GA_P}
    v_lshlrev_b32 v{T+13}, 2, v4
    v_lshl_add_u32 v{T+13}, v5, 11, v{T+13}
    s_lshl_b32 s42, s3, 8
    s_add_u32 s42, s42, {P2_GC}
    v_lshl_add_u32 v{T+14}, v5, 4, s42''')
    f.add(f'''s_lshl_b32 s7, s35, 6
    s_sub_u32 s6, 832, s7
    s_cmp_eq_u32 s49, 0
    s_cselect_b32 s7, s7, s6
    s_add_u32 s6, s7, 64
    s_cmp_eq_u32 s6, 896
    s_cselect_b32 s6, 448, s6
    s_cmp_eq_u32 s49, 0
    s_cselect_b32 s6, 0x7fff0000, s6
    v_mov_b32 v{T+3}, s6''')
    f.lines(f's_mul_i32 s43, s50, 896\ns_mul_i32 s44, s3, 3072\ns_add_u32 s44, s44, {P2_XI}')
    for t in range(3):
        f.lines(f'''v_add_u32 v{T}, {64*t}, v2
        v_mul_u32_u24 v{T+1}, 205, v{T}
        v_lshrrev_b32 v{T+1}, 10, v{T+1}
        v_mul_u32_u24 v{T+2}, 5, v{T+1}
        v_sub_u32 v{T}, v{T}, v{T+2}
        v_cmp_eq_u32 vcc, 4, v{T}
        v_lshl_add_u32 v{T}, v{T}, 4, s7
        v_mul_u32_u24 v{T+1}, {64*896}, v{T+1}
        v_cndmask_b32 v{T}, v{T}, v{T+3}, vcc
        v_add_u32 v{T+10+t}, v{T}, v{T+1}''')
    nx = len(f)
    U = GA; k.f3 = f3 = Q(k)
    f3.lines(f'''
    v_lshlrev_b32 v{U}, 6, v4
    v_add_u32 v{U}, s50, v{U}
    v_or_b32 v{U+1}, v{U}, v5
    v_cmp_eq_u32 vcc, 0, v{U+1}
    v_lshlrev_b32 v{TB+3}, 2, v4
    v_mov_b32 v{ZB}, 0x45004500
    v_cvt_f32_u32 v{U}, v{U}
    v_cndmask_b32 v{ZB}, 0, v{ZB}, vcc
    v_mov_b32 v{ZB+1}, v{ZB}
    v_mov_b32 v{ZB+2}, v{ZB}
    v_mov_b32 v{ZB+3}, v{ZB}
    v_mul_f32 v{U}, {f2h(1/2048)}, v{U}
    v_lshlrev_b32 v{U+1}, 2, v5
    v_cvt_f32_u32 v{U+1}, v{U+1}
    v_mul_f32 v{U+1}, v{U}, v{U+1}''')
    for r in range(8):
        f3.lines(f'''v_fmamk_f32 v{U+2}, v{U}, {f2h(DELT[2*r])}, v{U+1}
        v_fmamk_f32 v{U+3}, v{U}, {f2h(DELT[2*r+1])}, v{U+1}
        v_cos_f32 v{U+4}, v{U+2}
        v_cos_f32 v{U+5}, v{U+3}
        v_sin_f32 v{U+2}, v{U+2}
        v_sin_f32 v{U+3}, v{U+3}
        v_cvt_pk_bf16_f32 v{CC+r}, v{U+4}, v{U+5}
        v_cvt_pk_bf16_f32 v{SG+r}, v{U+2}, v{U+3}''')
    f3.add(f'''s_cmp_eq_u32 s36, 0
    s_cselect_b32 s73, 0, -1''')
    f3.lines(f'''v_mov_b32 v{U}, s73
    s_mul_i32 s73, s48, 0x80008000
    s_mul_i32 s38, s49, 0x80008000
    s_xor_b32 s37, s38, 0x80008000
    s_xor_b32 s38, s38, s73''')
    for r in range(8):
        f3.lines(f'''v_bitop3_b32 v{IC+r}, v{SG+r}, s73, v{U} bitop3:0x28
        v_xor_b32 v{RS+r}, s37, v{SG+r}
        v_bitop3_b32 v{IS+r}, v{CC+r}, s38, v{U} bitop3:0x28''')
    f.lines(f'''
    s_lshl_b32 s6, s48, 12
    v_lshlrev_b32 v9, 7, v4
    v_add_u32 v9, s6, v9
    v_bfe_u32 v{T+2}, v2, 1, 3
    v_xor_b32 v{T+2}, v{T+2}, v5
    v_lshl_add_u32 v9, v{T+2}, 4, v9
    v_xor_b32 v10, 32, v9
    v_xor_b32 v11, 64, v9
    v_xor_b32 v12, 96, v9
    s_lshl_b32 s6, s49, 12
    s_add_u32 s6, s6, 8192
    v_add_u32 v13, s6, v3
    ''')
    f.add('s_cmp_eq_u32 s36, 0\ns_cselect_b32 s46, s48, 0')
    f.lines(f's_add_u32 s6, s60, {P2_X}\nv_add_u32 v0, s6, v3')
    for r in range(0, 16, 2): f.add(f'v_mov_b64 {P(XV+r)}, 0')
    f.add(f'''s_cmp_eq_u32 s51, 1
    s_cselect_b32 s6, 4096, 0
    s_cselect_b32 s45, 7, s35
    v_mov_b32 v{T}, s6''')
    f.lines(f'''v_cmp_eq_u32 vcc, 0, v4
    v_add_u32 v15, {P2_X+4096}, v3
    v_mul_u32_u24 v1, 80, v4
    v_cndmask_b32 v{T}, 0, v{T}, vcc
    v_add_u32 v14, v0, v{T}
    v_lshl_add_u32 v7, v{T}, 1, v3
    v_add_u32 v7, {P2_X}, v7
    s_lshl_b32 s6, s46, 11
    v_add_u32 v6, s6, v7
    v_add_u32 v8, s6, v15
    v_add_u32 v1, s44, v1
    v_lshlrev_b32 v{T}, 3, v5
    v_sub_u32 v{T+1}, 10, v{T}
    s_lshl_b32 s45, s45, 7
    s_add_u32 s45, s45, {WS_ZF}''')
    f.add(f'''s_cmp_eq_u32 s49, 0
    s_cselect_b64 vcc, -1, 0
    v_cndmask_b32 v{T}, v{T+1}, v{T}, vcc
    v_add_u32 v1, v1, v{T}''')
    f.lines(f'''
    s_lshl_b32 s6, s32, 1
    s_add_u32 s6, s6, s34
    s_lshl_b32 s6, s6, 1
    s_add_u32 s6, s6, s48            ; rho
    s_mul_i32 s57, s6, 14
    s_add_u32 s57, s57, s51
    s_lshl_b32 s58, s57, 8
    s_add_u32 s58, s58, {WS_ST}
    s_lshl_b32 s57, s57, 11
    s_add_u32 s59, s57, {WS_X1}
    s_add_u32 s57, s57, {WS_X1C}
    v_lshlrev_b32 v{T+15}, 3, v4
    v_lshl_add_u32 v{T+15}, v5, 2, v{T+15}
    s_lshl_b32 s62, s34, 1
    s_xor_b32 s62, s62, s49
    s_or_b32 s63, s36, s48
    v_mov_b64 {P(T)}, 0
    v_mov_b64 {P(T+2)}, 0
    ''')
    k.nf3 = len(f3); tot = len(f); f.xready = lambda: tot - len(f) >= nx
    return f

def P2(k, C, _):
    T = T2
    if C['mp1']:
        for _ in range(6 if C['ssig'] else 2): k.ds_op('ds_read_b32 v16, v3')
        k.wait(lg='xv')
        l, d, sb = k.label('B1'), k.label('B1D'), k.label('B1B'); pace = C['mp1']
        def re(p, t, off):
            x = k.label('B1S')
            return f's_cmp_eq_u32 {t}, 36\ns_cbranch_scc1 {x}\ns_cmp_ge_u32 {p}, 36\ns_cbranch_scc1 {x}\ns_mov_b32 {p}, -1\ns_atomic_and {p}, s[24:25], {off} glc\n{x}:\n'
        k.e(f'''s_mov_b32 s1, {pace-1}
{l}:
    s_max_i32 s6, s76, s77
    s_max_i32 s7, s78, s4
    s_min_i32 s0, s6, s7
    s_cmp_eq_u32 s0, 36
    s_cbranch_scc1 {d}
    s_add_u32 s1, s1, 1
    s_and_b32 s0, s1, {pace-1}
    s_cbranch_scc1 {l}
    s_cmp_gt_u32 s1, {SPIN_MAX*8}
    s_cbranch_scc1 {d}
    s_and_b32 s0, s1, {pace}
    s_cbranch_scc1 {sb}
''' + re('s76', 's6', 's53') + re('s78', 's7', 's56') + f's_branch {l}\n{sb}:\n' + re('s77', 's6', 's53') + re('s4', 's7', 's56') + f's_branch {l}\n{d}:\ns_mov_b32 m0, s60')
    else:
        l, d = k.label('B1'), k.label('B1D')
        k.e(f'''s_mov_b32 s1, 0
{l}:
    s_waitcnt lgkmcnt(0)
    s_add_u32 s0, s0, s4
    s_cmp_eq_u32 s0, 72
    s_cbranch_scc1 {d}
    s_add_u32 s1, s1, 1
    s_cmp_gt_u32 s1, {SPIN_MAX}
    s_cbranch_scc1 {d}
    s_mov_b32 s0, 0
    s_mov_b32 s4, 0
    s_atomic_add s0, s[24:25], s53 glc
    s_atomic_add s4, s[24:25], s5 glc
    s_branch {l}
{d}:
    s_mov_b32 m0, s60''')
    if not C['r1sep']: k.wait(vm=f'w3_{R1N-1}')
    k.e('s_barrier')
    k.lg = []; k.st('bar1')
    dq = Q(k)
    for c in range(7):
        dq.vm(f's_add_u32 m0, s60, {16384*c}\ns_add_u32 s52, s52, 128\ns_add_u32 s55, s55, 4096\ns_cmp_eq_u32 s52, s72\ns_cselect_b32 s52, s70, s52\ns_cselect_b32 s55, s71, s55' if c else None, f'buffer_load_dwordx4 v{T+8}, s[12:15], s52 offen sc1 lds')
        dq.vm(None, f'buffer_load_dwordx4 v{T+9}, s[12:15], s52 offen offset:1024 sc1 lds')
        dq.vm(f's_add_u32 m0, s60, {16384*c+8192}', 'buffer_load_dwordx4 v3, s[12:15], s55 offen sc1 lds')
        dq.vm(None, 'buffer_load_dwordx4 v3, s[12:15], s55 offen offset:1024 sc1 lds', f'ch{c}')
    gq = Q(k)
    gq.vm('s_mov_b32 m0, s42', f'buffer_load_dword v{T+13}, s[12:15], s41 offen sc1 lds', 'gc')
    k.r2 = r2 = w3_dma(k, R1N, 28, 0); NR2 = len(r2)
    tr = k.tr1
    dq.emit(C['p2_pre'])
    if C['r1sep']: k.wait(vm=f'w3_{R1N-1}'); k.e('s_barrier')
    f3 = k.f3
    while len(dq) > 12:
        if len(tr): tr.emit(4); f3.cyc(16)
        else: f3.cyc(40)
        dq.emit(1)
    assert not len(tr)
    if C['mp1']:
        for _ in range(4): k.ds_op('ds_read_b32 v16, v3')
    k.wait(lg='tr'); k.e('s_barrier')
    if C['p2_modi'] < 0: poll_issue(k, 's68', 's47', 3)
    for n in range(2):
        dq.emit(1); k.ds_op(f'ds_write_b128 v0, {v(T,4)} offset:{1024*n}'); k.e(f'v_subrev_u32 v{TB+n}, {R1L}, v{TB+n}')
    k.e(f'v_add_u32 v{TB+2}, 0x10000, v{TB+1}')
    for n in range(C['p2_pre2']-2): f3.cyc(40); dq.emit(1)
    def rdk(c, kk):
        b = FB + 32*(c & 1)
        k.ds_op(f'ds_read_b128 {v(b+8*kk,4)}, v{9+kk} offset:{16384*(c&3)}')
        k.ds_op(f'ds_read_b128 {v(b+8*kk+4,4)}, v13 offset:{16384*(c&3)+1024*kk}', f'r{c}{kk}')
        if c == 3: k.e(f'v_add_u32 v{9+kk}, 0x10000, v{9+kk}' + ('\nv_add_u32 v13, 0x10000, v13' if kk == 3 else ''))
    def mfk(c, kk):
        b = FB + 32*(c & 1)
        k.wait(lg=f'r{c}{kk}')
        cc = '0' if c == 0 and kk == 0 else v(ACC,16)
        k.e(f'v_mfma_f32_32x32x16_bf16 {v(ACC,16)}, {v(b+8*kk,4)}, {v(b+8*kk+4,4)}, {cc}')
    k.st('issued')
    zl = [k.label('ZA'), k.label('ZB'), k.label('ZC'), k.label('ZD'), k.label('ZE')]
    for c in range(7):
        if c == C['p2_modi']: poll_issue(k, 's68', 's47', 3)
        if c == C['p2_mod']: poll_check(k, 's68', 28, 's47', 3)
        k.wait(vm=f'ch{c}'); k.e('s_barrier'); k.st(f'c{c}')
        for kk in range(4):
            if c: mfk(c-1, kk)
            f3.cyc(C['p2_f3'])
            if len(dq): dq.emit(C['p2_rate'])
            elif len(k.cq) and c >= C['cq_from']: k.cq.emit(3)
            elif len(k.wdq) and c >= C['wd_from']: k.wdq.emit(1)
            else:
                if c == C['p2_mod'] and len(r2) % 2 == 0: gq.flush()
                if c >= C['r2_from'] and kk in C['r2_kk'] and NR2 - len(r2) < 4*(c-1): r2.emit(1)
            rdk(c, kk)
        if c == 2:
            k.e(f's_cmp_lg_u32 s63, 0\ns_cbranch_scc1 {zl[0]}\ns_mov_b32 s0, 0\ns_atomic_add s0, s[24:25], {FL_SIDE+14*128} glc\n{zl[0]}:')
    assert not len(dq) and not len(gq) and not len(tr) and not len(f3) and C['p2_mod'] >= 3
    k.st('A6')
    k.e(f'''s_cmp_lg_u32 s63, 0
    s_cbranch_scc1 {zl[1]}
    s_mov_b32 s1, 0
{zl[2]}:
    s_waitcnt lgkmcnt(0)
    s_cmp_eq_u32 s0, 4
    s_cbranch_scc1 {zl[3]}
    s_add_u32 s1, s1, 1
    s_cmp_gt_u32 s1, {SPIN_MAX}
    s_cbranch_scc1 {zl[3]}
    s_mov_b32 s0, 0
    s_atomic_add s0, s[24:25], {FL_SIDE+14*128} glc
    s_branch {zl[2]}
{zl[3]}:''')
    for i in range(4): k.vm_op(f'buffer_load_dword v{ZF+i}, v{TB+3}, s[12:15], s45 offen offset:{1024*i} sc1', 'zf', maybe=True)
    k.e(f'{zl[1]}:')
    for kk in range(4):
        mfk(6, kk)
        if len(k.wdq): k.wdq.emit(1)
        elif C['r2_6']: r2.emit(1)
    r2.emit(C['r2_a'])
    for hf in range(2):
        for r in range(4*hf, 4*hf+4): k.e(f'v_cvt_pk_bf16_f32 v{T+r}, v{ACC+2*r}, v{ACC+2*r+1}')
        k.ds_op(f'ds_write_b128 v14, {v(T+4*hf,4)} offset:{1024*hf}')
    r2.emit(C['r2_b']); assert NR2 - len(r2) <= 20
    k.wait(lg='all'); k.e('s_barrier'); k.st('Xbar')
    kinds = [('v6', 0, CC), ('v7', 2048, IC), ('v8', 0, RS), ('v15', 2048, IS)]
    rb = [(f'ds_read_b128 {v(FB+8*i+4*a_,4)}, {ad} offset:{off+1024*a_}', f'x{i}{a_}') for i, (ad, off, _) in enumerate(kinds) for a_ in range(2)]
    for x in rb[:4]: k.ds_op(*x)
    r2.emit(C['r2_pre'])
    for n in range(8):
        i, a_ = n >> 1, n & 1
        k.wait(lg=f'x{i}{a_}')
        k.e(f'v_mfma_f32_32x32x16_bf16 {v(ACC,16)}, {v(FB+8*i+4*a_,4)}, {v(kinds[i][2]+4*a_,4)}, {v(ACC,16) if n else 0}')
        if n < 2: k.ds_op(*rb[4+2*n]); k.ds_op(*rb[5+2*n])
        elif n in C['r2_sb']: r2.emit(1)
        if 3 <= n < 7:
            k.wait(vm='gc'); kk = n-3
            k.ds_op(f'ds_read_b128 {v(GA+4*kk,4)}, v{T+14} offset:{32*kk}'); k.ds_op(f'ds_read_b128 {v(CB+4*kk,4)}, v{T+14} offset:{128+32*kk}', 'gcr')
    r2.emit(C['r2_c']); k.r2n = R1N + (NR2 - len(r2))//2; assert k.r2n >= R1N + 4
    k.e(f's_cmp_lg_u32 s63, 0\ns_cbranch_scc1 {zl[4]}')
    sv = list(k.vm); k.wait(vm='zf'); k.vm = sv
    k.e(f'v_mfma_f32_32x32x16_bf16 {v(ACC,16)}, {v(ZF,4)}, {v(ZB,4)}, {v(ACC,16)}\n{zl[4]}:')
    k.wait(lg='gcr')
    for hf in range(2):
        R = range(8*hf, 8*hf+8, 2)
        for r in R: k.e(f'v_pk_fma_f32 {P(XV+r)}, {P(ACC+r)}, {P(GA+r)}, {P(XV+r)}')
        for r in R: k.e(f'v_pk_mul_f32 {P(CB+r)}, {P(CB+r)}, {P(XV+r)}')
        for r in range(4*hf, 4*hf+4): k.e(f'v_cvt_pk_bf16_f32 v{FB+r}, v{CB+2*r}, v{CB+2*r+1}')
        k.vm_op(f'buffer_store_dwordx4 {v(FB+4*hf,4)}, v3, s[12:15], s57 offen offset:{1024*hf} sc1')
    k.e(f'v_pk_add_f32 {P(T)}, {P(XV)}, {P(XV+2)}\nv_pk_mul_f32 {P(T+2)}, {P(XV)}, {P(XV)}')
    for r in range(2, 16, 2):
        if r >= 4: k.e(f'v_pk_add_f32 {P(T)}, {P(T)}, {P(XV+r)}')
        k.e(f'v_pk_fma_f32 {P(T+2)}, {P(XV+r)}, {P(XV+r)}, {P(T+2)}')
    k.e(f'''v_add_f32 v{T}, v{T}, v{T+1}
    v_add_f32 v{T+1}, v{T+2}, v{T+3}
    v_cvt_pk_bf16_f32 v{FB+8}, v{XV}, v{XV+1}
    v_cvt_pk_bf16_f32 v{FB+9}, v{XV+2}, v{XV+3}
    v_permlane32_swap_b32 v{T}, v{T+1}
    v_add_f32 v{T}, v{T}, v{T+1}''')
    k.vm_op(f'buffer_store_dword v{T}, v{T+15}, s[12:15], s58 offen sc1', 'p2st')
    k.st('p2st')
    for r in range(2, 8): k.e(f'v_cvt_pk_bf16_f32 v{FB+8+r}, v{XV+2*r}, v{XV+2*r+1}')
    k.e(f's_mov_b64 s[76:77], 0\ns_mov_b32 s78, 0\ns_mov_b32 s5, s59\ns_lshl_b32 s4, s34, 3\ns_add_u32 s4, s4, s35\ns_lshl_b32 s4, s4, 7\ns_lshl_b32 s6, s32, 9\ns_sub_u32 s4, s4, s6\ns_add_u32 s4, s4, {FL_WD}\ns_mov_b32 s28, s67\ns_mov_b32 s29, s69')

SM = 48
def sm(i): return f's{SM+i}' if i < 12 else f's{64+i-12}'
VH0, VH1, VWD, VA0, VA1 = 9, 142, 143, 14, 15
def setup34(k, C):
    q = Q(k); T = ET
    q.lines(f'''s_lshr_b32 s63, s3, 1            ; sw
    s_and_b32 s72, s3, 1
    s_lshl_b32 s6, s35, 2
    s_add_u32 s6, s6, s72
    s_mul_i32 s6, s6, {56*1024}
    s_add_u32 s6, s6, {WS_WDP}
    v_add_u32 v{VWD}, s6, v3
    s_mul_i32 s66, s34, 7
    s_sub_u32 s67, 8, s66
    s_sub_u32 s67, s67, s63
    s_add_u32 s68, s66, s63
    s_lshl_b32 s67, s67, 12
    s_lshl_b32 s68, s68, 12
    s_lshl_b32 s66, s66, 12''')
    q.add('s_cmp_eq_u32 s63, 0\ns_cselect_b32 s66, s66, s67')
    for i in range(14):
        base = 68 if i & 2 else 67 if i < 12 else 66
        q.add(f's_add_u32 {sm(i)}, s{base}, {(2*(i >> 2) + 28*(i & 1))*4096}')
    q.lines('s_and_b32 s69, s35, 1\ns_lshl_b32 s6, s34, 1\ns_or_b32 s69, s69, s6')
    q.lines(f'''
    s_lshl_b32 s39, s33, 7
    s_lshl_b32 s6, s32, 9
    s_sub_u32 s39, s39, s6
    s_add_u32 s39, s39, {FL_SIDE}
    s_lshl_b32 s7, s32, 2''')
    for st in range(4):
        q.lines(f'''s_xor_b32 s6, s69, {st}
        s_add_u32 s6, s6, s7             ; rho
        s_mul_i32 s{44+st}, s6, {28*1024}
        s_add_u32 s{44+st}, s{44+st}, {WS_X1C}
        s_and_b32 s{40+st}, s6, 1
        s_lshr_b32 s6, s6, 1
        s_lshl_b32 s6, s6, 2
        s_add_u32 s6, s6, s3
        s_mul_i32 s6, s6, 14
        s_add_u32 s6, s6, s33
        s_lshl_b32 s6, s6, 1
        s_add_u32 s6, s6, s{40+st}
        s_lshl_b32 s6, s6, 11
        s_add_u32 s{40+st}, s6, {WS_HH}''')
    q.lines(f'''
    s_xor_b32 s6, s69, s3
    s_add_u32 s6, s6, s7
    s_mul_i32 s37, s6, 3584
    s_add_u32 s37, s37, {WS_ST}
    s_lshl_b32 s6, s33, 2
    s_add_u32 s6, s6, s3
    s_lshl_b32 s38, s6, 11
    s_add_u32 s38, s38, {WS_WEXT}
    v_lshlrev_b32 v6, 3, v2
    v_add_u32 v7, {2*IMG}, v3
    v_add_u32 v8, {KSP}, v6
    s_mul_i32 s66, s3, 7168
    v_add_u32 v{VA0}, s66, v3
    v_add_u32 v{VA1}, 4096, v{VA0}
    s_add_u32 s70, s7, s62
    s_lshl_b32 s6, s32, 1
    s_add_u32 s6, s6, s34
    s_lshl_b32 s6, s6, 2
    s_add_u32 s6, s6, s72
    s_mul_i32 s6, s6, {56*1024}
    s_add_u32 s6, s6, {WS_HH}
    s_lshl_b32 s67, s63, 11
    s_add_u32 s6, s6, s67
    s_lshl_b32 s67, s72, 8
    v_xor_b32 v{VH0}, s67, v3
    v_add_u32 v{VH0}, s6, v{VH0}
    v_xor_b32 v{VH1}, 2048, v{VH0}
    s_lshl_b32 s73, s3, 12
    v_add_u32 v10, s73, v3
    v_add_u32 v11, {WDL[0]}, v10
    s_mul_i32 s70, s70, {28*1024}
    s_add_u32 s70, s70, s67
    s_add_u32 s70, s70, {WS_X1}''')
    q.add(f'''s_lshl_b32 s6, s35, 2
    s_sub_u32 s7, 29, s6
    s_cmp_le_u32 s35, 3
    s_cselect_b32 s67, s6, s7
    s_add_u32 s68, s6, 2
    s_sub_u32 s69, s7, 2
    s_cmp_le_u32 s35, 2
    s_cselect_b32 s68, s68, s69
    s_sub_u32 s69, s7, 4
    s_cmp_le_u32 s35, 3
    s_cselect_b32 s69, 1, s69
    s_cmp_eq_u32 s35, 3
    s_cselect_b32 s68, 13, s68''')
    q.lines(f'''v_and_b32 v127, 15, v2
    v_lshlrev_b32 v127, 4, v127
    v_lshrrev_b32 v{T}, 4, v2
    v_lshl_add_u32 v127, v{T}, 9, v127
    v_add_u32 v127, s70, v127
    s_mul_i32 s71, s3, 3072
    s_add_u32 s71, s71, {X1L}''')
    for t in range(2):
        q.lines(f'''s_lshl_b32 s6, s35, 6
        s_add_u32 s6, s6, {t}
        v_lshl_add_u32 v{T}, v4, 1, s6
        v_cmp_le_u32 vcc, 224, v{T}
        v_sub_u32 v{T+1}, 448, v{T}
        v_cndmask_b32 v{T+1}, v{T}, v{T+1}, vcc
        v_cndmask_b32 v{T+2}, 0, 1, vcc
        v_cmp_eq_u32 vcc, 224, v{T+1}
        v_cndmask_b32 v{T+1}, v{T+1}, 0, vcc
        v_lshrrev_b32 v{T+3}, 5, v{T+1}
        v_lshl_add_u32 v{T+3}, v{T+3}, 1, v{T+2}
        v_cmp_eq_u32 vcc, s68, v{T+3}
        v_mov_b32 v{T+2}, 2
        v_cndmask_b32 v{T+2}, v{T+2}, 1, vcc
        v_cmp_eq_u32 vcc, s67, v{T+3}
        v_bfe_u32 v{T+3}, v{T+1}, 4, 1
        v_cndmask_b32 v{T+2}, v{T+2}, 0, vcc
        v_lshlrev_b32 v{T+2}, 10, v{T+2}
        v_lshl_add_u32 v{T+2}, v{T+3}, 9, v{T+2}
        v_bfe_u32 v{T+3}, v{T+1}, 2, 1
        v_lshl_add_u32 v{T+2}, v{T+3}, 8, v{T+2}
        v_bfe_u32 v{T+3}, v{T+1}, 3, 1
        v_lshl_add_u32 v{T+2}, v{T+3}, 3, v{T+2}
        v_and_b32 v{T+3}, 3, v{T+1}
        v_lshl_add_u32 v{T+2}, v{T+3}, 1, v{T+2}
        v_lshl_add_u32 v{T+2}, v5, 6, v{T+2}
        v_add_u32 v{12+t}, s71, v{T+2}''')
    for b in range(3): q.add(f's_lshl_b32 s{67+b}, s{67+b}, 11')
    for sl in range(3):
        q.lines(f's_xor_b32 s6, s3, {sl+1}\ns_mul_i32 s6, s6, 12288\ns_add_u32 s6, s6, {RED+4096*sl}\nv_add_u32 v{124+sl}, s6, v3')
    q.lines(f'''s_mul_i32 s6, s3, 12288
    s_add_u32 s6, s6, {RED}
    v_add_u32 v1, s6, v3''')
    q.add(t1_txt('s7', 's36', 's63', 's6'))
    q.lines(f'''s_lshl_b32 s72, s72, 10
    s_add_u32 s72, s72, s7
    s_mul_i32 s72, s72, 896
    s_lshl_b32 s6, s35, 7
    s_add_u32 s72, s72, s6
    v_mul_u32_u24 v0, {4*64*896}, v5
    v_lshl_add_u32 v0, v4, 2, v0
    s_mov_b32 s8, s80
    s_and_b32 s9, s81, 0xffff''')
    return q

C01 = [(2,0),(2,1),(3,0),(3,1),(6,0),(6,1),(7,0),(7,1),(10,0),(10,1),(11,0),(11,1)]
C2 = [(i,1) for i in (0,1,4,5,8,9,12,13)]
C3 = [(i,0) for i in (0,1,4,5,8,9,12,13)]
ORDER = C01 + C2 + C3
C0 = [p for p in C01 if p[1] == 0]; C1 = [p for p in C01 if p not in C0]
LORDER = C0 + C1 + C2 + C3
def hreg(i, rl, a_): return a(8*LORDER.index((i, rl)) + 4*a_, 4)
def hh(q, L):
    if 'hh' in ABL: return
    for i, rl in L:
        for a_ in range(2): q.vm(None, f'buffer_load_dwordx4 {hreg(i,rl,a_)}, v{VH1 if rl else VH0}, s[12:15], {sm(i)} offen offset:{1024*a_} sc1', f'h{i}_{rl}')
def epi3(k, acc, st, pk=False):
    q = Q(k)
    K1 = ET + 2*(st & 1); SS = K1 + 1; T = ET + 4; PK = ET + 12
    for qq in range(4 if 'epi' not in ABL else 0):
        rr = range(4*qq, 4*qq+4); t = T + 4*(qq & 1)
        if pk: q.add(*[f'v_pk_mul_f32 {P(t+r)}, {P(acc+4*qq+r)}, {P(K1)} op_sel_hi:[1,0]' for r in (0, 2)])
        else: q.add(*[f'v_mul_f32 v{t+(r&3)}, v{acc+r}, v{K1}' for r in rr])
        for r in rr: q.add(f'v_exp_f32 v{t+(r&3)}, v{t+(r&3)}')
        if pk: q.add(*[f'v_pk_fma_f32 {P(t+r)}, {P(t+r)}, {P(K1)}, {P(K1)} op_sel:[0,1,1] op_sel_hi:[1,1,1]' for r in (0, 2)])
        else: q.add(*[f'v_fma_f32 v{t+(r&3)}, v{t+(r&3)}, v{SS}, v{SS}' for r in rr])
        for r in rr: q.add(f'v_rcp_f32 v{t+(r&3)}, v{t+(r&3)}')
        if pk: q.add(*[f'v_pk_mul_f32 {P(t+r)}, {P(t+r)}, {P(acc+16+4*qq+r)}' for r in (0, 2)])
        else: q.add(*[f'v_mul_f32 v{t+(r&3)}, v{t+(r&3)}, v{acc+16+r}' for r in rr])
        q.add(f'v_cvt_pk_bf16_f32 v{PK+2*qq}, v{t}, v{t+1}', f'v_cvt_pk_bf16_f32 v{PK+2*qq+1}, v{t+2}, v{t+3}')
        if qq & 1 and 'st' not in ABL: q.add(('vm', f'buffer_store_dwordx4 {v(PK+4*(qq>>1),4)}, v3, s[12:15], s{40+st} offen offset:{1024*(qq>>1)} sc1', f'hh{st}'))
    return q

def P3(k, C):
    su = setup34(k, C)
    def wd_reg(q, i):
        if 'wd' in C['abl']: return
        for f in range(4): q.vm(None, f'buffer_load_dwordx4 {wdreg(i,f)}, v{VWD}, s[12:15], {sm(i)} offen offset:{1024*f} sc1', f'wd{i}')
    def wd_lds(q, i):
        if 'wd' in C['abl']: return
        for f in range(4): q.vm(f's_add_u32 m0, s73, {WDL[LDSI.index(i)]}' if f == 0 else None, f'buffer_load_dwordx4 v{VWD}, s[12:15], {sm(i)} offen offset:{1024*f} sc1 lds', f'wd{i}')
    def a_dma(q, st):
        for i in range(7):
            pre = f's_add_u32 m0, s66, {st*IMG+1024*i}' if i in (0, 4) else None
            q.vm(pre, f'buffer_load_dwordx4 v{VA0 if i < 4 else VA1}, s[12:15], s{44+st} offen offset:{1024*(i&3)} sc1 lds', f'a{st}')
    r3 = k.r2; page(k, 3, 1)
    wq = Q(k)
    for i in REGI[0:4] + REGI[5:9] + REGI[4:5]: wd_reg(wq, i)
    for n in range(C['r3_drain']): su.cyc(C['su_drain']//(C['r3_drain']+1)); r3.emit(1)
    su.cyc(C['su_drain']//(C['r3_drain']+1))
    k.wait(vm='p2st'); k.e('s_barrier'); k.st('sigA')
    gsignal(k, 0, 2)
    if 0 in C['pollA']: mp_issue(k, 0, 0, 0)
    l = k.label('WS')
    k.e(f's_cmp_lg_u32 s29, 1\ns_cbranch_scc1 {l}\ns_mov_b32 s74, 1\ns_add_u32 s29, s28, 1024\ns_atomic_add s74, s[24:25], s28\ns_atomic_add s74, s[24:25], s29\n{l}:')
    assert C['wd_flag'] == 0
    def x1st():
        for hf in range(2): k.vm_op(f'buffer_store_dwordx4 {v(FB+8+4*hf,4)}, v3, s[12:15], s5 offen offset:{1024*hf} sc1')
    tr = w3_tr(k, R1N, 28); nl = 4*(28 - k.r2n)
    n = 0
    while len(r3):
        r3.emit(1); n += 1
        if n in C['pollA']: mp_issue(k, 0, C['pollA'].index(n), 0)
        if len(tr) > nl: tr.emit(min(4, len(tr)-nl))
        else: su.cyc(32)
    x1st()
    tr.emit(len(tr) - nl)
    su.flush()
    k.st('w3done')
    k.e(f's_add_u32 s6, s44, s60\ns_mul_i32 s7, s3, 5120\ns_add_u32 s7, s7, 8192\ns_mov_b32 m0, s60\ns_add_u32 s61, s7, s44')
    lds_pad(k, 3, 128); k.wait(lg='tr')
    mp_check(k, 0, 7, 0)
    k.wait(vm='w3_27'); k.e('s_barrier'); k.st('flagA')
    for i in range(2): k.vm_op(f'buffer_load_dwordx4 v3, s[12:15], s6 offen offset:{1024*i} sc1 lds', 'a0a')
    poll_issue(k, 's79', 's75', 3)
    k.e('s_mov_b32 m0, s7')
    for i in range(5):
        if i == 4: k.e('s_add_u32 m0, s7, 4096\ns_add_u32 s61, s61, 4096')
        k.vm_op(f'buffer_load_dwordx4 v3, s[12:15], s61 offen offset:{1024*(i&3)} sc1 lds', 'a0b'); tr.emit(4)
    a1q = Q(k); a_dma(a1q, 1); assert k.r2n - R1N >= 8 or not C['a1_pre']
    for i in range(C['a1_pre']): a1q.emit(1); tr.emit(4)
    tr.flush(); lds_pad(k, 3, RING+12); k.wait(lg='tr')
    poll_issue(k, 's39', 's75', 2); poll_issue(k, 's4', 's75', 1)
    vq = [Q(k) for _ in range(4)]
    vq[0].q += a1q.q
    while len(vq[0]) < 5: vq[0].add(lambda: None)
    for i in range(0, 7, 2):
        vq[0].q.insert(5 + i//2, lambda i=i: [k.vm_op(f'buffer_load_dwordx2 {v(128+2*j,2)}, v6, s[12:15], s37 offen offset:{512*j} sc1', 'st') for j in range(i, min(7, i+2))])
    a_dma(vq[0], 2)
    wx = [('vm', f'buffer_load_dwordx4 {v(WX+4*mt,4)}, v3, s[12:15], s38 offen offset:{1024*mt} sc1', 'wx') for mt in range(2)]
    assert C['s0_chk'] <= len(vq[0]); vq[0].q[C['s0_chk']:C['s0_chk']] = wx
    a_dma(vq[1], 3); wd_lds(vq[1], LDSI[0]); wd_lds(vq[1], LDSI[1]); wd_lds(vq[1], LDSI[2])
    for st in range(3): vq[st].q += wq.q[:C['wd_st'][st]]; wq.q = wq.q[C['wd_st'][st]:]
    assert len(vq[2]) >= C['sigB0'][1] or ABL
    wd_lds(vq[2], LDSI[3]); wd_lds(vq[2], LDSI[4])
    vq[3].q += wq.q
    vq[3].vm(f's_lshl_b32 s6, s35, 8\ns_add_u32 s6, s6, {WS_MOD+GB_N}\nv_lshlrev_b32 v14, 3, v4', 'buffer_load_dwordx2 v[14:15], v14, s[12:15], s6 offen sc1', 'gb')
    sq = Q(k)
    for i in range(1, 7): sq.lines(f'v_add_f32 v128, v128, v{128+2*i}\nv_add_f32 v129, v129, v{129+2*i}')
    sq.lines(f'''v_mov_b32 v130, v128
    v_mov_b32 v131, v129
    s_mul_i32 s6, s3, {IMG}
    v_add_u32 v138, s6, v3
    v_permlane32_swap_b32 v128, v130
    v_permlane32_swap_b32 v129, v131
    v_add_f32 v128, v128, v130
    v_add_f32 v129, v129, v131
    v_mul_f32 v128, {f2h(-1/448)}, v128
    v_mul_f32 v129, {f2h(1/448)}, v129
    v_fma_f32 v129, -v128, v128, v129
    v_max_f32 v129, 0, v129
    v_add_f32 v129, {f2h(1e-5)}, v129
    v_rsq_f32 v130, v129
    v_sqrt_f32 v131, v129
    v_cvt_pk_bf16_f32 v132, v128, v128
    v_mul_f32 v130, {f2h(-LOG2E)}, v130
    v_cvt_pk_bf16_f32 v136, v131, v131
    v_and_b32 v137, 0xffff0000, v132
    v_and_b32 v136, 0xffff0000, v136
    v_sub_f32 v137, v128, v137
    v_sub_f32 v136, v131, v136
    v_cmp_eq_u32 vcc, 0, v5
    v_cvt_pk_bf16_f32 v133, v137, v131
    v_cvt_pk_bf16_f32 v134, v131, v136
    v_mov_b32 v135, 0
    v_cndmask_b32 v132, 0, v132, vcc
    v_cndmask_b32 v133, 0, v133, vcc
    v_cndmask_b32 v134, 0, v134, vcc
    s_lshl_b32 s6, s3, 9
    v_add_u32 v137, s6, v8''')
    sq.add(('ds', 'ds_write_b128 v138, v[132:135] offset:28672', 'stw'), ('ds', 'ds_write_b64 v137, v[130:131]', 'stw'))
    L = 8; KS = 29 - L
    seq = [(st, ks) for st in range(4) for ks in range(29)]
    def breg(n): return v(RING+4*(n&3),4) if n < 87+KS else v(ACC0+4*(n-87-KS),4)
    def rd(n):
        st, ks = seq[n]
        base, off = ('v3', st*IMG) if st < 2 else ('v7', (st-2)*IMG)
        k.ds_op(f'ds_read_b128 {breg(n)}, {base} offset:{off+1024*ks}', f'b{n}')
    PD = 3
    page(k, 4, 1)
    k.wait(vm='a0a'); k.e('s_barrier'); k.st('P3go')
    for n in range(PD): rd(n)
    k.lq = lq = Q(k); k.nl = 0
    fill = Q(k); rate = 0; nv = [len(q) for q in vq]; assert max(nv) <= 28
    def mf(n, mt):
        st, ks = seq[n]; acc = ACC0 + 32*(st & 1)
        if ks < 28: A = a(8*ks+4*mt, 4); k.wait(lg=f'b{n}')
        else: A = v(WX+4*mt, 4); k.wait(vm='wx', lg=f'b{n}')
        c = '0' if ks == 0 else v(acc+16*mt, 16)
        k.e(f'v_mfma_f32_32x32x16_bf16 {v(acc+16*mt,16)}, {A}, {breg(n)}, {c}')
    def events(st, ks):
        e = (st, ks); bar = False
        if e == (0, C['s0_chk']): poll_check(k, 's39', 2, 's75', 2); poll_check(k, 's4', 28, 's75', 1); bar = True
        if e == (3, C['c0_ks']): mp_check(k, 0, 14, 0); bar = True
        if e == (3, C['c01_ks']): mp_check(k, 128, 7, 3); bar = True
        if e == C['sigB0']: k.wait(vm=['hh0', 'a3']); bar = True
        if e == C['sigB01']: k.wait(vm='hh1'); bar = True
        if e == (3, C['sigB2']): k.wait(vm='hh2'); bar = True
        if bar: k.e('s_barrier')
        return
    def events2(st, ks):
        e = (st, ks)
        if e == C['sigB0']: gsignal(k, 0, 1)
        if e == C['sigB01']: gsignal(k, 128, 1)
        if e == (3, C['sigB2']): gsignal(k, 256, 2); k.st('sigB2')
        if e in C['pollB01']: mp_issue(k, 128, C['pollB01'].index(e), 3)
        if e in C['pollB0']: mp_issue(k, 0, C['pollB0'].index(e), 0)
        if e == (3, C['c0_ks']):
            for b in range(3): lq.vm(f's_add_u32 m0, s71, {1024*b}', f'buffer_load_dwordx4 v127, s[12:15], s{67+b} offen sc1 lds', 'x1')
            hh(lq, C0)
        if e == (3, C['c01_ks']): k.st('B01ok'); hh(lq, C1)
    nrd = PD
    for n, (st, ks) in enumerate(seq[:87+KS]):
        k.st(f'k{st}_{ks}')
        s2, k2 = seq[nrd]
        if (s2, k2) == (0, 8): poll_check(k, 's79', 7, 's75', 3); k.wait(vm='a0b'); k.e('s_barrier')
        elif (s2, k2) == (0, 28):
            assert not len(sq); k.wait(vm='a1' if C['a2_bar'] else 'a2', lg='stw'); k.e('s_barrier')
            k.ds_op(f'ds_read_b64 {v(ET,2)}, v8', 'ks0')
        elif (s2, k2) == (2, 0) and C['a2_bar']: k.wait(vm='a2'); k.e('s_barrier')
        if nrd >= 87+KS: assert not len(fill)
        rd(nrd); nrd += 1
        if nrd > 87+KS: rd(nrd); nrd += 1
        if ks == (27 if st < 3 else 5) and st: k.ds_op(f'ds_read_b64 {v(ET+2*(st&1),2)}, v8 offset:{512*st}', f'ks{st}')
        if ks == 2 and st > 0:
            fill = epi3(k, ACC0 + 32*((st-1) & 1), st-1)
            rate = fill.cost() / (2*C['epi_span'][st-1])
        if (st, ks) == (0, C['st_ks']): k.wait(vm='st'); fill = sq; rate = sq.cost() / (2*(24 - C['st_ks']))
        events(st, ks)
        for mt in range(2):
            mf(n, mt)
            if mt == 0: events2(st, ks)
            if mt == 1 and (st, ks) == C['pg5']: page(k, 5, 2)
            if mt == 0 and len(vq[st]) > ((nv[st]*(27-ks))//28 if 0 < st < 3 else 0): vq[st].emit(1)
            elif mt == 0 and st == 3 and len(lq):
                assert (k.nl - 3)//2 < ks; lq.emit(1); k.nl += 1
            fill.cyc(rate)
        if ks == 28:
            assert not len(fill) and not len(vq[st]), (st, len(fill), len(vq[st]))
            k.st(f'S{st}')
    G = ACC0+32; U = G+16; K1 = ET+2; PK = ET+12; k.st('gph')
    for j in range(L):
        if nrd < len(seq): rd(nrd); nrd += 1
        if not j & 1: events(3, KS + j//2)
        mf(87+KS+j, 0)
        if not j & 1: events2(3, KS + j//2)
        if j & 1: lq.emit(1)
        if j < 7: k.e(f'v_mov_b64 {P(128+2*j)}, 0')
    sg = Q(k); k.st('uph')
    for qq in range(4):
        rr = range(G+4*qq, G+4*qq+4); pk = qq >= C['sg_pk']
        if pk: sg.add(*[f'v_pk_mul_f32 {P(r)}, {P(r)}, {P(K1)} op_sel_hi:[1,0]' for r in rr[::2]])
        else: sg.add(*[f'v_mul_f32 v{r}, v{r}, v{K1}' for r in rr])
        sg.add(*[f'v_exp_f32 v{r}, v{r}' for r in rr])
        if pk: sg.add(*[f'v_pk_fma_f32 {P(r)}, {P(r)}, {P(K1)}, {P(K1)} op_sel:[0,1,1] op_sel_hi:[1,1,1]' for r in rr[::2]])
        else: sg.add(*[f'v_fma_f32 v{r}, v{r}, v{K1+1}, v{K1+1}' for r in rr])
        sg.add(*[f'v_rcp_f32 v{r}, v{r}' for r in rr])
    for j in range(L):
        if not j & 1: events(3, KS + (L+j)//2)
        mf(87+KS+j, 1)
        if not j & 1: events2(3, KS + (L+j)//2)
        if j == 0: lq.emit(1); ldsread(k, LDSI[0])
        elif j == 1: lq.emit(1); k.e('s_nop 3')
        else:
            if j & 1 and C['u_ld']: lq.emit(1)
            sg.cyc(C['sg_rate'])
    k.st('S3')
    if -1 in C['p4_poll2']: mp_issue(k, 256, C['p4_poll2'].index(-1), 1, True)
    for n in range(C['e_ld']): sg.cyc(64); lq.emit(1)
    sg.flush()
    for hf in range(2):
        for r in range(8*hf, 8*hf+8, 2): k.e(f'v_pk_mul_f32 {P(G+r)}, {P(G+r)}, {P(U+r)}')
        for r in range(4*hf, 4*hf+4): k.e(f'v_cvt_pk_bf16_f32 v{PK+r}, v{G+2*r}, v{G+2*r+1}')
        k.vm_op(f'buffer_store_dwordx4 {v(PK+4*hf,4)}, v3, s[12:15], s43 offen offset:{1024*hf} sc1', 'hh3')
    k.st('epi3')
    if C['sigB2'] > 28: k.wait(vm='hh2'); k.e('s_barrier'); gsignal(k, 256, 2); k.st('sigB2')

RG = [RING, WX]
def ldsread(k, i):
    slot = LDSI.index(i)
    base, off = ('v11', WDL[slot]-WDL[0]) if slot < 2 else ('v10', WDL[slot])
    k.wait(vm=f'wd{i}')
    for f in range(4): k.ds_op(f'ds_read_b128 {v(RG[slot&1]+4*f,4)}, {base} offset:{off+1024*f}', f'wl{i}_{f}')
def P4(k, C):
    XRG = list(range(128, 142)) + [122, 123]
    lq = k.lq
    started = set(); order = ORDER; redw = Q(k); R = RING
    LT = 2; ml = []
    for n, (i, rl) in enumerate(order[:-LT]): ml += [(n, i, rl, a_, t) for a_ in range(2) for t in range(2)]
    for t in range(2): ml += [(len(order)-LT+j, i, rl, a_, t) for j, (i, rl) in enumerate(order[-LT:]) for a_ in range(2)]
    seen = set(); burst = C['p4_burst0']
    for m, (n, i, rl, a_, t) in enumerate(ml):
        if n not in seen:
            seen.add(n); k.st(f'n{n}')
            if n == C['p4_sig3']: k.wait(vm='hh3'); k.e('s_barrier'); gsignal(k, 384, 0); k.st('sigB3')
            if n in C['p4_poll2']: mp_issue(k, 256, C['p4_poll2'].index(n), 1, True)
            if n == 2: k.e('v_mov_b64 v[122:123], 0')
            if n == C['p4_c2']:
                mp_check(k, 256, 7, 1, True); k.e('s_barrier'); hh(lq, C2); k.st('B2ok')
            if n in C['p4_poll3']: mp_issue(k, 384, C['p4_poll3'].index(n), 2, True)
            if n == C['p4_c3']:
                mp_check(k, 384, 7, 2, True); k.e('s_barrier'); hh(lq, C3); k.st('B3ok'); lq.emit(C['p4_b0']); burst = C['p4_burst']
            if n == 12:
                k.wait(vm='x1')
                for tt in range(2):
                    for r in range(8): redw.add(('ds', f'ds_read_u16_d16_hi v{XRG[8*tt+r]}, v{12+tt} offset:{16*DELT[r]}', 'xr'))
            if i in LDSI and rl == 0 and LDSI.index(i) < 4:
                ldsread(k, LDSI[LDSI.index(i)+1])
                if LDSI.index(i) == 3: lds_pad(k, 4, 112)
        if m == 82:
            assert not len(redw)
            for rh in range(2):
                for tt in range(2):
                    for q in range(2): redw.add(('ds', f'ds_write_b128 v{125+rh}, {v(acc4(1,tt)+8*rh+4*q,4)} offset:{(2*tt+q)*1024}', 'rw'))
        if m == 100:
            assert not len(redw); k.wait(lg='rw'); k.e('s_barrier')
        f = 2*a_+t
        if i in LDSI: B = v(RG[LDSI.index(i)&1]+4*f, 4); k.wait(vm=f'h{i}_{rl}', lg=f'wl{i}_{f}')
        else: B = wdreg(i, f); k.wait(vm=f'h{i}_{rl}')
        assert not any(isinstance(x, tuple) and x[2] == f'h{i}_{rl}' for x in lq.q), (i, rl)
        c = v(acc4(rl,t),16) if (rl,t) in started else '0'
        started.add((rl,t))
        k.e(f'v_mfma_f32_32x32x16_bf16 {v(acc4(rl,t),16)}, {hreg(i,rl,a_)}, {B}, {c}')
        if m == C['pg6']: page(k, 6, 2)
        if burst > 0: lq.emit(1); burst -= 1
        elif not m & 1: lq.emit(1)
        if m & 1: redw.emit(1)
        if 100 <= m < 104:
            for sl in (1, 2): k.ds_op(f'ds_read_b128 {v(R+16*(sl-1)+4*(m-100),4)}, v1 offset:{sl*4096+(m-100)*1024}', f'r12_{m-100}')
        if 105 <= m < 109:
            k.wait(lg=f'r12_{m-105}')
            for r in range(4*(m-105), 4*(m-104)): k.e(f'v_add_f32 v{R+r}, v{R+r}, v{R+16+r}')
        if m >= 110: k.ds_op(f'ds_write_b128 v124, {v(acc4(0,0)+8+4*(m-110),4)} offset:{(m-110)*1024}')
    assert not len(redw) and not len(lq)
    k.st('P4mf')
    for r in range(0, 8, 2): k.e(f'v_pk_add_f32 {P(R+r)}, {P(R+r)}, {P(acc4(0,0)+r)}')
    for q in range(2): k.ds_op(f'ds_write_b128 v124, {v(acc4(0,1)+8+4*q,4)} offset:{(2+q)*1024}')
    for r in range(0, 8, 2): k.e(f'v_pk_add_f32 {P(R+8+r)}, {P(R+8+r)}, {P(acc4(0,1)+r)}')
    for t in range(2):
        for r in range(0, 8, 2): k.e(f'v_pk_fma_f32 {P(XRG[8*t+r])}, {P(R+8*t+r)}, v[14:15], {P(XRG[8*t+r])} op_sel:[0,{t},0] op_sel_hi:[1,{t},1]')
    k.wait(lg='all'); k.e('s_barrier')
    R0 = 144
    for q in range(2):
        for t in range(2): k.ds_op(f'ds_read_b128 {v(R0+8*t+4*q,4)}, v1 offset:{(2*t+q)*1024}', f'rr{q}')
    for r in range(8): k.e(f's_add_u32 s{48+r}, s72, {DELT[r]*64*896}')
    for q in range(2):
        k.wait(lg=f'rr{q}')
        for t in range(2):
            for r in (4*q, 4*q+2):
                x = XRG[8*t+r]
                k.e(f'v_pk_fma_f32 {P(x)}, {P(R0+8*t+r)}, v[14:15], {P(x)} op_sel:[0,{t},0] op_sel_hi:[1,{t},1]')
        for r in range(4*q, 4*q+4):
            k.e(f'v_cvt_pk_bf16_f32 v{XRG[r]}, v{XRG[r]}, v{XRG[8+r]}')
            k.vm_op(f'buffer_store_dword v{XRG[r]}, v0, s[8:11], s{48+r} offen {C["out_pol"]}')

S_W = 8192
def side(k, C):
    wq = side_head(k, False, C)
    side_tail(k, wq, C)
    k.e('s_endpgm\n' + ('.p2align 12\n' if PAGES else '') + 'SD_Z:'); k.reset_counts()
    side_head(k, True, C)
    k.e('s_branch SD_G3')

ROTB = int(os.environ.get('ROTB', 3))
W = 16; SL = 128; AC = 142; TS = 150; DF = 160; CS = 176
def side_head(k, Z, C):
    T = TS; tg = 'Z' if Z else 'B'
    k.e(f'''
    v_lshrrev_b32 v1, 6, v0
    v_and_b32 v2, 63, v0
    v_readfirstlane_b32 s3, v1
    v_lshrrev_b32 v6, 3, v2
    v_and_b32 v8, 7, v2
    s_mul_i32 s39, s3, 112
    v_add_u32 v7, s39, v6
    v_mul_u32_u24 v7, 5376, v7
    v_lshl_add_u32 v7, v8, 4, v7
    s_mul_i32 s62, s33, {8*ROTB if not Z else 0}
    v_add_u32 v9, s62, v2
    v_add_u32 v11, 56, v9
    v_subrev_u32 v10, 112, v9
    v_min_u32 v9, v9, v10
    v_subrev_u32 v10, 112, v11
    v_min_u32 v11, v11, v10
    v_add_lshl_u32 v9, v9, s39, 1    ; c voffsets
    v_add_lshl_u32 v11, v11, s39, 1
    s_mul_i32 s62, s62, 5376
    s_mov_b32 s10, {448*5376}
    s_mov_b32 s11, 0x20000
    s_mov_b32 s46, 896
    s_mov_b32 s47, 0x20000
    s_mov_b32 s14, {WS_END}
    s_mov_b32 s15, 0x20000
    ''')
    if Z: k.e('s_lshl_b32 s34, s33, 1\ns_add_u32 s35, s34, 1\ns_lshl_b32 s40, s34, 7\ns_lshl_b32 s41, s35, 7')
    else: k.e('s_add_u32 s40, s32, 7\ns_lshl_b32 s40, s40, 7\ns_add_u32 s41, s33, 1\ns_mul_i32 s41, s41, 896\ns_add_u32 s41, s41, s40')
    k.e(f'''
    v_lshlrev_b32 v3, 4, v2
    v_and_b32 v4, 31, v2
    v_lshrrev_b32 v5, 5, v2
    s_and_b32 s42, s3, 1             ; mat
    s_lshr_b32 s43, s3, 1
    s_mov_b32 s52, {f2h(1/448)}
    s_mov_b32 s53, {f2h(-448.0)}
    s_waitcnt lgkmcnt(0)
    s_mov_b32 s44, s22
    s_and_b32 s45, s23, 0xffff
    s_mov_b32 s8, s24
    s_and_b32 s9, s25, 0xffff
    s_mov_b32 s12, s30
    s_and_b32 s13, s31, 0xffff
    ''')
    if Z:
        k.e(f'''s_cmp_lg_u32 s2, {NSIDE-1}
    s_cbranch_scc1 SD_NZ
    v_lshlrev_b32 v10, 4, v0
    v_mov_b64 v[16:17], 0
    v_mov_b64 v[18:19], 0
    s_mov_b32 s6, {WS_FLAG}''')
        for i in range(10): k.e('buffer_store_dwordx4 v[16:19], v10, s[12:15], s6 offen sc1\ns_add_u32 s6, s6, 4096')
        k.e('''s_mov_b32 s74, 1
    s_waitcnt vmcnt(0)
    s_barrier
    s_cmp_lg_u32 s3, 0
    s_cbranch_scc1 SD_NZ
    s_atomic_or s74, s[28:29], 0x0
SD_NZ:''')
    k.stamp(1); k.st('sd0')
    k.vm_op('buffer_load_ushort v10, v9, s[44:47], 0 offen', 'c')
    k.vm_op('buffer_load_ushort v11, v11, s[44:47], 0 offen', 'c')
    lq = Q(k)
    for t in range(2):
        for i in range(14):
            wrap = (not Z) and any((ROTB*q + i) % 14 == 0 for q in range(4))
            pre = (f's_add_u32 s62, s62, {8*5376}\n' + (f's_cmp_eq_u32 s62, {112*5376}\ns_cselect_b32 s62, 0, s62\n' if wrap or i == 0 else '') if i or t else '') + f's_add_u32 s63, s62, s{40+t}'
            lq.vm(pre, f'buffer_load_dwordx4 {v(W+56*t+4*i,4)}, v7, s[8:11], s63 offen', f'w{t}_{i}')
    lq.emit(2)
    def ang0(dst, step, ef, df, ph):
        return f'''v_mul_f32 v{dst}, v{ef}, v{df}
        v_mul_f32 v{step}, s52, v{dst}
        v_floor_f32 v{step}, v{step}
        v_fma_f32 v{dst}, v{step}, s53, v{dst}
        v_fma_f32 v{dst}, v{dst}, s52, {ph}
        v_mul_f32 v{step}, s52, v{ef}'''
    f = Q(k)
    f.lines(f'''v_lshlrev_b32 v{T}, 3, v8
    v_add_u32 v{T}, v{T}, v6
    v_lshlrev_b32 v{T}, 2, v{T}
    s_lshl_b32 s57, s3, 8
    v_add_u32 v9, s57, v{T}
    v_lshlrev_b32 v241, 2, v2
    v_lshlrev_b32 v244, 2, v6
    v_mov_b32 v245, 0''')
    for i in range(0, 8, 2): f.add(f'v_mov_b64 {P(AC+i)}, 0')
    if not Z:
        f.lines(f'''
        s_lshl_b32 s6, s33, 2
        v_lshl_add_u32 v12, v5, 1, s6    ; 4kk+2h
        s_lshl_b32 s6, s32, 6
        v_add_u32 v{T}, s6, v12
        v_cvt_f32_u32 v{T}, v{T}         ; d0
        v_lshlrev_b32 v12, 2, v12
        s_lshl_b32 s6, s43, 5
        v_add_u32 v{T+1}, s6, v4
        v_cmp_eq_u32 vcc, 0, v{T+1}
        v_cvt_f32_u32 v{T+1}, v{T+1}''')
        f.add(f'''s_cmp_eq_u32 s42, 1
        s_cselect_b32 s6, {f2h(-0.25)}, 0
        s_cselect_b32 s7, {f2h(224.0)}, 0''')
        f.lines(f'''v_mov_b32 v{T+2}, s6
        v_mov_b32 v{T+3}, s7
        v_cndmask_b32 v{T+3}, v{T+1}, v{T+3}, vcc
        v_cndmask_b32 v{T+4}, v{T+2}, 0, vcc''')
        for jj in range(4):
            if jj: f.add(f'v_add_f32 v{T+1}, {f2h(64.0)}, v{T+1}')
            f.lines(ang0(T+5, T+6, T+3 if jj == 0 else T+1, T, f'v{T+4}' if jj == 0 else f'v{T+2}'))
            for n in range(8): f.add(f'v_fmamk_f32 v{CS+8*jj+n}, v{T+6}, {f2h(16*(n&3)+(n>>2))}, v{T+5}')
            for n in range(8): f.add(f'v_cos_f32 v{CS+8*jj+n}, v{CS+8*jj+n}')
        f.lines(f'''s_mul_i32 s58, s3, 28
        s_lshl_b32 s7, s32, 2
        s_add_u32 s58, s58, s7
        s_add_u32 s58, s58, s33
        s_lshl_b32 s58, s58, 10
        s_add_u32 s58, s58, {WS_CP}''')
    else:
        f.lines(f'v_cvt_f32_u32 v{T+1}, v0\ns_lshl_b32 s6, s33, 7\nv_cvt_f32_u32 v{T}, s6')
        for t in range(2):
            f.lines(ang0(13, 14, T+1, T, '0') + f'\nv_add_f32 v{T}, {f2h(64.0)}, v{T}')
            for n in range(0, 64, 4):
                for i in range(4): f.add(f'v_fmamk_f32 v{T+2+i}, v14, {f2h(n+i)}, v13')
                for i in range(4): f.add(f'v_cos_f32 v{T+2+i}, v{T+2+i}')
                for i in range(2): f.add(f'v_cvt_pk_bf16_f32 v{CS+32*t+n//2+i}, v{T+2+2*i}, v{T+3+2*i}')
    for n in range(8): f.cyc(56); lq.emit(1)
    f.cyc(100)
    k.stamp(2)
    k.wait(vm='c')
    for txt in ('v_lshlrev_b32 v#, 16, v#', f'v_mul_f32 v@, {f2h(-LOG2E)}, v#', 'v_exp_f32 v@, v@', 'v_add_f32 v@, 1.0, v@', 'v_rcp_f32 v@, v@', 'v_mul_f32 v#, v#, v@', 'v_cvt_pk_bf16_f32 v#, v#, v245'):
        for r in range(2): k.e(txt.replace('#', str(10+r)).replace('@', str(246+r)))
    for i in range(14): k.ds_op(f'ds_bpermute_b32 v{SL+i}, v244, v{10+i//7} offset:{32*(i%7)}', f'sl{i}')
    lq.emit(2)
    if Z:
        while len(lq): f.cyc(56); lq.emit(1)
    f.flush()
    k.stamp(3)
    def gemv(t, split=99, mid=None):
        if t:
            for i in range(0, 8, 2): k.e(f'v_mov_b64 {P(AC+i)}, 0')
        for i in range(14):
            if i == split: mid()
            k.wait(vm=f'w{t}_{i}', lg=f'sl{i}')
            if len(lq) > 14 or (t == 0 and i < C['sd_l1']): lq.emit(1)
            k.e(f'v_lshlrev_b32 v{T}, 16, v{SL+i}')
            for d in range(4): k.e(f'v_dot2_f32_bf16 v{AC+2*d}, v{W+56*t+4*i+d}, v{SL+i}, v{AC+2*d}')
            for d in range(4): k.e(f'v_dot2_f32_bf16 v{AC+2*d+1}, v{W+56*t+4*i+d}, v{T}, v{AC+2*d+1}')
        for i in range(4): k.e(f'v_permlane32_swap_b32 v{AC+i}, v{AC+4+i}')
        for i in range(0, 4, 2): k.e(f'v_pk_add_f32 {P(AC+i)}, {P(AC+i)}, {P(AC+4+i)}')
        for i in range(2): k.e(f'v_permlane16_swap_b32 v{AC+i}, v{AC+2+i}')
        k.e(f'''v_pk_add_f32 {P(AC)}, {P(AC)}, {P(AC+2)}
        v_add_f32_dpp v{AC+2}, v{AC}, v{AC} row_ror:8 row_mask:0xf bank_mask:0xf
        v_add_f32_dpp v{AC+2}, v{AC+1}, v{AC+1} row_ror:8 row_mask:0xf bank_mask:0xc''')
        k.ds_op(f'ds_write_b32 v9, v{AC+2} offset:{1024*t}')
    def gemv_fin(t):
        for i in range(2): k.ds_op(f'ds_read2st64_b32 {P(AC+2*i)}, v241 offset0:{4*t+2*i} offset1:{4*t+2*i+1}')
        k.wait(lg='all')
        k.e(f'''v_pk_add_f32 {P(AC)}, {P(AC)}, {P(AC+2)}
        v_add_f32 v{AC}, v{AC}, v{AC+1}
        v_cvt_pk_bf16_f32 v{AC}, v{AC}, v{AC}
        v_and_b32 v{AC}, 0xffff0000, v{AC}''')
        if not Z: k.e(f'''v_add_f32 v{AC+1}, 1.0, v{AC}
        v_cvt_pk_bf16_f32 v{AC+1}, v{AC+1}, v{AC+1}
        v_and_b32 v{AC+1}, 0xffff0000, v{AC+1}''')
    def zfin():
        for t in range(2):
            gemv_fin(t)
            if t: k.e(f's_cmp_eq_u32 s33, 3\ns_cselect_b32 s6, 0, -1\nv_and_b32 v{AC}, s6, v{AC}')
            else: k.e(f'v_lshl_add_u32 v{T}, v2, 1, s57\nv_mov_b32 v{T+1}, s57')
            k.e(f'ds_write_b16_d16_hi v{T}, v{AC} offset:{4096+128*t}')
        for i in range(16): k.ds_op(f'ds_read_b128 {v(W+4*i,4)}, v{T+1} offset:{4096+16*i}', f'z{i}')
        k.e(f'''v_mov_b64 {P(AC+2)}, 0
        v_mov_b64 {P(AC+4)}, 0
        s_lshl_b32 s6, s33, 10
        s_add_u32 s6, s6, {WS_ZF}
        v_lshlrev_b32 v{T}, 2, v0
        v_cmp_ge_u32 vcc, 224, v0
        v_mov_b32 v{T+2}, 0x7fff0000
        v_add_u32 v{T+1}, 896, v{T}
        v_cndmask_b32 v{T}, v{T+2}, v{T}, vcc
        v_subrev_u32 v{T+3}, 1, v0
        v_cmp_gt_u32 vcc, 31, v{T+3}
        v_cndmask_b32 v{T+1}, v{T+2}, v{T+1}, vcc''')
        for i in range(16):
            k.wait(lg=f'z{i}')
            for d in range(4): k.e(f'v_dot2_f32_bf16 v{AC+2+d}, v{CS+4*i+d}, v{W+4*i+d}, v{AC+2+d}')
        k.e(f'''v_pk_add_f32 {P(AC+2)}, {P(AC+2)}, {P(AC+4)}
        v_add_f32 v{AC+2}, v{AC+2}, v{AC+3}
        v_cvt_pk_bf16_f32 v{AC+3}, v{AC+2}, v{AC+2}
        v_and_b32 v{AC+3}, 0xffff0000, v{AC+3}
        v_sub_f32 v{AC+3}, v{AC+2}, v{AC+3}
        v_cvt_pk_bf16_f32 v{AC+2}, v{AC+2}, v{AC+3}''')
        k.vm_op(f'buffer_store_dword v{AC+2}, v{T}, s[12:15], s6 offen sc1')
        k.vm_op(f'buffer_store_dword v{AC+2}, v{T+1}, s[12:15], s6 offen sc1')
    gemv(0); k.stamp(4)
    if not Z:
        k.wait(lg='all'); k.e('s_barrier'); gemv_fin(0); k.stamp(5)
        for n in range(8): k.e(f'ds_bpermute_b32 v{DF+n}, v12, v{AC+1} offset:{4*(16*(n&3)+(n>>2))}')
        k.e('s_waitcnt lgkmcnt(0)')
        for jj in range(4):
            if jj == 3: k.e('s_cmp_eq_u32 s43, 1\ns_cselect_b32 s58, 0x7fff0000, s58')
            for n in range(0, 8, 2): k.e(f'v_pk_mul_f32 {P(CS+8*jj+n)}, {P(CS+8*jj+n)}, {P(DF+n)}')
            for r in range(4): k.e(f'v_cvt_pk_bf16_f32 v{W+4*jj+r}, v{CS+8*jj+2*r}, v{CS+8*jj+2*r+1}')
            k.vm_op(f'buffer_store_dwordx4 {v(W+4*jj,4)}, v3, s[12:15], s58 offen sc1')
            if jj < 3: k.e(f's_add_u32 s58, s58, {4*28*1024}')
    else: k.stamp(5)
    k.stamp(6); k.st('sd1'); ready_issue(k, 242, 243, 'cp'); lq.emit(C['sd_l1b'])
    k.e(f'''
    s_lshr_b32 s36, s32, 1
    s_lshl_b32 s6, s33, 2
    s_add_u32 s36, s36, s6           ; idx
    s_and_b32 s6, s32, 1
    s_mul_i32 s6, s6, 14
    s_add_u32 s37, s6, s36           ; 2m+half
    s_cmp_eq_u32 s42, 0
    s_cselect_b32 s48, s16, s18
    s_cselect_b32 s49, s17, s19
    s_and_b32 s49, s49, 0xffff
    s_cmp_lt_u32 s36, 14
    s_cselect_b32 s50, {448*3584}, 0
    s_mov_b32 s51, 0x20000
    v_bfe_u32 v{T}, v2, 4, 1
    v_lshlrev_b32 v{T}, 2, v{T}
    v_xor_b32 v{T}, v{T}, v8
    v_mul_u32_u24 v15, 3584, v6
    v_lshl_add_u32 v15, v{T}, 4, v15
    s_mul_i32 s54, s43, {224*3584}
    s_lshl_b32 s6, s37, 7
    s_add_u32 s54, s54, s6
    s_mul_i32 s55, s42, 57344
    s_mul_i32 s6, s43, 28672
    s_add_u32 s56, s55, s6
    s_add_u32 m0, s56, {S_W}
    s_lshl_b32 s58, s32, 7
    s_add_u32 s58, s58, {WS_FLAG+FL_BAR}
    ''' + bar_regs(248, 249))
    wq = Q(k)
    for i in range(28): wq.vm(f's_add_u32 m0, m0, 1024\ns_add_u32 s54, s54, {8*3584}' if i else None, 'buffer_load_dwordx4 v15, s[48:51], s54 offen lds', 'wst')
    if not Z: k.e(f'''
    s_lshl_b32 s6, s32, 6
    v_add_u32 v{DF}, s6, v2          ; col
    v_cmp_le_u32 vcc, 224, v{DF}
    v_sub_u32 v{DF+1}, 448, v{DF}
    v_cndmask_b32 v{DF+1}, v{DF}, v{DF+1}, vcc
    v_cndmask_b32 v{DF+2}, 0, 32, vcc
    v_cmp_eq_u32 vcc, 224, v{DF+1}
    v_cndmask_b32 v{DF+1}, v{DF+1}, 0, vcc
    v_lshrrev_b32 v{DF+3}, 5, v{DF+1}
    v_lshl_add_u32 v{DF+2}, v{DF+3}, 6, v{DF+2}
    v_and_b32 v{DF+1}, 31, v{DF+1}
    v_add_u32 v{DF+1}, v{DF+1}, v{DF+2} ; position
    s_mov_b32 s60, {WS_MOD+GA_P}
    s_cmp_eq_u32 s33, 3
    s_cselect_b64 vcc, -1, 0
    s_cselect_b32 s60, {WS_MOD+GB_N}, s60
    v_cndmask_b32 v{DF+1}, v{DF+1}, v{DF}, vcc
    s_mov_b32 s61, 0x7fff0000
    s_cmp_eq_u32 s33, 1
    s_cselect_b32 s61, {WS_MOD+SB_K}, s61
    s_cselect_b32 s60, 0x7fff0000, s60
    s_cmp_eq_u32 s33, 2
    s_cselect_b64 vcc, -1, 0
    s_cselect_b32 s60, {WS_MOD+CB1_P}, s60
    s_cselect_b32 s61, {WS_MOD+CB1_K}, s61
    v_lshlrev_b32 v{DF+1}, 2, v{DF+1}
    v_lshlrev_b32 v{DF}, 1, v{DF}
    s_mov_b32 s59, {WS_FLAG+FL_BAR+7*128}
    ''')
    def midsig():
        k.wait(vm='cp'); k.e('s_barrier'); bar_signal(k, 's58', 248, 249, 242, 243); k.stamp(7); k.st('sd2'); lq.flush()
    split = C['sd_split'] if not Z else 99
    gemv(1, split, midsig)
    k.wait(vm='cp', lg='all'); k.e('s_barrier')
    if Z: k.e('s_mov_b32 s58, 0x7fff0000')
    if split > 13: bar_signal(k, 's58', 248, 249, 242, 243); k.stamp(7); k.st('sd2')
    if Z:
        zfin()
        k.e(f's_add_u32 s24, s30, {WS_FLAG}\ns_addc_u32 s25, s31, 0')
        k.wait(vm='all'); k.e('s_barrier'); signal(k, FL_SIDE+14*128)
        return
    k.e('s_cmp_lg_u32 s3, 0\ns_cbranch_scc1 SD_G4')
    gemv_fin(1)
    k.e(f'''v_cndmask_b32 v{AC}, v{AC}, v{AC+1}, vcc
    buffer_store_dword v{AC}, v{DF+1}, s[12:15], s60 offen sc1
    buffer_store_short_d16_hi v{AC}, v{DF}, s[12:15], s61 offen sc1
    s_barrier
    s_add_u32 s24, s30, {WS_FLAG}
    s_addc_u32 s25, s31, 0
    s_mov_b32 s74, 1
    s_waitcnt vmcnt(0)''')
    for r in list(range(0, 16, 2)) + [16, 17]: k.e(f's_atomic_add s74, s[24:25], {FL_BAR+1024*r+7*128}')
    k.e('s_branch SD_G3\nSD_G4:\ns_barrier')
    return wq

def side_tail(k, wq, C):
    T = TS
    k.e('SD_G3:'); k.vm = []; k.lg = []
    k.stamp(8); k.st('sd3')
    k.e('s_cmp_lt_u32 s36, 14\ns_cbranch_scc0 KP_END')
    f = Q(k)
    f.lines(f'''
    s_lshr_b32 s24, s37, 1
    s_lshl_b32 s38, s24, 7
    s_add_u32 s38, s38, {FL_SIDE}
    s_and_b32 s39, s32, 1
    s_lshl_b32 s39, s39, 10
    s_add_u32 s39, s39, {FL_BAR+(NREP-2)*1024+7*128}''')
    f.add(f's_add_u32 s24, s30, {WS_FLAG}\ns_addc_u32 s25, s31, 0')
    f.lines(f'''v_bfe_u32 v{T}, v2, 2, 2
    v_lshl_add_u32 v{T+1}, v5, 3, v{T}
    v_lshlrev_b32 v8, 7, v{T+1}
    v_lshrrev_b32 v{T}, 1, v{T}
    v_xor_b32 v{T}, s43, v{T}
    v_lshl_add_u32 v8, v{T}, 6, v8
    v_bfe_u32 v{T}, v2, 4, 1
    v_lshl_add_u32 v8, v{T}, 5, v8
    v_and_b32 v{T}, 3, v2
    v_lshl_add_u32 v8, v{T}, 3, v8
    s_add_u32 s55, s55, {S_W}
    v_add_u32 v8, s55, v8
    v_and_b32 v9, 1, v2
    v_lshlrev_b32 v9, 10, v9
    v_lshl_add_u32 v9, v5, 4, v9
    s_lshl_b32 s19, s37, 2
    s_add_u32 s19, s19, s3
    s_lshl_b32 s19, s19, 10
    s_add_u32 s19, s19, {WS_WEXT}''')
    if C['sd_late']:
        f.flush(); poll_issue(k, 's39', 's0', 1); poll_check(k, 's39', 28, 's0', 1); k.e('s_barrier')
    while len(wq): wq.emit(1); f.emit(3)
    if not C['sd_late']: poll_issue(k, 's39', 's0', 1); poll_check(k, 's39', 28, 's0', 1)
    k.e(f's_cmp_lg_u32 s3, 1\ns_cbranch_scc1 SD_V\ns_mov_b32 m0, 4096\ns_mov_b32 s6, {WS_MOD+CB1_K}')
    k.e('buffer_load_dwordx4 v3, s[12:15], s6 offen sc1 lds\nbuffer_load_dwordx4 v3, s[12:15], s6 offen offset:1024 sc1 lds\nSD_V:')
    k.wait(vm='all'); k.e('s_barrier'); k.stamp(9); k.st('sd4')
    A2 = 240
    def rd(ks):
        for hf in range(2): k.ds_op(f'ds_read_b64_tr_b16 {a(4*ks+2*hf,2)}, v8 offset:{2048*ks+512*hf}')
        k.ds_op(f'ds_read_b128 {v(W+4*ks,4)}, v9 offset:{4096+32*ks}', f'a{ks}')
    for ks in range(3): rd(ks)
    for ks in range(28):
        k.wait(lg=f'a{ks}')
        c = '0' if ks == 0 else v(A2,16)
        k.e(f'v_mfma_f32_32x32x16_bf16 {v(A2,16)}, {v(W+4*ks,4)}, {a(4*ks,4)}, {c}')
        if ks+3 < 28: rd(ks+3)
    k.e(f'''
    v_cvt_pk_bf16_f32 v9, v{A2}, v{A2+1}
    v_lshlrev_b32 v12, 16, v9
    v_and_b32 v13, 0xffff0000, v9
    v_sub_f32 v12, v{A2}, v12
    v_sub_f32 v13, v{A2+1}, v13
    v_cmp_eq_u32 vcc, 0, v5
    v_cvt_pk_bf16_f32 v8, v{A2}, v12
    v_cvt_pk_bf16_f32 v10, v13, v{A2+1}
    v_mov_b32 v11, 0
    v_cndmask_b32 v8, 0, v8, vcc
    v_cndmask_b32 v9, 0, v9, vcc
    v_cndmask_b32 v10, 0, v10, vcc
    ''')
    k.vm_op('buffer_store_dwordx4 v[8:11], v3, s[12:15], s19 offen sc1')
    k.wait(vm='all'); k.e('s_barrier'); signal(k, 's38')
    if K.MARK and K.MARK.startswith('sd'): k.mark_spin()
    k.stamp_out(0, 11)
```

```python
from asmlib import *
from layout2 import *
import math, os
NSIDE = 32; NMAIN = 224; GRID = 256
LDS_ALL = 163840
RX = int(os.environ.get('RX', 0)); RSH = int(os.environ.get('RSH', 0)); NREP = 18; assert not RX and not RSH
SPIN_MAX = 1 << 20
DELT = [16*a + 8*(n >> 2) + (n & 3) for a in range(2) for n in range(8)]
LOG2E = math.log2(math.e)
CFG = dict(sd_pf=[], x_first=0, poll1b=2, poll1c=15, sd_bar=1, rdy=2, z_f0=700, z_pace=64, mp1=8, ld1=0, f3_post=0, r1sep=0, ssig=1, sd_split=0, sd_l1=0, p1_w3_t=0, sd_late=0, p1_fill0=40, p1_ld_pre=10, p1_fill=64, pf_ca=1, pf_mod=2, pf_a=2, c2_at=6, sd_l1b=8, wl_early=1, w3_at=8, cold_at=101, c2_bar=1, cq_from=2, cold_rate=3, cold_a=0, p1_f2=400, p1_fill_drain0=400, p1_w3_ld=0, p1_w3_a=0, p1_w3_b=0, p1_w3_c=0, p1_w3_drain=8, p1_fill_drain=32, p1_fill_drain2=0, poll1_at=11, f3_pre=0, p2_f3=16,
           p2_pre=4, p2_pre2=4, p2_rate=1, r2_from=2, r2_kk=(1,3), r2_sb=(2,4,6), r2_6=0, wd_from=5, pollW=4, r2_a=2, r2_b=2, r2_c=1, p2_modi=-1, p2_mod=4, r2_pre=1, su_drain=500, r3_drain=8, pollA=(0,5,9), wd_flag=0, pg5=(2,5), pg6='e', hrot=0, abl=(), a1_bar=1, wd_early=1, xp=0, tr_rate=1, su_ks=12, tr_late=1, su_go=200, x0=6, su_span=10, a1_pre=4, st_ks=25, wd_st=(6,0,15),
           w64=0, bar2=0, rr=0, flip=0, rrh=0, gap=(24,24,28), vmc=8, epi_span=(20,18,12), sigB0=(2,12), pollB0=((2,20),), c0_ks=6, sigB01=(3,6), pollB01=((3,10),(3,14)), c01_ks=22, sigB2=28, u_ld=1, e_ld=2, p4_burst0=4, sg_pk=2, sg_rate=28, p4_poll2=(-1,1,3), p4_c2=6, p4_sig3=6, p4_poll3=(6,8,10), p4_c3=14, p4_b0=0, p4_burst=0, out_pol='sc1')

ABL = set()
class Q:
    def __init__(self, k): self.k = k; self.q = []; self.debt = 0
    def add(self, *atoms): self.q.extend(atoms)
    def lines(self, txt): self.q.extend([l.strip() for l in txt.strip().split('\n') if l.strip()])
    def vm(self, pre, txt, tag=None):
        if pre: self.q.append(lambda: (self.k.e(pre), self.k.vm_op(txt, tag)))
        else: self.q.append(('vm', txt, tag))
    def emit(self, n=1):
        c = 0
        while self.q and c < n:
            x = self.q.pop(0)
            if isinstance(x, tuple):
                (self.k.vm_op if x[0] == 'vm' else self.k.ds_op)(x[1], x[2]); c += 1
            elif callable(x): x(); c += 1
            else: self.k.e(x); c += len(x.strip().split('\n'))
    def cyc(self, budget):
        self.debt += budget
        while self.q and self.debt > 0:
            n0 = len(self.k.L); self.emit(1)
            for l in self.k.L[n0:]:
                mn = l.split()[0]
                self.debt -= 8 if mn in TRANS else 12 if mn.startswith('buffer_') else 4
        if not self.q: self.debt = 0
    def cost(self):
        return sum((12 if isinstance(x, tuple) else 8 if x.split()[0] in TRANS else 4*len(x.strip().split('\n'))) for x in self.q)
    def flush(self): self.emit(1 << 30)
    def __len__(self): return len(self.q)

PAGES = int(os.environ.get('PAGES', 1))
def page(k, n, ret=None, touch=None):
    if not PAGES: return
    for w, p in (touch or {}).items(): k.e(f's_cmp_eq_u32 s3, {w}\ns_cbranch_scc1 PT_{p}')
    k.e(f's_branch PL_{n}\nPE_{n}:\n.p2align 12\nPT_{n}:')
    if ret is not None: k.e(f's_branch PL_{ret}\ns_nop 0')
    k.e(f'PL_{n}:')
def t1_txt(dst, g, b, tmp):
    return f'''s_sub_u32 {tmp}, 64, {g}
    s_cmp_eq_u32 {g}, 0
    s_cselect_b32 {tmp}, 32, {tmp}
    s_cmp_eq_u32 {b}, 0
    s_cselect_b32 {dst}, {g}, {tmp}'''
def srd_txt(d, base, size): return f's_mov_b32 s{d}, s{base}\ns_and_b32 s{d+1}, s{base+1}, 0xffff\ns_mov_b32 s{d+2}, {size}\ns_mov_b32 s{d+3}, 0x20000'
P = lambda r: v(r, 2)

def signal(k, off, wave=0):
    l = k.label('SIG')
    k.e(f's_cmp_lg_u32 s3, {wave}\ns_cbranch_scc1 {l}\ns_mov_b32 s74, 1\ns_atomic_add s74, s[24:25], {off}\n{l}:')
def poll_issue(k, off, r='s0', wave=0):
    l = k.label('PI')
    k.e(f's_cmp_lg_u32 s3, {wave}\ns_cbranch_scc1 {l}\ns_mov_b32 {r}, 0\ns_atomic_add {r}, s[24:25], {off} glc\n{l}:')
def poll_check(k, off, target, r='s0', wave=0):
    l, d = k.label('PC'), k.label('PD')
    k.e(f'''s_cmp_lg_u32 s3, {wave}
    s_cbranch_scc1 {d}
    s_mov_b32 s1, 0
{l}:
    s_waitcnt lgkmcnt(0)
    s_cmp_ge_u32 {r}, {target}
    s_cbranch_scc1 {d}
    s_add_u32 s1, s1, 1
    s_cmp_gt_u32 s1, {SPIN_MAX}
    s_cbranch_scc1 {d}
    s_mov_b32 {r}, 0
    s_atomic_add {r}, s[24:25], {off} glc
    s_branch {l}
{d}:''')
MP = [76, 77, 78]
def gsignal(k, off, wave):
    l = k.label('SIG')
    k.e(f's_cmp_lg_u32 s3, {wave}\ns_cbranch_scc1 {l}\ns_atomic_add s74, s[30:31], {off}\n{l}:')
def fladdr(off, other): return f's[24:25], s79 offset:{off}' if other else f's[30:31], {off}'
def mp_issue(k, off, j, wave, other=False):
    l = k.label('MI')
    k.e(f's_cmp_lg_u32 s3, {wave}\ns_cbranch_scc1 {l}\ns_mov_b32 s{MP[j]}, -1\ns_atomic_and s{MP[j]}, {fladdr(off, other)} glc\n{l}:')
def mp_check(k, off, target, wave, other=False, pace=4):
    if 'chk' in ABL and (off, target) != (0, 7): return
    l, d = k.label('MC'), k.label('MD'); r = [k.label('MR') for _ in MP]
    t = f's_cmp_lg_u32 s3, {wave}\ns_cbranch_scc1 {d}\ns_mov_b32 s1, -1\n{l}:\n'
    for p in MP: t += f's_cmp_ge_i32 s{p}, {target}\ns_cbranch_scc1 {d}\n'
    t += f's_add_u32 s1, s1, 1\ns_cmp_gt_u32 s1, {SPIN_MAX*4}\ns_cbranch_scc1 {d}\ns_and_b32 s0, s1, {pace-1}\ns_cbranch_scc1 {l}\n'
    for p, x in zip(MP, r): t += f's_cmp_lg_u32 s{p}, -1\ns_cbranch_scc1 {x}\n'
    t += f's_branch {l}\n'
    for p, x in zip(MP, r): t += f'{x}:\ns_cmp_ge_i32 s{p}, {target}\ns_cbranch_scc1 {d}\ns_mov_b32 s{p}, -1\ns_atomic_and s{p}, {fladdr(off, other)} glc\ns_branch {l}\n'
    k.e(t + f'{d}:')
def reread(k, soff, junk):
    k.e('s_mov_b64 exec, 0xffff'); k.vm_op(f'buffer_load_dword v{junk}, v2, s[12:15], {soff} offen sc1'); k.e('s_mov_b64 exec, -1')
def lds_pad(k, n, junk):
    for _ in range(n): k.ds_op(f'ds_read_b32 v{junk}, v6')
def ready_loop(k, vz, vr):
    l, g = k.label('BS'), k.label('BG')
    k.e(f'''s_cmp_lg_u32 s75, 0
    s_cbranch_scc1 {g}
    s_mov_b32 s1, 0
    v_mov_b32 v{vz}, 0
{l}:
    s_sleep 8
    global_load_dword v{vr}, v{vz}, s[28:29] sc1
    s_add_u32 s1, s1, 1
    s_waitcnt vmcnt(0)
    v_readfirstlane_b32 s75, v{vr}
    s_cmp_gt_u32 s1, {SPIN_MAX}
    s_cbranch_scc1 {g}
    s_cmp_lg_u32 s75, 0
    s_cbranch_scc0 {l}
{g}:''')

P2_X, P2_GC, P2_XI = 114688, 126976, 151552
IMG = 29696; KSP = 4*IMG
ACC0 = 16; RING = 80; WX = 96; ET = 104
REGI = [0, 1, 4, 5, 8, 9, 12, 13, 2]; LDSI = [3, 6, 7, 10, 11]
WDL = [120832, 120832+16384, 0, 16384, 32768]
X1L = 59392; RED = 71680; XR = 128
R1A = int(os.environ.get('R1A', 0)); R1N = int(os.environ.get('R1N', 10)); R1L = 65536 - 8192*R1A
ROTMASK = int(os.environ.get('ROT', 0))
TLB_OFF = 0x23000
VD, VM, VS, TB = 208, 209, 210, 211
def wdreg(i, f):
    n = REGI.index(i)*4 + f
    return v(144+4*n, 4) if n < 28 else a(224+4*(n-28), 4)
def acc4(rl, t): return ACC0 + 32*rl + 16*t

def gen_kp(cfg=None):
    C = dict(CFG); C.update(cfg or {}); ABL.clear(); ABL.update(C['abl'])
    k = K(); k.stamp(0); k.st('start')
    k.e(f'''
    s_load_dwordx16 s[16:31], s[0:1], 48
    s_getpc_b64 s[6:7]
KP_PC:
    s_lshr_b32 s33, s2, 3
    v_and_b32 v1, 15, v0
    v_lshl_add_u32 v1, s33, 4, v1
    v_lshlrev_b32 v1, 7, v1
    v_min_u32 v1, KP_LAST-KP_PC-4, v1
    global_load_dword a255, v1, s[6:7]
    s_andn2_b32 s32, s2, 24
    s_cmp_lt_u32 s32, 7
    s_cbranch_scc1 KP_SIDE
    s_cmp_eq_u32 s32, 7
    s_cbranch_scc1 SD_Z
    s_load_dwordx2 s[4:5], s[0:1], 0
    s_cmp_ge_u32 s2, {GRID}
    s_cbranch_scc1 KP_END
    v_lshrrev_b32 v1, 6, v0
    v_and_b32 v2, 63, v0
    v_readfirstlane_b32 s3, v1
    v_lshlrev_b32 v3, 4, v2          ; lane*16
    v_and_b32 v4, 31, v2             ; lane&31
    v_lshrrev_b32 v5, 5, v2          ; h
    s_mov_b32 s14, {WS_END}
    s_mov_b32 s15, 0x20000
    s_and_b32 s34, s2, 1             ; hi
    s_lshr_b32 s35, s2, 3
    s_sub_u32 s35, s35, {NSIDE//8}
    s_mul_i32 s33, s35, 37
    s_lshr_b32 s33, s33, 8           ; gl = q/7
    s_and_b32 s6, s2, 7
    s_lshl_b32 s6, s6, 1
    s_lshr_b32 s7, s33, 1
    s_add_u32 s6, s6, s7             ; pair p
    s_sub_u32 s7, 32, s6
    s_cmp_eq_u32 s6, 0
    s_cselect_b32 s7, 16, s7
    s_bitcmp1_b32 s33, 0
    s_cselect_b32 s36, s7, s6        ; g
    s_and_b32 s32, s2, 6
    s_lshl_b32 s32, s32, 1
    s_add_u32 s32, s32, s33          ; G
    s_mul_i32 s33, s33, 7
    s_sub_u32 s35, s35, s33          ; lo
    s_mul_i32 s33, s34, 7
    s_add_u32 s33, s33, s35          ; mem
    ''')
    f = P1(k, C)
    P2(k, C, f)
    P3(k, C)
    P4(k, C)
    k.st('end')
    if K.MARK and not K.MARK.startswith('sd'): k.mark_spin()
    k.stamp_out(0, len(K.NAMES or [])+2)
    k.e('s_endpgm\nPE_7:\n' + ('.p2align 12\n' if PAGES else '') + 'KP_SIDE:'); k.reset_counts(); side(k, C)
    k.e('KP_END:\ns_endpgm\nKP_LAST:')
    return k.L

def w3slot(n, lo): return n if lo == 0 or n < 14 else n + 2
def w3_dma(k, lo, hi, ldsbase):
    q = Q(k)
    for ks in range(lo, hi):
        j, mu, a_ = ks >> 2, (ks >> 1) & 1, ks & 1
        row = 32*j + 16*a_ if not mu else 433 - 32*j - 16*a_
        vo = VS if ks == 2 else VM if mu else VD
        so = '0' if ks in (0, 2) else 's61'
        pre = f's_add_u32 m0, s60, {ldsbase + w3slot(ks-lo, lo)*8192}\n' + (f's_mov_b32 s61, {row*3584}' if so != '0' else 's_nop 0')
        q.vm(pre, f'buffer_load_dwordx4 v{vo}, s[16:19], {so} offen lds')
        q.vm(None, f'buffer_load_dwordx4 v{vo}, s[20:23], {so} offen offset:1024 lds', f'w3_{ks}')
    return q
def w3_tr(k, lo, hi):
    q = Q(k)
    for ks in range(lo, hi):
        n = w3slot(ks - lo, lo)
        for mt in range(2):
            for hf in range(2):
                q.add(('ds', f'ds_read_b64_tr_b16 {a(8*ks+4*mt+2*hf,2)}, v{TB+(n>>3)} offset:{(n&7)*8192+mt*1024+hf*4096}', 'tr'))
    return q

def P1(k, C):
    X = 16; UP = 72; M = 88; T = 96; WL = 216; WO = 224; BF = 40; AC = 160
    k.e(f'''
    v_lshrrev_b32 v6, 3, v2
    s_lshl_b32 s6, s3, 4
    v_add_u32 v6, s6, v6
    v_and_b32 v7, 7, v2
    v_mul_u32_u24 v246, {32*896}, v6
    v_lshl_add_u32 v246, v7, 4, v246
    v_add_u32 v247, {8*32*896}, v246 ; set 1
    s_mul_i32 s39, s36, 896
    s_lshl_b32 s40, s35, 7
    s_mov_b32 s10, {2048*896}
    s_mov_b32 s11, 0x20000
    s_add_u32 s37, s39, s40
    s_add_u32 s38, s39, 896
    ''')
    f = Q(k)
    wa = f'''
    s_sub_u32 s6, s2, {NSIDE}
    s_mul_i32 s7, s6, 9363
    s_lshr_b32 s7, s7, 16
    s_mul_i32 s64, s7, 7
    s_sub_u32 s64, s6, s64           ; jt
    s_lshl_b32 s7, s7, 2
    s_add_u32 s7, s7, s3             ; rb
    s_min_u32 s65, s7, 111
    s_mul_i32 s65, s65, {16*896}
    s_lshl_b32 s67, s64, 7
    s_add_u32 s65, s65, s67
    v_mul_u32_u24 v{WO}, {4*896}, v5
    v_and_b32 v232, 15, v2
    v_bfe_u32 v{WO+1}, v2, 4, 1
    v_lshl_add_u32 v{WO}, v232, 3, v{WO}
    v_lshl_add_u32 v{WO}, v{WO+1}, 2, v{WO}
    v_lshlrev_b32 v232, 4, v232
    v_lshl_add_u32 v232, v5, 8, v232
    v_lshl_add_u32 v232, v{WO+1}, 11, v232     ; packed store voffset
    v_add_u32 v{WO}, s65, v{WO}
    v_add_u32 v{WO+1}, {8*896}, v{WO}'''
    wb = f'''
    s_lshl_b32 s64, s64, 2
    s_bfe_u32 s65, s7, 0x20001
    s_add_u32 s64, s64, s65
    s_mul_i32 s64, s64, 14
    s_lshr_b32 s65, s7, 3
    s_add_u32 s64, s64, s65
    s_lshl_b32 s64, s64, 3
    s_and_b32 s65, s7, 1
    s_add_u32 s64, s64, s65
    s_lshl_b32 s64, s64, 9
    s_add_u32 s64, s64, {WS_WDP}
    s_lshl_b32 s65, s32, 9
    s_sub_u32 s67, s67, s65
    s_add_u32 s67, s67, {FL_WD}
    s_cmp_lt_u32 s6, 196
    s_cselect_b32 s64, s64, 0x7fff0000
    s_cselect_b32 s69, s3, 0
    s_mov_b32 s65, 0x05040100
    s_mov_b32 s66, 0x07060302'''
    f.lines(f'''
    s_and_b32 s6, s2, 7
    s_mul_i32 s7, s3, 7
    s_add_u32 s7, s7, s6
    s_add_u32 s7, s7, 14
    s_lshl_b32 s43, s3, 1
    s_add_u32 s43, s43, 1''')
    f.add('s_cmp_eq_u32 s6, 7\ns_cselect_b32 s7, s43, s7')
    f.lines(f'''s_lshl_b32 s7, s7, 7
    s_lshr_b32 s6, s2, 3
    s_sub_u32 s6, s6, {NSIDE//8}
    s_mul_i32 s6, s6, {16*5376}
    s_add_u32 s7, s7, s6
    v_mul_u32_u24 v250, 5376, v2
    s_and_b32 s43, s2, 7
    s_add_u32 s43, s43, 7
    s_lshl_b32 s43, s43, 7
    s_add_u32 s43, s43, s6
    s_mul_i32 s6, s3, {4*5376}
    s_add_u32 s43, s43, s6
    v_add_u32 v249, s43, v250
    v_add_u32 v250, s7, v250
    s_lshr_b32 s7, s3, 1
    s_mul_i32 s7, s7, 1792
    v_lshl_add_u32 v252, v2, 7, s7
    s_sub_u32 s6, s2, {NSIDE}''')
    f.add(f'''s_add_u32 s7, s6, 224
    s_cmp_eq_u32 s6, 128
    s_cselect_b32 s7, 224, s7
    s_cmp_lt_u32 s6, 128
    s_cselect_b32 s7, s6, s7
    s_mul_i32 s7, s7, 3584
    v_add_u32 v251, s7, v252
    s_cmp_ge_u32 s6, 96
    s_addc_u32 s6, s6, 128
    s_mul_i32 s6, s6, 3584
    v_add_u32 v252, s6, v252''')
    npf = len(f)
    def pf_mod(): k.e('s_mov_b64 exec, 0xffff'); k.vm_op('global_load_dword a254, v250, s[0:1]'); k.e('s_mov_b64 exec, -1')
    def pf_ca(): k.e('s_mov_b64 exec, 15'); k.vm_op('global_load_dword a251, v249, s[24:25]'); k.e('s_mov_b64 exec, -1')
    def pf_w3(h): k.e('s_mov_b64 exec, 0x3fff'); k.vm_op(f'global_load_dword a{253-h}, v{251+h}, s[26:27]'); k.e('s_mov_b64 exec, -1')
    f.lines(f'''
    v_lshrrev_b32 v{T}, 4, v2
    v_bfe_u32 v{T+1}, v2, 2, 2
    v_xor_b32 v{T+1}, v{T+1}, v{T}
    v_and_b32 v{T+2}, 3, v2
    v_lshlrev_b32 v{T+2}, 4, v{T+2}
    v_lshl_add_u32 v{T+1}, v{T+1}, 6, v{T+2}
    s_lshl_b32 s6, s33, 8
    v_add_u32 v{T+1}, s6, v{T+1}
    s_lshl_b32 s6, s3, 2
    v_add_u32 v{T}, s6, v{T}         ; row in k-step
    v_mul_u32_u24 v{VD}, 3584, v{T}
    v_sub_u32 v{VM}, {15*3584}, v{VD}
    v_add_u32 v{VD}, v{VD}, v{T+1}
    v_add_u32 v{VM}, v{VM}, v{T+1}
    v_cmp_eq_u32 vcc, 0, v{T}
    v_mov_b32 v{T+1}, {433*3584}
    v_mov_b32 v{T+2}, {(433-224)*3584}
    v_cndmask_b32 v{T+1}, v{T+1}, v{T+2}, vcc
    v_add_u32 v{VS}, v{VM}, v{T+1}
    s_lshl_b32 s60, s3, 11
    ''')
    nearly = len(f)
    f.lines(f'''
    s_and_b32 s46, s3, 1
    s_lshl_b32 s46, s46, 4
    s_lshr_b32 s47, s3, 1            ; isI
    v_and_b32 v11, 15, v2
    v_add_u32 v12, s46, v11          ; g row
    v_cvt_f32_u32 v13, v12''')
    f.add(f'''s_cmp_eq_u32 s47, 1
    s_cselect_b32 s6, {f2h(0.25)}, 0
    s_cselect_b32 s7, {f2h(32.0)}, 0''')
    f.lines(f'''
    v_cmp_eq_u32 vcc, 0, v12
    v_mov_b32 v{T}, s6
    v_mov_b32 v{T+1}, s7
    v_cndmask_b32 v13, v13, v{T+1}, vcc
    v_cndmask_b32 v{T}, v{T}, 0, vcc
    v_mul_f32 v13, {f2h(1/64)}, v13
    v_lshrrev_b32 v14, 4, v2
    v_lshlrev_b32 v14, 2, v14
    v_cvt_f32_u32 v{T+1}, v14
    v_fma_f32 v{T}, v13, v{T+1}, v{T}
    ''')
    for ks in range(2):
        for n in range(8): f.add(f'v_fmamk_f32 v{T+2+n}, v13, {f2h(32*ks + 16*(n >> 2) + (n & 3))}, v{T}')
        for n in range(8): f.add(f'v_cos_f32 v{T+2+n}, v{T+2+n}')
        for r in range(4): f.add(f'v_cvt_pk_bf16_f32 v{M+4*ks+r}, v{T+2+2*r}, v{T+3+2*r}')
    f.lines(f'''
    v_mul_u32_u24 v6, 160, v6
    v_lshl_add_u32 v244, v7, 4, v6
    v_lshrrev_b32 v7, 2, v2
    v_mul_u32_u24 v7, 160, v7
    v_and_b32 v12, 3, v2
    v_lshl_add_u32 v245, v12, 3, v7
    v_add_u32 v14, s46, v14
    v_mul_u32_u24 v14, {2*32*896}, v14
    v_lshl_add_u32 v248, v11, 3, v14 ; U voffset
    s_mul_i32 s47, s47, {32*896}
    s_add_u32 s47, s47, s39
    s_add_u32 s47, s47, s40          ; U soffset
    s_mov_b32 s73, 0x3f803f80
    ''')
    for i in range(0, 8, 2): f.add(f'v_mov_b64 {P(T+i)}, 0')
    f.lines(wa); f.add(wb)
    f.lines(f's_mul_i32 s6, s3, {(NREP-2)//4*1024}\ns_add_u32 s40, s40, s6\ns_lshl_b32 s6, s32, 9\ns_sub_u32 s40, s40, s6\ns_add_u32 s40, s40, {FL_BAR}')
    f2 = P2_pre(k)
    ntot = len(f); f.emit(C['p1_fill0'])
    k.e('s_waitcnt lgkmcnt(0)\ns_mov_b32 s8, s4\ns_and_b32 s9, s5, 0xffff')
    xq = Q(k)
    for i in range(7):
        for st in range(2):
            xq.vm('s_add_u32 s37, s37, 128\ns_cmp_ge_u32 s37, s38\ns_cselect_b32 s37, s39, s37' if i and not st else None,
                  f'buffer_load_dwordx4 {v(X+28*st+4*i,4)}, v{246+st}, s[8:11], s37 offen', f'x{i}{st}')
    f.q[0:0] = [f's_mov_b64 s[82:83], s[20:21]\ns_mov_b32 s12, s30\ns_and_b32 s13, s31, 0xffff',
                f's_sub_u32 s20, s18, 1024\ns_subb_u32 s21, s19, 0\ns_and_b32 s21, s21, 0xffff\ns_mov_b32 s22, {448*3584+1024}\ns_mov_b32 s23, 0x20000\ns_and_b32 s17, s17, 0xffff\ns_mov_b32 s18, {448*3584}\ns_mov_b32 s19, 0x20000']
    assert ntot - len(f) + 2 >= npf
    if C['pf_ca'] == 1: pf_ca()
    xq.emit(2)
    if C['pf_ca'] == 2: pf_ca()
    k.e('s_mov_b64 s[0:1], s[24:25]')
    k.e('s_mov_b64 s[80:81], s[26:27]\ns_bitcmp1_b32 s3, 0\ns_cselect_b64 s[26:27], s[18:19], s[16:17]')
    if C['pf_mod'] == 1: pf_mod()
    if C['pf_a'] == 1: pf_w3(0)
    for n in range(C['p1_ld_pre']-2): f.cyc(C['p1_fill']); xq.emit(1)
    f.flush(); f2.cyc(C['p1_f2'])
    k.st('p1iss'); page(k, 1, None, {1: 2, 2: 3, 3: 4})
    wlq = [('vm', f'global_load_dword v{WL+n}, v{WO+(n>>2)}, s[82:83] offset:{896*(n&3)}', 'wl') for n in range(8)]
    assert C['wl_early']; cq = Q(k)
    c2 = Q(k)
    if C['pf_mod'] == 2: c2.add(pf_mod)
    if C['pf_a'] == 2: c2.add(lambda: pf_w3(0))
    cq.add(lambda: pf_w3(1))
    cq.q += wlq
    w3 = w3_dma(k, 0, R1N, R1L)
    for i in range(7):
        for st in range(2):
            k.wait(vm=f'x{i}{st}')
            if len(xq): xq.emit(1)
            elif len(c2) and 2*i+st >= C['c2_at']:
                if 2*i+st == C['c2_at'] and C['c2_bar']: k.e('s_barrier')
                c2.emit(1)
            elif len(cq) and 2*i+st >= C['cold_at']: cq.emit(C['cold_rate'])
            elif 2*i+st < C['w3_at']: pass
            elif 2*R1N - len(w3) < C['p1_w3_ld']: w3.emit(1)
            for d in range(4):
                r = X+28*st+4*i+d; t = T+4*st+(d & 1)
                k.e(f'v_dot2_f32_bf16 v{t}, v{r}, s73, v{t}\nv_dot2_f32_bf16 v{t+2}, v{r}, v{r}, v{t+2}')
            if i == 0:
                for d in range(4): k.e(f'v_lshlrev_b32 v{UP+8*st+2*d}, 16, v{X+28*st+d}\nv_and_b32 v{UP+8*st+2*d+1}, 0xffff0000, v{X+28*st+d}')
    assert not len(xq) and not len(c2)
    k.st('p1dat')
    for t in (T, T+2, T+4, T+6): k.e(f'v_add_f32 v{t}, v{t}, v{t+1}')
    for m in ('quad_perm:[1,0,3,2]', 'quad_perm:[2,3,0,1]', 'row_half_mirror'):
        for t in (T, T+2, T+4, T+6): k.e(f'v_add_f32_dpp v{t}, v{t}, v{t} {m} row_mask:0xf bank_mask:0xf')
    w3.emit(C['p1_w3_t'])
    for txt in (f'v_mul_f32 v#0, {f2h(-1/448)}, v#0', f'v_mul_f32 v#2, {f2h(1/448)}, v#2', 'v_fma_f32 v#2, -v#0, v#0, v#2', 'v_max_f32 v#2, 0, v#2',
                f'v_add_f32 v#2, {f2h(1e-5)}, v#2', 'v_rsq_f32 v#2, v#2', 'v_mul_f32 v#0, v#0, v#2'):
        for st in range(2): k.e(txt.replace('#0', str(T+4*st)).replace('#2', str(T+4*st+2)))
    w3.emit(C['p1_w3_t'])
    for st in range(2):
        t = T+4*st
        for d in range(4): k.e(f'v_pk_fma_f32 {P(UP+8*st+2*d)}, {P(UP+8*st+2*d)}, {P(t+2)}, {P(t)} op_sel_hi:[1,0,0]')
        for d in range(4): k.e(f'v_cvt_pk_bf16_f32 v{X+4*st+d}, v{UP+8*st+2*d}, v{UP+8*st+2*d+1}')
        k.ds_op(f'ds_write_b128 v244, {v(X+4*st,4)} offset:{8*160*st}')
    w3.emit(C['p1_w3_a']); cq.emit(C['cold_a'])
    k.wait(lg='all'); k.e('s_barrier'); k.st('p1bar')
    for ks in range(2):
        for t in range(4):
            for hf in range(2):
                k.ds_op(f'ds_read_b64_tr_b16 {v(BF+16*ks+4*t+2*hf,2)}, v245 offset:{ks*32*160+hf*16*160+t*32}', f'b{ks}{t}')
    w3.emit(C['p1_w3_b'])
    if C['cold_at'] < 99: cq.flush()
    for ks in range(2):
        for t in range(4):
            k.wait(lg=f'b{ks}{t}')
            c = '0' if ks == 0 else v(AC+4*t,4)
            k.e(f'v_mfma_f32_16x16x32_bf16 {v(AC+4*t,4)}, {v(M+4*ks,4)}, {v(BF+16*ks+4*t,4)}, {c}')
    w3.emit(C['p1_w3_c'])
    for r in range(4):
        k.e(f'v_cvt_pk_bf16_f32 v{X+2*r}, v{AC+r}, v{AC+4+r}\nv_cvt_pk_bf16_f32 v{X+2*r+1}, v{AC+8+r}, v{AC+12+r}')
        k.vm_op(f'buffer_store_dwordx2 {v(X+2*r,2)}, v248, s[12:15], s47 offen sc1', 'ust')
        if r < 3: k.e(f's_add_u32 s47, s47, {2*32*896}')
    k.st('p1st')
    if C['rdy'] == 0: k.e('s_load_dword s75, s[28:29], 0x0')
    assert C['ssig'] and len(w3) % 2 == 0
    n1 = R1N - len(w3)//2
    while not f2.xready(): f2.emit(1)
    for t in range(3):
        k.e(f's_add_u32 m0, s44, {1024*t}')
        k.vm_op(f'buffer_load_dwordx4 v{T2+10+t}, s[8:11], s43 offen lds', 'xi')
    if C['cold_at'] == 99: cq.flush()
    f2.q += k.f3.q; k.f3.q = []
    if C['rdy'] == 1: k.e('s_load_dword s75, s[28:29], 0x0')
    f2.cyc(C['p1_fill_drain0'])
    if C['rdy'] == 2: k.e('s_load_dword s75, s[28:29], 0x0')
    for n in range(C['p1_w3_drain']): w3.emit(1); f2.cyc(C['p1_fill_drain'])
    f2.cyc(C['p1_fill_drain2'])
    if C['cold_at'] == 100: cq.flush()
    k.wait(vm='ust', lg='all'); k.e('s_barrier'); k.st('sig1')
    ready_loop(k, UP+2, UP+3)
    for i in range(4): k.e(f's_atomic_add s74, s[24:25], s40 offset:{1024*i}')
    k.tr1 = tr = w3_tr(k, 0, R1N)
    k.st('w0')
    def xreads():
        k.st('w7'); k.wait(vm='xi'); k.st('w8')
        la, lb = k.label('P2xa'), k.label('P2xb')
        k.e(f's_cmp_eq_u32 s49, 0\ns_cbranch_scc0 {la}')
        for r in range(16): k.e(f'ds_read_u16_d16_hi v{XV+r}, v1 offset:{2*DELT[r]}')
        k.e(f's_branch {lb}\n{la}:')
        for r in range(16): k.ds_op(f'ds_read_u16_d16_hi v{XV+r}, v1 offset:{2*DELT[15-r]}', 'xv')
        k.e(f'{lb}:')
    if C['x_first']: xreads()
    k.st('w1')
    n = 0
    while len(w3):
        if n == C['poll1_at'] and not C['ld1']:
            if C['mp1']:
                l = k.label('B0')
                k.e(f's_mov_b32 s76, -1\ns_atomic_and s76, s[24:25], s53 glc\ns_mov_b32 s78, 36\ns_mov_b32 s4, 0\ns_cmp_eq_u32 s3, 3\ns_cbranch_scc1 {l}\ns_mov_b32 s78, -1\ns_atomic_and s78, s[24:25], s56 glc\n{l}:')
            else: k.e('s_cmp_eq_u32 s3, 3\ns_cselect_b32 s5, s53, s56\ns_mov_b32 s0, 0\ns_mov_b32 s4, 0\ns_atomic_add s0, s[24:25], s53 glc\ns_atomic_add s4, s[24:25], s5 glc')
        w3.emit(1); f2.cyc(24); n += 1
        if len(tr) > 4*(R1N-min(n1, R1A)): tr.emit(2)
    def pollB():
        l = k.label('B0'); k.e(f's_mov_b32 s77, -1\ns_atomic_and s77, s[24:25], s53 glc\ns_cmp_eq_u32 s3, 3\ns_cbranch_scc1 {l}\ns_mov_b32 s4, -1\ns_atomic_and s4, s[24:25], s56 glc\n{l}:')
    if C['cold_at'] == 101:
        k.e('s_barrier')
        if C['poll1b'] == 1: pollB()
        cq.flush()
        if C['poll1b'] == 2: pollB()
    k.cq = cq
    if n1 < R1A: k.wait(vm=f'w3_{R1A-1}'); k.e('s_barrier')
    tr.emit(len(tr) - 4*(R1N-R1A))
    if C['poll1_at'] >= n: k.e('s_cmp_eq_u32 s3, 3\ns_cselect_b32 s78, 36, 0\ns_mov_b32 s4, 0')
    k.st('r1iss')
    k.f3.q = f2.q; assert len(k.f3) <= k.nf3
    def wdst():
        k.wait(vm='wl')
        for t in range(2):
            for r in range(4): k.e(f'v_perm_b32 v{WO+4*t+r}, v{WL+2*r+1}, v{WL+2*r}, s{65+t}')
    k.wdq = Q(k)
    if C['cold_at'] < 99: wdst()
    else: k.wdq.add(wdst)
    for t in range(2): k.wdq.vm(None, f'buffer_store_dwordx4 {v(WO+4*t,4)}, v232, s[12:15], s64 offen offset:{1024*t} sc1', 'wdst')
    if C['ld1'] == 1: k.e('s_cmp_eq_u32 s3, 3\ns_cselect_b32 s5, s53, s56\ns_load_dword s0, s[24:25], s53 glc\ns_load_dword s4, s[24:25], s5 glc')
    if not C['x_first']: xreads()
    k.f3.cyc(C['f3_pre']); k.st('w6'); page(k, 2, 1, {2: 5, 3: 6})
    if C['ld1'] == 2: k.e('s_cmp_eq_u32 s3, 3\ns_cselect_b32 s5, s53, s56\ns_load_dword s0, s[24:25], s53 glc\ns_load_dword s4, s[24:25], s5 glc')
    k.f3.cyc(C['f3_post'])
    return None

ACC = 16; FB = 32; CC = 96; SG = 104; IC = 112; RS = 120; IS = 128; XV = 136; GA = 152; CB = 168; ZF = 184; ZB = 188; T2 = 192
def P2_pre(k):
    T = T2; f = Q(k)
    f.lines(f'''
    v_bfe_u32 v{TB}, v2, 2, 2
    v_xor_b32 v{T}, s3, v{TB}
    v_lshlrev_b32 v{TB}, 8, v{TB}
    v_lshl_add_u32 v{TB}, v{T}, 6, v{TB}
    v_bfe_u32 v{T}, v2, 4, 1
    v_lshl_add_u32 v{TB}, v{T}, 5, v{TB}
    v_and_b32 v{T}, 3, v2
    v_lshl_add_u32 v{TB}, v{T}, 3, v{TB}
    v_lshl_add_u32 v{TB}, v5, 11, v{TB}
    v_add_u32 v{TB}, {R1L}, v{TB}
    v_add_u32 v{TB+1}, 0x10000, v{TB}
    s_and_b32 s48, s3, 1
    s_lshr_b32 s49, s3, 1
    v_lshrrev_b32 v6, 3, v2
    s_lshl_b32 s6, s3, 4
    v_add_u32 v6, s6, v6
    v_mul_u32_u24 v6, 896, v6
    v_lshrrev_b32 v{T+8}, 4, v2
    v_xor_b32 v{T+8}, v{T+8}, v2
    v_and_b32 v{T+8}, 7, v{T+8}
    v_xor_b32 v{T+9}, 4, v{T+8}
    v_lshl_add_u32 v{T+9}, v{T+9}, 4, v6
    v_add_u32 v{T+9}, {8*896-1024}, v{T+9}
    v_lshl_add_u32 v{T+8}, v{T+8}, 4, v6
    s_mul_i32 s52, s36, 57344        ; U soffset
    s_mul_i32 s54, s49, 28
    s_lshl_b32 s55, s48, 1
    s_add_u32 s54, s54, s55
    s_lshl_b32 s54, s54, 10
    s_mul_i32 s55, s35, 57344
    s_add_u32 s55, s55, s54
    s_add_u32 s55, s55, {WS_CP}
    s_mov_b32 s70, s52
    s_mov_b32 s71, s55
    s_add_u32 s72, s52, 896
    s_and_b32 s6, s2, {ROTMASK}
    s_min_u32 s6, s6, 6
    s_lshl_b32 s6, s6, 7
    s_add_u32 s52, s52, s6
    s_lshl_b32 s6, s6, 5
    s_add_u32 s55, s55, s6
    s_lshl_b32 s24, s32, 9
    s_add_u32 s24, s24, {WS_FLAG}
    ''')
    f.add('s_add_u32 s24, s24, s30\ns_addc_u32 s25, s31, 0\ns_lshl_b32 s6, s34, 13\ns_add_u32 s30, s24, s6\ns_addc_u32 s31, s25, 0')
    f.lines('s_mov_b64 s[76:77], 0\ns_mov_b32 s78, 0\ns_xor_b32 s79, s34, 1\ns_lshl_b32 s79, s79, 13\ns_mov_b32 s74, 1')
    f.lines(('s_and_b32 s53, s2, 7' if RX else f's_lshr_b32 s53, s32, {RSH}') + f'''
    s_lshl_b32 s53, s53, 10
    s_lshl_b32 s6, s32, 9
    s_sub_u32 s53, s53, s6
    s_lshl_b32 s6, s3, 8
    s_add_u32 s53, s53, s6
    s_add_u32 s53, s53, {FL_BAR}     ; barrier counter offset (rel s[24:25]) of chunk 2w
    s_add_u32 s56, s53, 128
    s_and_b32 s6, s32, 1
    s_lshl_b32 s6, s6, 10
    s_sub_u32 s68, s56, s6           ; mod counter (even replicas only; used by wave 3)''')
    f.add(t1_txt('s50', 's36', 's48', 's6'))
    f.lines(f'''s_lshl_b32 s51, s35, 1
    s_add_u32 s51, s51, s49          ; beta
    s_lshl_b32 s41, s51, 7
    s_add_u32 s41, s41, {WS_MOD+GA_P}
    v_lshlrev_b32 v{T+13}, 2, v4
    v_lshl_add_u32 v{T+13}, v5, 11, v{T+13}
    s_lshl_b32 s42, s3, 8
    s_add_u32 s42, s42, {P2_GC}
    v_lshl_add_u32 v{T+14}, v5, 4, s42''')
    f.add(f'''s_lshl_b32 s7, s35, 6
    s_sub_u32 s6, 832, s7
    s_cmp_eq_u32 s49, 0
    s_cselect_b32 s7, s7, s6
    s_add_u32 s6, s7, 64
    s_cmp_eq_u32 s6, 896
    s_cselect_b32 s6, 448, s6
    s_cmp_eq_u32 s49, 0
    s_cselect_b32 s6, 0x7fff0000, s6
    v_mov_b32 v{T+3}, s6''')
    f.lines(f's_mul_i32 s43, s50, 896\ns_mul_i32 s44, s3, 3072\ns_add_u32 s44, s44, {P2_XI}')
    for t in range(3):
        f.lines(f'''v_add_u32 v{T}, {64*t}, v2
        v_mul_u32_u24 v{T+1}, 205, v{T}
        v_lshrrev_b32 v{T+1}, 10, v{T+1}
        v_mul_u32_u24 v{T+2}, 5, v{T+1}
        v_sub_u32 v{T}, v{T}, v{T+2}
        v_cmp_eq_u32 vcc, 4, v{T}
        v_lshl_add_u32 v{T}, v{T}, 4, s7
        v_mul_u32_u24 v{T+1}, {64*896}, v{T+1}
        v_cndmask_b32 v{T}, v{T}, v{T+3}, vcc
        v_add_u32 v{T+10+t}, v{T}, v{T+1}''')
    nx = len(f)
    U = GA; k.f3 = f3 = Q(k)
    f3.lines(f'''
    v_lshlrev_b32 v{U}, 6, v4
    v_add_u32 v{U}, s50, v{U}
    v_or_b32 v{U+1}, v{U}, v5
    v_cmp_eq_u32 vcc, 0, v{U+1}
    v_lshlrev_b32 v{TB+3}, 2, v4
    v_mov_b32 v{ZB}, 0x45004500
    v_cvt_f32_u32 v{U}, v{U}
    v_cndmask_b32 v{ZB}, 0, v{ZB}, vcc
    v_mov_b32 v{ZB+1}, v{ZB}
    v_mov_b32 v{ZB+2}, v{ZB}
    v_mov_b32 v{ZB+3}, v{ZB}
    v_mul_f32 v{U}, {f2h(1/2048)}, v{U}
    v_lshlrev_b32 v{U+1}, 2, v5
    v_cvt_f32_u32 v{U+1}, v{U+1}
    v_mul_f32 v{U+1}, v{U}, v{U+1}''')
    for r in range(8):
        f3.lines(f'''v_fmamk_f32 v{U+2}, v{U}, {f2h(DELT[2*r])}, v{U+1}
        v_fmamk_f32 v{U+3}, v{U}, {f2h(DELT[2*r+1])}, v{U+1}
        v_cos_f32 v{U+4}, v{U+2}
        v_cos_f32 v{U+5}, v{U+3}
        v_sin_f32 v{U+2}, v{U+2}
        v_sin_f32 v{U+3}, v{U+3}
        v_cvt_pk_bf16_f32 v{CC+r}, v{U+4}, v{U+5}
        v_cvt_pk_bf16_f32 v{SG+r}, v{U+2}, v{U+3}''')
    f3.add(f'''s_cmp_eq_u32 s36, 0
    s_cselect_b32 s73, 0, -1''')
    f3.lines(f'''v_mov_b32 v{U}, s73
    s_mul_i32 s73, s48, 0x80008000
    s_mul_i32 s38, s49, 0x80008000
    s_xor_b32 s37, s38, 0x80008000
    s_xor_b32 s38, s38, s73''')
    for r in range(8):
        f3.lines(f'''v_bitop3_b32 v{IC+r}, v{SG+r}, s73, v{U} bitop3:0x28
        v_xor_b32 v{RS+r}, s37, v{SG+r}
        v_bitop3_b32 v{IS+r}, v{CC+r}, s38, v{U} bitop3:0x28''')
    f.lines(f'''
    s_lshl_b32 s6, s48, 12
    v_lshlrev_b32 v9, 7, v4
    v_add_u32 v9, s6, v9
    v_bfe_u32 v{T+2}, v2, 1, 3
    v_xor_b32 v{T+2}, v{T+2}, v5
    v_lshl_add_u32 v9, v{T+2}, 4, v9
    v_xor_b32 v10, 32, v9
    v_xor_b32 v11, 64, v9
    v_xor_b32 v12, 96, v9
    s_lshl_b32 s6, s49, 12
    s_add_u32 s6, s6, 8192
    v_add_u32 v13, s6, v3
    ''')
    f.add('s_cmp_eq_u32 s36, 0\ns_cselect_b32 s46, s48, 0')
    f.lines(f's_add_u32 s6, s60, {P2_X}\nv_add_u32 v0, s6, v3')
    for r in range(0, 16, 2): f.add(f'v_mov_b64 {P(XV+r)}, 0')
    f.add(f'''s_cmp_eq_u32 s51, 1
    s_cselect_b32 s6, 4096, 0
    s_cselect_b32 s45, 7, s35
    v_mov_b32 v{T}, s6''')
    f.lines(f'''v_cmp_eq_u32 vcc, 0, v4
    v_add_u32 v15, {P2_X+4096}, v3
    v_mul_u32_u24 v1, 80, v4
    v_cndmask_b32 v{T}, 0, v{T}, vcc
    v_add_u32 v14, v0, v{T}
    v_lshl_add_u32 v7, v{T}, 1, v3
    v_add_u32 v7, {P2_X}, v7
    s_lshl_b32 s6, s46, 11
    v_add_u32 v6, s6, v7
    v_add_u32 v8, s6, v15
    v_add_u32 v1, s44, v1
    v_lshlrev_b32 v{T}, 3, v5
    v_sub_u32 v{T+1}, 10, v{T}
    s_lshl_b32 s45, s45, 7
    s_add_u32 s45, s45, {WS_ZF}''')
    f.add(f'''s_cmp_eq_u32 s49, 0
    s_cselect_b64 vcc, -1, 0
    v_cndmask_b32 v{T}, v{T+1}, v{T}, vcc
    v_add_u32 v1, v1, v{T}''')
    f.lines(f'''
    s_lshl_b32 s6, s32, 1
    s_add_u32 s6, s6, s34
    s_lshl_b32 s6, s6, 1
    s_add_u32 s6, s6, s48            ; rho
    s_mul_i32 s57, s6, 14
    s_add_u32 s57, s57, s51
    s_lshl_b32 s58, s57, 8
    s_add_u32 s58, s58, {WS_ST}
    s_lshl_b32 s57, s57, 11
    s_add_u32 s59, s57, {WS_X1}
    s_add_u32 s57, s57, {WS_X1C}
    v_lshlrev_b32 v{T+15}, 3, v4
    v_lshl_add_u32 v{T+15}, v5, 2, v{T+15}
    s_lshl_b32 s62, s34, 1
    s_xor_b32 s62, s62, s49
    s_or_b32 s63, s36, s48
    v_mov_b64 {P(T)}, 0
    v_mov_b64 {P(T+2)}, 0
    ''')
    k.nf3 = len(f3); tot = len(f); f.xready = lambda: tot - len(f) >= nx
    return f

def P2(k, C, _):
    T = T2
    if C['mp1']:
        for _ in range(8): k.ds_op('ds_read_b32 v16, v3')
        k.wait(lg='xv')
        l, d, sb = k.label('B1'), k.label('B1D'), k.label('B1B'); pace = C['mp1']
        def re(p, t, off):
            x = k.label('B1S')
            return f's_cmp_eq_u32 {t}, 36\ns_cbranch_scc1 {x}\ns_cmp_ge_u32 {p}, 36\ns_cbranch_scc1 {x}\ns_mov_b32 {p}, -1\ns_atomic_and {p}, s[24:25], {off} glc\n{x}:\n'
        k.e(f'''s_mov_b32 s1, {pace-1 if not C['poll1b'] else C['poll1c']}
{l}:
    s_max_i32 s6, s76, s77
    s_max_i32 s7, s78, s4
    s_min_i32 s0, s6, s7
    s_cmp_eq_u32 s0, 36
    s_cbranch_scc1 {d}
    s_add_u32 s1, s1, 1
    s_and_b32 s0, s1, {pace-1}
    s_cbranch_scc1 {l}
    s_cmp_gt_u32 s1, {SPIN_MAX*8}
    s_cbranch_scc1 {d}
    s_and_b32 s0, s1, {pace}
    s_cbranch_scc1 {sb}
''' + re('s76', 's6', 's53') + re('s78', 's7', 's56') + f's_branch {l}\n{sb}:\n' + re('s77', 's6', 's53') + re('s4', 's7', 's56') + f's_branch {l}\n{d}:\ns_mov_b32 m0, s60')
    else:
        l, d = k.label('B1'), k.label('B1D')
        k.e(f'''s_mov_b32 s1, 0
{l}:
    s_waitcnt lgkmcnt(0)
    s_add_u32 s0, s0, s4
    s_cmp_eq_u32 s0, 72
    s_cbranch_scc1 {d}
    s_add_u32 s1, s1, 1
    s_cmp_gt_u32 s1, {SPIN_MAX}
    s_cbranch_scc1 {d}
    s_mov_b32 s0, 0
    s_mov_b32 s4, 0
    s_atomic_add s0, s[24:25], s53 glc
    s_atomic_add s4, s[24:25], s5 glc
    s_branch {l}
{d}:
    s_mov_b32 m0, s60''')
    if not C['r1sep']: k.wait(vm=f'w3_{R1N-1}')
    k.e('s_barrier')
    k.lg = []; k.st('bar1')
    dq = Q(k)
    for c in range(7):
        dq.vm(f's_add_u32 m0, s60, {16384*c}\ns_add_u32 s52, s52, 128\ns_add_u32 s55, s55, 4096\ns_cmp_eq_u32 s52, s72\ns_cselect_b32 s52, s70, s52\ns_cselect_b32 s55, s71, s55' if c else None, f'buffer_load_dwordx4 v{T+8}, s[12:15], s52 offen sc1 lds')
        dq.vm(None, f'buffer_load_dwordx4 v{T+9}, s[12:15], s52 offen offset:1024 sc1 lds')
        dq.vm(f's_add_u32 m0, s60, {16384*c+8192}', 'buffer_load_dwordx4 v3, s[12:15], s55 offen sc1 lds')
        dq.vm(None, 'buffer_load_dwordx4 v3, s[12:15], s55 offen offset:1024 sc1 lds', f'ch{c}')
    gq = Q(k)
    gq.vm('s_mov_b32 m0, s42', f'buffer_load_dword v{T+13}, s[12:15], s41 offen sc1 lds', 'gc')
    k.r2 = r2 = w3_dma(k, R1N, 28, 0); NR2 = len(r2)
    tr = k.tr1
    dq.emit(C['p2_pre'])
    if C['r1sep']: k.wait(vm=f'w3_{R1N-1}'); k.e('s_barrier')
    f3 = k.f3
    while len(dq) > 12:
        if len(tr): tr.emit(4); f3.cyc(16)
        else: f3.cyc(40)
        dq.emit(1)
    assert not len(tr)
    if C['mp1']:
        for _ in range(4): k.ds_op('ds_read_b32 v16, v3')
    k.wait(lg='tr'); k.e('s_barrier')
    if C['p2_modi'] < 0: poll_issue(k, 's68', 's47', 3)
    for n in range(2):
        dq.emit(1); k.ds_op(f'ds_write_b128 v0, {v(T,4)} offset:{1024*n}'); k.e(f'v_subrev_u32 v{TB+n}, {R1L}, v{TB+n}')
    k.e(f'v_add_u32 v{TB+2}, 0x10000, v{TB+1}')
    for n in range(C['p2_pre2']-2): f3.cyc(40); dq.emit(1)
    def rdk(c, kk):
        b = FB + 32*(c & 1)
        k.ds_op(f'ds_read_b128 {v(b+8*kk,4)}, v{9+kk} offset:{16384*(c&3)}')
        k.ds_op(f'ds_read_b128 {v(b+8*kk+4,4)}, v13 offset:{16384*(c&3)+1024*kk}', f'r{c}{kk}')
        if c == 3: k.e(f'v_add_u32 v{9+kk}, 0x10000, v{9+kk}' + ('\nv_add_u32 v13, 0x10000, v13' if kk == 3 else ''))
    def mfk(c, kk):
        b = FB + 32*(c & 1)
        k.wait(lg=f'r{c}{kk}')
        cc = '0' if c == 0 and kk == 0 else v(ACC,16)
        k.e(f'v_mfma_f32_32x32x16_bf16 {v(ACC,16)}, {v(b+8*kk,4)}, {v(b+8*kk+4,4)}, {cc}')
    k.st('issued')
    zl = [k.label('ZA'), k.label('ZB'), k.label('ZC'), k.label('ZD'), k.label('ZE')]
    for c in range(7):
        if c == C['p2_modi']: poll_issue(k, 's68', 's47', 3)
        if c == C['p2_mod']: poll_check(k, 's68', 28, 's47', 3)
        k.wait(vm=f'ch{c}'); k.e('s_barrier'); k.st(f'c{c}')
        for kk in range(4):
            if c: mfk(c-1, kk)
            f3.cyc(C['p2_f3'])
            if len(dq): dq.emit(C['p2_rate'])
            elif len(k.cq) and c >= C['cq_from']: k.cq.emit(3)
            elif len(k.wdq) and c >= C['wd_from']: k.wdq.emit(1)
            else:
                if c == C['p2_mod'] and len(r2) % 2 == 0: gq.flush()
                if c >= C['r2_from'] and kk in C['r2_kk'] and NR2 - len(r2) < 4*(c-1): r2.emit(1)
            rdk(c, kk)
        if c == 2:
            k.e(f's_cmp_lg_u32 s63, 0\ns_cbranch_scc1 {zl[0]}\ns_mov_b32 s0, 0\ns_atomic_add s0, s[24:25], {FL_Z} glc\n{zl[0]}:')
    assert not len(dq) and not len(gq) and not len(tr) and not len(f3) and C['p2_mod'] >= 3
    k.st('A6')
    k.e(f'''s_cmp_lg_u32 s63, 0
    s_cbranch_scc1 {zl[1]}
    s_mov_b32 s1, 0
{zl[2]}:
    s_waitcnt lgkmcnt(0)
    s_cmp_eq_u32 s0, 4
    s_cbranch_scc1 {zl[3]}
    s_add_u32 s1, s1, 1
    s_cmp_gt_u32 s1, {SPIN_MAX}
    s_cbranch_scc1 {zl[3]}
    s_mov_b32 s0, 0
    s_atomic_add s0, s[24:25], {FL_Z} glc
    s_branch {zl[2]}
{zl[3]}:''')
    for i in range(4): k.vm_op(f'buffer_load_dword v{ZF+i}, v{TB+3}, s[12:15], s45 offen offset:{1024*i} sc1', 'zf', maybe=True)
    k.e(f'{zl[1]}:')
    for kk in range(4):
        mfk(6, kk)
        if len(k.wdq): k.wdq.emit(1)
        elif C['r2_6']: r2.emit(1)
    r2.emit(C['r2_a'])
    for hf in range(2):
        for r in range(4*hf, 4*hf+4): k.e(f'v_cvt_pk_bf16_f32 v{T+r}, v{ACC+2*r}, v{ACC+2*r+1}')
        k.ds_op(f'ds_write_b128 v14, {v(T+4*hf,4)} offset:{1024*hf}')
    r2.emit(C['r2_b']); assert NR2 - len(r2) <= 20
    assert not len(k.wdq); k.wait(vm='wdst' if C['wd_early'] else None, lg='all'); k.e('s_barrier'); k.st('Xbar')
    kinds = [('v6', 0, CC), ('v7', 2048, IC), ('v8', 0, RS), ('v15', 2048, IS)]
    rb = [(f'ds_read_b128 {v(FB+8*i+4*a_,4)}, {ad} offset:{off+1024*a_}', f'x{i}{a_}') for i, (ad, off, _) in enumerate(kinds) for a_ in range(2)]
    for x in rb[:4]: k.ds_op(*x)
    r2.emit(C['r2_pre'])
    for n in range(8):
        i, a_ = n >> 1, n & 1
        k.wait(lg=f'x{i}{a_}')
        k.e(f'v_mfma_f32_32x32x16_bf16 {v(ACC,16)}, {v(FB+8*i+4*a_,4)}, {v(kinds[i][2]+4*a_,4)}, {v(ACC,16) if n else 0}')
        if n < 2: k.ds_op(*rb[4+2*n]); k.ds_op(*rb[5+2*n])
        elif n in C['r2_sb']: r2.emit(1)
        if 3 <= n < 7:
            k.wait(vm='gc'); kk = n-3
            k.ds_op(f'ds_read_b128 {v(GA+4*kk,4)}, v{T+14} offset:{32*kk}'); k.ds_op(f'ds_read_b128 {v(CB+4*kk,4)}, v{T+14} offset:{128+32*kk}', 'gcr')
    r2.emit(C['r2_c']); k.r2n = R1N + (NR2 - len(r2))//2; assert k.r2n >= R1N + 4
    k.e(f's_cmp_lg_u32 s63, 0\ns_cbranch_scc1 {zl[4]}')
    sv = list(k.vm); k.wait(vm='zf'); k.vm = sv
    k.e(f'v_mfma_f32_32x32x16_bf16 {v(ACC,16)}, {v(ZF,4)}, {v(ZB,4)}, {v(ACC,16)}\n{zl[4]}:')
    k.wait(lg='gcr')
    if C['wd_early']:
        l = k.label('WS')
        k.e(f's_cmp_lg_u32 s69, 1\ns_cbranch_scc1 {l}\ns_atomic_add s74, s[24:25], s67\ns_atomic_add s74, s[24:25], s67 offset:1024\n{l}:')
    for hf in range(2):
        R = range(8*hf, 8*hf+8, 2)
        for r in R: k.e(f'v_pk_fma_f32 {P(XV+r)}, {P(ACC+r)}, {P(GA+r)}, {P(XV+r)}')
        for r in R: k.e(f'v_pk_mul_f32 {P(CB+r)}, {P(CB+r)}, {P(XV+r)}')
        for r in range(4*hf, 4*hf+4): k.e(f'v_cvt_pk_bf16_f32 v{FB+r}, v{CB+2*r}, v{CB+2*r+1}')
        k.vm_op(f'buffer_store_dwordx4 {v(FB+4*hf,4)}, v3, s[12:15], s57 offen offset:{1024*hf} sc1')
    k.e(f'v_pk_add_f32 {P(T)}, {P(XV)}, {P(XV+2)}\nv_pk_mul_f32 {P(T+2)}, {P(XV)}, {P(XV)}')
    for r in range(2, 16, 2):
        if r >= 4: k.e(f'v_pk_add_f32 {P(T)}, {P(T)}, {P(XV+r)}')
        k.e(f'v_pk_fma_f32 {P(T+2)}, {P(XV+r)}, {P(XV+r)}, {P(T+2)}')
    k.e(f'''v_add_f32 v{T}, v{T}, v{T+1}
    v_add_f32 v{T+1}, v{T+2}, v{T+3}
    v_cvt_pk_bf16_f32 v116, v{XV}, v{XV+1}
    v_cvt_pk_bf16_f32 v117, v{XV+2}, v{XV+3}
    v_permlane32_swap_b32 v{T}, v{T+1}
    v_add_f32 v{T}, v{T}, v{T+1}''')
    k.vm_op(f'buffer_store_dword v{T}, v{T+15}, s[12:15], s58 offen sc1', 'p2st')
    k.st('p2st')
    for r in range(2, 8): k.e(f'v_cvt_pk_bf16_f32 v{116+r}, v{XV+2*r}, v{XV+2*r+1}')
    k.e(f's_mov_b64 s[76:77], 0\ns_mov_b32 s78, 0\ns_mov_b32 s5, s59\ns_lshl_b32 s4, s34, 3\ns_add_u32 s4, s4, s35\ns_lshl_b32 s4, s4, 7\ns_lshl_b32 s6, s32, 9\ns_sub_u32 s4, s4, s6\ns_add_u32 s4, s4, {FL_WD}\ns_mov_b32 s28, s67\ns_mov_b32 s29, s69')

SM = 48
def sm(i): return f's{SM+i}' if i < 12 else f's{64+i-12}'
VH0, VH1, VWD, VA0, VA1 = 9, 142, 143, 14, 15
def setup34(k, C):
    q = Q(k); T = ET
    q.lines('s_and_b32 s69, s35, 1\ns_lshl_b32 s6, s34, 1\ns_or_b32 s69, s69, s6')
    q.lines(f'''
    s_lshl_b32 s39, s33, 7
    s_lshl_b32 s6, s32, 9
    s_sub_u32 s39, s39, s6
    s_add_u32 s39, s39, {FL_SIDE}
    s_lshl_b32 s7, s32, 2''')
    for st in range(4):
        q.lines(f'''s_xor_b32 s6, s69, {st}
        s_add_u32 s6, s6, s7             ; rho
        s_mul_i32 s{44+st}, s6, {28*1024}
        s_add_u32 s{44+st}, s{44+st}, {WS_X1C}
        s_and_b32 s{40+st}, s6, 1
        s_lshr_b32 s6, s6, 1
        s_lshl_b32 s6, s6, 2
        s_add_u32 s6, s6, s3
        s_mul_i32 s6, s6, 14
        s_add_u32 s6, s6, s33
        s_lshl_b32 s6, s6, 1
        s_add_u32 s6, s6, s{40+st}
        s_lshl_b32 s6, s6, 11
        s_add_u32 s{40+st}, s6, {WS_HH}''')
    q.lines(f'''
    s_xor_b32 s6, s69, s3
    s_add_u32 s6, s6, s7
    s_mul_i32 s37, s6, 3584
    s_add_u32 s37, s37, {WS_ST}
    s_lshl_b32 s6, s33, 2
    s_add_u32 s6, s6, s3
    s_lshl_b32 s38, s6, 11
    s_add_u32 s38, s38, {WS_WEXT}
    v_lshlrev_b32 v6, 3, v2
    v_add_u32 v7, {2*IMG}, v3
    v_add_u32 v8, {KSP}, v6
    s_mul_i32 s66, s3, 7168
    v_add_u32 v{VA0}, s66, v3
    v_add_u32 v{VA1}, 4096, v{VA0}
    s_xor_b32 s83, s34, {C['flip']}
    s_xor_b32 s6, s62, {2*C['flip']}
    s_add_u32 s70, s7, s6''')
    q.add('''s_cmp_eq_u32 s3, 2
    s_cselect_b32 s4, s39, s4
    s_cselect_b32 s39, 2, 28
    s_cmp_eq_u32 s3, 3
    s_cselect_b32 s4, s79, s4
    s_cselect_b32 s39, 7, s39''')
    q1 = q; q = Q(k)
    q.lines(f'''s_lshr_b32 s63, s3, 1            ; sw
    s_and_b32 s72, s3, 1
    s_lshl_b32 s6, s35, 2
    s_add_u32 s6, s6, s72
    s_mul_i32 s6, s6, {56*1024}
    s_add_u32 s6, s6, {WS_WDP}
    v_add_u32 v{VWD}, s6, v3
    s_mul_i32 s71, s83, 7
    s_sub_u32 s67, 8, s71
    s_sub_u32 s67, s67, s63
    s_add_u32 s68, s71, s63
    s_lshl_b32 s67, s67, 12
    s_lshl_b32 s68, s68, 12
    s_lshl_b32 s71, s71, 12''')
    q.add('s_cmp_eq_u32 s63, 0\ns_cselect_b32 s71, s71, s67')
    for i in range(14):
        base = 68 if i & 2 else 67 if i < 12 else 71
        q.add(f's_add_u32 {sm(i)}, s{base}, {(2*(i >> 2) + 28*(i & 1))*4096}')
    q.lines(f'''
    s_lshl_b32 s6, s32, 1
    s_add_u32 s6, s6, s83
    s_lshl_b32 s6, s6, 2
    s_add_u32 s6, s6, s72
    s_mul_i32 s6, s6, {56*1024}
    s_add_u32 s6, s6, {WS_HH}
    s_lshl_b32 s67, s63, 11
    s_add_u32 s6, s6, s67
    s_lshl_b32 s67, s72, 8
    s_add_u32 s6, s6, s67
    v_and_b32 v4, 15, v2
    v_lshlrev_b32 v127, 4, v4
    v_lshrrev_b32 v{T+4}, 4, v2
    v_lshl_add_u32 v127, v{T+4}, 9, v127
    v_add_u32 v{VH0}, s6, v127
    v_xor_b32 v{VH1}, 2048, v{VH0}
    s_lshl_b32 s73, s3, 12
    v_add_u32 v10, s73, v3
    v_add_u32 v11, {WDL[0]}, v10
    s_mul_i32 s70, s70, {28*1024}
    s_add_u32 s70, s70, s67
    s_add_u32 s70, s70, {WS_X1}''')
    q.add(f'''s_lshl_b32 s6, s35, 2
    s_sub_u32 s7, 29, s6
    s_cmp_le_u32 s35, 3
    s_cselect_b32 s67, s6, s7
    s_add_u32 s68, s6, 2
    s_sub_u32 s69, s7, 2
    s_cmp_le_u32 s35, 2
    s_cselect_b32 s68, s68, s69
    s_sub_u32 s69, s7, 4
    s_cmp_le_u32 s35, 3
    s_cselect_b32 s69, 1, s69
    s_cmp_eq_u32 s35, 3
    s_cselect_b32 s68, 13, s68''')
    q.lines(f'''v_add_u32 v127, s70, v127
    s_mul_i32 s71, s3, 3072
    s_add_u32 s71, s71, {X1L}''')
    for t in range(2):
        q.lines(f'''s_lshl_b32 s6, s35, 6
        s_add_u32 s6, s6, {t}
        v_lshl_add_u32 v{T}, v4, 2, s6
        v_cmp_le_u32 vcc, 224, v{T}
        v_sub_u32 v{T+1}, 448, v{T}
        v_cndmask_b32 v{T+1}, v{T}, v{T+1}, vcc
        v_cndmask_b32 v{T+2}, 0, 1, vcc
        v_cmp_eq_u32 vcc, 224, v{T+1}
        v_cndmask_b32 v{T+1}, v{T+1}, 0, vcc
        v_lshrrev_b32 v{T+3}, 5, v{T+1}
        v_lshl_add_u32 v{T+3}, v{T+3}, 1, v{T+2}
        v_cmp_eq_u32 vcc, s68, v{T+3}
        v_mov_b32 v{T+2}, 2
        v_cndmask_b32 v{T+2}, v{T+2}, 1, vcc
        v_cmp_eq_u32 vcc, s67, v{T+3}
        v_bfe_u32 v{T+3}, v{T+1}, 4, 1
        v_cndmask_b32 v{T+2}, v{T+2}, 0, vcc
        v_lshlrev_b32 v{T+2}, 10, v{T+2}
        v_lshl_add_u32 v{T+2}, v{T+3}, 9, v{T+2}
        v_bfe_u32 v{T+3}, v{T+1}, 2, 1
        v_lshl_add_u32 v{T+2}, v{T+3}, 8, v{T+2}
        v_bfe_u32 v{T+3}, v{T+1}, 3, 1
        v_lshl_add_u32 v{T+2}, v{T+3}, 3, v{T+2}
        v_and_b32 v{T+3}, 3, v{T+1}
        v_lshl_add_u32 v{T+2}, v{T+3}, 1, v{T+2}
        v_lshl_add_u32 v{T+2}, v{T+4}, 6, v{T+2}
        v_add_u32 v{12+t}, s71, v{T+2}''')
    for b in range(3): q.add(f's_lshl_b32 s{67+b}, s{67+b}, 11')
    for sl in range(3):
        q.lines(f's_xor_b32 s6, s3, {sl+1}\ns_mul_i32 s6, s6, 12288\ns_add_u32 s6, s6, {RED+4096*sl}\nv_add_u32 v{124+sl}, s6, v{6 if C["w64"] else 3}')
    q.lines(f'''s_mul_i32 s6, s3, 12288
    s_add_u32 s6, s6, {RED}
    v_add_u32 v1, s6, v{6 if C['w64'] else 3}''')
    if C['flip']:
        q.lines('s_and_b32 s6, s2, 7\ns_xor_b32 s6, s6, 1\ns_lshl_b32 s6, s6, 1\ns_bfe_u32 s7, s32, 0x10001\ns_add_u32 s6, s6, s7')
        q.add('s_sub_u32 s7, 32, s6\ns_cmp_eq_u32 s6, 0\ns_cselect_b32 s7, 16, s7\ns_bitcmp1_b32 s32, 0\ns_cselect_b32 s36, s7, s6')
    q.add(t1_txt('s7', 's36', 's63', 's6'))
    q.lines(f'''s_lshl_b32 s72, s72, 10
    s_add_u32 s72, s72, s7
    s_mul_i32 s72, s72, 896
    s_lshl_b32 s6, s35, 7
    s_add_u32 s72, s72, s6
    v_mul_u32_u24 v0, {4*64*896}, v{T+4}
    v_lshl_add_u32 v0, v4, 3, v0
    s_mov_b32 s8, s80
    s_and_b32 s9, s81, 0xffff''')
    q.add('v_lshlrev_b32 v2, 7, v2')
    q.add(f's_bitcmp1_b32 s3, 0\ns_cselect_b32 s6, 0xffffff00, 0\ns_cselect_b32 s7, -1, 0\ns_cselect_b32 s6, s6, 0x100\ns_add_u32 s16, s12, s6\ns_addc_u32 s17, s13, s7\ns_mov_b32 s18, {WS_END+256}')
    return q1, q

C01 = [(2,0),(2,1),(3,0),(3,1),(6,0),(6,1),(7,0),(7,1),(10,0),(10,1),(11,0),(11,1)]
C2 = [(i,1) for i in (0,1,4,5,8,9,12,13)]
C3 = [(i,0) for i in (0,1,4,5,8,9,12,13)]
ORDER = C01 + C2 + C3
C0 = [p for p in C01 if p[1] == 0]; C1 = [p for p in C01 if p not in C0]
LORDER = C0 + C1 + C2 + C3
def hreg(i, rl, u): return a(8*LORDER.index((i, rl)) + 4*u, 4)
def hh(q, L, split=False):
    if 'hh' in ABL: return
    items = [(i, rl, u) for u in (1, 0) for i, rl in L] if split else [(i, rl, u) for i, rl in L for u in range(2)]
    for i, rl, u in items: q.vm(None, f'buffer_load_dwordx4 {hreg(i,rl,u)}, v{VH1 if rl else VH0}, s[{16 if u else 12}:{19 if u else 15}], {sm(i)} offen sc1', f'h{i}_{rl}_{u}')
def epi3(k, acc, st, pk=False):
    q = Q(k)
    K1 = ET + 2*(st & 1); SS = K1 + 1; T = ET + 4; PK = ET + 12
    for qq in range(4 if 'epi' not in ABL else 0):
        rr = range(4*qq, 4*qq+4); t = T + 4*(qq & 1)
        if pk: q.add(*[f'v_pk_mul_f32 {P(t+r)}, {P(acc+4*qq+r)}, {P(K1)} op_sel_hi:[1,0]' for r in (0, 2)])
        else: q.add(*[f'v_mul_f32 v{t+(r&3)}, v{acc+r}, v{K1}' for r in rr])
        for r in rr: q.add(f'v_exp_f32 v{t+(r&3)}, v{t+(r&3)}')
        if pk: q.add(*[f'v_pk_fma_f32 {P(t+r)}, {P(t+r)}, {P(K1)}, {P(K1)} op_sel:[0,1,1] op_sel_hi:[1,1,1]' for r in (0, 2)])
        else: q.add(*[f'v_fma_f32 v{t+(r&3)}, v{t+(r&3)}, v{SS}, v{SS}' for r in rr])
        for r in rr: q.add(f'v_rcp_f32 v{t+(r&3)}, v{t+(r&3)}')
        if pk: q.add(*[f'v_pk_mul_f32 {P(t+r)}, {P(t+r)}, {P(acc+16+4*qq+r)}' for r in (0, 2)])
        else: q.add(*[f'v_mul_f32 v{t+(r&3)}, v{t+(r&3)}, v{acc+16+r}' for r in rr])
        q.add(f'v_cvt_pk_bf16_f32 v{PK+2*qq}, v{t}, v{t+1}', f'v_cvt_pk_bf16_f32 v{PK+2*qq+1}, v{t+2}, v{t+3}')
        if qq & 1 and 'st' not in ABL: q.add(('vm', f'buffer_store_dwordx4 {v(PK+4*(qq>>1),4)}, v3, s[12:15], s{40+st} offen offset:{1024*(qq>>1)} sc1', f'hh{st}'))
    return q

def lcost(l, vmc=12):
    mn = l.split()[0]
    return 0 if mn.endswith(':') or mn.startswith('.') else 8 if mn in TRANS else vmc if mn.startswith(('buffer_', 'global_')) else 4
class Epi:
    def __init__(self, k, acc, st, vmc):
        self.k = k; self.vmc = vmc; q = epi3(k, acc, st).q
        n = len(q)//2 if q else 0
        st_ = 'st' not in ABL
        self.ch = [q[0:22] + q[n:n+22], q[22:44] + q[n+22:n+44]] if q else [[], []]
        self.st = [q[44], q[n+44]] if q and st_ else []
    def __len__(self): return len(self.ch[0]) + len(self.ch[1]) + len(self.st)
    def pack(self, bud):
        while True:
            done = 44 - max(len(self.ch[0]), len(self.ch[1]))
            if self.st and done >= 22*(3 - len(self.st)) and bud >= self.vmc:
                x = self.st.pop(0); self.k.vm_op(x[1], x[2]); bud -= self.vmc; continue
            c = [ch for ch in sorted(self.ch, key=lambda c: -len(c)) if ch and lcost(ch[0]) <= bud]
            if not c: return
            if len(c) == 2 and lcost(c[0][0]) != lcost(c[1][0]):
                c.sort(key=lambda ch: lcost(ch[0]) * (1 if bud % 8 == 4 else -1))
            elif len(c) == 2 and len(self.ch[1]) - len(self.ch[0]) < 4: c = [self.ch[0]]
            x = c[0].pop(0); self.k.e(x); bud -= lcost(x)
def P3(k, C):
    su, su2 = setup34(k, C)
    def wd_reg(q, i):
        if 'wd' in C['abl']: return
        for f in range(4): q.vm(None, f'buffer_load_dwordx4 {wdreg(i,f)}, v{VWD}, s[12:15], {sm(i)} offen offset:{1024*f} sc1', f'wd{i}')
    def wd_lds(q, i):
        if 'wd' in C['abl']: return
        for f in range(4): q.vm(f's_add_u32 m0, s73, {WDL[LDSI.index(i)]}' if f == 0 else None, f'buffer_load_dwordx4 v{VWD}, s[12:15], {sm(i)} offen offset:{1024*f} sc1 lds', f'wd{i}')
    def a_dma(q, st):
        for i in range(7):
            pre = f's_add_u32 m0, s66, {st*IMG+1024*i}' if i in (0, 4) else None
            q.vm(pre, f'buffer_load_dwordx4 v{VA0 if i < 4 else VA1}, s[12:15], s{44+st} offen offset:{1024*(i&3)} sc1 lds', f'a{st}')
    r3 = k.r2; page(k, 3, 1)
    if C['rr']: k.e('s_mov_b32 s82, s57\nv_lshlrev_b32 v129, 7, v2')
    wq = Q(k)
    for i in REGI[0:4] + REGI[5:9] + REGI[4:5]: wd_reg(wq, i)
    n1 = len(su); su.q += su2.q; tot = len(su)
    for n in range(C['r3_drain']): su.cyc(C['su_drain']//(C['r3_drain']+1)); r3.emit(1)
    su.cyc(C['su_drain']//(C['r3_drain']+1))
    r3n = 28 - (len(r3)+1)//2
    k.wait(vm='p2st')
    if C['rr']: k.e('s_mov_b64 exec, 0xffff'); k.vm_op('buffer_load_dword v130, v129, s[12:15], s82 offen sc1'); k.e('s_mov_b64 exec, -1')
    k.e('s_barrier'); k.st('sigA')
    gsignal(k, 0, 2)
    if 0 in C['pollA']: mp_issue(k, 0, 0, 0)
    if not C['wd_early']:
        l = k.label('WS')
        k.e(f's_mov_b32 s75, 99\ns_cmp_lg_u32 s29, 1\ns_cbranch_scc1 {l}\ns_atomic_add s74, s[24:25], s28\ns_atomic_add s74, s[24:25], s28 offset:1024\n{l}:')
    tr = w3_tr(k, R1N, 28); nl = 4*(28 - k.r2n)
    n = 0
    while len(r3):
        r3.emit(1); n += 1
        if n in C['pollA']: mp_issue(k, 0, C['pollA'].index(n), 0)
        if n == C['pollW'] and C['wd_early']:
            assert tot - len(su) >= n1
            l = k.label('XW'); k.e(f's_mov_b32 s75, 99\ns_cmp_lg_u32 s3, 1\ns_cbranch_scc1 {l}\ns_mov_b32 s75, -1\ns_atomic_and s75, s[24:25], s4 glc\n{l}:')
        if len(tr) > nl: tr.emit(min(4, len(tr)-nl))
        else: su.cyc(32)
    tr.emit(len(tr) - nl)
    while tot - len(su) < n1: su.emit(1)
    k.st('w3done'); assert len(su)
    k.e(f's_mul_i32 s0, s3, 3072\ns_mov_b32 m0, s0\ns_add_u32 s28, s44, s0\ns_lshl_b32 s60, s3, 12\ns_add_u32 s60, s60, 12288\ns_add_u32 s61, s60, s44')
    lds_pad(k, 3, 128); k.wait(lg='tr')
    mp_check(k, 0, 7, 0)
    if not C['tr_late']: r3n = 28
    assert r3n - R1N >= 11
    k.wait(vm=f'w3_{r3n-1}'); k.e('s_barrier'); k.st('flagA')
    for i in range(3): k.vm_op(f'buffer_load_dwordx4 v3, s[12:15], s28 offen offset:{1024*i} sc1 lds', 'a0a')
    k.e('s_mov_b32 m0, s60')
    def xpoll():
        l = k.label('XP'); k.e(f's_cmp_lt_u32 s3, {2 if C["wd_early"] else 1}\ns_cbranch_scc1 {l}\ns_mov_b32 s75, -1\ns_atomic_and s75, s[24:25], s4 glc\n{l}:')
    if C['xp'] == 0: xpoll()
    nl = 4*(28 - r3n)
    for i in range(4): k.vm_op(f'buffer_load_dwordx4 v3, s[12:15], s61 offen offset:{1024*i} sc1 lds', 'a0b'); tr.emit(min(4, len(tr)-nl))
    a1q = Q(k); a_dma(a1q, 1); assert k.r2n - R1N >= 8 or not C['a1_pre']
    for i in range(C['a1_pre']): a1q.emit(1); tr.emit(min(4, len(tr)-nl))
    tr.emit(len(tr)-nl)
    def xcheck(only=None):
        l, d = k.label('XC'), k.label('XD')
        if only is not None: k.e(f's_cmp_lg_u32 s3, {only}\ns_cbranch_scc1 {d}')
        k.e(f'''s_cmp_ge_i32 s75, s39
    s_cbranch_scc1 {d}
    s_mov_b32 s1, 0
{l}:
    s_waitcnt lgkmcnt(0)
    s_cmp_ge_i32 s75, s39
    s_cbranch_scc1 {d}
    s_add_u32 s1, s1, 1
    s_cmp_gt_u32 s1, {SPIN_MAX}
    s_cbranch_scc1 {d}
    s_mov_b32 s75, -1
    s_atomic_and s75, s[24:25], s4 glc
    s_branch {l}
{d}:''')
    if C['wd_early']: xcheck(1)
    if C['xp'] == 1: xpoll()
    while tot - len(su) < n1 + 29: su.emit(1)
    su.debt = 0; su.cyc(C['su_go'])
    vq = [Q(k) for _ in range(4)]
    vq[0].q += a1q.q
    for hf in range(2): vq[0].vm(None, f'buffer_store_dwordx4 {v(116+4*hf,4)}, v3, s[12:15], s5 offen offset:{1024*hf} sc1')
    while len(vq[0]) < 9: vq[0].add(wq.q.pop(0) if len(wq) and C['wd_early'] else (lambda: None))
    for i in range(0, 7, 2):
        vq[0].add(lambda i=i: [k.vm_op(f'buffer_load_dwordx2 {v(128+2*j,2)}, v6, s[12:15], s37 offen offset:{512*j} sc1', 'st') for j in range(i, min(7, i+2))])
    a_dma(vq[0], 2)
    for mt in range(2): vq[0].vm(None, f'buffer_load_dwordx4 {v(WX+4*mt,4)}, v3, s[12:15], s38 offen offset:{1024*mt} sc1', 'wx')
    vq[1].q += wq.q[:C['x0']] if 'wd' not in ABL else [lambda: None]*C['x0']; wq.q = wq.q[C['x0']:]
    a_dma(vq[1], 3); wd_lds(vq[1], LDSI[0]); wd_lds(vq[1], LDSI[1]); wd_lds(vq[1], LDSI[2])
    for st in range(3): vq[st].q += wq.q[:C['wd_st'][st]]; wq.q = wq.q[C['wd_st'][st]:]
    assert len(vq[2]) >= C['sigB0'][1] or ABL
    wd_lds(vq[2], LDSI[3]); wd_lds(vq[2], LDSI[4])
    vq[3].q += wq.q
    sq = Q(k)
    for i in range(1, 7): sq.lines(f'v_add_f32 v128, v128, v{128+2*i}\nv_add_f32 v129, v129, v{129+2*i}')
    sq.lines(f'''v_mov_b32 v130, v128
    v_mov_b32 v131, v129
    s_mul_i32 s6, s3, {IMG}
    v_add_u32 v138, s6, v3
    v_permlane32_swap_b32 v128, v130
    v_permlane32_swap_b32 v129, v131
    v_add_f32 v128, v128, v130
    v_add_f32 v129, v129, v131
    v_mul_f32 v128, {f2h(-1/448)}, v128
    v_mul_f32 v129, {f2h(1/448)}, v129
    v_fma_f32 v129, -v128, v128, v129
    v_max_f32 v129, 0, v129
    v_add_f32 v129, {f2h(1e-5)}, v129
    v_rsq_f32 v130, v129
    v_sqrt_f32 v131, v129
    v_cvt_pk_bf16_f32 v132, v128, v128
    v_mul_f32 v130, {f2h(-LOG2E)}, v130
    v_cvt_pk_bf16_f32 v136, v131, v131
    v_and_b32 v137, 0xffff0000, v132
    v_and_b32 v136, 0xffff0000, v136
    v_sub_f32 v137, v128, v137
    v_sub_f32 v136, v131, v136
    v_cmp_eq_u32 vcc, 0, v5
    v_cvt_pk_bf16_f32 v133, v137, v131
    v_cvt_pk_bf16_f32 v134, v131, v136
    v_mov_b32 v135, 0
    v_cndmask_b32 v132, 0, v132, vcc
    v_cndmask_b32 v133, 0, v133, vcc
    v_cndmask_b32 v134, 0, v134, vcc
    s_lshl_b32 s6, s3, 9
    v_add_u32 v137, s6, v8''')
    sq.add(('ds', 'ds_write_b128 v138, v[132:135] offset:28672', 'stw'), ('ds', 'ds_write_b64 v137, v[130:131]', 'stw'))
    L = 8; KS = 29 - L
    seq = [(st, ks) for st in range(4) for ks in range(29)]
    X0 = C['x0']; seq.remove((0, 28)); seq.insert(28 + X0, (0, 28))
    def breg(n): return v(RING+4*(n&3),4) if n < 87+KS else v(ACC0+4*(n-87-KS),4)
    def rd(n):
        st, ks = seq[n]
        base, off = ('v3', st*IMG) if st < 2 else ('v7', (st-2)*IMG)
        k.ds_op(f'ds_read_b128 {breg(n)}, {base} offset:{off+1024*ks}', f'b{n}')
    PD = 3
    page(k, 4, 1)
    k.wait(vm='a0a'); k.e('s_barrier'); k.st('P3go')
    for n in range(PD): rd(n)
    k.lq = lq = Q(k); k.nl = 0
    fill = Q(k); rate = 0; nv = [len(q) for q in vq]; assert max(nv) <= 28
    def mf(n, mt):
        st, ks = seq[n]; acc = ACC0 + 32*(st & 1)
        if ks < 28: A = a(8*ks+4*mt, 4); k.wait(lg=f'b{n}')
        else: A = v(WX+4*mt, 4); k.wait(vm='wx', lg=f'b{n}')
        c = '0' if ks == 0 else v(acc+16*mt, 16)
        k.e(f'v_mfma_f32_32x32x16_bf16 {v(acc+16*mt,16)}, {A}, {breg(n)}, {c}')
    def events(st, ks):
        e = (st, ks); bar = False
        if e == (3, C['c0_ks']): mp_check(k, 0, 14, 0, C['flip']); bar = True
        if e == (3, C['c01_ks']): mp_check(k, 128, 7, 3, C['flip']); bar = True
        if e == C['sigB0']: k.wait(vm=['hh0', 'a3']); bar = True
        if e == C['sigB01']: k.wait(vm='hh1'); bar = True
        if e == (3, C['sigB2']): k.wait(vm='hh2'); bar = True
        if bar: k.e('s_barrier')
        return
    def events2(st, ks):
        e = (st, ks)
        if e == C['sigB0']: gsignal(k, 0, 1)
        if e == C['sigB01']: gsignal(k, 128, 1)
        if e == (3, C['sigB2']):
            gsignal(k, 256, 2); k.st('sigB2')
            if C['rrh']: reread(k, 's42', 5)
        if e in C['pollB01']: mp_issue(k, 128, C['pollB01'].index(e), 3, C['flip'])
        if e in C['pollB0']: mp_issue(k, 0, C['pollB0'].index(e), 0, C['flip'])
        if e == (3, C['c0_ks']):
            for b in range(3): lq.vm(f's_add_u32 m0, s71, {1024*b}', f'buffer_load_dwordx4 v127, s[12:15], s{67+b} offen sc1 lds', 'x1')
            hh(lq, C0)
        if e == (3, C['c01_ks']): k.st('B01ok'); hh(lq, C1)
    nrd = PD
    for n, (st, ks) in enumerate(seq[:87+KS]):
        k.st(f'k{st}_{ks}')
        s2, k2 = seq[nrd]
        if (s2, k2) == (0, 28): assert not len(tr)
        if (s2, k2) == (0, 12): xcheck(); k.wait(vm='a0b' if C['a1_bar'] else 'a1'); k.e('s_barrier')
        elif (s2, k2) == (1, 0) and C['a1_bar']: k.wait(vm='a1'); k.e('s_barrier')
        elif (s2, k2) == (0, 28):
            assert not len(fill); k.wait(vm='a2', lg='stw'); k.e('s_barrier')
            k.ds_op(f'ds_read_b64 {v(ET,2)}, v8', 'ks0')
        if nrd >= 87+KS: assert not len(fill)
        rd(nrd); nrd += 1
        if nrd > 87+KS: rd(nrd); nrd += 1
        if ks == (27 if st < 3 else 5) and st: k.ds_op(f'ds_read_b64 {v(ET+2*(st&1),2)}, v8 offset:{512*st}', f'ks{st}')
        if ks == (2 if st > 1 else X0+2) and st > 0:
            if C['gap']: fill = Epi(k, ACC0 + 32*((st-1) & 1), st-1, C['vmc'])
            else:
                fill = epi3(k, ACC0 + 32*((st-1) & 1), st-1)
                rate = fill.cost() / (2*C['epi_span'][st-1])
        if (st, ks) == (0, C['su_ks']): fill = su; rate = su.cost() / (2*C['su_span'])
        if (st, ks) == (0, C['st_ks']): assert not len(fill); k.wait(vm='st'); fill = sq; rate = sq.cost() / (2*(24 + X0 - C['st_ks']))
        events(st, ks)
        for mt in range(2):
            mf(n, mt); n0 = len(k.L)
            if mt == 0: events2(st, ks)
            if st == 0: tr.emit(C['tr_rate'])
            if mt == 1 and (st, ks) == C['pg5']: page(k, 5, 2)
            if mt == 0 and len(vq[st]) > ((nv[st]*(27-ks))//28 if 0 < st < 3 and 'wd' not in ABL else 0): vq[st].emit(1)
            elif mt == 0 and st == 3 and len(lq):
                assert (k.nl - 3)//2 < ks; lq.emit(1); k.nl += 1
            if isinstance(fill, Epi):
                was = len(fill)
                fill.pack(C['gap'][st-1] - sum(lcost(l, C['vmc']) for l in k.L[n0:]) - 8*mt)
                if was and not len(fill) and os.environ.get('VERB'): print('epi done', st, ks)
            else: fill.cyc(rate)
        if ks == 28:
            assert not len(fill) and not len(vq[st]), (st, len(fill), len(vq[st]))
            k.st(f'S{st}')
    G = ACC0+32; U = G+16; K1 = ET+2; PK = ET+12; k.st('gph')
    for j in range(L):
        if nrd < len(seq): rd(nrd); nrd += 1
        if not j & 1: events(3, KS + j//2)
        mf(87+KS+j, 0)
        if not j & 1: events2(3, KS + j//2)
        if j & 1: lq.emit(1)
        if j < 7: k.e(f'v_mov_b64 {P(128+2*j)}, 0')
    sg = Q(k); k.st('uph')
    for qq in range(4):
        rr = range(G+4*qq, G+4*qq+4); pk = qq >= C['sg_pk']
        if pk: sg.add(*[f'v_pk_mul_f32 {P(r)}, {P(r)}, {P(K1)} op_sel_hi:[1,0]' for r in rr[::2]])
        else: sg.add(*[f'v_mul_f32 v{r}, v{r}, v{K1}' for r in rr])
        sg.add(*[f'v_exp_f32 v{r}, v{r}' for r in rr])
        if pk: sg.add(*[f'v_pk_fma_f32 {P(r)}, {P(r)}, {P(K1)}, {P(K1)} op_sel:[0,1,1] op_sel_hi:[1,1,1]' for r in rr[::2]])
        else: sg.add(*[f'v_fma_f32 v{r}, v{r}, v{K1+1}, v{K1+1}' for r in rr])
        sg.add(*[f'v_rcp_f32 v{r}, v{r}' for r in rr])
    for j in range(L):
        if not j & 1: events(3, KS + (L+j)//2)
        mf(87+KS+j, 1)
        if not j & 1: events2(3, KS + (L+j)//2)
        if j == 0: lq.emit(1); ldsread(k, LDSI[0])
        elif j == 1:
            lq.emit(1)
            if C['pg6'] == 'u': page(k, 6, 2)
        else:
            if j & 1 and C['u_ld']: lq.emit(1)
            sg.cyc(C['sg_rate'])
    k.st('S3')
    if -1 in C['p4_poll2']: mp_issue(k, 256, C['p4_poll2'].index(-1), 1, not C['flip'])
    for n in range(C['e_ld']): sg.cyc(64); lq.emit(1)
    sg.flush()
    for hf in range(2):
        for r in range(8*hf, 8*hf+8, 2): k.e(f'v_pk_mul_f32 {P(G+r)}, {P(G+r)}, {P(U+r)}')
        for r in range(4*hf, 4*hf+4): k.e(f'v_cvt_pk_bf16_f32 v{PK+r}, v{G+2*r}, v{G+2*r+1}')
        k.vm_op(f'buffer_store_dwordx4 {v(PK+4*hf,4)}, v3, s[12:15], s43 offen offset:{1024*hf} sc1', 'hh3')
    k.st('epi3')
    if C['pg6'] == 'e': page(k, 6, 2)
    if C['sigB2'] > 28:
        k.wait(vm='hh2'); k.e('s_barrier'); gsignal(k, 256, 2); k.st('sigB2')
        if C['rrh']: reread(k, 's42', 5)

RG = [RING, WX]
def ldsread(k, i):
    slot = LDSI.index(i)
    base, off = ('v11', WDL[slot]-WDL[0]) if slot < 2 else ('v10', WDL[slot])
    k.wait(vm=f'wd{i}')
    for f in range(4): k.ds_op(f'ds_read_b128 {v(RG[slot&1]+4*f,4)}, {base} offset:{off+1024*f}', f'wl{i}')
def P4(k, C):
    XRG = list(range(128, 142)) + [122, 123]
    GB = 112; R = RING; R0 = 144
    def acc(rl, u, t): return ACC0 + 32*rl + 16*u + 4*t
    lq = k.lq; started = set(); redw = Q(k)
    ml = []
    for i, rl in C01 + C2: ml += [(i, rl, 0), (i, rl, 1)]
    for u in (1, 0): ml += [(i, rl, u) for i, rl in C3]
    burst = C['p4_burst0']
    for g, (i, rl, u) in enumerate(ml):
        n = g >> 1; post = []
        if not g & 1:
            k.st(f'n{n}'); bar = False
            if n == C['p4_sig3']: k.wait(vm='hh3'); bar = True; post.append(lambda: (gsignal(k, 384, 0), k.st('sigB3'))); C['rrh'] and post.append(lambda: reread(k, 's43', 5))
            if n == C['p4_c2']: mp_check(k, 256, 7, 1, not C['flip']); bar = True; hh(lq, C2)
            if n == C['p4_c3']: mp_check(k, 384, 7, 2, not C['flip']); bar = True; hh(lq, C3, True); burst = C['p4_burst']
            if bar: k.e('s_barrier')
            if n == C['p4_c2']: k.st('B2ok')
            if n == C['p4_c3']: k.st('B3ok'); lq.emit(C['p4_b0'])
            if n in C['p4_poll2']: post.append(lambda n=n: mp_issue(k, 256, C['p4_poll2'].index(n), 1, not C['flip']))
            if n in C['p4_poll3']: post.append(lambda n=n: mp_issue(k, 384, C['p4_poll3'].index(n), 2, not C['flip']))
            if n == 1:
                redw.add(f's_lshl_b32 s6, s35, 8\ns_add_u32 s6, s6, {WS_MOD+GB_N}', 'v_mov_b64 v[122:123], 0\nv_lshlrev_b32 v4, 4, v4')
                redw.vm(None, f'buffer_load_dwordx4 {v(GB,4)}, v4, s[12:15], s6 offen sc1', 'gb')
                redw.add('v_and_b32 v14, 4, v13\nv_sub_u32 v15, 2, v14', 'v_add_u32 v14, v13, v15\nv_add_u32 v15, v14, v15')
            if n == 4:
                assert not len(redw); k.wait(vm='x1')
                for t in range(4):
                    for r in range(4): redw.add(('ds', f'ds_read_u16_d16_hi v{XRG[4*t+r]}, v{12+t} offset:{16*r}', 'xr'), lambda: None)
        nxt = None
        if (rl, u) == (1, 1) and g < 24:
            sl = (g >> 2) + 1
            if sl < 5: nxt = LDSI[sl]; k.wait(vm=f'wd{nxt}'); base, off = ('v11', WDL[sl]-WDL[0]) if sl < 2 else ('v10', WDL[sl])
            elif sl == 5: nxt = -1
        def wr(ad, r, t, tag):
            if C['w64']: redw.add(*[('ds', f'ds_write_b64 v{ad}, {v(r+2*x,2)} offset:{1024*t+512*x}', tag) for x in range(2)])
            else: redw.add(('ds', f'ds_write_b128 v{ad}, {v(r,4)} offset:{1024*t}', tag))
        def rdr(r, off, tag):
            if C['w64']: k.ds_op(f'ds_read2st64_b64 {v(r,4)}, v1 offset0:{off//512} offset1:{off//512+1}', tag)
            else: k.ds_op(f'ds_read_b128 {v(r,4)}, v1 offset:{off}', tag)
        if g == 40:
            assert not len(redw)
            for uu in range(2):
                for t in range(4): wr(125+uu, acc(1,uu,t), t, 'rw')
        if g == 48:
            for t in range(4): wr(124, acc(0,1,t), t, 'rv')
        if g == 49 and C['bar2']: assert len(redw) <= 8; k.wait(lg='rw'); k.e('s_barrier')
        if g == 53: assert not len(redw); k.wait(lg='rv'); k.e('s_barrier')
        k.wait(vm=f'h{i}_{rl}_{u}', lg=f'wl{i}' if i in LDSI else None)
        assert not any(isinstance(x, tuple) and x[2] == f'h{i}_{rl}_{u}' for x in lq.q), (i, rl, u)
        k.pend = getattr(k, 'pend', []) + post
        for t in range(4):
            B = v(RG[LDSI.index(i)&1]+4*t, 4) if i in LDSI else wdreg(i, t)
            D = v(acc(rl,u,t), 4); c = D if (rl,u,t) in started else '0'; started.add((rl,u,t))
            k.e(f'v_mfma_f32_16x16x32_bf16 {D}, {hreg(i,rl,u)}, {B}, {c}')
            if t == 0: lq.emit(1)
            elif t == 2:
                if len(redw): redw.emit(1)
                elif burst > 0: lq.emit(1); burst -= 1
            elif k.pend: k.pend.pop(0)()
            if nxt == -1: lds_pad(k, 1, 116)
            elif nxt is not None: k.ds_op(f'ds_read_b128 {v(RG[sl&1]+4*t,4)}, {base} offset:{off+1024*t}', f'wl{nxt}')
            if C['w64'] and g > 40 and t == 0: redw.emit(1)
            if C['bar2']:
                if g in (49, 50, 51, 52) and t & 1: x = 2*(g-49) + (t >> 1); rdr(R+16*(x&1)+4*(x>>1), (1+(x&1))*4096+(x>>1)*1024, 'r12')
                if g == 53: rdr(R0+4*t, 1024*t, 'r0')
                if g in (54, 55):
                    if (g, t) == (54, 0): k.wait(lg='r12')
                    for r in range(8*(g-54)+2*t, 8*(g-54)+2*t+2): k.e(f'v_add_f32 v{R+r}, v{R+r}, v{R+16+r}')
            elif g >= 53: rdr((R, R+16, R0)[g-53]+4*t, ((1, 2, 0)[g-53])*4096+1024*t, f'rr{g}')
    assert not len(redw) and not len(lq) and not k.pend
    k.st('P4mf')
    if not C['bar2']:
        k.wait(lg='rr54')
        for r in range(0, 16, 2): k.e(f'v_pk_add_f32 {P(R+r)}, {P(R+r)}, {P(R+16+r)}')
    k.wait(vm='gb', lg='all')
    for r in range(0, 16, 2): k.e(f'v_pk_add_f32 {P(R+r)}, {P(R+r)}, {P(R0+r)}')
    for r in range(4): k.e(f's_add_u32 s{48+r}, s72, {r*64*896}')
    for h in range(2):
        for t in range(4): k.e(f'v_pk_add_f32 {P(R+4*t+2*h)}, {P(R+4*t+2*h)}, {P(acc(0,0,t)+2*h)}')
        for t in range(4):
            x = XRG[4*t+2*h]
            k.e(f'v_pk_fma_f32 {P(x)}, {P(R+4*t+2*h)}, {P(GB+(t&2))}, {P(x)} op_sel:[0,{t&1},0] op_sel_hi:[1,{t&1},1]')
        for r in (2*h, 2*h+1):
            k.e(f'v_cvt_pk_bf16_f32 v{R0+2*r}, v{XRG[r]}, v{XRG[4+r]}\nv_cvt_pk_bf16_f32 v{R0+2*r+1}, v{XRG[8+r]}, v{XRG[12+r]}')
            k.vm_op(f'buffer_store_dwordx2 {P(R0+2*r)}, v0, s[8:11], s{48+r} offen {C["out_pol"]}')

S_W = 8192
def side(k, C):
    wq = side_head(k, False, C)
    side_tail(k, wq, C)
    k.e('s_endpgm\n' + ('.p2align 12\n' if PAGES else '') + 'SD_Z:'); k.reset_counts()
    side_head(k, True, C)
    k.e('s_branch SD_G3')

ROTB = int(os.environ.get('ROTB', 3))
W = 16; SL = 128; AC = 142; TS = 150; DF = 160; CS = 176
def side_head(k, Z, C):
    T = TS; tg = 'Z' if Z else 'B'
    k.e(f'''
    v_lshrrev_b32 v1, 6, v0
    v_and_b32 v2, 63, v0
    v_readfirstlane_b32 s3, v1
    v_lshrrev_b32 v6, 3, v2
    v_and_b32 v8, 7, v2
    s_mul_i32 s39, s3, 112
    v_add_u32 v7, s39, v6
    v_mul_u32_u24 v7, 5376, v7
    v_lshl_add_u32 v7, v8, 4, v7
    s_mul_i32 s62, s33, {8*ROTB if not Z else 0}
    v_add_u32 v9, s62, v2
    v_add_u32 v11, 56, v9
    v_subrev_u32 v10, 112, v9
    v_min_u32 v9, v9, v10
    v_subrev_u32 v10, 112, v11
    v_min_u32 v11, v11, v10
    v_add_lshl_u32 v9, v9, s39, 1    ; c voffsets
    v_add_lshl_u32 v11, v11, s39, 1
    s_mul_i32 s62, s62, 5376
    s_mov_b32 s10, {448*5376}
    s_mov_b32 s11, 0x20000
    s_mov_b32 s46, 896
    s_mov_b32 s47, 0x20000
    s_mov_b32 s14, {WS_END}
    s_mov_b32 s15, 0x20000
    ''')
    if Z: k.e('s_lshl_b32 s34, s33, 1\ns_add_u32 s35, s34, 1\ns_lshl_b32 s40, s34, 7\ns_lshl_b32 s41, s35, 7\ns_cmp_eq_u32 s33, 3\ns_cselect_b32 s41, 0x7ff00000, s41')
    else: k.e('s_add_u32 s40, s32, 7\ns_lshl_b32 s40, s40, 7\ns_add_u32 s41, s33, 1\ns_mul_i32 s41, s41, 896\ns_add_u32 s41, s41, s40')
    k.e(f'''
    v_lshlrev_b32 v3, 4, v2
    v_and_b32 v4, 31, v2
    v_lshrrev_b32 v5, 5, v2
    s_and_b32 s42, s3, 1             ; mat
    s_lshr_b32 s43, s3, 1
    s_mov_b32 s52, {f2h(1/448)}
    s_mov_b32 s53, {f2h(-448.0)}
    s_waitcnt lgkmcnt(0)
    s_mov_b32 s44, s22
    s_and_b32 s45, s23, 0xffff
    s_mov_b32 s8, s24
    s_and_b32 s9, s25, 0xffff
    s_mov_b32 s12, s30
    s_and_b32 s13, s31, 0xffff
    ''')
    if Z:
        k.e(f'''s_cmp_lg_u32 s2, {NSIDE-1}
    s_cbranch_scc1 SD_NZ
    v_lshlrev_b32 v10, 4, v0
    v_mov_b64 v[16:17], 0
    v_mov_b64 v[18:19], 0
    s_mov_b32 s6, {WS_FLAG+FL_BAR}''')
        for i in range(4): k.e('buffer_store_dwordx4 v[16:19], v10, s[12:15], s6 offen sc1\ns_add_u32 s6, s6, 4096')
        k.e('s_mov_b32 s74, 1\ns_waitcnt vmcnt(0)\ns_barrier\ns_cmp_lg_u32 s3, 0\ns_cbranch_scc1 SD_NZ\ns_atomic_or s74, s[28:29], 0x0\nSD_NZ:')
    k.stamp(1); k.st('sd0')
    k.vm_op('buffer_load_ushort v10, v9, s[44:47], 0 offen', 'c')
    k.vm_op('buffer_load_ushort v11, v11, s[44:47], 0 offen', 'c')
    lq = Q(k)
    for t in range(2):
        for i in range(14):
            wrap = (not Z) and any((ROTB*q + i) % 14 == 0 for q in range(4))
            pre = (f's_add_u32 s62, s62, {8*5376}\n' + (f's_cmp_eq_u32 s62, {112*5376}\ns_cselect_b32 s62, 0, s62\n' if wrap or i == 0 else '') if i or t else '') + f's_add_u32 s63, s62, s{40+t}'
            lq.vm(pre, f'buffer_load_dwordx4 {v(W+56*t+4*i,4)}, v7, s[8:11], s63 offen', f'w{t}_{i}')
    lq.emit(2)
    def ang0(dst, step, ef, df, ph):
        return f'''v_mul_f32 v{dst}, v{ef}, v{df}
        v_mul_f32 v{step}, s52, v{dst}
        v_floor_f32 v{step}, v{step}
        v_fma_f32 v{dst}, v{step}, s53, v{dst}
        v_fma_f32 v{dst}, v{dst}, s52, {ph}
        v_mul_f32 v{step}, s52, v{ef}'''
    f = Q(k)
    f.lines(f'''v_lshlrev_b32 v{T}, 3, v8
    v_add_u32 v{T}, v{T}, v6
    v_lshlrev_b32 v{T}, 2, v{T}
    s_lshl_b32 s57, s3, 8
    v_add_u32 v9, s57, v{T}
    v_lshlrev_b32 v241, 2, v2
    v_lshlrev_b32 v244, 2, v6
    v_mov_b32 v245, 0''')
    for i in range(0, 8, 2): f.add(f'v_mov_b64 {P(AC+i)}, 0')
    if not Z:
        f.lines(f'''
        s_lshl_b32 s6, s33, 2
        v_lshl_add_u32 v12, v5, 1, s6    ; 4kk+2h
        s_lshl_b32 s6, s32, 6
        v_add_u32 v{T}, s6, v12
        v_cvt_f32_u32 v{T}, v{T}         ; d0
        v_lshlrev_b32 v12, 2, v12
        s_lshl_b32 s6, s43, 5
        v_add_u32 v{T+1}, s6, v4
        v_cmp_eq_u32 vcc, 0, v{T+1}
        v_cvt_f32_u32 v{T+1}, v{T+1}''')
        f.add(f'''s_cmp_eq_u32 s42, 1
        s_cselect_b32 s6, {f2h(-0.25)}, 0
        s_cselect_b32 s7, {f2h(224.0)}, 0''')
        f.lines(f'''v_mov_b32 v{T+2}, s6
        v_mov_b32 v{T+3}, s7
        v_cndmask_b32 v{T+3}, v{T+1}, v{T+3}, vcc
        v_cndmask_b32 v{T+4}, v{T+2}, 0, vcc''')
        for jj in range(4):
            if jj: f.add(f'v_add_f32 v{T+1}, {f2h(64.0)}, v{T+1}')
            f.lines(ang0(T+5, T+6, T+3 if jj == 0 else T+1, T, f'v{T+4}' if jj == 0 else f'v{T+2}'))
            for n in range(8): f.add(f'v_fmamk_f32 v{CS+8*jj+n}, v{T+6}, {f2h(16*(n&3)+(n>>2))}, v{T+5}')
            for n in range(8): f.add(f'v_cos_f32 v{CS+8*jj+n}, v{CS+8*jj+n}')
        f.lines(f'''s_mul_i32 s58, s3, 28
        s_lshl_b32 s7, s32, 2
        s_add_u32 s58, s58, s7
        s_add_u32 s58, s58, s33
        s_lshl_b32 s58, s58, 10
        s_add_u32 s58, s58, {WS_CP}
        s_mul_i32 s7, s33, 7
        s_add_u32 s7, s7, s32
        s_lshl_b32 s59, s7, 10
        s_add_u32 s59, s59, {WS_FLAG}''')
        f.add('s_cmp_lt_u32 s7, 20\ns_cselect_b32 s59, s59, 0x7fff0000\ns_cmp_eq_u32 s3, 3\ns_cselect_b32 s59, s59, 0x7fff0000')
    else:
        f.lines(f'v_cvt_f32_u32 v{T+1}, v0\ns_lshl_b32 s6, s33, 7\nv_cvt_f32_u32 v{T}, s6')
        for t in range(2):
            f.lines(ang0(13, 14, T+1, T, '0') + f'\nv_add_f32 v{T}, {f2h(64.0)}, v{T}')
            for n in range(0, 64, 4):
                for i in range(4): f.add(f'v_fmamk_f32 v{T+2+i}, v14, {f2h(n+i)}, v13')
                for i in range(4): f.add(f'v_cos_f32 v{T+2+i}, v{T+2+i}')
                for i in range(2): f.add(f'v_cvt_pk_bf16_f32 v{CS+32*t+n//2+i}, v{T+2+2*i}, v{T+3+2*i}')
    for n in range(8): f.cyc(56); lq.emit(1)
    f.cyc(100)
    if Z: f.cyc(C['z_f0'])
    k.stamp(2)
    k.wait(vm='c')
    for txt in ('v_lshlrev_b32 v#, 16, v#', f'v_mul_f32 v@, {f2h(-LOG2E)}, v#', 'v_exp_f32 v@, v@', 'v_add_f32 v@, 1.0, v@', 'v_rcp_f32 v@, v@', 'v_mul_f32 v#, v#, v@', 'v_cvt_pk_bf16_f32 v#, v#, v245'):
        for r in range(2): k.e(txt.replace('#', str(10+r)).replace('@', str(246+r)))
    for i in range(14): k.ds_op(f'ds_bpermute_b32 v{SL+i}, v244, v{10+i//7} offset:{32*(i%7)}', f'sl{i}')
    lq.emit(2)
    if Z:
        while len(f): f.cyc(C['z_pace']); lq.emit(1)
    f.flush()
    k.stamp(3)
    def gemv(t, split=99, mid=None):
        if t:
            for i in range(0, 8, 2): k.e(f'v_mov_b64 {P(AC+i)}, 0')
        for i in range(14):
            if i == split: mid()
            k.wait(vm=f'w{t}_{i}', lg=f'sl{i}')
            if Z or len(lq) > 14 or (t == 0 and i < C['sd_l1']): lq.emit(1)
            k.e(f'v_lshlrev_b32 v{T}, 16, v{SL+i}')
            for d in range(4): k.e(f'v_dot2_f32_bf16 v{AC+2*d}, v{W+56*t+4*i+d}, v{SL+i}, v{AC+2*d}')
            for d in range(4): k.e(f'v_dot2_f32_bf16 v{AC+2*d+1}, v{W+56*t+4*i+d}, v{T}, v{AC+2*d+1}')
        for i in range(4): k.e(f'v_permlane32_swap_b32 v{AC+i}, v{AC+4+i}')
        for i in range(0, 4, 2): k.e(f'v_pk_add_f32 {P(AC+i)}, {P(AC+i)}, {P(AC+4+i)}')
        for i in range(2): k.e(f'v_permlane16_swap_b32 v{AC+i}, v{AC+2+i}')
        k.e(f'''v_pk_add_f32 {P(AC)}, {P(AC)}, {P(AC+2)}
        v_add_f32_dpp v{AC+2}, v{AC}, v{AC} row_ror:8 row_mask:0xf bank_mask:0xf
        v_add_f32_dpp v{AC+2}, v{AC+1}, v{AC+1} row_ror:8 row_mask:0xf bank_mask:0xc''')
        k.ds_op(f'ds_write_b32 v9, v{AC+2} offset:{1024*t}')
    def gemv_fin(t):
        for i in range(2): k.ds_op(f'ds_read2st64_b32 {P(AC+2*i)}, v241 offset0:{4*t+2*i} offset1:{4*t+2*i+1}')
        k.wait(lg='all')
        k.e(f'''v_pk_add_f32 {P(AC)}, {P(AC)}, {P(AC+2)}
        v_add_f32 v{AC}, v{AC}, v{AC+1}
        v_cvt_pk_bf16_f32 v{AC}, v{AC}, v{AC}
        v_and_b32 v{AC}, 0xffff0000, v{AC}''')
        if not Z: k.e(f'''v_add_f32 v{AC+1}, 1.0, v{AC}
        v_cvt_pk_bf16_f32 v{AC+1}, v{AC+1}, v{AC+1}
        v_and_b32 v{AC+1}, 0xffff0000, v{AC+1}''')
    def zfin():
        for t in range(2):
            gemv_fin(t)
            if t: k.e(f's_cmp_eq_u32 s33, 3\ns_cselect_b32 s6, 0, -1\nv_and_b32 v{AC}, s6, v{AC}')
            else: k.e(f'v_lshl_add_u32 v{T}, v2, 1, s57\nv_mov_b32 v{T+1}, s57')
            k.e(f'ds_write_b16_d16_hi v{T}, v{AC} offset:{4096+128*t}')
        for i in range(16): k.ds_op(f'ds_read_b128 {v(W+4*i,4)}, v{T+1} offset:{4096+16*i}', f'z{i}')
        k.e(f'''v_mov_b64 {P(AC+2)}, 0
        v_mov_b64 {P(AC+4)}, 0
        s_lshl_b32 s6, s33, 10
        s_add_u32 s6, s6, {WS_ZF}
        v_lshlrev_b32 v{T}, 2, v0
        v_cmp_ge_u32 vcc, 224, v0
        v_mov_b32 v{T+2}, 0x7fff0000
        v_add_u32 v{T+1}, 896, v{T}
        v_cndmask_b32 v{T}, v{T+2}, v{T}, vcc
        v_subrev_u32 v{T+3}, 1, v0
        v_cmp_gt_u32 vcc, 31, v{T+3}
        v_cndmask_b32 v{T+1}, v{T+2}, v{T+1}, vcc''')
        for i in range(16):
            k.wait(lg=f'z{i}')
            for d in range(4): k.e(f'v_dot2_f32_bf16 v{AC+2+d}, v{CS+4*i+d}, v{W+4*i+d}, v{AC+2+d}')
        k.e(f'''v_pk_add_f32 {P(AC+2)}, {P(AC+2)}, {P(AC+4)}
        v_add_f32 v{AC+2}, v{AC+2}, v{AC+3}
        v_cvt_pk_bf16_f32 v{AC+3}, v{AC+2}, v{AC+2}
        v_and_b32 v{AC+3}, 0xffff0000, v{AC+3}
        v_sub_f32 v{AC+3}, v{AC+2}, v{AC+3}
        v_cvt_pk_bf16_f32 v{AC+2}, v{AC+2}, v{AC+3}''')
        k.vm_op(f'buffer_store_dword v{AC+2}, v{T}, s[12:15], s6 offen sc1')
        k.vm_op(f'buffer_store_dword v{AC+2}, v{T+1}, s[12:15], s6 offen sc1')
    gemv(0); k.stamp(4)
    if not Z:
        k.wait(lg='all'); k.e('s_barrier'); gemv_fin(0); k.stamp(5)
        for n in range(8): k.e(f'ds_bpermute_b32 v{DF+n}, v12, v{AC+1} offset:{4*(16*(n&3)+(n>>2))}')
        k.e('s_waitcnt lgkmcnt(0)')
        for jj in range(4):
            if jj == 3:
                k.e('s_cmp_eq_u32 s43, 1\ns_cselect_b32 s58, s59, s58\ns_cselect_b32 s6, 0, -1')
            for n in range(0, 8, 2): k.e(f'v_pk_mul_f32 {P(CS+8*jj+n)}, {P(CS+8*jj+n)}, {P(DF+n)}')
            for r in range(4): k.e(f'v_cvt_pk_bf16_f32 v{W+4*jj+r}, v{CS+8*jj+2*r}, v{CS+8*jj+2*r+1}')
            if jj == 3:
                for r in range(4): k.e(f'v_and_b32 v{W+12+r}, s6, v{W+12+r}')
            k.vm_op(f'buffer_store_dwordx4 {v(W+4*jj,4)}, v3, s[12:15], s58 offen sc1', 'cp')
            if jj < 3: k.e(f's_add_u32 s58, s58, {4*28*1024}')
    else: k.stamp(5)
    k.stamp(6); k.st('sd1'); k.e('s_load_dword s75, s[28:29], 0x0')
    if C['sd_bar'] and not Z: k.e('s_barrier')
    lq.emit(C['sd_l1b'])
    k.e(f'''
    s_lshr_b32 s36, s32, 1
    s_lshl_b32 s6, s33, 2
    s_add_u32 s36, s36, s6           ; idx
    s_and_b32 s6, s32, 1
    s_mul_i32 s6, s6, 14
    s_add_u32 s37, s6, s36           ; 2m+half
    s_cmp_eq_u32 s42, 0
    s_cselect_b32 s48, s16, s18
    s_cselect_b32 s49, s17, s19
    s_and_b32 s49, s49, 0xffff
    s_cmp_lt_u32 s36, 14
    s_cselect_b32 s50, {448*3584}, 0
    s_mov_b32 s51, 0x20000
    v_bfe_u32 v{T}, v2, 4, 1
    v_lshlrev_b32 v{T}, 2, v{T}
    v_xor_b32 v{T}, v{T}, v8
    v_mul_u32_u24 v15, 3584, v6
    v_lshl_add_u32 v15, v{T}, 4, v15
    s_mul_i32 s54, s43, {224*3584}
    s_lshl_b32 s6, s37, 7
    s_add_u32 s54, s54, s6
    s_mul_i32 s55, s42, 57344
    s_mul_i32 s6, s43, 28672
    s_add_u32 s56, s55, s6
    s_add_u32 m0, s56, {S_W}
    s_lshl_b32 s58, s32, 7
    s_lshl_b32 s6, s3, 12
    s_add_u32 s58, s58, s6
    s_add_u32 s24, s30, {WS_FLAG}
    s_addc_u32 s25, s31, 0
    s_mov_b32 s74, 1
    ''')
    wq = Q(k)
    for i in range(28): wq.vm(f's_add_u32 m0, m0, 1024\ns_add_u32 s54, s54, {8*3584}' if i else None, 'buffer_load_dwordx4 v15, s[48:51], s54 offen lds', 'wst')
    if not Z: k.e(f'''
    s_lshl_b32 s6, s32, 6
    v_add_u32 v{DF}, s6, v2          ; col
    v_cmp_le_u32 vcc, 224, v{DF}
    v_sub_u32 v{DF+1}, 448, v{DF}
    v_cndmask_b32 v{DF+1}, v{DF}, v{DF+1}, vcc
    v_cndmask_b32 v{DF+2}, 0, 32, vcc
    v_cmp_eq_u32 vcc, 224, v{DF+1}
    v_cndmask_b32 v{DF+1}, v{DF+1}, 0, vcc
    v_lshrrev_b32 v{DF+3}, 5, v{DF+1}
    v_lshl_add_u32 v{DF+2}, v{DF+3}, 6, v{DF+2}
    v_and_b32 v{DF+1}, 31, v{DF+1}
    v_add_u32 v{DF+1}, v{DF+1}, v{DF+2} ; position
    s_mov_b32 s60, {WS_MOD+GA_P}
    s_cmp_eq_u32 s33, 3
    s_cselect_b64 vcc, -1, 0
    s_cselect_b32 s60, {WS_MOD+GB_N}, s60
    v_cndmask_b32 v{DF+1}, v{DF+1}, v{DF}, vcc
    s_mov_b32 s61, 0x7fff0000
    s_cmp_eq_u32 s33, 1
    s_cselect_b32 s61, {WS_MOD+SB_K}, s61
    s_cselect_b32 s60, 0x7fff0000, s60
    s_cmp_eq_u32 s33, 2
    s_cselect_b64 vcc, -1, 0
    s_cselect_b32 s60, {WS_MOD+CB1_P}, s60
    s_cselect_b32 s61, {WS_MOD+CB1_K}, s61
    v_lshlrev_b32 v{DF+1}, 2, v{DF+1}
    v_lshlrev_b32 v{DF}, 1, v{DF}
    ''')
    def midsig():
        k.wait(vm='cp', lg='all'); k.e('s_barrier'); ready_loop(k, 242, 243)
        for i in range(4): k.e(f's_atomic_add s74, s[24:25], s58 offset:{FL_BAR+1024*i}')
        k.stamp(7); k.st('sd2'); lq.flush()
    assert C['sd_split'] < 14
    gemv(1, C['sd_split'] if not Z else 99, midsig)
    k.wait(lg='all'); k.e('s_barrier')
    if Z: ready_loop(k, 242, 243); k.stamp(7)
    if Z:
        zfin()
        k.wait(vm='all'); k.e('s_barrier'); signal(k, FL_Z)
        return
    k.e('s_cmp_lg_u32 s3, 0\ns_cbranch_scc1 SD_G4')
    gemv_fin(1)
    k.e(f'''v_cndmask_b32 v{AC}, v{AC}, v{AC+1}, vcc
    buffer_store_dword v{AC}, v{DF+1}, s[12:15], s60 offen sc1
    buffer_store_short_d16_hi v{AC}, v{DF}, s[12:15], s61 offen sc1
    s_barrier
    s_waitcnt vmcnt(0)''')
    for r in list(range(0, 16, 2)) + [3, 5]: k.e(f's_atomic_add s74, s[24:25], {FL_BAR+1024*r+7*128}')
    k.e('s_branch SD_G3\nSD_G4:\ns_barrier')
    return wq

def side_tail(k, wq, C):
    T = TS
    k.e('SD_G3:'); k.vm = []; k.lg = []
    k.stamp(8); k.st('sd3')
    k.e('s_cmp_lt_u32 s36, 14\ns_cbranch_scc0 ' + ('SD_PF' if C['sd_pf'] else 'KP_END'))
    f = Q(k)
    f.lines(f'''
    s_lshr_b32 s38, s37, 1
    s_lshl_b32 s38, s38, 7
    s_add_u32 s38, s38, {FL_SIDE}
    s_and_b32 s39, s32, 1
    s_lshl_b32 s39, s39, 11
    s_add_u32 s39, s39, {FL_MODS}''')
    f.lines(f'''v_bfe_u32 v{T}, v2, 2, 2
    v_lshl_add_u32 v{T+1}, v5, 3, v{T}
    v_lshlrev_b32 v8, 7, v{T+1}
    v_lshrrev_b32 v{T}, 1, v{T}
    v_xor_b32 v{T}, s43, v{T}
    v_lshl_add_u32 v8, v{T}, 6, v8
    v_bfe_u32 v{T}, v2, 4, 1
    v_lshl_add_u32 v8, v{T}, 5, v8
    v_and_b32 v{T}, 3, v2
    v_lshl_add_u32 v8, v{T}, 3, v8
    s_add_u32 s55, s55, {S_W}
    v_add_u32 v8, s55, v8
    v_and_b32 v9, 1, v2
    v_mul_u32_u24 v9, 1152, v9
    v_lshl_add_u32 v9, v5, 4, v9
    s_lshl_b32 s19, s37, 2
    s_add_u32 s19, s19, s3
    s_lshl_b32 s19, s19, 10
    s_add_u32 s19, s19, {WS_WEXT}''')
    if C['sd_late']:
        f.flush(); poll_issue(k, 's39', 's0', 1); poll_check(k, 's39', 28, 's0', 1); k.e('s_barrier')
    while len(wq): wq.emit(1); f.emit(3)
    poll_issue(k, 's39', 's0', 1)
    k.wait(vm='all'); k.e('s_barrier')
    poll_check(k, 's39', 28, 's0', 1)
    k.e(f's_cmp_lg_u32 s3, 1\ns_cbranch_scc1 SD_V\ns_mov_b32 m0, 4096\ns_mov_b32 s6, {WS_MOD+CB1_K}')
    k.e('buffer_load_dwordx4 v3, s[12:15], s6 offen sc1 lds\ns_mov_b32 m0, 4224\ns_nop 0\nbuffer_load_dwordx4 v3, s[12:15], s6 offen offset:1024 sc1 lds\nSD_V:')
    for ks in range(28):
        for hf in range(2): k.ds_op(f'ds_read_b64_tr_b16 {a(4*ks+2*hf,2)}, v8 offset:{2048*ks+512*hf}')
    k.wait(vm='all'); k.e('s_barrier'); k.stamp(9); k.st('sd4')
    A2 = 240
    def rd(ks): k.ds_op(f'ds_read_b128 {v(W+4*ks,4)}, v9 offset:{4096+32*ks}', f'a{ks}')
    for ks in range(6): rd(ks)
    for ks in range(28):
        k.wait(lg=f'a{ks}')
        c = '0' if ks == 0 else v(A2,16)
        k.e(f'v_mfma_f32_32x32x16_bf16 {v(A2,16)}, {v(W+4*ks,4)}, {a(4*ks,4)}, {c}')
        if ks+6 < 28: rd(ks+6)
    k.e(f'''
    v_cvt_pk_bf16_f32 v9, v{A2}, v{A2+1}
    v_lshlrev_b32 v12, 16, v9
    v_and_b32 v13, 0xffff0000, v9
    v_sub_f32 v12, v{A2}, v12
    v_sub_f32 v13, v{A2+1}, v13
    v_cmp_eq_u32 vcc, 0, v5
    v_cvt_pk_bf16_f32 v8, v{A2}, v12
    v_cvt_pk_bf16_f32 v10, v13, v{A2+1}
    v_mov_b32 v11, 0
    v_cndmask_b32 v8, 0, v8, vcc
    v_cndmask_b32 v9, 0, v9, vcc
    v_cndmask_b32 v10, 0, v10, vcc
    ''')
    k.vm_op('buffer_store_dwordx4 v[8:11], v3, s[12:15], s19 offen sc1')
    k.wait(vm='all'); k.e('s_barrier'); signal(k, 's38')
    if C['sd_pf']:
        k.e(f'''SD_PF:
    s_add_u32 s24, s30, {WS_FLAG+FL_WD}
    s_addc_u32 s25, s31, 0
    s_and_b32 s34, s32, 1
    s_lshl_b32 s6, s34, 10
    s_lshl_b32 s7, s3, 8
    s_add_u32 s6, s6, s7
    s_cmp_eq_u32 s3, 3
    s_cselect_b32 s7, 0, 128
    s_add_u32 s7, s7, s6
    s_lshl_b32 s35, s33, 2
    s_add_u32 s35, s35, s3
    s_mul_i32 s35, s35, 56
    v_min_u32 v6, 55, v2
    v_add_u32 v6, s35, v6
    v_lshrrev_b32 v7, 5, v6
    v_and_b32 v6, 31, v6
    v_mul_u32_u24 v7, 57344, v7
    v_lshl_add_u32 v6, v6, 7, v7
    s_mul_i32 s34, s34, {7*4096}
    s_sub_u32 s35, {WS_WDP+7*4096}, s34
    s_add_u32 s34, s34, {WS_WDP}
    s_mov_b32 s1, 0
SD_PL:
    s_mov_b32 s0, 0
    s_mov_b32 s4, 0
    s_atomic_add s0, s[24:25], s6 glc
    s_atomic_add s4, s[24:25], s7 glc
    s_add_u32 s1, s1, 1
    s_waitcnt lgkmcnt(0)
    s_add_u32 s0, s0, s4
    s_cmp_eq_u32 s0, 56
    s_cbranch_scc1 SD_PD
    s_sleep 8
    s_cmp_lt_u32 s1, {SPIN_MAX}
    s_cbranch_scc1 SD_PL
SD_PD:
    s_barrier''')
        for j, (own, lo) in enumerate(C['sd_pf']):
            k.e(f's_add_u32 s6, s{34 if own else 35}, {4096*lo}\nbuffer_load_dword v{16+j}, v6, s[12:15], s6 offen sc1')
    if K.MARK and K.MARK.startswith('sd'): k.mark_spin()
    k.stamp_out(0, 11)
```

```python
from asmlib import *
from layout2 import *
import math, os
NSIDE = 32; NMAIN = 224; GRID = 256
LDS_ALL = 163840
RX = int(os.environ.get('RX', 0)); RSH = int(os.environ.get('RSH', 0)); NREP = 18; assert not RX and not RSH
SPIN_MAX = 1 << 20
DELT = [16*a + 8*(n >> 2) + (n & 3) for a in range(2) for n in range(8)]
LOG2E = math.log2(math.e)
CFG = dict(sd_pf=[], x_first=0, poll1b=2, poll1c=15, sd_bar=1, rdy=2, z_f0=700, z_pace=64, mp1=8, ld1=0, f3_post=0, r1sep=0, ssig=1, sd_split=0, sd_l1=0, p1_w3_t=0, sd_late=0, p1_fill0=40, p1_ld_pre=10, p1_fill=64, pf_ca=1, pf_mod=2, pf_a=2, c2_at=6, sd_l1b=8, wl_early=1, w3_at=8, cold_at=101, c2_bar=1, cq_from=2, cold_rate=3, cold_a=0, cold_n=99, pf_b=1, wl_c2=0, sd_ord=1, wl_nat=0, p1_split=0, p1_f2=150, p1_fill_drain0=300, p1_w3_ld=0, p1_w3_a=0, p1_w3_b=0, p1_w3_c=0, p1_w3_drain=8, p1_fill_drain=32, p1_fill_drain2=0, poll1_at=11, f3_pre=0, p2_f3=16,
           p2_pre=4, p2_pre2=4, p2_rate=1, r2_from=2, r2_kk=(1,3), r2_sb=(2,4,6), r2_6=0, wd_from=5, pollW=4, r2_a=2, r2_b=2, r2_c=1, p2_modi=-1, p2_mod=4, r2_pre=1, su_drain=500, r3_drain=8, pollA=(0,5,9), wd_flag=0, pg5=(2,5), pg6='e', hrot=0, abl=(), a1_bar=1, wd_early=1, xp=0, tr_rate=1, su_ks=12, tr_late=1, su_go=200, x0=6, su_span=10, a1_pre=4, st_ks=25, wd_st=(7,0,14),
           w64=0, bar2=0, rr=0, flip=0, rrh=0, gap=(24,24,28), vmc=8, epi_span=(20,18,12), sigB0=(2,12), pollB0=((2,20),), c0_ks=6, sigB01=(3,6), pollB01=((3,10),(3,14)), c01_ks=22, sigB2=28, u_ld=1, e_ld=2, p4_burst0=4, sg_pk=2, sg_rate=28, p4_poll2=(-1,1,3), p4_c2=6, p4_sig3=6, p4_poll3=(6,8,10), p4_c3=14, p4_b0=0, p4_burst=0, out_pol='sc1')

ABL = set()
class Q:
    def __init__(self, k): self.k = k; self.q = []; self.debt = 0
    def add(self, *atoms): self.q.extend(atoms)
    def lines(self, txt): self.q.extend([l.strip() for l in txt.strip().split('\n') if l.strip()])
    def vm(self, pre, txt, tag=None):
        if pre: self.q.append(lambda: (self.k.e(pre), self.k.vm_op(txt, tag)))
        else: self.q.append(('vm', txt, tag))
    def emit(self, n=1):
        c = 0
        while self.q and c < n:
            x = self.q.pop(0)
            if isinstance(x, tuple):
                (self.k.vm_op if x[0] == 'vm' else self.k.ds_op)(x[1], x[2]); c += 1
            elif callable(x): x(); c += 1
            else: self.k.e(x); c += len(x.strip().split('\n'))
    def cyc(self, budget):
        self.debt += budget
        while self.q and self.debt > 0:
            n0 = len(self.k.L); self.emit(1)
            for l in self.k.L[n0:]:
                mn = l.split()[0]
                self.debt -= 8 if mn in TRANS else 12 if mn.startswith('buffer_') else 4
        if not self.q: self.debt = 0
    def cost(self):
        return sum((12 if isinstance(x, tuple) else 8 if x.split()[0] in TRANS else 4*len(x.strip().split('\n'))) for x in self.q)
    def flush(self): self.emit(1 << 30)
    def __len__(self): return len(self.q)

PAGES = int(os.environ.get('PAGES', 1))
def page(k, n, ret=None, touch=None):
    if not PAGES: return
    for w, p in (touch or {}).items(): k.e(f's_cmp_eq_u32 s3, {w}\ns_cbranch_scc1 PT_{p}')
    k.e(f's_branch PL_{n}\nPE_{n}:\n.p2align 12\nPT_{n}:')
    if ret is not None: k.e(f's_branch PL_{ret}\ns_nop 0')
    k.e(f'PL_{n}:')
def t1_txt(dst, g, b, tmp):
    return f'''s_sub_u32 {tmp}, 64, {g}
    s_cmp_eq_u32 {g}, 0
    s_cselect_b32 {tmp}, 32, {tmp}
    s_cmp_eq_u32 {b}, 0
    s_cselect_b32 {dst}, {g}, {tmp}'''
def srd_txt(d, base, size): return f's_mov_b32 s{d}, s{base}\ns_and_b32 s{d+1}, s{base+1}, 0xffff\ns_mov_b32 s{d+2}, {size}\ns_mov_b32 s{d+3}, 0x20000'
P = lambda r: v(r, 2)

def signal(k, off, wave=0):
    l = k.label('SIG')
    k.e(f's_cmp_lg_u32 s3, {wave}\ns_cbranch_scc1 {l}\ns_mov_b32 s74, 1\ns_atomic_add s74, s[24:25], {off}\n{l}:')
def poll_issue(k, off, r='s0', wave=0):
    l = k.label('PI')
    k.e(f's_cmp_lg_u32 s3, {wave}\ns_cbranch_scc1 {l}\ns_mov_b32 {r}, 0\ns_atomic_add {r}, s[24:25], {off} glc\n{l}:')
def poll_check(k, off, target, r='s0', wave=0):
    l, d = k.label('PC'), k.label('PD')
    k.e(f'''s_cmp_lg_u32 s3, {wave}
    s_cbranch_scc1 {d}
    s_mov_b32 s1, 0
{l}:
    s_waitcnt lgkmcnt(0)
    s_cmp_ge_u32 {r}, {target}
    s_cbranch_scc1 {d}
    s_add_u32 s1, s1, 1
    s_cmp_gt_u32 s1, {SPIN_MAX}
    s_cbranch_scc1 {d}
    s_mov_b32 {r}, 0
    s_atomic_add {r}, s[24:25], {off} glc
    s_branch {l}
{d}:''')
MP = [76, 77, 78]
def gsignal(k, off, wave):
    l = k.label('SIG')
    k.e(f's_cmp_lg_u32 s3, {wave}\ns_cbranch_scc1 {l}\ns_atomic_add s74, s[30:31], {off}\n{l}:')
def fladdr(off, other): return f's[24:25], s79 offset:{off}' if other else f's[30:31], {off}'
def mp_issue(k, off, j, wave, other=False):
    if 'pol' in ABL and off: return
    l = k.label('MI')
    k.e(f's_cmp_lg_u32 s3, {wave}\ns_cbranch_scc1 {l}\ns_mov_b32 s{MP[j]}, -1\ns_atomic_and s{MP[j]}, {fladdr(off, other)} glc\n{l}:')
def mp_check(k, off, target, wave, other=False, pace=4):
    if 'chk' in ABL and (off, target) != (0, 7): return
    l, d = k.label('MC'), k.label('MD'); r = [k.label('MR') for _ in MP]
    t = f's_cmp_lg_u32 s3, {wave}\ns_cbranch_scc1 {d}\ns_mov_b32 s1, -1\n{l}:\n'
    for p in MP: t += f's_cmp_ge_i32 s{p}, {target}\ns_cbranch_scc1 {d}\n'
    t += f's_add_u32 s1, s1, 1\ns_cmp_gt_u32 s1, {SPIN_MAX*4}\ns_cbranch_scc1 {d}\ns_and_b32 s0, s1, {pace-1}\ns_cbranch_scc1 {l}\n'
    for p, x in zip(MP, r): t += f's_cmp_lg_u32 s{p}, -1\ns_cbranch_scc1 {x}\n'
    t += f's_branch {l}\n'
    for p, x in zip(MP, r): t += f'{x}:\ns_cmp_ge_i32 s{p}, {target}\ns_cbranch_scc1 {d}\ns_mov_b32 s{p}, -1\ns_atomic_and s{p}, {fladdr(off, other)} glc\ns_branch {l}\n'
    k.e(t + f'{d}:')
def reread(k, soff, junk):
    k.e('s_mov_b64 exec, 0xffff'); k.vm_op(f'buffer_load_dword v{junk}, v2, s[12:15], {soff} offen sc1'); k.e('s_mov_b64 exec, -1')
def lds_pad(k, n, junk):
    for _ in range(n): k.ds_op(f'ds_read_b32 v{junk}, v6')
def ready_loop(k, vz, vr):
    l, g = k.label('BS'), k.label('BG')
    k.e(f'''s_cmp_lg_u32 s75, 0
    s_cbranch_scc1 {g}
    s_mov_b32 s1, 0
    v_mov_b32 v{vz}, 0
{l}:
    s_sleep 8
    global_load_dword v{vr}, v{vz}, s[28:29] sc1
    s_add_u32 s1, s1, 1
    s_waitcnt vmcnt(0)
    v_readfirstlane_b32 s75, v{vr}
    s_cmp_gt_u32 s1, {SPIN_MAX}
    s_cbranch_scc1 {g}
    s_cmp_lg_u32 s75, 0
    s_cbranch_scc0 {l}
{g}:''')

P2_X, P2_GC, P2_XI = 114688, 126976, 151552
IMG = 29696; KSP = 4*IMG
ACC0 = 16; RING = 80; WX = 96; ET = 104
REGI = [0, 1, 4, 5, 8, 9, 12, 13, 2]; LDSI = [3, 6, 7, 10, 11]
WDL = [120832, 120832+16384, 0, 16384, 32768]
X1L = 59392; RED = 71680; XR = 128
R1A = int(os.environ.get('R1A', 0)); R1N = int(os.environ.get('R1N', 10)); R1L = 65536 - 8192*R1A
ROTMASK = int(os.environ.get('ROT', 0))
TLB_OFF = 0x23000
VD, VM, VS, TB = 208, 209, 210, 211
def wdreg(i, f):
    n = REGI.index(i)*4 + f
    return v(144+4*n, 4) if n < 28 else a(224+4*(n-28), 4)
def acc4(rl, t): return ACC0 + 32*rl + 16*t

def gen_kp(cfg=None):
    C = dict(CFG); C.update(cfg or {}); ABL.clear(); ABL.update(C['abl'])
    k = K(); k.stamp(0); k.st('start')
    k.e(f'''
    s_load_dwordx16 s[16:31], s[0:1], 48
    s_getpc_b64 s[6:7]
KP_PC:
    s_lshr_b32 s33, s2, 3
    v_and_b32 v1, 15, v0
    v_lshl_add_u32 v1, s33, 4, v1
    v_lshlrev_b32 v1, 7, v1
    v_min_u32 v1, KP_LAST-KP_PC-4, v1
    global_load_dword a255, v1, s[6:7]
    s_andn2_b32 s32, s2, 24
    s_cmp_lt_u32 s32, 7
    s_cbranch_scc1 KP_SIDE
    s_cmp_eq_u32 s32, 7
    s_cbranch_scc1 SD_Z
    s_load_dwordx2 s[4:5], s[0:1], 0
    s_cmp_ge_u32 s2, {GRID}
    s_cbranch_scc1 KP_END
    v_lshrrev_b32 v1, 6, v0
    v_and_b32 v2, 63, v0
    v_readfirstlane_b32 s3, v1
    v_lshlrev_b32 v3, 4, v2          ; lane*16
    v_and_b32 v4, 31, v2             ; lane&31
    v_lshrrev_b32 v5, 5, v2          ; h
    s_mov_b32 s14, {WS_END}
    s_mov_b32 s15, 0x20000
    s_and_b32 s34, s2, 1             ; hi
    s_lshr_b32 s35, s2, 3
    s_sub_u32 s35, s35, {NSIDE//8}
    s_mul_i32 s33, s35, 37
    s_lshr_b32 s33, s33, 8           ; gl = q/7
    s_and_b32 s6, s2, 7
    s_lshl_b32 s6, s6, 1
    s_lshr_b32 s7, s33, 1
    s_add_u32 s6, s6, s7             ; pair p
    s_sub_u32 s7, 32, s6
    s_cmp_eq_u32 s6, 0
    s_cselect_b32 s7, 16, s7
    s_bitcmp1_b32 s33, 0
    s_cselect_b32 s36, s7, s6        ; g
    s_and_b32 s32, s2, 6
    s_lshl_b32 s32, s32, 1
    s_add_u32 s32, s32, s33          ; G
    s_mul_i32 s33, s33, 7
    s_sub_u32 s35, s35, s33          ; lo
    s_mul_i32 s33, s34, 7
    s_add_u32 s33, s33, s35          ; mem
    ''')
    f = P1(k, C)
    P2(k, C, f)
    P3(k, C)
    P4(k, C)
    k.st('end')
    if K.MARK and not K.MARK.startswith('sd'): k.mark_spin()
    k.stamp_out(0, len(K.NAMES or [])+2)
    k.e('s_endpgm\nPE_7:\n' + ('.p2align 12\n' if PAGES else '') + 'KP_SIDE:'); k.reset_counts(); side(k, C)
    k.e('KP_END:\ns_endpgm\nKP_LAST:')
    return k.L

def w3slot(n, lo): return n if lo == 0 or n < 14 else n + 2
def w3_dma(k, lo, hi, ldsbase):
    q = Q(k)
    for ks in range(lo, hi):
        j, mu, a_ = ks >> 2, (ks >> 1) & 1, ks & 1
        row = 32*j + 16*a_ if not mu else 433 - 32*j - 16*a_
        vo = VS if ks == 2 else VM if mu else VD
        so = '0' if ks in (0, 2) else 's61'
        pre = f's_add_u32 m0, s60, {ldsbase + w3slot(ks-lo, lo)*8192}\n' + (f's_mov_b32 s61, {row*3584}' if so != '0' else 's_nop 0')
        if ('w3a' in ABL and lo == 0) or ('w3b' in ABL and lo): q.add(lambda: None, lambda: None); continue
        q.vm(pre, f'buffer_load_dwordx4 v{vo}, s[16:19], {so} offen lds')
        q.vm(None, f'buffer_load_dwordx4 v{vo}, s[20:23], {so} offen offset:1024 lds', f'w3_{ks}')
    return q
def w3_tr(k, lo, hi):
    q = Q(k)
    for ks in range(lo, hi):
        n = w3slot(ks - lo, lo)
        for mt in range(2):
            for hf in range(2):
                if 'tr' in ABL: q.add(lambda: None); continue
                q.add(('ds', f'ds_read_b64_tr_b16 {a(8*ks+4*mt+2*hf,2)}, v{TB+(n>>3)} offset:{(n&7)*8192+mt*1024+hf*4096}', 'tr'))
    return q

def P1(k, C):
    X = 16; UP = 72; M = 88; T = 96; WL = 216; WO = 224; BF = 40; AC = 160
    k.e(f'''
    v_lshrrev_b32 v6, 3, v2
    s_lshl_b32 s6, s3, 4
    v_add_u32 v6, s6, v6
    v_and_b32 v7, 7, v2
    v_mul_u32_u24 v246, {32*896}, v6
    v_lshl_add_u32 v246, v7, 4, v246
    v_add_u32 v247, {8*32*896}, v246 ; set 1
    s_mul_i32 s39, s36, 896
    s_lshl_b32 s40, s35, 7
    s_mov_b32 s10, {2048*896}
    s_mov_b32 s11, 0x20000
    s_add_u32 s37, s39, s40
    s_add_u32 s38, s39, 896
    ''')
    f = Q(k)
    wa = f'''
    s_sub_u32 s6, s2, {NSIDE}
    s_mul_i32 s7, s6, 9363
    s_lshr_b32 s7, s7, 16
    s_mul_i32 s64, s7, 7
    s_sub_u32 s64, s6, s64           ; jt
    s_lshl_b32 s7, s7, 2
    s_add_u32 s7, s7, s3             ; rb
    s_min_u32 s65, s7, 111
    s_mul_i32 s65, s65, {16*896}
    s_lshl_b32 s67, s64, 7
    s_add_u32 s65, s65, s67
    v_mul_u32_u24 v{WO}, {4*896}, v5
    v_and_b32 v232, 15, v2
    v_bfe_u32 v{WO+1}, v2, 4, 1
    v_lshlrev_b32 v234, 3, v232
    v_lshl_add_u32 v234, v{WO+1}, 2, v234
    {f'v_lshl_add_u32 v{WO}, v4, 2, v{WO}' if C['wl_nat'] or 'wl' in ABL else f'v_add_u32 v{WO}, v234, v{WO}'}
    v_lshl_add_u32 v234, v5, 7, v234
    v_lshlrev_b32 v232, 4, v232
    v_lshl_add_u32 v232, v5, 8, v232
    v_lshl_add_u32 v232, v{WO+1}, 11, v232     ; packed store voffset
    v_add_u32 v{WO}, s65, v{WO}
    v_add_u32 v{WO+1}, {8*896}, v{WO}'''
    wb = f'''
    s_lshl_b32 s64, s64, 2
    s_bfe_u32 s65, s7, 0x20001
    s_add_u32 s64, s64, s65
    s_mul_i32 s64, s64, 14
    s_lshr_b32 s65, s7, 3
    s_add_u32 s64, s64, s65
    s_lshl_b32 s64, s64, 3
    s_and_b32 s65, s7, 1
    s_add_u32 s64, s64, s65
    s_lshl_b32 s64, s64, 9
    s_add_u32 s64, s64, {WS_WDP}
    s_lshl_b32 s65, s32, 9
    s_sub_u32 s67, s67, s65
    s_add_u32 s67, s67, {FL_WD}
    s_cmp_lt_u32 s6, 196
    s_cselect_b32 s64, s64, 0x7fff0000
    s_cselect_b32 s69, s3, 0
    s_mov_b32 s65, 0x05040100
    s_mov_b32 s66, 0x07060302'''
    f.lines(f'''
    s_and_b32 s6, s2, 7
    s_mul_i32 s7, s3, 7
    s_add_u32 s7, s7, s6
    s_add_u32 s7, s7, 14
    s_lshl_b32 s43, s3, 1
    s_add_u32 s43, s43, 1''')
    f.add('s_cmp_eq_u32 s6, 7\ns_cselect_b32 s7, s43, s7')
    f.lines(f'''s_lshl_b32 s7, s7, 7
    s_lshr_b32 s6, s2, 3
    s_sub_u32 s6, s6, {NSIDE//8}
    s_mul_i32 s6, s6, {16*5376}
    s_add_u32 s7, s7, s6
    v_mul_u32_u24 v250, 5376, v2
    s_and_b32 s43, s2, 7
    s_add_u32 s43, s43, 7
    s_lshl_b32 s43, s43, 7
    s_add_u32 s43, s43, s6
    s_mul_i32 s6, s3, {4*5376}
    s_add_u32 s43, s43, s6
    v_add_u32 v249, s43, v250
    v_add_u32 v250, s7, v250
    s_lshr_b32 s7, s3, 1
    s_mul_i32 s7, s7, 1792
    v_lshl_add_u32 v252, v2, 7, s7
    s_sub_u32 s6, s2, {NSIDE}''')
    f.add(f'''s_add_u32 s7, s6, 224
    s_cmp_eq_u32 s6, 128
    s_cselect_b32 s7, 224, s7
    s_cmp_lt_u32 s6, 128
    s_cselect_b32 s7, s6, s7
    s_mul_i32 s7, s7, 3584
    v_add_u32 v251, s7, v252
    s_cmp_ge_u32 s6, 96
    s_addc_u32 s6, s6, 128
    s_mul_i32 s6, s6, 3584
    v_add_u32 v252, s6, v252''')
    npf = len(f)
    def pf_mod(): k.e('s_mov_b64 exec, 0xffff'); k.vm_op('global_load_dword a254, v250, s[0:1]'); k.e('s_mov_b64 exec, -1')
    def pf_ca(): k.e('s_mov_b64 exec, 15'); k.vm_op('global_load_dword a251, v249, s[24:25]'); k.e('s_mov_b64 exec, -1')
    def pf_w3(h): k.e('s_mov_b64 exec, 0x3fff'); k.vm_op(f'global_load_dword a{253-h}, v{251+h}, s[26:27]'); k.e('s_mov_b64 exec, -1')
    f.lines(f'''
    v_lshrrev_b32 v{T}, 4, v2
    v_bfe_u32 v{T+1}, v2, 2, 2
    v_xor_b32 v{T+1}, v{T+1}, v{T}
    v_and_b32 v{T+2}, 3, v2
    v_lshlrev_b32 v{T+2}, 4, v{T+2}
    v_lshl_add_u32 v{T+1}, v{T+1}, 6, v{T+2}
    s_lshl_b32 s6, s33, 8
    v_add_u32 v{T+1}, s6, v{T+1}
    s_lshl_b32 s6, s3, 2
    v_add_u32 v{T}, s6, v{T}         ; row in k-step
    v_mul_u32_u24 v{VD}, 3584, v{T}
    v_sub_u32 v{VM}, {15*3584}, v{VD}
    v_add_u32 v{VD}, v{VD}, v{T+1}
    v_add_u32 v{VM}, v{VM}, v{T+1}
    v_cmp_eq_u32 vcc, 0, v{T}
    v_mov_b32 v{T+1}, {433*3584}
    v_mov_b32 v{T+2}, {(433-224)*3584}
    v_cndmask_b32 v{T+1}, v{T+1}, v{T+2}, vcc
    v_add_u32 v{VS}, v{VM}, v{T+1}
    s_lshl_b32 s60, s3, 11
    ''')
    nearly = len(f)
    f.lines(f'''
    s_and_b32 s46, s3, 1
    s_lshl_b32 s46, s46, 4
    s_lshr_b32 s47, s3, 1            ; isI
    v_and_b32 v11, 15, v2
    v_add_u32 v12, s46, v11          ; g row
    v_cvt_f32_u32 v13, v12''')
    f.add(f'''s_cmp_eq_u32 s47, 1
    s_cselect_b32 s6, {f2h(0.25)}, 0
    s_cselect_b32 s7, {f2h(32.0)}, 0''')
    f.lines(f'''
    v_cmp_eq_u32 vcc, 0, v12
    v_mov_b32 v{T}, s6
    v_mov_b32 v{T+1}, s7
    v_cndmask_b32 v13, v13, v{T+1}, vcc
    v_cndmask_b32 v{T}, v{T}, 0, vcc
    v_mul_f32 v13, {f2h(1/64)}, v13
    v_lshrrev_b32 v14, 4, v2
    v_lshlrev_b32 v14, 2, v14
    v_cvt_f32_u32 v{T+1}, v14
    v_fma_f32 v{T}, v13, v{T+1}, v{T}
    ''')
    for ks in range(2):
        for n in range(8): f.add(f'v_fmamk_f32 v{T+2+n}, v13, {f2h(32*ks + 16*(n >> 2) + (n & 3))}, v{T}')
        for n in range(8): f.add(f'v_cos_f32 v{T+2+n}, v{T+2+n}')
        for r in range(4): f.add(f'v_cvt_pk_bf16_f32 v{M+4*ks+r}, v{T+2+2*r}, v{T+3+2*r}')
    f.lines(f'''
    v_mul_u32_u24 v6, 160, v6
    v_lshl_add_u32 v244, v7, 4, v6   ; N write addr
    v_lshrrev_b32 v7, 2, v2
    v_mul_u32_u24 v7, 160, v7
    v_and_b32 v12, 3, v2
    v_lshl_add_u32 v245, v12, 3, v7  ; N tr read addr
    v_add_u32 v14, s46, v14
    v_mul_u32_u24 v14, {2*32*896}, v14
    v_lshl_add_u32 v248, v11, 3, v14 ; U voffset
    s_mul_i32 s47, s47, {32*896}
    s_add_u32 s47, s47, s39
    s_add_u32 s47, s47, s40          ; U soffset
    s_mov_b32 s73, 0x3f803f80
    ''')
    for i in range(0, 8, 2): f.add(f'v_mov_b64 {P(T+i)}, 0')
    f.add(f'v_mov_b32 v233, {f2h(1e-5)}')
    f.lines(wa); f.add(wb)
    f.lines(f's_mul_i32 s6, s3, {(NREP-2)//4*1024}\ns_add_u32 s40, s40, s6\ns_lshl_b32 s6, s32, 9\ns_sub_u32 s40, s40, s6\ns_add_u32 s40, s40, {FL_BAR}')
    f2 = P2_pre(k)
    ntot = len(f); f.emit(C['p1_fill0'])
    k.st('ka0'); k.e('s_waitcnt lgkmcnt(0)'); k.st('ka1'); k.e('s_mov_b32 s8, s4\ns_and_b32 s9, s5, 0xffff')
    xq = Q(k)
    XO = [(i, st) for i in range(7) for st in range(2)] if not C['p1_split'] else [(0, 0), (0, 1)] + [(i, st) for st in range(2) for i in range(1, 7)]
    adv = 's_add_u32 s37, s37, 128\ns_cmp_ge_u32 s37, s38\ns_cselect_b32 s37, s39, s37'
    for n, (i, st) in enumerate(XO):
        pre = None if n == 0 or XO[n-1][0] == i else adv if XO[n-1][0] < i else adv + '\n' + adv
        xq.vm(pre, f'buffer_load_dwordx4 {v(X+28*st+4*i,4)}, v{246+st}, s[8:11], s37 offen', f'x{i}{st}')
    f.q[0:0] = [f's_mov_b64 s[82:83], s[20:21]\ns_mov_b32 s12, s30\ns_and_b32 s13, s31, 0xffff',
                f's_sub_u32 s20, s18, 1024\ns_subb_u32 s21, s19, 0\ns_and_b32 s21, s21, 0xffff\ns_mov_b32 s22, {448*3584+1024}\ns_mov_b32 s23, 0x20000\ns_and_b32 s17, s17, 0xffff\ns_mov_b32 s18, {448*3584}\ns_mov_b32 s19, 0x20000']
    if C['pf_ca'] == 1: assert ntot - len(f) + 2 >= npf; pf_ca()
    xq.emit(C['x_first'] + 2)
    hd = [f.q.pop(0), f.q.pop(0)]
    while ntot - len(f) < npf: f.emit(1)
    f.q[0:0] = hd
    if C['pf_ca'] == 2: pf_ca()
    k.e('s_mov_b64 s[0:1], s[24:25]')
    k.e('s_mov_b64 s[80:81], s[26:27]\ns_bitcmp1_b32 s3, 0\ns_cselect_b64 s[26:27], s[18:19], s[16:17]')
    if C['pf_mod'] == 1: pf_mod()
    if C['pf_a'] == 1: pf_w3(0)
    for n in range(C['p1_ld_pre']-2-C['x_first']): f.cyc(C['p1_fill']); xq.emit(1)
    f.flush(); f2.cyc(C['p1_f2'])
    k.st('p1iss'); page(k, 1, None, {1: 2, 2: 3, 3: 4})
    wlq = [('vm', f'global_load_dword v{WL+n}, v{WO+(n>>2)}, s[82:83] offset:{896*(n&3)}', 'wl') for n in range(8)]
    assert C['wl_early']; cq = Q(k)
    c2 = Q(k)
    if C['pf_mod'] == 2: c2.add(pf_mod)
    if C['pf_a'] == 2: c2.add(lambda: pf_w3(0))
    if C['pf_b']: cq.add(lambda: pf_w3(1))
    if C['wl_c2']: c2.add(*[lambda j=j: [k.vm_op(x[1], x[2]) for x in wlq[j:j+2]] for j in range(0, 8, 2)])
    elif 'cold' not in ABL: cq.q += wlq
    w3 = w3_dma(k, 0, R1N, R1L)
    def tail(sets):
        q = Q(k); ts = [T+4*st+o for st in sets for o in (0, 2)]
        for t in ts: q.add(f'v_add_f32 v{t}, v{t}, v{t+1}')
        for m in ('quad_perm:[1,0,3,2]', 'quad_perm:[2,3,0,1]', 'row_half_mirror'):
            for t in ts: q.add(f'v_add_f32_dpp v{t}, v{t}, v{t} {m} row_mask:0xf bank_mask:0xf')
        for txt in (f'v_mul_f32 v#0, {f2h(-1/448)}, v#0', f'v_fmamk_f32 v#2, v#2, {f2h(1/448)}, v233', 'v_fma_f32 v#2, -v#0, v#0, v#2', 'v_max_f32 v#2, v233, v#2',
                    'v_rsq_f32 v#2, v#2', 'v_mul_f32 v#0, v#0, v#2'):
            for st in sets: q.add(txt.replace('#0', str(T+4*st)).replace('#2', str(T+4*st+2)))
        for st in sets:
            t = T+4*st
            for d in range(4): q.add(f'v_pk_fma_f32 {P(UP+8*st+2*d)}, {P(UP+8*st+2*d)}, {P(t+2)}, {P(t)} op_sel_hi:[1,0,0]')
            for d in range(4): q.add(f'v_cvt_pk_bf16_f32 v{X+4*st+d}, v{UP+8*st+2*d}, v{UP+8*st+2*d+1}')
            q.add(('ds', f'ds_write_b128 v244, {v(X+4*st,4)} offset:{8*160*st}', None))
        return q
    t0 = Q(k)
    for n, (i, st) in enumerate(XO):
        k.wait(vm=f'x{i}{st}'); k.st(f'x{i}{st}')
        if len(xq): xq.emit(1)
        elif len(c2) and n >= C['c2_at']:
            if n == C['c2_at'] and C['c2_bar']: k.e('s_barrier')
            c2.emit(1)
        elif len(cq) and n >= C['cold_at']: cq.emit(C['cold_rate'])
        elif n < C['w3_at']: pass
        elif 2*R1N - len(w3) < C['p1_w3_ld']: w3.emit(1)
        for d in range(4):
            r = X+28*st+4*i+d; t = T+4*st+(d & 1)
            k.e(f'v_dot2_f32_bf16 v{t}, v{r}, s73, v{t}\nv_dot2_f32_bf16 v{t+2}, v{r}, v{r}, v{t+2}')
            if d or n > 8: t0.emit(1)
        if i == 0:
            for d in range(4): k.e(f'v_lshlrev_b32 v{UP+8*st+2*d}, 16, v{X+28*st+d}\nv_and_b32 v{UP+8*st+2*d+1}, 0xffff0000, v{X+28*st+d}')
        if C['p1_split'] and n == 7: t0 = tail([0])
    assert not len(xq) and not len(c2)
    k.st('p1dat')
    t0.flush(); tail([1] if C['p1_split'] else [0, 1]).flush()
    w3.emit(C['p1_w3_a']); cq.emit(C['cold_a'])
    k.wait(lg='all'); k.e('s_barrier'); k.st('p1bar')
    for ks in range(2):
        for t in range(4):
            for hf in range(2):
                k.ds_op(f'ds_read_b64_tr_b16 {v(BF+16*ks+4*t+2*hf,2)}, v245 offset:{ks*32*160+hf*16*160+t*32}', f'b{ks}{t}')
    w3.emit(C['p1_w3_b'])
    if C['cold_at'] < 99: cq.flush()
    for ks in range(2):
        for t in range(4):
            k.wait(lg=f'b{ks}{t}')
            c = '0' if ks == 0 else v(AC+4*t,4)
            k.e(f'v_mfma_f32_16x16x32_bf16 {v(AC+4*t,4)}, {v(M+4*ks,4)}, {v(BF+16*ks+4*t,4)}, {c}')
    w3.emit(C['p1_w3_c'])
    for r in range(4):
        k.e(f'v_cvt_pk_bf16_f32 v{X+2*r}, v{AC+r}, v{AC+4+r}\nv_cvt_pk_bf16_f32 v{X+2*r+1}, v{AC+8+r}, v{AC+12+r}')
        k.vm_op(f'buffer_store_dwordx2 {v(X+2*r,2)}, v248, s[12:15], s47 offen sc1', 'ust')
        if r < 3: k.e(f's_add_u32 s47, s47, {2*32*896}')
    k.st('p1st')
    if C['rdy'] == 0: k.e('s_load_dword s75, s[28:29], 0x0')
    assert C['ssig'] and len(w3) % 2 == 0
    n1 = R1N - len(w3)//2
    while not f2.xready(): f2.emit(1)
    for t in range(3 if 'xi' not in ABL else 2):
        k.e(f's_add_u32 m0, s44, {1024*t}')
        k.vm_op(f'buffer_load_dwordx4 v{T2+10+t}, s[8:11], s43 offen lds', 'xi')
    if C['cold_at'] == 99: cq.flush()
    f2.q += k.f3.q; k.f3.q = []
    if C['rdy'] == 1: k.e('s_load_dword s75, s[28:29], 0x0')
    f2.cyc(C['p1_fill_drain0'])
    if C['rdy'] == 2: k.e('s_load_dword s75, s[28:29], 0x0')
    for n in range(C['p1_w3_drain']): w3.emit(1); f2.cyc(C['p1_fill_drain'])
    f2.cyc(C['p1_fill_drain2'])
    if C['cold_at'] == 100: cq.flush()
    k.wait(vm='ust', lg='all'); k.e('s_barrier'); k.st('sig1')
    ready_loop(k, UP+2, UP+3)
    for i in range(4): k.e(f's_atomic_add s74, s[24:25], s40 offset:{1024*i}')
    k.tr1 = tr = w3_tr(k, 0, R1N)
    k.st('w0')
    def xreads():
        k.st('w7'); k.wait(vm='xi'); k.st('w8')
        la, lb = k.label('P2xa'), k.label('P2xb')
        k.e(f's_cmp_eq_u32 s49, 0\ns_cbranch_scc0 {la}')
        for r in range(16): k.e(f'ds_read_u16_d16_hi v{XV+r}, v1 offset:{2*DELT[r]}')
        k.e(f's_branch {lb}\n{la}:')
        for r in range(16): k.ds_op(f'ds_read_u16_d16_hi v{XV+r}, v1 offset:{2*DELT[15-r]}', 'xv')
        k.e(f'{lb}:')
    k.st('w1')
    n = 0
    while len(w3):
        if n == C['poll1_at'] and not C['ld1']:
            if C['mp1']:
                l = k.label('B0')
                k.e(f's_mov_b32 s76, -1\ns_atomic_and s76, s[24:25], s53 glc\ns_mov_b32 s78, 36\ns_mov_b32 s4, 0\ns_cmp_eq_u32 s3, 3\ns_cbranch_scc1 {l}\ns_mov_b32 s78, -1\ns_atomic_and s78, s[24:25], s56 glc\n{l}:')
            else: k.e('s_cmp_eq_u32 s3, 3\ns_cselect_b32 s5, s53, s56\ns_mov_b32 s0, 0\ns_mov_b32 s4, 0\ns_atomic_add s0, s[24:25], s53 glc\ns_atomic_add s4, s[24:25], s5 glc')
        if n == C['cold_n']:
            if n: k.e('s_barrier')
            cq.flush()
        w3.emit(1); f2.cyc(24); n += 1
        if len(tr) > 4*(R1N-min(n1, R1A)): tr.emit(2)
    def pollB():
        l = k.label('B0'); k.e(f's_mov_b32 s77, -1\ns_atomic_and s77, s[24:25], s53 glc\ns_cmp_eq_u32 s3, 3\ns_cbranch_scc1 {l}\ns_mov_b32 s4, -1\ns_atomic_and s4, s[24:25], s56 glc\n{l}:')
    page(k, 2, 1)
    if C['cold_at'] == 101:
        if len(cq): k.e('s_barrier')
        if C['poll1b'] == 1: pollB()
        cq.flush()
        if C['poll1b'] == 2: pollB()
    k.cq = cq
    if n1 < R1A: k.wait(vm=f'w3_{R1A-1}'); k.e('s_barrier')
    tr.emit(len(tr) - 4*(R1N-R1A))
    if C['poll1_at'] >= n: k.e('s_cmp_eq_u32 s3, 3\ns_cselect_b32 s78, 36, 0\ns_mov_b32 s4, 0')
    k.st('r1iss')
    k.f3.q = f2.q; assert len(k.f3) <= k.nf3
    def wdst():
        k.wait(vm='wl', lg='wbp')
        for t in range(2):
            for r in range(4): k.e(f'v_perm_b32 v{WO+4*t+r}, v{WL+2*r+1}, v{WL+2*r}, s{65+t}')
    k.wdq = Q(k)
    def wdbp():
        k.wait(vm='wl')
        for n in range(8): k.ds_op(f'ds_bpermute_b32 v{WL+n}, v234, v{WL+n}', 'wbp')
    if C['wl_nat']: k.wdq.add(wdbp)
    if C['cold_at'] < 99: wdst()
    else: k.wdq.add(wdst)
    for t in range(2): k.wdq.vm(None, f'buffer_store_dwordx4 {v(WO+4*t,4)}, v232, s[12:15], s64 offen offset:{1024*t} sc1', 'wdst')
    if C['ld1'] == 1: k.e('s_cmp_eq_u32 s3, 3\ns_cselect_b32 s5, s53, s56\ns_load_dword s0, s[24:25], s53 glc\ns_load_dword s4, s[24:25], s5 glc')
    xreads()
    k.f3.cyc(C['f3_pre']); k.st('w6')
    if C['ld1'] == 2: k.e('s_cmp_eq_u32 s3, 3\ns_cselect_b32 s5, s53, s56\ns_load_dword s0, s[24:25], s53 glc\ns_load_dword s4, s[24:25], s5 glc')
    k.f3.cyc(C['f3_post'])
    return None

ACC = 16; FB = 32; CC = 96; SG = 104; IC = 112; RS = 120; IS = 128; XV = 136; GA = 152; CB = 168; ZF = 184; ZB = 188; T2 = 192
def P2_pre(k):
    T = T2; f = Q(k)
    f.lines(f'''
    v_bfe_u32 v{TB}, v2, 2, 2
    v_xor_b32 v{T}, s3, v{TB}
    v_lshlrev_b32 v{TB}, 8, v{TB}
    v_lshl_add_u32 v{TB}, v{T}, 6, v{TB}
    v_bfe_u32 v{T}, v2, 4, 1
    v_lshl_add_u32 v{TB}, v{T}, 5, v{TB}
    v_and_b32 v{T}, 3, v2
    v_lshl_add_u32 v{TB}, v{T}, 3, v{TB}
    v_lshl_add_u32 v{TB}, v5, 11, v{TB}
    v_add_u32 v{TB}, {R1L}, v{TB}
    v_add_u32 v{TB+1}, 0x10000, v{TB}
    s_and_b32 s48, s3, 1
    s_lshr_b32 s49, s3, 1
    v_lshrrev_b32 v6, 3, v2
    s_lshl_b32 s6, s3, 4
    v_add_u32 v6, s6, v6
    v_mul_u32_u24 v6, 896, v6
    v_lshrrev_b32 v{T+8}, 4, v2
    v_xor_b32 v{T+8}, v{T+8}, v2
    v_and_b32 v{T+8}, 7, v{T+8}
    v_xor_b32 v{T+9}, 4, v{T+8}
    v_lshl_add_u32 v{T+9}, v{T+9}, 4, v6
    v_add_u32 v{T+9}, {8*896-1024}, v{T+9}
    v_lshl_add_u32 v{T+8}, v{T+8}, 4, v6
    s_mul_i32 s52, s36, 57344        ; U soffset
    s_mul_i32 s54, s49, 28
    s_lshl_b32 s55, s48, 1
    s_add_u32 s54, s54, s55
    s_lshl_b32 s54, s54, 10
    s_mul_i32 s55, s35, 57344
    s_add_u32 s55, s55, s54
    s_add_u32 s55, s55, {WS_CP}
    s_mov_b32 s70, s52
    s_mov_b32 s71, s55
    s_add_u32 s72, s52, 896
    s_and_b32 s6, s2, {ROTMASK}
    s_min_u32 s6, s6, 6
    s_lshl_b32 s6, s6, 7
    s_add_u32 s52, s52, s6
    s_lshl_b32 s6, s6, 5
    s_add_u32 s55, s55, s6
    s_lshl_b32 s24, s32, 9
    s_add_u32 s24, s24, {WS_FLAG}
    ''')
    f.add('s_add_u32 s24, s24, s30\ns_addc_u32 s25, s31, 0\ns_lshl_b32 s6, s34, 13\ns_add_u32 s30, s24, s6\ns_addc_u32 s31, s25, 0')
    f.lines('s_mov_b64 s[76:77], 0\ns_mov_b32 s78, 0\ns_xor_b32 s79, s34, 1\ns_lshl_b32 s79, s79, 13\ns_mov_b32 s74, 1')
    f.lines(('s_and_b32 s53, s2, 7' if RX else f's_lshr_b32 s53, s32, {RSH}') + f'''
    s_lshl_b32 s53, s53, 10
    s_lshl_b32 s6, s32, 9
    s_sub_u32 s53, s53, s6
    s_lshl_b32 s6, s3, 8
    s_add_u32 s53, s53, s6
    s_add_u32 s53, s53, {FL_BAR}     ; barrier counter offset (rel s[24:25]) of chunk 2w
    s_add_u32 s56, s53, 128
    s_and_b32 s6, s32, 1
    s_lshl_b32 s6, s6, 10
    s_sub_u32 s68, s56, s6           ; mod counter (even replicas only; used by wave 3)''')
    f.add(t1_txt('s50', 's36', 's48', 's6'))
    f.lines(f'''s_lshl_b32 s51, s35, 1
    s_add_u32 s51, s51, s49          ; beta
    s_lshl_b32 s41, s51, 7
    s_add_u32 s41, s41, {WS_MOD+GA_P}
    v_lshlrev_b32 v{T+13}, 2, v4
    v_lshl_add_u32 v{T+13}, v5, 11, v{T+13}
    s_lshl_b32 s42, s3, 8
    s_add_u32 s42, s42, {P2_GC}
    v_lshl_add_u32 v{T+14}, v5, 4, s42''')
    f.add(f'''s_lshl_b32 s7, s35, 6
    s_sub_u32 s6, 832, s7
    s_cmp_eq_u32 s49, 0
    s_cselect_b32 s7, s7, s6
    s_add_u32 s6, s7, 64
    s_cmp_eq_u32 s6, 896
    s_cselect_b32 s6, 448, s6
    s_cmp_eq_u32 s49, 0
    s_cselect_b32 s6, 0x7fff0000, s6
    v_mov_b32 v{T+3}, s6''')
    f.lines(f's_mul_i32 s43, s50, 896\ns_mul_i32 s44, s3, 3072\ns_add_u32 s44, s44, {P2_XI}')
    for t in range(3):
        f.lines(f'''v_add_u32 v{T}, {64*t}, v2
        v_mul_u32_u24 v{T+1}, 205, v{T}
        v_lshrrev_b32 v{T+1}, 10, v{T+1}
        v_mul_u32_u24 v{T+2}, 5, v{T+1}
        v_sub_u32 v{T}, v{T}, v{T+2}
        v_cmp_eq_u32 vcc, 4, v{T}
        v_lshl_add_u32 v{T}, v{T}, 4, s7
        v_mul_u32_u24 v{T+1}, {64*896}, v{T+1}
        v_cndmask_b32 v{T}, v{T}, v{T+3}, vcc
        v_add_u32 v{T+10+t}, v{T}, v{T+1}''')
    nx = len(f)
    U = GA; k.f3 = f3 = Q(k)
    f3.lines(f'''
    v_lshlrev_b32 v{U}, 6, v4
    v_add_u32 v{U}, s50, v{U}
    v_or_b32 v{U+1}, v{U}, v5
    v_cmp_eq_u32 vcc, 0, v{U+1}
    v_lshlrev_b32 v{TB+3}, 2, v4
    v_mov_b32 v{ZB}, 0x45004500
    v_cvt_f32_u32 v{U}, v{U}
    v_cndmask_b32 v{ZB}, 0, v{ZB}, vcc
    v_mov_b32 v{ZB+1}, v{ZB}
    v_mov_b32 v{ZB+2}, v{ZB}
    v_mov_b32 v{ZB+3}, v{ZB}
    v_mul_f32 v{U}, {f2h(1/2048)}, v{U}
    v_lshlrev_b32 v{U+1}, 2, v5
    v_cvt_f32_u32 v{U+1}, v{U+1}
    v_mul_f32 v{U+1}, v{U}, v{U+1}''')
    for r in range(8):
        f3.lines(f'''v_fmamk_f32 v{U+2}, v{U}, {f2h(DELT[2*r])}, v{U+1}
        v_fmamk_f32 v{U+3}, v{U}, {f2h(DELT[2*r+1])}, v{U+1}
        v_cos_f32 v{U+4}, v{U+2}
        v_cos_f32 v{U+5}, v{U+3}
        v_sin_f32 v{U+2}, v{U+2}
        v_sin_f32 v{U+3}, v{U+3}
        v_cvt_pk_bf16_f32 v{CC+r}, v{U+4}, v{U+5}
        v_cvt_pk_bf16_f32 v{SG+r}, v{U+2}, v{U+3}''')
    f3.add(f'''s_cmp_eq_u32 s36, 0
    s_cselect_b32 s73, 0, -1''')
    f3.lines(f'''v_mov_b32 v{U}, s73
    s_mul_i32 s73, s48, 0x80008000
    s_mul_i32 s38, s49, 0x80008000
    s_xor_b32 s37, s38, 0x80008000
    s_xor_b32 s38, s38, s73''')
    for r in range(8):
        f3.lines(f'''v_bitop3_b32 v{IC+r}, v{SG+r}, s73, v{U} bitop3:0x28
        v_xor_b32 v{RS+r}, s37, v{SG+r}
        v_bitop3_b32 v{IS+r}, v{CC+r}, s38, v{U} bitop3:0x28''')
    f.lines(f'''
    s_lshl_b32 s6, s48, 12
    v_lshlrev_b32 v9, 7, v4
    v_add_u32 v9, s6, v9
    v_bfe_u32 v{T+2}, v2, 1, 3
    v_xor_b32 v{T+2}, v{T+2}, v5
    v_lshl_add_u32 v9, v{T+2}, 4, v9
    v_xor_b32 v10, 32, v9
    v_xor_b32 v11, 64, v9
    v_xor_b32 v12, 96, v9
    s_lshl_b32 s6, s49, 12
    s_add_u32 s6, s6, 8192
    v_add_u32 v13, s6, v3
    ''')
    f.add('s_cmp_eq_u32 s36, 0\ns_cselect_b32 s46, s48, 0')
    f.lines(f's_add_u32 s6, s60, {P2_X}\nv_add_u32 v0, s6, v3')
    for r in range(0, 16, 2): f.add(f'v_mov_b64 {P(XV+r)}, 0')
    f.add(f'''s_cmp_eq_u32 s51, 1
    s_cselect_b32 s6, 4096, 0
    s_cselect_b32 s45, 7, s35
    v_mov_b32 v{T}, s6''')
    f.lines(f'''v_cmp_eq_u32 vcc, 0, v4
    v_add_u32 v15, {P2_X+4096}, v3
    v_mul_u32_u24 v1, 80, v4
    v_cndmask_b32 v{T}, 0, v{T}, vcc
    v_add_u32 v14, v0, v{T}
    v_lshl_add_u32 v7, v{T}, 1, v3
    v_add_u32 v7, {P2_X}, v7
    s_lshl_b32 s6, s46, 11
    v_add_u32 v6, s6, v7
    v_add_u32 v8, s6, v15
    v_add_u32 v1, s44, v1
    v_lshlrev_b32 v{T}, 3, v5
    v_sub_u32 v{T+1}, 10, v{T}
    s_lshl_b32 s45, s45, 7
    s_add_u32 s45, s45, {WS_ZF}''')
    f.add(f'''s_cmp_eq_u32 s49, 0
    s_cselect_b64 vcc, -1, 0
    v_cndmask_b32 v{T}, v{T+1}, v{T}, vcc
    v_add_u32 v1, v1, v{T}''')
    f.lines(f'''
    s_lshl_b32 s6, s32, 1
    s_add_u32 s6, s6, s34
    s_lshl_b32 s6, s6, 1
    s_add_u32 s6, s6, s48            ; rho
    s_mul_i32 s57, s6, 14
    s_add_u32 s57, s57, s51
    s_lshl_b32 s58, s57, 8
    s_add_u32 s58, s58, {WS_ST}
    s_lshl_b32 s57, s57, 11
    s_add_u32 s59, s57, {WS_X1}
    s_add_u32 s57, s57, {WS_X1C}
    v_lshlrev_b32 v{T+15}, 3, v4
    v_lshl_add_u32 v{T+15}, v5, 2, v{T+15}
    s_lshl_b32 s62, s34, 1
    s_xor_b32 s62, s62, s49
    s_or_b32 s63, s36, s48
    v_mov_b64 {P(T)}, 0
    v_mov_b64 {P(T+2)}, 0
    ''')
    k.nf3 = len(f3); tot = len(f); f.xready = lambda: tot - len(f) >= nx
    return f

def P2(k, C, _):
    T = T2
    if C['mp1']:
        for _ in range(8): k.ds_op('ds_read_b32 v16, v3')
        k.wait(lg='xv')
        l, d, sb = k.label('B1'), k.label('B1D'), k.label('B1B'); pace = C['mp1']
        def re(p, t, off):
            x = k.label('B1S')
            return f's_cmp_eq_u32 {t}, 36\ns_cbranch_scc1 {x}\ns_cmp_ge_u32 {p}, 36\ns_cbranch_scc1 {x}\ns_mov_b32 {p}, -1\ns_atomic_and {p}, s[24:25], {off} glc\n{x}:\n'
        k.e(f'''s_mov_b32 s1, {pace-1 if not C['poll1b'] else C['poll1c']}
{l}:
    s_max_i32 s6, s76, s77
    s_max_i32 s7, s78, s4
    s_min_i32 s0, s6, s7
    s_cmp_eq_u32 s0, 36
    s_cbranch_scc1 {d}
    s_add_u32 s1, s1, 1
    s_and_b32 s0, s1, {pace-1}
    s_cbranch_scc1 {l}
    s_cmp_gt_u32 s1, {SPIN_MAX*8}
    s_cbranch_scc1 {d}
    s_and_b32 s0, s1, {pace}
    s_cbranch_scc1 {sb}
''' + re('s76', 's6', 's53') + re('s78', 's7', 's56') + f's_branch {l}\n{sb}:\n' + re('s77', 's6', 's53') + re('s4', 's7', 's56') + f's_branch {l}\n{d}:\ns_mov_b32 m0, s60')
    else:
        l, d = k.label('B1'), k.label('B1D')
        k.e(f'''s_mov_b32 s1, 0
{l}:
    s_waitcnt lgkmcnt(0)
    s_add_u32 s0, s0, s4
    s_cmp_eq_u32 s0, 72
    s_cbranch_scc1 {d}
    s_add_u32 s1, s1, 1
    s_cmp_gt_u32 s1, {SPIN_MAX}
    s_cbranch_scc1 {d}
    s_mov_b32 s0, 0
    s_mov_b32 s4, 0
    s_atomic_add s0, s[24:25], s53 glc
    s_atomic_add s4, s[24:25], s5 glc
    s_branch {l}
{d}:
    s_mov_b32 m0, s60''')
    if not C['r1sep']: k.wait(vm=f'w3_{R1N-1}')
    k.e('s_barrier')
    k.lg = []; k.st('bar1')
    dq = Q(k)
    for c in range(7):
        dq.vm(f's_add_u32 m0, s60, {16384*c}\ns_add_u32 s52, s52, 128\ns_add_u32 s55, s55, 4096\ns_cmp_eq_u32 s52, s72\ns_cselect_b32 s52, s70, s52\ns_cselect_b32 s55, s71, s55' if c else None, f'buffer_load_dwordx4 v{T+8}, s[12:15], s52 offen sc1 lds')
        dq.vm(None, f'buffer_load_dwordx4 v{T+9}, s[12:15], s52 offen offset:1024 sc1 lds')
        dq.vm(f's_add_u32 m0, s60, {16384*c+8192}', 'buffer_load_dwordx4 v3, s[12:15], s55 offen sc1 lds')
        dq.vm(None, 'buffer_load_dwordx4 v3, s[12:15], s55 offen offset:1024 sc1 lds', f'ch{c}')
    gq = Q(k)
    gq.vm('s_mov_b32 m0, s42', f'buffer_load_dword v{T+13}, s[12:15], s41 offen sc1 lds', 'gc')
    k.r2 = r2 = w3_dma(k, R1N, 28, 0); NR2 = len(r2)
    tr = k.tr1
    dq.emit(C['p2_pre'])
    if C['r1sep']: k.wait(vm=f'w3_{R1N-1}'); k.e('s_barrier')
    f3 = k.f3
    while len(dq) > 12:
        if len(tr): tr.emit(4); f3.cyc(16)
        else: f3.cyc(40)
        dq.emit(1)
    assert not len(tr)
    if C['mp1']:
        for _ in range(4): k.ds_op('ds_read_b32 v16, v3')
    k.wait(lg='tr'); k.e('s_barrier')
    if C['p2_modi'] < 0: poll_issue(k, 's68', 's47', 3)
    for n in range(2):
        dq.emit(1); k.ds_op(f'ds_write_b128 v0, {v(T,4)} offset:{1024*n}'); k.e(f'v_subrev_u32 v{TB+n}, {R1L}, v{TB+n}')
    k.e(f'v_add_u32 v{TB+2}, 0x10000, v{TB+1}')
    for n in range(C['p2_pre2']-2): f3.cyc(40); dq.emit(1)
    def rdk(c, kk):
        b = FB + 32*(c & 1)
        k.ds_op(f'ds_read_b128 {v(b+8*kk,4)}, v{9+kk} offset:{16384*(c&3)}')
        k.ds_op(f'ds_read_b128 {v(b+8*kk+4,4)}, v13 offset:{16384*(c&3)+1024*kk}', f'r{c}{kk}')
        if c == 3: k.e(f'v_add_u32 v{9+kk}, 0x10000, v{9+kk}' + ('\nv_add_u32 v13, 0x10000, v13' if kk == 3 else ''))
    def mfk(c, kk):
        b = FB + 32*(c & 1)
        k.wait(lg=f'r{c}{kk}')
        cc = '0' if c == 0 and kk == 0 else v(ACC,16)
        k.e(f'v_mfma_f32_32x32x16_bf16 {v(ACC,16)}, {v(b+8*kk,4)}, {v(b+8*kk+4,4)}, {cc}')
    k.st('issued')
    zl = [k.label('ZA'), k.label('ZB'), k.label('ZC'), k.label('ZD'), k.label('ZE')]
    for c in range(7):
        if c == C['p2_modi']: poll_issue(k, 's68', 's47', 3)
        if c == C['p2_mod'] and 'mod' not in ABL: poll_check(k, 's68', 28, 's47', 3)
        k.wait(vm=f'ch{c}'); k.e('s_barrier'); k.st(f'c{c}')
        for kk in range(4):
            if c: mfk(c-1, kk)
            f3.cyc(C['p2_f3'])
            if len(dq): dq.emit(C['p2_rate'])
            elif len(k.cq) and c >= C['cq_from']: k.cq.emit(3)
            elif len(k.wdq) and c >= C['wd_from']: k.wdq.emit(1)
            else:
                if c == C['p2_mod'] and len(r2) % 2 == 0: gq.flush()
                if c >= C['r2_from'] and kk in C['r2_kk'] and NR2 - len(r2) < 4*(c-1): r2.emit(1)
            rdk(c, kk)
        if c == 2:
            k.e(f's_cmp_lg_u32 s63, 0\ns_cbranch_scc1 {zl[0]}\ns_mov_b32 s0, 0\ns_atomic_add s0, s[24:25], {FL_Z} glc\n{zl[0]}:')
    assert not len(dq) and not len(gq) and not len(tr) and not len(f3) and C['p2_mod'] >= 3
    k.st('A6')
    k.e(f'''s_cmp_lg_u32 s63, 0
    s_cbranch_scc1 {zl[1]}
    s_mov_b32 s1, 0
{zl[2]}:
    s_waitcnt lgkmcnt(0)
    s_cmp_eq_u32 s0, 4
    s_cbranch_scc1 {zl[3]}
    s_add_u32 s1, s1, 1
    s_cmp_gt_u32 s1, {SPIN_MAX}
    s_cbranch_scc1 {zl[3]}
    s_mov_b32 s0, 0
    s_atomic_add s0, s[24:25], {FL_Z} glc
    s_branch {zl[2]}
{zl[3]}:''')
    for i in range(4): k.vm_op(f'buffer_load_dword v{ZF+i}, v{TB+3}, s[12:15], s45 offen offset:{1024*i} sc1', 'zf', maybe=True)
    k.e(f'{zl[1]}:')
    for kk in range(4):
        mfk(6, kk)
        if len(k.wdq): k.wdq.emit(1)
        elif C['r2_6']: r2.emit(1)
    r2.emit(C['r2_a'])
    for hf in range(2):
        for r in range(4*hf, 4*hf+4): k.e(f'v_cvt_pk_bf16_f32 v{T+r}, v{ACC+2*r}, v{ACC+2*r+1}')
        k.ds_op(f'ds_write_b128 v14, {v(T+4*hf,4)} offset:{1024*hf}')
    r2.emit(C['r2_b']); assert NR2 - len(r2) <= 20
    assert not len(k.wdq); k.wait(vm='wdst' if C['wd_early'] else None, lg='all'); k.e('s_barrier'); k.st('Xbar')
    kinds = [('v6', 0, CC), ('v7', 2048, IC), ('v8', 0, RS), ('v15', 2048, IS)]
    rb = [(f'ds_read_b128 {v(FB+8*i+4*a_,4)}, {ad} offset:{off+1024*a_}', f'x{i}{a_}') for i, (ad, off, _) in enumerate(kinds) for a_ in range(2)]
    for x in rb[:4]: k.ds_op(*x)
    r2.emit(C['r2_pre'])
    for n in range(8):
        i, a_ = n >> 1, n & 1
        k.wait(lg=f'x{i}{a_}')
        k.e(f'v_mfma_f32_32x32x16_bf16 {v(ACC,16)}, {v(FB+8*i+4*a_,4)}, {v(kinds[i][2]+4*a_,4)}, {v(ACC,16) if n else 0}')
        if n < 2: k.ds_op(*rb[4+2*n]); k.ds_op(*rb[5+2*n])
        elif n in C['r2_sb']: r2.emit(1)
        if 3 <= n < 7:
            k.wait(vm='gc'); kk = n-3
            k.ds_op(f'ds_read_b128 {v(GA+4*kk,4)}, v{T+14} offset:{32*kk}'); k.ds_op(f'ds_read_b128 {v(CB+4*kk,4)}, v{T+14} offset:{128+32*kk}', 'gcr')
    r2.emit(C['r2_c']); k.r2n = R1N + (NR2 - len(r2))//2; assert k.r2n >= R1N + 4
    k.e(f's_cmp_lg_u32 s63, 0\ns_cbranch_scc1 {zl[4]}')
    sv = list(k.vm); k.wait(vm='zf'); k.vm = sv
    k.e(f'v_mfma_f32_32x32x16_bf16 {v(ACC,16)}, {v(ZF,4)}, {v(ZB,4)}, {v(ACC,16)}\n{zl[4]}:')
    k.wait(lg='gcr')
    if C['wd_early']:
        l = k.label('WS')
        k.e(f's_cmp_lg_u32 s69, 1\ns_cbranch_scc1 {l}\ns_atomic_add s74, s[24:25], s67\ns_atomic_add s74, s[24:25], s67 offset:1024\n{l}:')
    for hf in range(2):
        R = range(8*hf, 8*hf+8, 2)
        for r in R: k.e(f'v_pk_fma_f32 {P(XV+r)}, {P(ACC+r)}, {P(GA+r)}, {P(XV+r)}')
        for r in R: k.e(f'v_pk_mul_f32 {P(CB+r)}, {P(CB+r)}, {P(XV+r)}')
        for r in range(4*hf, 4*hf+4): k.e(f'v_cvt_pk_bf16_f32 v{FB+r}, v{CB+2*r}, v{CB+2*r+1}')
        k.vm_op(f'buffer_store_dwordx4 {v(FB+4*hf,4)}, v3, s[12:15], s57 offen offset:{1024*hf} sc1')
    k.e(f'v_pk_add_f32 {P(T)}, {P(XV)}, {P(XV+2)}\nv_pk_mul_f32 {P(T+2)}, {P(XV)}, {P(XV)}')
    for r in range(2, 16, 2):
        if r >= 4: k.e(f'v_pk_add_f32 {P(T)}, {P(T)}, {P(XV+r)}')
        k.e(f'v_pk_fma_f32 {P(T+2)}, {P(XV+r)}, {P(XV+r)}, {P(T+2)}')
    k.e(f'''v_add_f32 v{T}, v{T}, v{T+1}
    v_add_f32 v{T+1}, v{T+2}, v{T+3}
    v_cvt_pk_bf16_f32 v116, v{XV}, v{XV+1}
    v_cvt_pk_bf16_f32 v117, v{XV+2}, v{XV+3}
    v_permlane32_swap_b32 v{T}, v{T+1}
    v_add_f32 v{T}, v{T}, v{T+1}''')
    k.vm_op(f'buffer_store_dword v{T}, v{T+15}, s[12:15], s58 offen sc1', 'p2st')
    k.st('p2st')
    for r in range(2, 8): k.e(f'v_cvt_pk_bf16_f32 v{116+r}, v{XV+2*r}, v{XV+2*r+1}')
    k.e(f's_mov_b64 s[76:77], 0\ns_mov_b32 s78, 0\ns_mov_b32 s5, s59\ns_lshl_b32 s4, s34, 3\ns_add_u32 s4, s4, s35\ns_lshl_b32 s4, s4, 7\ns_lshl_b32 s6, s32, 9\ns_sub_u32 s4, s4, s6\ns_add_u32 s4, s4, {FL_WD}\ns_mov_b32 s28, s67\ns_mov_b32 s29, s69')

SM = 48
def sm(i): return f's{SM+i}' if i < 12 else f's{64+i-12}'
VH0, VH1, VWD, VA0, VA1 = 9, 142, 143, 14, 15
def setup34(k, C):
    q = Q(k); T = ET
    q.lines('s_and_b32 s69, s35, 1\ns_lshl_b32 s6, s34, 1\ns_or_b32 s69, s69, s6')
    q.lines(f'''
    s_lshl_b32 s39, s33, 7
    s_lshl_b32 s6, s32, 9
    s_sub_u32 s39, s39, s6
    s_add_u32 s39, s39, {FL_SIDE}
    s_lshl_b32 s7, s32, 2''')
    for st in range(4):
        q.lines(f'''s_xor_b32 s6, s69, {st}
        s_add_u32 s6, s6, s7             ; rho
        s_mul_i32 s{44+st}, s6, {28*1024}
        s_add_u32 s{44+st}, s{44+st}, {WS_X1C}
        s_and_b32 s{40+st}, s6, 1
        s_lshr_b32 s6, s6, 1
        s_lshl_b32 s6, s6, 2
        s_add_u32 s6, s6, s3
        s_mul_i32 s6, s6, 14
        s_add_u32 s6, s6, s33
        s_lshl_b32 s6, s6, 1
        s_add_u32 s6, s6, s{40+st}
        s_lshl_b32 s6, s6, 11
        s_add_u32 s{40+st}, s6, {WS_HH}''')
    q.lines(f'''
    s_xor_b32 s6, s69, s3
    s_add_u32 s6, s6, s7
    s_mul_i32 s37, s6, 3584
    s_add_u32 s37, s37, {WS_ST}
    s_lshl_b32 s6, s33, 2
    s_add_u32 s6, s6, s3
    s_lshl_b32 s38, s6, 10
    s_add_u32 s38, s38, {WS_WEXT}
    v_lshlrev_b32 v6, 3, v2
    v_add_u32 v7, {2*IMG}, v3
    v_add_u32 v8, {KSP}, v6
    s_mul_i32 s66, s3, 7168
    v_add_u32 v{VA0}, s66, v3
    v_add_u32 v{VA1}, 4096, v{VA0}
    s_xor_b32 s83, s34, {C['flip']}
    s_xor_b32 s6, s62, {2*C['flip']}
    s_add_u32 s70, s7, s6''')
    q.add('''s_cmp_eq_u32 s3, 2
    s_cselect_b32 s4, s39, s4
    s_cselect_b32 s39, 2, 28
    s_cmp_eq_u32 s3, 3
    s_cselect_b32 s4, s79, s4
    s_cselect_b32 s39, 7, s39''')
    q1 = q; q = Q(k)
    q.lines(f'''s_lshr_b32 s63, s3, 1            ; sw
    s_and_b32 s72, s3, 1
    s_lshl_b32 s6, s35, 2
    s_add_u32 s6, s6, s72
    s_mul_i32 s6, s6, {56*1024}
    s_add_u32 s6, s6, {WS_WDP}
    v_add_u32 v{VWD}, s6, v3
    s_mul_i32 s71, s83, 7
    s_sub_u32 s67, 8, s71
    s_sub_u32 s67, s67, s63
    s_add_u32 s68, s71, s63
    s_lshl_b32 s67, s67, 12
    s_lshl_b32 s68, s68, 12
    s_lshl_b32 s71, s71, 12''')
    q.add('s_cmp_eq_u32 s63, 0\ns_cselect_b32 s71, s71, s67')
    for i in range(14):
        base = 68 if i & 2 else 67 if i < 12 else 71
        q.add(f's_add_u32 {sm(i)}, s{base}, {(2*(i >> 2) + 28*(i & 1))*4096}')
    q.lines(f'''
    s_lshl_b32 s6, s32, 1
    s_add_u32 s6, s6, s83
    s_lshl_b32 s6, s6, 2
    s_add_u32 s6, s6, s72
    s_mul_i32 s6, s6, {56*1024}
    s_add_u32 s6, s6, {WS_HH}
    s_lshl_b32 s67, s63, 11
    s_add_u32 s6, s6, s67
    s_lshl_b32 s67, s72, 8
    s_add_u32 s6, s6, s67
    v_and_b32 v4, 15, v2
    v_lshlrev_b32 v127, 4, v4
    v_lshrrev_b32 v{T+4}, 4, v2
    v_lshl_add_u32 v127, v{T+4}, 9, v127
    v_add_u32 v{VH0}, s6, v127
    v_xor_b32 v{VH1}, 2048, v{VH0}
    s_lshl_b32 s73, s3, 12
    v_add_u32 v10, s73, v3
    v_add_u32 v11, {WDL[0]}, v10
    s_mul_i32 s70, s70, {28*1024}
    s_add_u32 s70, s70, s67
    s_add_u32 s70, s70, {WS_X1}''')
    q.add(f'''s_lshl_b32 s6, s35, 2
    s_sub_u32 s7, 29, s6
    s_cmp_le_u32 s35, 3
    s_cselect_b32 s67, s6, s7
    s_add_u32 s68, s6, 2
    s_sub_u32 s69, s7, 2
    s_cmp_le_u32 s35, 2
    s_cselect_b32 s68, s68, s69
    s_sub_u32 s69, s7, 4
    s_cmp_le_u32 s35, 3
    s_cselect_b32 s69, 1, s69
    s_cmp_eq_u32 s35, 3
    s_cselect_b32 s68, 13, s68''')
    q.lines(f'''v_add_u32 v127, s70, v127
    s_mul_i32 s71, s3, 3072
    s_add_u32 s71, s71, {X1L}''')
    for t in range(2):
        q.lines(f'''s_lshl_b32 s6, s35, 6
        s_add_u32 s6, s6, {t}
        v_lshl_add_u32 v{T}, v4, 2, s6
        v_cmp_le_u32 vcc, 224, v{T}
        v_sub_u32 v{T+1}, 448, v{T}
        v_cndmask_b32 v{T+1}, v{T}, v{T+1}, vcc
        v_cndmask_b32 v{T+2}, 0, 1, vcc
        v_cmp_eq_u32 vcc, 224, v{T+1}
        v_cndmask_b32 v{T+1}, v{T+1}, 0, vcc
        v_lshrrev_b32 v{T+3}, 5, v{T+1}
        v_lshl_add_u32 v{T+3}, v{T+3}, 1, v{T+2}
        v_cmp_eq_u32 vcc, s68, v{T+3}
        v_mov_b32 v{T+2}, 2
        v_cndmask_b32 v{T+2}, v{T+2}, 1, vcc
        v_cmp_eq_u32 vcc, s67, v{T+3}
        v_bfe_u32 v{T+3}, v{T+1}, 4, 1
        v_cndmask_b32 v{T+2}, v{T+2}, 0, vcc
        v_lshlrev_b32 v{T+2}, 10, v{T+2}
        v_lshl_add_u32 v{T+2}, v{T+3}, 9, v{T+2}
        v_bfe_u32 v{T+3}, v{T+1}, 2, 1
        v_lshl_add_u32 v{T+2}, v{T+3}, 8, v{T+2}
        v_bfe_u32 v{T+3}, v{T+1}, 3, 1
        v_lshl_add_u32 v{T+2}, v{T+3}, 3, v{T+2}
        v_and_b32 v{T+3}, 3, v{T+1}
        v_lshl_add_u32 v{T+2}, v{T+3}, 1, v{T+2}
        v_lshl_add_u32 v{T+2}, v{T+4}, 6, v{T+2}
        v_add_u32 v{12+t}, s71, v{T+2}''')
    for b in range(3): q.add(f's_lshl_b32 s{67+b}, s{67+b}, 11')
    for sl in range(3):
        q.lines(f's_xor_b32 s6, s3, {sl+1}\ns_mul_i32 s6, s6, 12288\ns_add_u32 s6, s6, {RED+4096*sl}\nv_add_u32 v{124+sl}, s6, v{6 if C["w64"] else 3}')
    q.lines(f'''s_mul_i32 s6, s3, 12288
    s_add_u32 s6, s6, {RED}
    v_add_u32 v1, s6, v{6 if C['w64'] else 3}''')
    if C['flip']:
        q.lines('s_and_b32 s6, s2, 7\ns_xor_b32 s6, s6, 1\ns_lshl_b32 s6, s6, 1\ns_bfe_u32 s7, s32, 0x10001\ns_add_u32 s6, s6, s7')
        q.add('s_sub_u32 s7, 32, s6\ns_cmp_eq_u32 s6, 0\ns_cselect_b32 s7, 16, s7\ns_bitcmp1_b32 s32, 0\ns_cselect_b32 s36, s7, s6')
    q.add(t1_txt('s7', 's36', 's63', 's6'))
    q.lines(f'''s_lshl_b32 s72, s72, 10
    s_add_u32 s72, s72, s7
    s_mul_i32 s72, s72, 896
    s_lshl_b32 s6, s35, 7
    s_add_u32 s72, s72, s6
    v_mul_u32_u24 v0, {4*64*896}, v{T+4}
    v_lshl_add_u32 v0, v4, 3, v0
    s_mov_b32 s8, s80
    s_and_b32 s9, s81, 0xffff''')
    q.add('v_lshlrev_b32 v2, 7, v2')
    q.add(f's_bitcmp1_b32 s3, 0\ns_cselect_b32 s6, 0xffffff00, 0\ns_cselect_b32 s7, -1, 0\ns_cselect_b32 s6, s6, 0x100\ns_add_u32 s16, s12, s6\ns_addc_u32 s17, s13, s7\ns_mov_b32 s18, {WS_END+256}')
    return q1, q

C01 = [(2,0),(2,1),(3,0),(3,1),(6,0),(6,1),(7,0),(7,1),(10,0),(10,1),(11,0),(11,1)]
C2 = [(i,1) for i in (0,1,4,5,8,9,12,13)]
C3 = [(i,0) for i in (0,1,4,5,8,9,12,13)]
ORDER = C01 + C2 + C3
C0 = [p for p in C01 if p[1] == 0]; C1 = [p for p in C01 if p not in C0]
LORDER = C0 + C1 + C2 + C3
def hreg(i, rl, u): return a(8*LORDER.index((i, rl)) + 4*u, 4)
def hh(q, L, split=False):
    if 'hh' in ABL: return
    items = [(i, rl, u) for u in (1, 0) for i, rl in L] if split else [(i, rl, u) for i, rl in L for u in range(2)]
    for i, rl, u in items: q.vm(None, f'buffer_load_dwordx4 {hreg(i,rl,u)}, v{VH1 if rl else VH0}, s[{16 if u else 12}:{19 if u else 15}], {sm(i)} offen sc1', f'h{i}_{rl}_{u}')
def epi3(k, acc, st, pk=False):
    q = Q(k)
    K1 = ET + 2*(st & 1); SS = K1 + 1; T = ET + 4; PK = ET + 12
    for qq in range(4 if 'epi' not in ABL else 0):
        rr = range(4*qq, 4*qq+4); t = T + 4*(qq & 1)
        if pk: q.add(*[f'v_pk_mul_f32 {P(t+r)}, {P(acc+4*qq+r)}, {P(K1)} op_sel_hi:[1,0]' for r in (0, 2)])
        else: q.add(*[f'v_mul_f32 v{t+(r&3)}, v{acc+r}, v{K1}' for r in rr])
        for r in rr: q.add(f'v_exp_f32 v{t+(r&3)}, v{t+(r&3)}')
        if pk: q.add(*[f'v_pk_fma_f32 {P(t+r)}, {P(t+r)}, {P(K1)}, {P(K1)} op_sel:[0,1,1] op_sel_hi:[1,1,1]' for r in (0, 2)])
        else: q.add(*[f'v_fma_f32 v{t+(r&3)}, v{t+(r&3)}, v{SS}, v{SS}' for r in rr])
        for r in rr: q.add(f'v_rcp_f32 v{t+(r&3)}, v{t+(r&3)}')
        if pk: q.add(*[f'v_pk_mul_f32 {P(t+r)}, {P(t+r)}, {P(acc+16+4*qq+r)}' for r in (0, 2)])
        else: q.add(*[f'v_mul_f32 v{t+(r&3)}, v{t+(r&3)}, v{acc+16+r}' for r in rr])
        q.add(f'v_cvt_pk_bf16_f32 v{PK+2*qq}, v{t}, v{t+1}', f'v_cvt_pk_bf16_f32 v{PK+2*qq+1}, v{t+2}, v{t+3}')
        if qq & 1 and 'st' not in ABL: q.add(('vm', f'buffer_store_dwordx4 {v(PK+4*(qq>>1),4)}, v3, s[12:15], s{40+st} offen offset:{1024*(qq>>1)} sc1', f'hh{st}'))
    return q

def lcost(l, vmc=12):
    mn = l.split()[0]
    return 0 if mn.endswith(':') or mn.startswith('.') else 8 if mn in TRANS else vmc if mn.startswith(('buffer_', 'global_')) else 4
class Epi:
    def __init__(self, k, acc, st, vmc):
        self.k = k; self.vmc = vmc; q = epi3(k, acc, st).q
        n = len(q)//2 if q else 0
        st_ = 'st' not in ABL
        self.ch = [q[0:22] + q[n:n+22], q[22:44] + q[n+22:n+44]] if q else [[], []]
        self.st = [q[44], q[n+44]] if q and st_ else []
    def __len__(self): return len(self.ch[0]) + len(self.ch[1]) + len(self.st)
    def pack(self, bud):
        while True:
            done = 44 - max(len(self.ch[0]), len(self.ch[1]))
            if self.st and done >= 22*(3 - len(self.st)) and bud >= self.vmc:
                x = self.st.pop(0); self.k.vm_op(x[1], x[2]); bud -= self.vmc; continue
            c = [ch for ch in sorted(self.ch, key=lambda c: -len(c)) if ch and lcost(ch[0]) <= bud]
            if not c: return
            if len(c) == 2 and lcost(c[0][0]) != lcost(c[1][0]):
                c.sort(key=lambda ch: lcost(ch[0]) * (1 if bud % 8 == 4 else -1))
            elif len(c) == 2 and len(self.ch[1]) - len(self.ch[0]) < 4: c = [self.ch[0]]
            x = c[0].pop(0); self.k.e(x); bud -= lcost(x)
def P3(k, C):
    su, su2 = setup34(k, C)
    def wd_reg(q, i):
        if 'wd' in C['abl']: return
        for f in range(4): q.vm(None, f'buffer_load_dwordx4 {wdreg(i,f)}, v{VWD}, s[12:15], {sm(i)} offen offset:{1024*f} sc1', f'wd{i}')
    def wd_lds(q, i):
        if 'wd' in C['abl']: return
        for f in range(4): q.vm(f's_add_u32 m0, s73, {WDL[LDSI.index(i)]}' if f == 0 else None, f'buffer_load_dwordx4 v{VWD}, s[12:15], {sm(i)} offen offset:{1024*f} sc1 lds', f'wd{i}')
    def a_dma(q, st):
        for i in range(7):
            pre = f's_add_u32 m0, s66, {st*IMG+1024*i}' if i in (0, 4) else None
            q.vm(pre, f'buffer_load_dwordx4 v{VA0 if i < 4 else VA1}, s[12:15], s{44+st} offen offset:{1024*(i&3)} sc1 lds', f'a{st}')
    r3 = k.r2; page(k, 3, 1, {2: 5, 3: 6})
    if C['rr']: k.e('s_mov_b32 s82, s57\nv_lshlrev_b32 v129, 7, v2')
    wq = Q(k)
    for i in REGI[0:4] + REGI[5:9] + REGI[4:5]: wd_reg(wq, i)
    n1 = len(su); su.q += su2.q; tot = len(su)
    for n in range(C['r3_drain']): su.cyc(C['su_drain']//(C['r3_drain']+1)); r3.emit(1)
    su.cyc(C['su_drain']//(C['r3_drain']+1))
    r3n = 28 - (len(r3)+1)//2
    k.wait(vm='p2st')
    if C['rr']: k.e('s_mov_b64 exec, 0xffff'); k.vm_op('buffer_load_dword v130, v129, s[12:15], s82 offen sc1'); k.e('s_mov_b64 exec, -1')
    k.e('s_barrier'); k.st('sigA')
    gsignal(k, 0, 2)
    if 0 in C['pollA']: mp_issue(k, 0, 0, 0)
    if not C['wd_early']:
        l = k.label('WS')
        k.e(f's_mov_b32 s75, 99\ns_cmp_lg_u32 s29, 1\ns_cbranch_scc1 {l}\ns_atomic_add s74, s[24:25], s28\ns_atomic_add s74, s[24:25], s28 offset:1024\n{l}:')
    tr = w3_tr(k, R1N, 28); nl = 4*(28 - k.r2n)
    n = 0
    while len(r3):
        r3.emit(1); n += 1
        if n in C['pollA']: mp_issue(k, 0, C['pollA'].index(n), 0)
        if n == C['pollW'] and C['wd_early']:
            assert tot - len(su) >= n1
            l = k.label('XW'); k.e(f's_mov_b32 s75, 99\ns_cmp_lg_u32 s3, 1\ns_cbranch_scc1 {l}\ns_mov_b32 s75, -1\ns_atomic_and s75, s[24:25], s4 glc\n{l}:')
        if len(tr) > nl: tr.emit(min(4, len(tr)-nl))
        else: su.cyc(32)
    tr.emit(len(tr) - nl)
    while tot - len(su) < n1: su.emit(1)
    k.st('w3done'); assert len(su)
    k.e(f's_mul_i32 s0, s3, 3072\ns_mov_b32 m0, s0\ns_add_u32 s28, s44, s0\ns_lshl_b32 s60, s3, 12\ns_add_u32 s60, s60, 12288\ns_add_u32 s61, s60, s44')
    lds_pad(k, 3, 128); k.wait(lg='tr')
    mp_check(k, 0, 7, 0)
    if not C['tr_late']: r3n = 28
    assert r3n - R1N >= 11
    k.wait(vm=f'w3_{r3n-1}'); k.e('s_barrier'); k.st('flagA')
    for i in range(3): k.vm_op(f'buffer_load_dwordx4 v3, s[12:15], s28 offen offset:{1024*i} sc1 lds', 'a0a')
    k.e('s_mov_b32 m0, s60')
    def xpoll():
        l = k.label('XP'); k.e(f's_cmp_lt_u32 s3, {2 if C["wd_early"] else 1}\ns_cbranch_scc1 {l}\ns_mov_b32 s75, -1\ns_atomic_and s75, s[24:25], s4 glc\n{l}:')
    if C['xp'] == 0: xpoll()
    nl = 4*(28 - r3n)
    for i in range(4): k.vm_op(f'buffer_load_dwordx4 v3, s[12:15], s61 offen offset:{1024*i} sc1 lds', 'a0b'); tr.emit(min(4, len(tr)-nl))
    a1q = Q(k); a_dma(a1q, 1); assert k.r2n - R1N >= 8 or not C['a1_pre']
    for i in range(C['a1_pre']): a1q.emit(1); tr.emit(min(4, len(tr)-nl))
    tr.emit(len(tr)-nl)
    def xcheck(only=None):
        l, d = k.label('XC'), k.label('XD')
        if only is not None: k.e(f's_cmp_lg_u32 s3, {only}\ns_cbranch_scc1 {d}')
        k.e(f'''s_cmp_ge_i32 s75, s39
    s_cbranch_scc1 {d}
    s_mov_b32 s1, 0
{l}:
    s_waitcnt lgkmcnt(0)
    s_cmp_ge_i32 s75, s39
    s_cbranch_scc1 {d}
    s_add_u32 s1, s1, 1
    s_cmp_gt_u32 s1, {SPIN_MAX}
    s_cbranch_scc1 {d}
    s_mov_b32 s75, -1
    s_atomic_and s75, s[24:25], s4 glc
    s_branch {l}
{d}:''')
    if C['wd_early']: xcheck(1)
    if C['xp'] == 1: xpoll()
    while tot - len(su) < n1 + 29: su.emit(1)
    su.debt = 0; su.cyc(C['su_go'])
    vq = [Q(k) for _ in range(4)]
    vq[0].q += a1q.q
    for hf in range(2): vq[0].vm(None, f'buffer_store_dwordx4 {v(116+4*hf,4)}, v3, s[12:15], s5 offen offset:{1024*hf} sc1')
    while len(vq[0]) < 9: vq[0].add(wq.q.pop(0) if len(wq) and C['wd_early'] else (lambda: None))
    for i in range(3): vq[0].vm(None, f'buffer_load_dwordx4 {v(128+4*i,4)}, v3, s[12:15], s37 offen offset:{1024*i} sc1', 'st')
    vq[0].add(lambda: (k.e('v_mov_b64 v[112:113], 0\nv_mov_b64 v[114:115], 0\ns_mov_b32 exec_hi, 0'), k.vm_op('buffer_load_dwordx4 v[112:115], v3, s[12:15], s37 offen offset:3072 sc1', 'st'), k.e('s_mov_b32 exec_hi, -1')))
    a_dma(vq[0], 2)
    vq[0].vm(None, f'buffer_load_dwordx4 {v(WX,4)}, v3, s[12:15], s38 offen sc1', 'wx')
    vq[1].q += wq.q[:C['x0']] if 'wd' not in ABL else [lambda: None]*C['x0']; wq.q = wq.q[C['x0']:]
    a_dma(vq[1], 3); wd_lds(vq[1], LDSI[0]); wd_lds(vq[1], LDSI[1]); wd_lds(vq[1], LDSI[2])
    for st in range(3): vq[st].q += wq.q[:C['wd_st'][st]]; wq.q = wq.q[C['wd_st'][st]:]
    assert len(vq[2]) >= C['sigB0'][1] or ABL
    wd_lds(vq[2], LDSI[3]); wd_lds(vq[2], LDSI[4])
    vq[3].q += wq.q
    sq = Q(k)
    for r in range(4): sq.lines(f'v_add_f32 v{128+r}, v{128+r}, v{132+r}\nv_add_f32 v{136+r}, v{136+r}, v{112+r}')
    for r in range(4): sq.add(f'v_add_f32 v{128+r}, v{128+r}, v{136+r}')
    sq.lines(f'''v_lshlrev_b32 v139, 1, v4
    v_bfe_u32 v140, v3, 8, 1
    v_permlane16_swap_b32 v128, v130
    v_permlane16_swap_b32 v129, v131
    v_add_f32 v128, v128, v130
    v_add_f32 v129, v129, v131
    v_add_u32 v139, v139, v140
    v_lshl_add_u32 v139, v5, 5, v139
    v_mov_b32 v130, v128
    v_mov_b32 v131, v129
    s_mul_i32 s6, s3, {IMG}
    v_lshl_add_u32 v138, v139, 4, s6
    v_permlane32_swap_b32 v128, v130
    v_permlane32_swap_b32 v129, v131
    v_add_f32 v128, v128, v130
    v_add_f32 v129, v129, v131
    v_mul_f32 v128, {f2h(-1/448)}, v128
    v_mul_f32 v129, {f2h(1/448)}, v129
    v_fma_f32 v129, -v128, v128, v129
    v_max_f32 v129, 0, v129
    v_add_f32 v129, {f2h(1e-5)}, v129
    v_rsq_f32 v130, v129
    v_sqrt_f32 v131, v129
    v_cvt_pk_bf16_f32 v132, v128, v128
    v_mul_f32 v130, {f2h(-LOG2E)}, v130
    v_cvt_pk_bf16_f32 v136, v131, v131
    v_and_b32 v137, 0xffff0000, v132
    v_and_b32 v136, 0xffff0000, v136
    v_sub_f32 v137, v128, v137
    v_sub_f32 v136, v131, v136
    v_cmp_eq_u32 vcc, 0, v5
    v_cvt_pk_bf16_f32 v133, v137, v131
    v_cvt_pk_bf16_f32 v134, v131, v136
    v_mov_b32 v135, 0
    v_cndmask_b32 v132, 0, v132, vcc
    v_cndmask_b32 v133, 0, v133, vcc
    v_cndmask_b32 v134, 0, v134, vcc
    s_lshl_b32 s6, s3, 9
    s_add_u32 s6, s6, {KSP}
    v_lshl_add_u32 v137, v139, 3, s6''')
    sq.add(('ds', 'ds_write_b128 v138, v[132:135] offset:28672', 'stw'), ('ds', 'ds_write_b64 v137, v[130:131]', 'stw'))
    wxq = Q(k)
    wxq.add(f'v_mov_b64 {P(WX+4)}, {P(WX)}', f'v_mov_b64 {P(WX+6)}, {P(WX+2)}')
    for r in range(3): wxq.add(f'v_permlane32_swap_b32 v{WX+r}, v{WX+4+r}')
    L = 8; KS = 29 - L
    seq = [(st, ks) for st in range(4) for ks in range(29)]
    X0 = C['x0']; seq.remove((0, 28)); seq.insert(28 + X0, (0, 28))
    def breg(n): return v(RING+4*(n&3),4) if n < 87+KS else v(ACC0+4*(n-87-KS),4)
    def rd(n):
        st, ks = seq[n]
        base, off = ('v3', st*IMG) if st < 2 else ('v7', (st-2)*IMG)
        k.ds_op(f'ds_read_b128 {breg(n)}, {base} offset:{off+1024*ks}', f'b{n}')
    PD = 3
    page(k, 4, 1)
    k.wait(vm='a0a'); k.e('s_barrier'); k.st('P3go')
    for n in range(PD): rd(n)
    k.lq = lq = Q(k); k.nl = 0
    fill = Q(k); rate = 0; nv = [len(q) for q in vq]; assert max(nv) <= 28
    def mf(n, mt):
        st, ks = seq[n]; acc = ACC0 + 32*(st & 1)
        if ks < 28: A = a(8*ks+4*mt, 4); k.wait(lg=f'b{n}')
        else: A = v(WX+4*mt, 4); k.wait(vm='wx', lg=f'b{n}')
        c = '0' if ks == 0 else v(acc+16*mt, 16)
        k.e(f'v_mfma_f32_32x32x16_bf16 {v(acc+16*mt,16)}, {A}, {breg(n)}, {c}')
    def events(st, ks):
        e = (st, ks); bar = False
        if e == (3, C['c0_ks']): mp_check(k, 0, 14, 0, C['flip']); bar = True
        if e == (3, C['c01_ks']): mp_check(k, 128, 7, 3, C['flip']); bar = True
        if e == C['sigB0']: k.wait(vm=['hh0', 'a3']); bar = True
        if e == C['sigB01']: k.wait(vm='hh1' if 'dr' not in ABL else None); bar = True
        if e == (3, C['sigB2']): k.wait(vm='hh2' if 'dr' not in ABL else None); bar = True
        if bar and not ('bar' in ABL and st == 3): k.e('s_barrier')
        return
    def events2(st, ks):
        e = (st, ks)
        if e == C['sigB0']: gsignal(k, 0, 1)
        if e == C['sigB01']: gsignal(k, 128, 1)
        if e == (3, C['sigB2']):
            gsignal(k, 256, 2); k.st('sigB2')
            if C['rrh']: reread(k, 's42', 5)
        if e in C['pollB01']: mp_issue(k, 128, C['pollB01'].index(e), 3, C['flip'])
        if e in C['pollB0']: mp_issue(k, 0, C['pollB0'].index(e), 0, C['flip'])
        if e == (3, C['c0_ks']):
            for b in range(3): lq.vm(f's_add_u32 m0, s71, {1024*b}', f'buffer_load_dwordx4 v127, s[12:15], s{67+b} offen sc1 lds', 'x1')
            hh(lq, C0)
        if e == (3, C['c01_ks']): k.st('B01ok'); hh(lq, C1)
    nrd = PD
    for n, (st, ks) in enumerate(seq[:87+KS]):
        k.st(f'k{st}_{ks}')
        s2, k2 = seq[nrd]
        if (s2, k2) == (0, 28): assert not len(tr)
        if (s2, k2) == (0, 12): xcheck(); k.wait(vm='a0b' if C['a1_bar'] else 'a1'); k.e('s_barrier')
        elif (s2, k2) == (1, 0) and C['a1_bar']: k.wait(vm='a1'); k.e('s_barrier')
        elif (s2, k2) == (0, 28):
            assert not len(fill); k.wait(vm='a2', lg='stw'); k.e('s_barrier')
            k.ds_op(f'ds_read_b64 {v(ET,2)}, v8', 'ks0'); k.wait(vm='wx'); fill = wxq; rate = 8
        if nrd >= 87+KS: assert not len(fill)
        rd(nrd); nrd += 1
        if nrd > 87+KS: rd(nrd); nrd += 1
        if ks == (27 if st < 3 else 5) and st: k.ds_op(f'ds_read_b64 {v(ET+2*(st&1),2)}, v8 offset:{512*st}', f'ks{st}')
        if ks == (2 if st > 1 else X0+2) and st > 0:
            if C['gap']: fill = Epi(k, ACC0 + 32*((st-1) & 1), st-1, C['vmc'])
            else:
                fill = epi3(k, ACC0 + 32*((st-1) & 1), st-1)
                rate = fill.cost() / (2*C['epi_span'][st-1])
        if (st, ks) == (0, C['su_ks']): fill = su; rate = su.cost() / (2*C['su_span'])
        if (st, ks) == (0, C['st_ks']): assert not len(fill); k.wait(vm='st'); fill = sq; rate = sq.cost() / (2*(24 + X0 - C['st_ks']))
        events(st, ks)
        for mt in range(2):
            mf(n, mt); n0 = len(k.L)
            if mt == 0: events2(st, ks)
            if st == 0: tr.emit(C['tr_rate'])
            if mt == 1 and (st, ks) == C['pg5']: page(k, 5, 3)
            if mt == 0 and len(vq[st]) > ((nv[st]*(27-ks))//28 if 0 < st < 3 and 'wd' not in ABL else 0): vq[st].emit(1)
            elif mt == 0 and st == 3 and len(lq):
                assert (k.nl - 3)//2 < ks; lq.emit(1); k.nl += 1
            if isinstance(fill, Epi):
                was = len(fill)
                fill.pack(C['gap'][st-1] - sum(lcost(l, C['vmc']) for l in k.L[n0:]) - 8*mt)
                if was and not len(fill) and os.environ.get('VERB'): print('epi done', st, ks)
            else: fill.cyc(rate)
        if ks == 28:
            assert not len(fill) and not len(vq[st]), (st, len(fill), len(vq[st]))
            k.st(f'S{st}')
    G = ACC0+32; U = G+16; K1 = ET+2; PK = ET+12; k.st('gph')
    for j in range(L):
        if nrd < len(seq): rd(nrd); nrd += 1
        if not j & 1: events(3, KS + j//2)
        mf(87+KS+j, 0)
        if not j & 1: events2(3, KS + j//2)
        if j & 1: lq.emit(1)
        if j < 7: k.e(f'v_mov_b64 {P(128+2*j)}, 0')
    sg = Q(k); k.st('uph')
    for qq in range(4):
        rr = range(G+4*qq, G+4*qq+4); pk = qq >= C['sg_pk']
        if pk: sg.add(*[f'v_pk_mul_f32 {P(r)}, {P(r)}, {P(K1)} op_sel_hi:[1,0]' for r in rr[::2]])
        else: sg.add(*[f'v_mul_f32 v{r}, v{r}, v{K1}' for r in rr])
        sg.add(*[f'v_exp_f32 v{r}, v{r}' for r in rr])
        if pk: sg.add(*[f'v_pk_fma_f32 {P(r)}, {P(r)}, {P(K1)}, {P(K1)} op_sel:[0,1,1] op_sel_hi:[1,1,1]' for r in rr[::2]])
        else: sg.add(*[f'v_fma_f32 v{r}, v{r}, v{K1+1}, v{K1+1}' for r in rr])
        sg.add(*[f'v_rcp_f32 v{r}, v{r}' for r in rr])
    for j in range(L):
        if not j & 1: events(3, KS + (L+j)//2)
        mf(87+KS+j, 1)
        if not j & 1: events2(3, KS + (L+j)//2)
        if j == 0: lq.emit(1); ldsread(k, LDSI[0])
        elif j == 1:
            lq.emit(1)
            if C['pg6'] == 'u': page(k, 6, 3)
        else:
            if j & 1 and C['u_ld']: lq.emit(1)
            sg.cyc(C['sg_rate'])
    k.st('S3')
    if -1 in C['p4_poll2']: mp_issue(k, 256, C['p4_poll2'].index(-1), 1, not C['flip'])
    for n in range(C['e_ld']): sg.cyc(64); lq.emit(1)
    sg.flush()
    for hf in range(2):
        for r in range(8*hf, 8*hf+8, 2): k.e(f'v_pk_mul_f32 {P(G+r)}, {P(G+r)}, {P(U+r)}')
        for r in range(4*hf, 4*hf+4): k.e(f'v_cvt_pk_bf16_f32 v{PK+r}, v{G+2*r}, v{G+2*r+1}')
        k.vm_op(f'buffer_store_dwordx4 {v(PK+4*hf,4)}, v3, s[12:15], s43 offen offset:{1024*hf} sc1', 'hh3')
    k.st('epi3')
    if C['pg6'] == 'e': page(k, 6, 3)
    if C['sigB2'] > 28:
        k.wait(vm='hh2'); k.e('s_barrier'); gsignal(k, 256, 2); k.st('sigB2')
        if C['rrh']: reread(k, 's42', 5)

RG = [RING, WX]
def ldsread(k, i):
    slot = LDSI.index(i)
    base, off = ('v11', WDL[slot]-WDL[0]) if slot < 2 else ('v10', WDL[slot])
    k.wait(vm=f'wd{i}')
    for f in range(4): k.ds_op(f'ds_read_b128 {v(RG[slot&1]+4*f,4)}, {base} offset:{off+1024*f}', f'wl{i}')
def P4(k, C):
    XRG = list(range(128, 142)) + [122, 123]
    GB = 112; R = RING; R0 = 144
    def acc(rl, u, t): return ACC0 + 32*rl + 16*u + 4*t
    lq = k.lq; started = set(); redw = Q(k)
    ml = []
    for i, rl in C01 + C2: ml += [(i, rl, 0), (i, rl, 1)]
    for u in (1, 0): ml += [(i, rl, u) for i, rl in C3]
    burst = C['p4_burst0']
    for g, (i, rl, u) in enumerate(ml):
        n = g >> 1; post = []
        if not g & 1:
            k.st(f'n{n}'); bar = False
            if n == C['p4_sig3']: k.wait(vm='hh3' if 'dr' not in ABL else None); bar = True; post.append(lambda: (gsignal(k, 384, 0), k.st('sigB3'))); C['rrh'] and post.append(lambda: reread(k, 's43', 5))
            if n == C['p4_c2']: mp_check(k, 256, 7, 1, not C['flip']); bar = True; hh(lq, C2)
            if n == C['p4_c3']: mp_check(k, 384, 7, 2, not C['flip']); bar = True; hh(lq, C3, True); burst = C['p4_burst']
            if bar and 'bar' not in ABL: k.e('s_barrier')
            if n == C['p4_c2']: k.st('B2ok')
            if n == C['p4_c3']: k.st('B3ok'); lq.emit(C['p4_b0'])
            if n in C['p4_poll2']: post.append(lambda n=n: mp_issue(k, 256, C['p4_poll2'].index(n), 1, not C['flip']))
            if n in C['p4_poll3']: post.append(lambda n=n: mp_issue(k, 384, C['p4_poll3'].index(n), 2, not C['flip']))
            if n == 1:
                redw.add(f's_lshl_b32 s6, s35, 8\ns_add_u32 s6, s6, {WS_MOD+GB_N}', 'v_mov_b64 v[122:123], 0\nv_lshlrev_b32 v4, 4, v4')
                redw.vm(None, f'buffer_load_dwordx4 {v(GB,4)}, v4, s[12:15], s6 offen sc1', 'gb')
                redw.add('v_and_b32 v14, 4, v13\nv_sub_u32 v15, 2, v14', 'v_add_u32 v14, v13, v15\nv_add_u32 v15, v14, v15')
            if n == 4:
                assert not len(redw); k.wait(vm='x1')
                for t in range(4):
                    for r in range(4): redw.add(('ds', f'ds_read_u16_d16_hi v{XRG[4*t+r]}, v{12+t} offset:{16*r}', 'xr'), lambda: None)
        nxt = None
        if (rl, u) == (1, 1) and g < 24:
            sl = (g >> 2) + 1
            if sl < 5: nxt = LDSI[sl]; k.wait(vm=f'wd{nxt}'); base, off = ('v11', WDL[sl]-WDL[0]) if sl < 2 else ('v10', WDL[sl])
            elif sl == 5: nxt = -1
        def wr(ad, r, t, tag):
            if C['w64']: redw.add(*[('ds', f'ds_write_b64 v{ad}, {v(r+2*x,2)} offset:{1024*t+512*x}', tag) for x in range(2)])
            else: redw.add(('ds', f'ds_write_b128 v{ad}, {v(r,4)} offset:{1024*t}', tag))
        def rdr(r, off, tag):
            if C['w64']: k.ds_op(f'ds_read2st64_b64 {v(r,4)}, v1 offset0:{off//512} offset1:{off//512+1}', tag)
            else: k.ds_op(f'ds_read_b128 {v(r,4)}, v1 offset:{off}', tag)
        if g == 40:
            assert not len(redw)
            for uu in range(2):
                for t in range(4): wr(125+uu, acc(1,uu,t), t, 'rw')
        if g == 48:
            for t in range(4): wr(124, acc(0,1,t), t, 'rv')
        if g == 49 and C['bar2']: assert len(redw) <= 8; k.wait(lg='rw'); k.e('s_barrier')
        if g == 53: assert not len(redw); k.wait(lg='rv'); k.e('s_barrier')
        k.wait(vm=f'h{i}_{rl}_{u}', lg=f'wl{i}' if i in LDSI else None)
        assert not any(isinstance(x, tuple) and x[2] == f'h{i}_{rl}_{u}' for x in lq.q), (i, rl, u)
        k.pend = getattr(k, 'pend', []) + post
        for t in range(4):
            B = v(RG[LDSI.index(i)&1]+4*t, 4) if i in LDSI else wdreg(i, t)
            D = v(acc(rl,u,t), 4); c = D if (rl,u,t) in started else '0'; started.add((rl,u,t))
            k.e(f'v_mfma_f32_16x16x32_bf16 {D}, {hreg(i,rl,u)}, {B}, {c}')
            if t == 0: lq.emit(1)
            elif t == 2:
                if len(redw): redw.emit(1)
                elif burst > 0: lq.emit(1); burst -= 1
            elif k.pend: k.pend.pop(0)()
            if nxt == -1: lds_pad(k, 1, 116)
            elif nxt is not None: k.ds_op(f'ds_read_b128 {v(RG[sl&1]+4*t,4)}, {base} offset:{off+1024*t}', f'wl{nxt}')
            if C['w64'] and g > 40 and t == 0: redw.emit(1)
            if C['bar2']:
                if g in (49, 50, 51, 52) and t & 1: x = 2*(g-49) + (t >> 1); rdr(R+16*(x&1)+4*(x>>1), (1+(x&1))*4096+(x>>1)*1024, 'r12')
                if g == 53: rdr(R0+4*t, 1024*t, 'r0')
                if g in (54, 55):
                    if (g, t) == (54, 0): k.wait(lg='r12')
                    for r in range(8*(g-54)+2*t, 8*(g-54)+2*t+2): k.e(f'v_add_f32 v{R+r}, v{R+r}, v{R+16+r}')
            elif g >= 53: rdr((R, R+16, R0)[g-53]+4*t, ((1, 2, 0)[g-53])*4096+1024*t, f'rr{g}')
    assert not len(redw) and not len(lq) and not k.pend
    k.st('P4mf')
    if not C['bar2']:
        k.wait(lg='rr54')
        for r in range(0, 16, 2): k.e(f'v_pk_add_f32 {P(R+r)}, {P(R+r)}, {P(R+16+r)}')
    k.wait(vm='gb', lg='all')
    for r in range(0, 16, 2): k.e(f'v_pk_add_f32 {P(R+r)}, {P(R+r)}, {P(R0+r)}')
    for r in range(4): k.e(f's_add_u32 s{48+r}, s72, {r*64*896}')
    for h in range(2):
        for t in range(4): k.e(f'v_pk_add_f32 {P(R+4*t+2*h)}, {P(R+4*t+2*h)}, {P(acc(0,0,t)+2*h)}')
        for t in range(4):
            x = XRG[4*t+2*h]
            k.e(f'v_pk_fma_f32 {P(x)}, {P(R+4*t+2*h)}, {P(GB+(t&2))}, {P(x)} op_sel:[0,{t&1},0] op_sel_hi:[1,{t&1},1]')
        for r in (2*h, 2*h+1):
            k.e(f'v_cvt_pk_bf16_f32 v{R0+2*r}, v{XRG[r]}, v{XRG[4+r]}\nv_cvt_pk_bf16_f32 v{R0+2*r+1}, v{XRG[8+r]}, v{XRG[12+r]}')
            k.vm_op(f'buffer_store_dwordx2 {P(R0+2*r)}, v0, s[8:11], s{48+r} offen {C["out_pol"]}')

S_W = 8192
def side(k, C):
    wq = side_head(k, False, C)
    side_tail(k, wq, C)
    k.e('s_endpgm\n' + ('.p2align 12\n' if PAGES else '') + 'SD_Z:'); k.reset_counts()
    side_head(k, True, C)
    k.e('s_branch SD_G3')

ROTB = int(os.environ.get('ROTB', 3))
W = 16; SL = 128; AC = 142; TS = 150; DF = 160; CS = 176
def side_head(k, Z, C):
    T = TS; tg = 'Z' if Z else 'B'
    k.e(f'''
    v_lshrrev_b32 v1, 6, v0
    v_and_b32 v2, 63, v0
    v_readfirstlane_b32 s3, v1
    v_lshrrev_b32 v6, 3, v2
    v_and_b32 v8, 7, v2
    s_mul_i32 s39, s3, 112
    v_add_u32 v7, s39, v6
    v_mul_u32_u24 v7, 5376, v7
    v_lshl_add_u32 v7, v8, 4, v7     ; w_mod voffset
    s_mul_i32 s62, s33, {8*ROTB if not Z else 0}
    v_add_u32 v9, s62, v2
    v_add_u32 v11, 56, v9
    v_subrev_u32 v10, 112, v9
    v_min_u32 v9, v9, v10
    v_subrev_u32 v10, 112, v11
    v_min_u32 v11, v11, v10
    v_add_lshl_u32 v9, v9, s39, 1    ; c voffsets
    v_add_lshl_u32 v11, v11, s39, 1
    s_mul_i32 s62, s62, 5376
    s_mov_b32 s10, {448*5376}
    s_mov_b32 s11, 0x20000
    s_mov_b32 s46, 896
    s_mov_b32 s47, 0x20000
    s_mov_b32 s14, {WS_END}
    s_mov_b32 s15, 0x20000
    ''')
    if Z: k.e('s_lshl_b32 s34, s33, 1\ns_add_u32 s35, s34, 1\ns_lshl_b32 s40, s34, 7\ns_lshl_b32 s41, s35, 7\ns_cmp_eq_u32 s33, 3\ns_cselect_b32 s41, 0x7ff00000, s41')
    else: k.e('s_add_u32 s40, s32, 7\ns_lshl_b32 s40, s40, 7\ns_add_u32 s41, s33, 1\ns_mul_i32 s41, s41, 896\ns_add_u32 s41, s41, s40')
    k.e(f'''
    v_lshlrev_b32 v3, 4, v2
    v_and_b32 v4, 31, v2
    v_lshrrev_b32 v5, 5, v2
    s_and_b32 s42, s3, 1             ; mat
    s_lshr_b32 s43, s3, 1
    s_mov_b32 s52, {f2h(1/448)}
    s_mov_b32 s53, {f2h(-448.0)}
    s_waitcnt lgkmcnt(0)
    s_mov_b32 s44, s22
    s_and_b32 s45, s23, 0xffff
    s_mov_b32 s8, s24
    s_and_b32 s9, s25, 0xffff
    s_mov_b32 s12, s30
    s_and_b32 s13, s31, 0xffff
    ''')
    if Z:
        k.e(f'''s_cmp_lg_u32 s2, {NSIDE-1}
    s_cbranch_scc1 SD_NZ
    v_lshlrev_b32 v10, 4, v0         ; WG 31: zero the barrier counters (16 KB), then raise d_debug[0]
    v_mov_b64 v[16:17], 0
    v_mov_b64 v[18:19], 0
    s_mov_b32 s6, {WS_FLAG+FL_BAR}''')
        for i in range(4): k.e('buffer_store_dwordx4 v[16:19], v10, s[12:15], s6 offen sc1\ns_add_u32 s6, s6, 4096')
        k.e('s_mov_b32 s74, 1\ns_waitcnt vmcnt(0)\ns_barrier\ns_cmp_lg_u32 s3, 0\ns_cbranch_scc1 SD_NZ\ns_atomic_or s74, s[28:29], 0x0\nSD_NZ:')
    k.stamp(1); k.st('sd0')
    k.vm_op('buffer_load_ushort v10, v9, s[44:47], 0 offen', 'c')
    k.vm_op('buffer_load_ushort v11, v11, s[44:47], 0 offen', 'c')
    lq = Q(k)
    for t in range(2):
        for i in range(14):
            wrap = (not Z) and any((ROTB*q + i) % 14 == 0 for q in range(4))
            pre = (f's_add_u32 s62, s62, {8*5376}\n' + (f's_cmp_eq_u32 s62, {112*5376}\ns_cselect_b32 s62, 0, s62\n' if wrap or i == 0 else '') if i or t else '') + f's_add_u32 s63, s62, s{40+t}'
            lq.vm(pre, f'buffer_load_dwordx4 {v(W+56*t+4*i,4)}, v7, s[8:11], s63 offen', f'w{t}_{i}')
    lq.emit(2)
    def ang0(dst, step, ef, df, ph):
        return f'''v_mul_f32 v{dst}, v{ef}, v{df}
        v_mul_f32 v{step}, s52, v{dst}
        v_floor_f32 v{step}, v{step}
        v_fma_f32 v{dst}, v{step}, s53, v{dst}
        v_fma_f32 v{dst}, v{dst}, s52, {ph}
        v_mul_f32 v{step}, s52, v{ef}'''
    f = Q(k)
    f.lines(f'''v_lshlrev_b32 v{T}, 3, v8
    v_add_u32 v{T}, v{T}, v6
    v_lshlrev_b32 v{T}, 2, v{T}
    s_lshl_b32 s57, s3, 8
    v_add_u32 v9, s57, v{T}          ; partial write addr
    v_lshlrev_b32 v241, 2, v2        ; partial read addr
    v_lshlrev_b32 v244, 2, v6
    v_mov_b32 v245, 0''')
    for i in range(0, 8, 2): f.add(f'v_mov_b64 {P(AC+i)}, 0')
    if not Z:
        f.lines(f'''
        s_lshl_b32 s6, s33, 2
        v_lshl_add_u32 v12, v5, 1, s6    ; 4kk+2h
        s_lshl_b32 s6, s32, 6
        v_add_u32 v{T}, s6, v12
        v_cvt_f32_u32 v{T}, v{T}         ; d0
        v_lshlrev_b32 v12, 2, v12        ; bpermute addr
        s_lshl_b32 s6, s43, 5
        v_add_u32 v{T+1}, s6, v4
        v_cmp_eq_u32 vcc, 0, v{T+1}
        v_cvt_f32_u32 v{T+1}, v{T+1}''')
        f.add(f'''s_cmp_eq_u32 s42, 1
        s_cselect_b32 s6, {f2h(-0.25)}, 0
        s_cselect_b32 s7, {f2h(224.0)}, 0''')
        f.lines(f'''v_mov_b32 v{T+2}, s6
        v_mov_b32 v{T+3}, s7
        v_cndmask_b32 v{T+3}, v{T+1}, v{T+3}, vcc
        v_cndmask_b32 v{T+4}, v{T+2}, 0, vcc''')
        for jj in range(4):
            if jj: f.add(f'v_add_f32 v{T+1}, {f2h(64.0)}, v{T+1}')
            f.lines(ang0(T+5, T+6, T+3 if jj == 0 else T+1, T, f'v{T+4}' if jj == 0 else f'v{T+2}'))
            for n in range(8): f.add(f'v_fmamk_f32 v{CS+8*jj+n}, v{T+6}, {f2h(16*(n&3)+(n>>2))}, v{T+5}')
            for n in range(8): f.add(f'v_cos_f32 v{CS+8*jj+n}, v{CS+8*jj+n}')
        f.lines(f'''s_mul_i32 s58, s3, 28
        s_lshl_b32 s7, s32, 2
        s_add_u32 s58, s58, s7
        s_add_u32 s58, s58, s33
        s_lshl_b32 s58, s58, 10
        s_add_u32 s58, s58, {WS_CP}
        s_mul_i32 s7, s33, 7
        s_add_u32 s7, s7, s32
        s_lshl_b32 s59, s7, 10
        s_add_u32 s59, s59, {WS_FLAG}''')
        f.add('s_cmp_lt_u32 s7, 20\ns_cselect_b32 s59, s59, 0x7fff0000\ns_cmp_eq_u32 s3, 3\ns_cselect_b32 s59, s59, 0x7fff0000')
    else:
        f.lines(f'v_cvt_f32_u32 v{T+1}, v0\ns_lshl_b32 s6, s33, 7\nv_cvt_f32_u32 v{T}, s6')
        for t in range(2):
            f.lines(ang0(13, 14, T+1, T, '0') + f'\nv_add_f32 v{T}, {f2h(64.0)}, v{T}')
            for n in range(0, 64, 4):
                for i in range(4): f.add(f'v_fmamk_f32 v{T+2+i}, v14, {f2h(n+i)}, v13')
                for i in range(4): f.add(f'v_cos_f32 v{T+2+i}, v{T+2+i}')
                for i in range(2): f.add(f'v_cvt_pk_bf16_f32 v{CS+32*t+n//2+i}, v{T+2+2*i}, v{T+3+2*i}')
    for n in range(8): f.cyc(56); lq.emit(1)
    f.cyc(100)
    if Z: f.cyc(C['z_f0'])
    k.stamp(2)
    k.wait(vm='c')
    for txt in ('v_lshlrev_b32 v#, 16, v#', f'v_mul_f32 v@, {f2h(-LOG2E)}, v#', 'v_exp_f32 v@, v@', 'v_add_f32 v@, 1.0, v@', 'v_rcp_f32 v@, v@', 'v_mul_f32 v#, v#, v@', 'v_cvt_pk_bf16_f32 v#, v#, v245'):
        for r in range(2): k.e(txt.replace('#', str(10+r)).replace('@', str(246+r)))
    for i in range(14): k.ds_op(f'ds_bpermute_b32 v{SL+i}, v244, v{10+i//7} offset:{32*(i%7)}', f'sl{i}')
    lq.emit(2)
    if Z:
        while len(f): f.cyc(C['z_pace']); lq.emit(1)
    f.flush()
    k.stamp(3)
    def gemv(t, split=99, mid=None):
        if t:
            for i in range(0, 8, 2): k.e(f'v_mov_b64 {P(AC+i)}, 0')
        for i in range(14):
            if i == split: mid()
            k.wait(vm=f'w{t}_{i}', lg=f'sl{i}')
            if Z or len(lq) > 14 or (t == 0 and i < C['sd_l1']): lq.emit(1)
            k.e(f'v_lshlrev_b32 v{T}, 16, v{SL+i}')
            for d in range(4): k.e(f'v_dot2_f32_bf16 v{AC+2*d}, v{W+56*t+4*i+d}, v{SL+i}, v{AC+2*d}')
            for d in range(4): k.e(f'v_dot2_f32_bf16 v{AC+2*d+1}, v{W+56*t+4*i+d}, v{T}, v{AC+2*d+1}')
        for i in range(4): k.e(f'v_permlane32_swap_b32 v{AC+i}, v{AC+4+i}')
        for i in range(0, 4, 2): k.e(f'v_pk_add_f32 {P(AC+i)}, {P(AC+i)}, {P(AC+4+i)}')
        for i in range(2): k.e(f'v_permlane16_swap_b32 v{AC+i}, v{AC+2+i}')
        k.e(f'''v_pk_add_f32 {P(AC)}, {P(AC)}, {P(AC+2)}
        v_add_f32_dpp v{AC+2}, v{AC}, v{AC} row_ror:8 row_mask:0xf bank_mask:0xf
        v_add_f32_dpp v{AC+2}, v{AC+1}, v{AC+1} row_ror:8 row_mask:0xf bank_mask:0xc''')
        k.ds_op(f'ds_write_b32 v9, v{AC+2} offset:{1024*t}')
    def gemv_fin(t):
        for i in range(2): k.ds_op(f'ds_read2st64_b32 {P(AC+2*i)}, v241 offset0:{4*t+2*i} offset1:{4*t+2*i+1}')
        k.wait(lg='all')
        k.e(f'''v_pk_add_f32 {P(AC)}, {P(AC)}, {P(AC+2)}
        v_add_f32 v{AC}, v{AC}, v{AC+1}
        v_cvt_pk_bf16_f32 v{AC}, v{AC}, v{AC}
        v_and_b32 v{AC}, 0xffff0000, v{AC}''')
        if not Z: k.e(f'''v_add_f32 v{AC+1}, 1.0, v{AC}
        v_cvt_pk_bf16_f32 v{AC+1}, v{AC+1}, v{AC+1}
        v_and_b32 v{AC+1}, 0xffff0000, v{AC+1}''')
    def zfin():
        for t in range(2):
            gemv_fin(t)
            if t: k.e(f's_cmp_eq_u32 s33, 3\ns_cselect_b32 s6, 0, -1\nv_and_b32 v{AC}, s6, v{AC}')
            else: k.e(f'v_lshl_add_u32 v{T}, v2, 1, s57\nv_mov_b32 v{T+1}, s57')
            k.e(f'ds_write_b16_d16_hi v{T}, v{AC} offset:{4096+128*t}')
        for i in range(16): k.ds_op(f'ds_read_b128 {v(W+4*i,4)}, v{T+1} offset:{4096+16*i}', f'z{i}')
        k.e(f'''v_mov_b64 {P(AC+2)}, 0
        v_mov_b64 {P(AC+4)}, 0
        s_lshl_b32 s6, s33, 10
        s_add_u32 s6, s6, {WS_ZF}
        v_lshlrev_b32 v{T}, 2, v0
        v_cmp_ge_u32 vcc, 224, v0
        v_mov_b32 v{T+2}, 0x7fff0000
        v_add_u32 v{T+1}, 896, v{T}
        v_cndmask_b32 v{T}, v{T+2}, v{T}, vcc
        v_subrev_u32 v{T+3}, 1, v0
        v_cmp_gt_u32 vcc, 31, v{T+3}
        v_cndmask_b32 v{T+1}, v{T+2}, v{T+1}, vcc''')
        for i in range(16):
            k.wait(lg=f'z{i}')
            for d in range(4): k.e(f'v_dot2_f32_bf16 v{AC+2+d}, v{CS+4*i+d}, v{W+4*i+d}, v{AC+2+d}')
        k.e(f'''v_pk_add_f32 {P(AC+2)}, {P(AC+2)}, {P(AC+4)}
        v_add_f32 v{AC+2}, v{AC+2}, v{AC+3}
        v_cvt_pk_bf16_f32 v{AC+3}, v{AC+2}, v{AC+2}
        v_and_b32 v{AC+3}, 0xffff0000, v{AC+3}
        v_sub_f32 v{AC+3}, v{AC+2}, v{AC+3}
        v_cvt_pk_bf16_f32 v{AC+2}, v{AC+2}, v{AC+3}''')
        k.vm_op(f'buffer_store_dword v{AC+2}, v{T}, s[12:15], s6 offen sc1')
        k.vm_op(f'buffer_store_dword v{AC+2}, v{T+1}, s[12:15], s6 offen sc1')
    gemv(0); k.stamp(4)
    if not Z:
        k.wait(lg='all'); k.e('s_barrier'); gemv_fin(0); k.stamp(5)
        for n in range(8): k.e(f'ds_bpermute_b32 v{DF+n}, v12, v{AC+1} offset:{4*(16*(n&3)+(n>>2))}')
        k.e('s_waitcnt lgkmcnt(0)')
        for jj in range(4):
            if jj == 3:
                k.e('s_cmp_eq_u32 s43, 1\ns_cselect_b32 s58, s59, s58\ns_cselect_b32 s6, 0, -1')
            for n in range(0, 8, 2): k.e(f'v_pk_mul_f32 {P(CS+8*jj+n)}, {P(CS+8*jj+n)}, {P(DF+n)}')
            for r in range(4): k.e(f'v_cvt_pk_bf16_f32 v{W+4*jj+r}, v{CS+8*jj+2*r}, v{CS+8*jj+2*r+1}')
            if jj == 3:
                for r in range(4): k.e(f'v_and_b32 v{W+12+r}, s6, v{W+12+r}')
            k.vm_op(f'buffer_store_dwordx4 {v(W+4*jj,4)}, v3, s[12:15], s58 offen sc1', 'cp')
            if jj < 3: k.e(f's_add_u32 s58, s58, {4*28*1024}')
    else: k.stamp(5)
    k.stamp(6); k.st('sd1'); k.e('s_load_dword s75, s[28:29], 0x0')
    if C['sd_bar'] and not Z: k.e('s_barrier')
    lq.emit(C['sd_l1b'])
    k.e(f'''
    s_lshr_b32 s36, s32, 1
    s_lshl_b32 s6, s33, 2
    s_add_u32 s36, s36, s6           ; idx
    s_and_b32 s6, s32, 1
    s_mul_i32 s6, s6, 14
    s_add_u32 s37, s6, s36           ; 2m+half
    s_cmp_eq_u32 s42, 0
    s_cselect_b32 s48, s16, s18
    s_cselect_b32 s49, s17, s19
    s_and_b32 s49, s49, 0xffff
    s_cmp_lt_u32 s36, 14
    s_cselect_b32 s50, {448*3584}, 0
    s_mov_b32 s51, 0x20000
    v_bfe_u32 v{T}, v2, 4, 1
    v_lshlrev_b32 v{T}, 2, v{T}
    v_xor_b32 v{T}, v{T}, v8
    v_mul_u32_u24 v15, 3584, v6
    v_lshl_add_u32 v15, v{T}, 4, v15
    s_mul_i32 s54, s43, {224*3584}
    s_lshl_b32 s6, s37, 7
    s_add_u32 s54, s54, s6
    s_mul_i32 s55, s42, 57344
    s_mul_i32 s6, s43, 28672
    s_add_u32 s56, s55, s6
    s_add_u32 m0, s56, {S_W + (16*1024 if C['sd_ord'] else 0)}
    s_add_u32 s54, s54, {16*8*3584 if C['sd_ord'] else 0}
    s_cmp_eq_u32 s43, {0 if C['sd_ord'] else 's43'}
    s_cselect_b32 s64, 1, -1
    s_cselect_b32 s66, -27, s64
    s_cselect_b32 s68, s64, 27
    s_mul_i32 s65, s64, {8*3584}
    s_mul_i32 s67, s66, {8*3584}
    s_mul_i32 s69, s68, {8*3584}
    s_lshl_b32 s64, s64, 10
    s_lshl_b32 s66, s66, 10
    s_lshl_b32 s68, s68, 10
    s_lshl_b32 s58, s32, 7
    s_lshl_b32 s6, s3, 12
    s_add_u32 s58, s58, s6
    s_add_u32 s24, s30, {WS_FLAG}
    s_addc_u32 s25, s31, 0
    s_mov_b32 s74, 1
    ''')
    wq = Q(k)
    for i in range(28):
        r = (66 if i == 12 else 68 if i == 17 else 64) if C['sd_ord'] else 64
        wq.vm(f's_add_u32 m0, m0, s{r}\ns_add_u32 s54, s54, s{r+1}' if i else None, 'buffer_load_dwordx4 v15, s[48:51], s54 offen lds', 'wst')
    if not Z: k.e(f'''
    s_lshl_b32 s6, s32, 6
    v_add_u32 v{DF}, s6, v2          ; col
    v_cmp_le_u32 vcc, 224, v{DF}
    v_sub_u32 v{DF+1}, 448, v{DF}
    v_cndmask_b32 v{DF+1}, v{DF}, v{DF+1}, vcc
    v_cndmask_b32 v{DF+2}, 0, 32, vcc
    v_cmp_eq_u32 vcc, 224, v{DF+1}
    v_cndmask_b32 v{DF+1}, v{DF+1}, 0, vcc
    v_lshrrev_b32 v{DF+3}, 5, v{DF+1}
    v_lshl_add_u32 v{DF+2}, v{DF+3}, 6, v{DF+2}
    v_and_b32 v{DF+1}, 31, v{DF+1}
    v_add_u32 v{DF+1}, v{DF+1}, v{DF+2} ; position
    s_mov_b32 s60, {WS_MOD+GA_P}
    s_cmp_eq_u32 s33, 3
    s_cselect_b64 vcc, -1, 0
    s_cselect_b32 s60, {WS_MOD+GB_N}, s60
    v_cndmask_b32 v{DF+1}, v{DF+1}, v{DF}, vcc
    s_mov_b32 s61, 0x7fff0000
    s_cmp_eq_u32 s33, 1
    s_cselect_b32 s61, {WS_MOD+SB_K}, s61
    s_cselect_b32 s60, 0x7fff0000, s60
    s_cmp_eq_u32 s33, 2
    s_cselect_b64 vcc, -1, 0
    s_cselect_b32 s60, {WS_MOD+CB1_P}, s60
    s_cselect_b32 s61, {WS_MOD+CB1_K}, s61
    v_lshlrev_b32 v{DF+1}, 2, v{DF+1}
    v_lshlrev_b32 v{DF}, 1, v{DF}
    ''')
    def midsig():
        k.wait(vm='cp', lg='all'); k.e('s_barrier'); ready_loop(k, 242, 243)
        for i in range(4): k.e(f's_atomic_add s74, s[24:25], s58 offset:{FL_BAR+1024*i}')
        k.stamp(7); k.st('sd2'); lq.flush()
    assert C['sd_split'] < 14
    gemv(1, C['sd_split'] if not Z else 99, midsig)
    k.wait(lg='all'); k.e('s_barrier')
    if Z: ready_loop(k, 242, 243); k.stamp(7)
    if Z:
        zfin()
        k.wait(vm='all'); k.e('s_barrier'); signal(k, FL_Z)
        return
    k.e('s_cmp_lg_u32 s3, 0\ns_cbranch_scc1 SD_G4')
    gemv_fin(1)
    k.e(f'''v_cndmask_b32 v{AC}, v{AC}, v{AC+1}, vcc
    buffer_store_dword v{AC}, v{DF+1}, s[12:15], s60 offen sc1
    buffer_store_short_d16_hi v{AC}, v{DF}, s[12:15], s61 offen sc1
    s_barrier
    s_waitcnt vmcnt(0)''')
    for r in list(range(0, 16, 2)) + [3, 5]: k.e(f's_atomic_add s74, s[24:25], {FL_BAR+1024*r+7*128}')
    k.e('s_branch SD_G3\nSD_G4:\ns_barrier')
    return wq

def side_tail(k, wq, C):
    T = TS
    k.e('SD_G3:'); k.vm = []; k.lg = []
    k.stamp(8); k.st('sd3')
    k.e('s_cmp_lt_u32 s36, 14\ns_cbranch_scc0 ' + ('SD_PF' if C['sd_pf'] else 'KP_END'))
    f = Q(k)
    f.lines(f'''
    s_lshr_b32 s38, s37, 1
    s_lshl_b32 s38, s38, 7
    s_add_u32 s38, s38, {FL_SIDE}
    s_and_b32 s39, s32, 1
    s_lshl_b32 s39, s39, 11
    s_add_u32 s39, s39, {FL_MODS}''')
    f.lines(f'''v_bfe_u32 v{T}, v2, 2, 2
    v_lshl_add_u32 v{T+1}, v5, 3, v{T}
    v_lshlrev_b32 v8, 7, v{T+1}
    v_lshrrev_b32 v{T}, 1, v{T}
    v_xor_b32 v{T}, s43, v{T}
    v_lshl_add_u32 v8, v{T}, 6, v8
    v_bfe_u32 v{T}, v2, 4, 1
    v_lshl_add_u32 v8, v{T}, 5, v8
    v_and_b32 v{T}, 3, v2
    v_lshl_add_u32 v8, v{T}, 3, v8
    s_add_u32 s55, s55, {S_W}
    v_add_u32 v8, s55, v8            ; tr read addr
    v_and_b32 v9, 1, v2
    v_mul_u32_u24 v9, 1152, v9
    v_lshl_add_u32 v9, v5, 4, v9     ; vec read addr
    s_lshl_b32 s19, s37, 2
    s_add_u32 s19, s19, s3
    s_lshl_b32 s19, s19, 9
    s_add_u32 s19, s19, {WS_WEXT}''')
    if C['sd_late']:
        f.flush(); poll_issue(k, 's39', 's0', 1); poll_check(k, 's39', 28, 's0', 1); k.e('s_barrier')
    while len(wq): wq.emit(1); f.emit(3)
    poll_issue(k, 's39', 's0', 1)
    k.wait(vm='all'); k.e('s_barrier')
    poll_check(k, 's39', 28, 's0', 1)
    k.e(f's_cmp_lg_u32 s3, 1\ns_cbranch_scc1 SD_V\ns_mov_b32 m0, 4096\ns_mov_b32 s6, {WS_MOD+CB1_K}')
    k.e('buffer_load_dwordx4 v3, s[12:15], s6 offen sc1 lds\ns_mov_b32 m0, 4224\ns_nop 0\nbuffer_load_dwordx4 v3, s[12:15], s6 offen offset:1024 sc1 lds\nSD_V:')
    for ks in range(28):
        for hf in range(2): k.ds_op(f'ds_read_b64_tr_b16 {a(4*ks+2*hf,2)}, v8 offset:{2048*ks+512*hf}')
    k.wait(vm='all'); k.e('s_barrier'); k.stamp(9); k.st('sd4')
    A2 = 240
    def rd(ks): k.ds_op(f'ds_read_b128 {v(W+4*ks,4)}, v9 offset:{4096+32*ks}', f'a{ks}')
    for ks in range(6): rd(ks)
    for ks in range(28):
        k.wait(lg=f'a{ks}')
        c = '0' if ks == 0 else v(A2,16)
        k.e(f'v_mfma_f32_32x32x16_bf16 {v(A2,16)}, {v(W+4*ks,4)}, {a(4*ks,4)}, {c}')
        if ks+6 < 28: rd(ks+6)
    k.e(f'''
    v_cvt_pk_bf16_f32 v9, v{A2}, v{A2+1}
    v_lshlrev_b32 v12, 16, v9
    v_and_b32 v13, 0xffff0000, v9
    v_sub_f32 v12, v{A2}, v12
    v_sub_f32 v13, v{A2+1}, v13
    v_cvt_pk_bf16_f32 v8, v{A2}, v12
    v_cvt_pk_bf16_f32 v10, v13, v{A2+1}
    v_mov_b32 v11, 0
    s_mov_b32 exec_hi, 0
    ''')
    k.vm_op('buffer_store_dwordx4 v[8:11], v3, s[12:15], s19 offen sc1')
    k.e('s_mov_b32 exec_hi, -1'); k.wait(vm='all'); k.e('s_barrier'); signal(k, 's38')
    if C['sd_pf']:
        k.e(f'''SD_PF:
    s_add_u32 s24, s30, {WS_FLAG+FL_WD}
    s_addc_u32 s25, s31, 0
    s_and_b32 s34, s32, 1
    s_lshl_b32 s6, s34, 10
    s_lshl_b32 s7, s3, 8
    s_add_u32 s6, s6, s7
    s_cmp_eq_u32 s3, 3
    s_cselect_b32 s7, 0, 128
    s_add_u32 s7, s7, s6
    s_lshl_b32 s35, s33, 2
    s_add_u32 s35, s35, s3
    s_mul_i32 s35, s35, 56
    v_min_u32 v6, 55, v2
    v_add_u32 v6, s35, v6
    v_lshrrev_b32 v7, 5, v6
    v_and_b32 v6, 31, v6
    v_mul_u32_u24 v7, 57344, v7
    v_lshl_add_u32 v6, v6, 7, v7
    s_mul_i32 s34, s34, {7*4096}
    s_sub_u32 s35, {WS_WDP+7*4096}, s34
    s_add_u32 s34, s34, {WS_WDP}
    s_mov_b32 s1, 0
SD_PL:
    s_mov_b32 s0, 0
    s_mov_b32 s4, 0
    s_atomic_add s0, s[24:25], s6 glc
    s_atomic_add s4, s[24:25], s7 glc
    s_add_u32 s1, s1, 1
    s_waitcnt lgkmcnt(0)
    s_add_u32 s0, s0, s4
    s_cmp_eq_u32 s0, 56
    s_cbranch_scc1 SD_PD
    s_sleep 8
    s_cmp_lt_u32 s1, {SPIN_MAX}
    s_cbranch_scc1 SD_PL
SD_PD:
    s_barrier''')
        for j, (own, lo) in enumerate(C['sd_pf']):
            k.e(f's_add_u32 s6, s{34 if own else 35}, {4096*lo}\nbuffer_load_dword v{16+j}, v6, s[12:15], s6 offen sc1')
    if K.MARK and K.MARK.startswith('sd'): k.mark_spin()
    k.stamp_out(0, 11)
```

```python
from asmlib import *
from layout2 import *
import math, os
NSIDE = 32; NMAIN = 224; GRID = 256
LDS_ALL = 163840
RX = int(os.environ.get('RX', 0)); RSH = int(os.environ.get('RSH', 0)); NREP = 18; assert not RX and not RSH
SPIN_MAX = 1 << 20
DELT = [16*a + 8*(n >> 2) + (n & 3) for a in range(2) for n in range(8)]
LOG2E = math.log2(math.e)
CFG = dict(sd_pf=[], x_first=0, poll1b=2, poll1c=15, sd_bar=1, rdy=2, z_f0=700, z_pace=64, mp1=8, ld1=0, f3_post=0, r1sep=0, ssig=1, sd_split=0, sd_l1=0, p1_w3_t=0, sd_late=0, p1_fill0=40, p1_ld_pre=10, p1_fill=64, pf_ca=1, pf_mod=2, pf_a=2, c2_at=6, sd_l1b=8, wl_early=1, w3_at=8, cold_at=101, c2_bar=1, cq_from=2, cold_rate=3, cold_a=0, join=0, x1at=0, wswap=0, cold_n=99, pf_b=1, wl_c2=0, sd_ord=1, wl_nat=0, p1_split=0, p1_f2=150, p1_fill_drain0=300, p1_w3_ld=0, p1_w3_a=0, p1_w3_b=0, p1_w3_c=0, p1_w3_drain=6, p1_fill_drain=32, p1_fill_drain2=0, poll1_at=11, f3_pre=0, p2_f3=16,
           p2_pre=4, p2_pre2=4, p2_rate=1, r2_from=2, r2_kk=(1,3), r2_sb=(2,4,6), r2_6=1, wd_from=9, pollW=4, r2_a=1, r2_b=2, r2_c=0, p2_modi=-1, p2_mod=4, r2_pre=1, su_drain=500, r3_drain=10, pollA=(0,5,9), wd_flag=0, pg5=(2,5), pg6='e', hrot=0, abl=(), a1_bar=1, r4=0, a1b_ks=25, wd_early=0, xp=1, tr_rate=1, su_ks=12, tr_late=1, su_go=200, x0=6, su_span=10, a1_pre=4, st_ks=25, wd_st=(7,2,16),
           w64=0, bar2=0, rr=0, flip=0, rrh=0, gap=(24,24,28), vmc=8, epi_span=(20,18,12), sigB0=(2,12), pollB0=((2,20),), c0_ks=6, sigB01=(3,6), pollB01=((3,10),(3,14)), c01_ks=22, sigB2=28, u_ld=1, e_ld=2, p4_burst0=4, sg_pk=2, sg_rate=28, p4_poll2=(-1,1,3), p4_c2=6, p4_sig3=6, p4_poll3=(6,8,10), p4_c3=14, p4_b0=0, p4_burst=0, out_pol='sc1')

ABL = set()
class Q:
    def __init__(self, k): self.k = k; self.q = []; self.debt = 0
    def add(self, *atoms): self.q.extend(atoms)
    def lines(self, txt): self.q.extend([l.strip() for l in txt.strip().split('\n') if l.strip()])
    def vm(self, pre, txt, tag=None):
        if pre: self.q.append(lambda: (self.k.e(pre), self.k.vm_op(txt, tag)))
        else: self.q.append(('vm', txt, tag))
    def emit(self, n=1):
        c = 0
        while self.q and c < n:
            x = self.q.pop(0)
            if isinstance(x, tuple):
                (self.k.vm_op if x[0] == 'vm' else self.k.ds_op)(x[1], x[2]); c += 1
            elif callable(x): x(); c += 1
            else: self.k.e(x); c += len(x.strip().split('\n'))
    def cyc(self, budget):
        self.debt += budget
        while self.q and self.debt > 0:
            n0 = len(self.k.L); self.emit(1)
            for l in self.k.L[n0:]:
                mn = l.split()[0]
                self.debt -= 8 if mn in TRANS else 12 if mn.startswith('buffer_') else 4
        if not self.q: self.debt = 0
    def cost(self):
        return sum((12 if isinstance(x, tuple) else 8 if x.split()[0] in TRANS else 4*len(x.strip().split('\n'))) for x in self.q)
    def flush(self): self.emit(1 << 30)
    def __len__(self): return len(self.q)

PAGES = int(os.environ.get('PAGES', 1))
def page(k, n, ret=None, touch=None):
    if not PAGES: return
    for w, p in (touch or {}).items(): k.e(f's_cmp_eq_u32 s3, {w}\ns_cbranch_scc1 PT_{p}')
    k.e(f's_branch PL_{n}\nPE_{n}:\n.p2align 12\nPT_{n}:')
    if ret is not None: k.e(f's_branch PL_{ret}\ns_nop 0')
    k.e(f'PL_{n}:')
def t1_txt(dst, g, b, tmp):
    return f'''s_sub_u32 {tmp}, 64, {g}
    s_cmp_eq_u32 {g}, 0
    s_cselect_b32 {tmp}, 32, {tmp}
    s_cmp_eq_u32 {b}, 0
    s_cselect_b32 {dst}, {g}, {tmp}'''
def srd_txt(d, base, size): return f's_mov_b32 s{d}, s{base}\ns_and_b32 s{d+1}, s{base+1}, 0xffff\ns_mov_b32 s{d+2}, {size}\ns_mov_b32 s{d+3}, 0x20000'
P = lambda r: v(r, 2)

def signal(k, off, wave=0):
    l = k.label('SIG')
    k.e(f's_cmp_lg_u32 s3, {wave}\ns_cbranch_scc1 {l}\ns_mov_b32 s74, 1\ns_atomic_add s74, s[24:25], {off}\n{l}:')
def poll_issue(k, off, r='s0', wave=0):
    l = k.label('PI')
    k.e(f's_cmp_lg_u32 s3, {wave}\ns_cbranch_scc1 {l}\ns_mov_b32 {r}, 0\ns_atomic_add {r}, s[24:25], {off} glc\n{l}:')
def poll_check(k, off, target, r='s0', wave=0):
    l, d = k.label('PC'), k.label('PD')
    k.e(f'''s_cmp_lg_u32 s3, {wave}
    s_cbranch_scc1 {d}
    s_mov_b32 s1, 0
{l}:
    s_waitcnt lgkmcnt(0)
    s_cmp_ge_u32 {r}, {target}
    s_cbranch_scc1 {d}
    s_add_u32 s1, s1, 1
    s_cmp_gt_u32 s1, {SPIN_MAX}
    s_cbranch_scc1 {d}
    s_mov_b32 {r}, 0
    s_atomic_add {r}, s[24:25], {off} glc
    s_branch {l}
{d}:''')
MP = [76, 77, 78]
def gsignal(k, off, wave):
    l = k.label('SIG')
    k.e(f's_cmp_lg_u32 s3, {wave}\ns_cbranch_scc1 {l}\ns_atomic_add s74, s[30:31], {off}\n{l}:')
def fladdr(off, other): return f's[24:25], s79 offset:{off}' if other else f's[30:31], {off}'
def mp_issue(k, off, j, wave, other=False):
    if 'pol' in ABL and off: return
    l = k.label('MI')
    k.e(f's_cmp_lg_u32 s3, {wave}\ns_cbranch_scc1 {l}\ns_mov_b32 s{MP[j]}, -1\ns_atomic_and s{MP[j]}, {fladdr(off, other)} glc\n{l}:')
def mp_check(k, off, target, wave, other=False, pace=4):
    if 'chk' in ABL and (off, target) != (0, 7): return
    l, d = k.label('MC'), k.label('MD'); r = [k.label('MR') for _ in MP]
    t = f's_cmp_lg_u32 s3, {wave}\ns_cbranch_scc1 {d}\ns_mov_b32 s1, -1\n{l}:\n'
    for p in MP: t += f's_cmp_ge_i32 s{p}, {target}\ns_cbranch_scc1 {d}\n'
    t += f's_add_u32 s1, s1, 1\ns_cmp_gt_u32 s1, {SPIN_MAX*4}\ns_cbranch_scc1 {d}\ns_and_b32 s0, s1, {pace-1}\ns_cbranch_scc1 {l}\n'
    for p, x in zip(MP, r): t += f's_cmp_lg_u32 s{p}, -1\ns_cbranch_scc1 {x}\n'
    t += f's_branch {l}\n'
    for p, x in zip(MP, r): t += f'{x}:\ns_cmp_ge_i32 s{p}, {target}\ns_cbranch_scc1 {d}\ns_mov_b32 s{p}, -1\ns_atomic_and s{p}, {fladdr(off, other)} glc\ns_branch {l}\n'
    k.e(t + f'{d}:')
def reread(k, soff, junk):
    k.e('s_mov_b64 exec, 0xffff'); k.vm_op(f'buffer_load_dword v{junk}, v2, s[12:15], {soff} offen sc1'); k.e('s_mov_b64 exec, -1')
def lds_pad(k, n, junk):
    for _ in range(n): k.ds_op(f'ds_read_b32 v{junk}, v6')
def ready_loop(k, vz, vr):
    l, g = k.label('BS'), k.label('BG')
    k.e(f'''s_cmp_lg_u32 s75, 0
    s_cbranch_scc1 {g}
    s_mov_b32 s1, 0
    v_mov_b32 v{vz}, 0
{l}:
    s_sleep 8
    global_load_dword v{vr}, v{vz}, s[28:29] sc1
    s_add_u32 s1, s1, 1
    s_waitcnt vmcnt(0)
    v_readfirstlane_b32 s75, v{vr}
    s_cmp_gt_u32 s1, {SPIN_MAX}
    s_cbranch_scc1 {g}
    s_cmp_lg_u32 s75, 0
    s_cbranch_scc0 {l}
{g}:''')

P2_X, P2_GC, P2_XI = 114688, 126976, 151552
IMG = 29696; KSP = 4*IMG
ACC0 = 16; RING = 80; WX = 96; ET = 104
REGI = [0, 1, 4, 5, 8, 9, 12, 13, 2]; LDSI = [3, 6, 7, 10, 11]
WDL = [120832, 120832+16384, 0, 16384, 32768]
X1L = 59392; RED = 71680; XR = 128
R1A = int(os.environ.get('R1A', 0)); R1N = int(os.environ.get('R1N', 10)); R1L = 65536 - 8192*R1A
ROTMASK = int(os.environ.get('ROT', 0))
TLB_OFF = 0x23000
VD, VM, VS, TB = 208, 209, 210, 211
WSLOT = {3: 0, 6: 1, 7: 2, 10: 3, 11: 4}
def wdreg(i, f):
    n = REGI.index(i)*4 + f
    return v(144+4*n, 4) if n < 28 else a(224+4*(n-28), 4)
def acc4(rl, t): return ACC0 + 32*rl + 16*t

def gen_kp(cfg=None):
    C = dict(CFG); C.update(cfg or {})
    if C['wswap']: WSLOT.update({6: 0, 10: 1, 3: 2, 7: 3, 11: 4})
    ABL.clear(); ABL.update(C['abl'])
    k = K(); k.stamp(0); k.st('start')
    k.e(f'''
    s_load_dwordx16 s[16:31], s[0:1], 48
    s_getpc_b64 s[6:7]
KP_PC:
    s_lshr_b32 s33, s2, 3
    v_and_b32 v1, 15, v0
    v_lshl_add_u32 v1, s33, 4, v1
    v_lshlrev_b32 v1, 7, v1
    v_min_u32 v1, KP_LAST-KP_PC-4, v1
    global_load_dword a255, v1, s[6:7]
    s_andn2_b32 s32, s2, 24
    s_cmp_lt_u32 s32, 7
    s_cbranch_scc1 KP_SIDE
    s_cmp_eq_u32 s32, 7
    s_cbranch_scc1 SD_Z
    s_load_dwordx2 s[4:5], s[0:1], 0
    s_cmp_ge_u32 s2, {GRID}
    s_cbranch_scc1 KP_END
    v_lshrrev_b32 v1, 6, v0
    v_and_b32 v2, 63, v0
    v_readfirstlane_b32 s3, v1
    v_lshlrev_b32 v3, 4, v2          ; lane*16
    v_and_b32 v4, 31, v2             ; lane&31
    v_lshrrev_b32 v5, 5, v2          ; h
    s_mov_b32 s14, {WS_END}
    s_mov_b32 s15, 0x20000
    s_and_b32 s34, s2, 1             ; hi
    s_lshr_b32 s35, s2, 3
    s_sub_u32 s35, s35, {NSIDE//8}
    s_mul_i32 s33, s35, 37
    s_lshr_b32 s33, s33, 8           ; gl = q/7
    s_and_b32 s6, s2, 7
    s_lshl_b32 s6, s6, 1
    s_lshr_b32 s7, s33, 1
    s_add_u32 s6, s6, s7             ; pair p
    s_sub_u32 s7, 32, s6
    s_cmp_eq_u32 s6, 0
    s_cselect_b32 s7, 16, s7
    s_bitcmp1_b32 s33, 0
    s_cselect_b32 s36, s7, s6        ; g
    s_and_b32 s32, s2, 6
    s_lshl_b32 s32, s32, 1
    s_add_u32 s32, s32, s33          ; G
    s_mul_i32 s33, s33, 7
    s_sub_u32 s35, s35, s33          ; lo
    s_mul_i32 s33, s34, 7
    s_add_u32 s33, s33, s35          ; mem
    ''')
    f = P1(k, C)
    P2(k, C, f)
    P3(k, C)
    P4(k, C)
    k.st('end')
    if K.MARK and not K.MARK.startswith('sd'): k.mark_spin()
    k.stamp_out(0, len(K.NAMES or [])+2)
    k.e('s_endpgm\nPE_7:\n' + ('.p2align 12\n' if PAGES else '') + 'KP_SIDE:'); k.reset_counts(); side(k, C)
    k.e('KP_END:\ns_endpgm\nKP_LAST:')
    return k.L

def w3slot(n, lo): return n if lo == 0 or n < 14 else n + 2
def w3_dma(k, lo, hi, ldsbase):
    q = Q(k)
    for ks in range(lo, hi):
        j, mu, a_ = ks >> 2, (ks >> 1) & 1, ks & 1
        row = 32*j + 16*a_ if not mu else 433 - 32*j - 16*a_
        vo = VS if ks == 2 else VM if mu else VD
        so = '0' if ks in (0, 2) else 's61'
        pre = f's_add_u32 m0, s60, {ldsbase + w3slot(ks-lo, lo)*8192}\n' + (f's_mov_b32 s61, {row*3584}' if so != '0' else 's_nop 0')
        if ('w3a' in ABL and lo == 0) or ('w3b' in ABL and lo): q.add(lambda: None, lambda: None); continue
        q.vm(pre, f'buffer_load_dwordx4 v{vo}, s[16:19], {so} offen lds')
        q.vm(None, f'buffer_load_dwordx4 v{vo}, s[20:23], {so} offen offset:1024 lds', f'w3_{ks}')
    return q
def w3_tr(k, lo, hi):
    q = Q(k)
    for ks in range(lo, hi):
        n = w3slot(ks - lo, lo)
        for mt in range(2):
            for hf in range(2):
                if 'tr' in ABL: q.add(lambda: None); continue
                q.add(('ds', f'ds_read_b64_tr_b16 {a(8*ks+4*mt+2*hf,2)}, v{TB+(n>>3)} offset:{(n&7)*8192+mt*1024+hf*4096}', 'tr'))
    return q

def P1(k, C):
    X = 16; UP = 72; M = 88; T = 96; WL = 216; WO = 224; BF = 40; AC = 160
    k.e(f'''
    v_lshrrev_b32 v6, 3, v2
    s_lshl_b32 s6, s3, 4
    v_add_u32 v6, s6, v6
    v_and_b32 v7, 7, v2
    v_mul_u32_u24 v246, {32*896}, v6
    v_lshl_add_u32 v246, v7, 4, v246
    v_add_u32 v247, {8*32*896}, v246 ; set 1
    s_mul_i32 s39, s36, 896
    s_lshl_b32 s40, s35, 7
    s_mov_b32 s10, {2048*896}
    s_mov_b32 s11, 0x20000
    s_add_u32 s37, s39, s40
    s_add_u32 s38, s39, 896
    ''')
    f = Q(k)
    wa = f'''
    s_sub_u32 s6, s2, {NSIDE}
    s_mul_i32 s7, s6, 9363
    s_lshr_b32 s7, s7, 16
    s_mul_i32 s64, s7, 7
    s_sub_u32 s64, s6, s64           ; jt
    s_lshl_b32 s7, s7, 2
    s_add_u32 s7, s7, s3             ; rb
    s_min_u32 s65, s7, 111
    s_mul_i32 s65, s65, {16*896}
    s_lshl_b32 s67, s64, 7
    s_add_u32 s65, s65, s67
    v_mul_u32_u24 v{WO}, {4*896}, v5
    v_and_b32 v232, 15, v2
    v_bfe_u32 v{WO+1}, v2, 4, 1
    v_lshlrev_b32 v234, 3, v232
    v_lshl_add_u32 v234, v{WO+1}, 2, v234
    {f'v_lshl_add_u32 v{WO}, v4, 2, v{WO}' if C['wl_nat'] or 'wl' in ABL else f'v_add_u32 v{WO}, v234, v{WO}'}
    v_lshl_add_u32 v234, v5, 7, v234
    v_lshlrev_b32 v232, 4, v232
    v_lshl_add_u32 v232, v5, 8, v232
    v_lshl_add_u32 v232, v{WO+1}, 11, v232     ; packed store voffset
    v_add_u32 v{WO}, s65, v{WO}
    v_add_u32 v{WO+1}, {8*896}, v{WO}'''
    wb = f'''
    s_lshl_b32 s64, s64, 2
    s_bfe_u32 s65, s7, 0x20001
    s_add_u32 s64, s64, s65
    s_mul_i32 s64, s64, 14
    s_lshr_b32 s65, s7, 3
    s_add_u32 s64, s64, s65
    s_lshl_b32 s64, s64, 3
    s_and_b32 s65, s7, 1
    s_add_u32 s64, s64, s65
    s_lshl_b32 s64, s64, 9
    s_add_u32 s64, s64, {WS_WDP}
    s_lshl_b32 s65, s32, 9
    s_sub_u32 s67, s67, s65
    s_add_u32 s67, s67, {FL_WD}
    s_cmp_lt_u32 s6, 196
    s_cselect_b32 s64, s64, 0x7fff0000
    s_cselect_b32 s69, s3, 0
    s_mov_b32 s65, 0x05040100
    s_mov_b32 s66, 0x07060302'''
    f.lines(f'''
    s_and_b32 s6, s2, 7
    s_mul_i32 s7, s3, 7
    s_add_u32 s7, s7, s6
    s_add_u32 s7, s7, 14
    s_lshl_b32 s43, s3, 1
    s_add_u32 s43, s43, 1''')
    f.add('s_cmp_eq_u32 s6, 7\ns_cselect_b32 s7, s43, s7')
    f.lines(f'''s_lshl_b32 s7, s7, 7
    s_lshr_b32 s6, s2, 3
    s_sub_u32 s6, s6, {NSIDE//8}
    s_mul_i32 s6, s6, {16*5376}
    s_add_u32 s7, s7, s6
    v_mul_u32_u24 v250, 5376, v2
    s_and_b32 s43, s2, 7
    s_add_u32 s43, s43, 7
    s_lshl_b32 s43, s43, 7
    s_add_u32 s43, s43, s6
    s_mul_i32 s6, s3, {4*5376}
    s_add_u32 s43, s43, s6
    v_add_u32 v249, s43, v250
    v_add_u32 v250, s7, v250
    s_lshr_b32 s7, s3, 1
    s_mul_i32 s7, s7, 1792
    v_lshl_add_u32 v252, v2, 7, s7
    s_sub_u32 s6, s2, {NSIDE}''')
    f.add(f'''s_add_u32 s7, s6, 224
    s_cmp_eq_u32 s6, 128
    s_cselect_b32 s7, 224, s7
    s_cmp_lt_u32 s6, 128
    s_cselect_b32 s7, s6, s7
    s_mul_i32 s7, s7, 3584
    v_add_u32 v251, s7, v252
    s_cmp_ge_u32 s6, 96
    s_addc_u32 s6, s6, 128
    s_mul_i32 s6, s6, 3584
    v_add_u32 v252, s6, v252''')
    npf = len(f)
    def pf_mod(): k.e('s_mov_b64 exec, 0xffff'); k.vm_op('global_load_dword a254, v250, s[0:1]'); k.e('s_mov_b64 exec, -1')
    def pf_ca(): k.e('s_mov_b64 exec, 15'); k.vm_op('global_load_dword a251, v249, s[24:25]'); k.e('s_mov_b64 exec, -1')
    def pf_w3(h): k.e('s_mov_b64 exec, 0x3fff'); k.vm_op(f'global_load_dword a{253-h}, v{251+h}, s[26:27]'); k.e('s_mov_b64 exec, -1')
    f.lines(f'''
    v_lshrrev_b32 v{T}, 4, v2
    v_bfe_u32 v{T+1}, v2, 2, 2
    v_xor_b32 v{T+1}, v{T+1}, v{T}
    v_and_b32 v{T+2}, 3, v2
    v_lshlrev_b32 v{T+2}, 4, v{T+2}
    v_lshl_add_u32 v{T+1}, v{T+1}, 6, v{T+2}
    s_lshl_b32 s6, s33, 8
    v_add_u32 v{T+1}, s6, v{T+1}
    s_lshl_b32 s6, s3, 2
    v_add_u32 v{T}, s6, v{T}         ; row in k-step
    v_mul_u32_u24 v{VD}, 3584, v{T}
    v_sub_u32 v{VM}, {15*3584}, v{VD}
    v_add_u32 v{VD}, v{VD}, v{T+1}
    v_add_u32 v{VM}, v{VM}, v{T+1}
    v_cmp_eq_u32 vcc, 0, v{T}
    v_mov_b32 v{T+1}, {433*3584}
    v_mov_b32 v{T+2}, {(433-224)*3584}
    v_cndmask_b32 v{T+1}, v{T+1}, v{T+2}, vcc
    v_add_u32 v{VS}, v{VM}, v{T+1}
    s_lshl_b32 s60, s3, 11
    ''')
    nearly = len(f)
    f.lines(f'''
    s_and_b32 s46, s3, 1
    s_lshl_b32 s46, s46, 4
    s_lshr_b32 s47, s3, 1            ; isI
    v_and_b32 v11, 15, v2
    v_add_u32 v12, s46, v11          ; g row
    v_cvt_f32_u32 v13, v12''')
    f.add(f'''s_cmp_eq_u32 s47, 1
    s_cselect_b32 s6, {f2h(0.25)}, 0
    s_cselect_b32 s7, {f2h(32.0)}, 0''')
    f.lines(f'''
    v_cmp_eq_u32 vcc, 0, v12
    v_mov_b32 v{T}, s6
    v_mov_b32 v{T+1}, s7
    v_cndmask_b32 v13, v13, v{T+1}, vcc
    v_cndmask_b32 v{T}, v{T}, 0, vcc
    v_mul_f32 v13, {f2h(1/64)}, v13
    v_lshrrev_b32 v14, 4, v2
    v_lshlrev_b32 v14, 2, v14
    v_cvt_f32_u32 v{T+1}, v14
    v_fma_f32 v{T}, v13, v{T+1}, v{T}
    ''')
    for ks in range(2):
        for n in range(8): f.add(f'v_fmamk_f32 v{T+2+n}, v13, {f2h(32*ks + 16*(n >> 2) + (n & 3))}, v{T}')
        for n in range(8): f.add(f'v_cos_f32 v{T+2+n}, v{T+2+n}')
        for r in range(4): f.add(f'v_cvt_pk_bf16_f32 v{M+4*ks+r}, v{T+2+2*r}, v{T+3+2*r}')
    f.lines(f'''
    v_mul_u32_u24 v6, 160, v6
    v_lshl_add_u32 v244, v7, 4, v6   ; N write addr
    v_lshrrev_b32 v7, 2, v2
    v_mul_u32_u24 v7, 160, v7
    v_and_b32 v12, 3, v2
    v_lshl_add_u32 v245, v12, 3, v7  ; N tr read addr
    v_add_u32 v14, s46, v14
    v_mul_u32_u24 v14, {2*32*896}, v14
    v_lshl_add_u32 v248, v11, 3, v14 ; U voffset
    s_mul_i32 s47, s47, {32*896}
    s_add_u32 s47, s47, s39
    s_add_u32 s47, s47, s40          ; U soffset
    s_mov_b32 s73, 0x3f803f80
    ''')
    for i in range(0, 8, 2): f.add(f'v_mov_b64 {P(T+i)}, 0')
    f.add(f'v_mov_b32 v233, {f2h(1e-5)}')
    f.lines(wa); f.add(wb)
    f.lines(f's_mul_i32 s6, s3, {(NREP-2)//4*1024}\ns_add_u32 s40, s40, s6\ns_lshl_b32 s6, s32, 9\ns_sub_u32 s40, s40, s6\ns_add_u32 s40, s40, {FL_BAR}')
    f2 = P2_pre(k)
    ntot = len(f); f.emit(C['p1_fill0'])
    k.st('ka0'); k.e('s_waitcnt lgkmcnt(0)'); k.st('ka1'); k.e('s_mov_b32 s8, s4\ns_and_b32 s9, s5, 0xffff')
    xq = Q(k)
    XO = [(i, st) for i in range(7) for st in range(2)] if not C['p1_split'] else [(0, 0), (0, 1)] + [(i, st) for st in range(2) for i in range(1, 7)]
    adv = 's_add_u32 s37, s37, 128\ns_cmp_ge_u32 s37, s38\ns_cselect_b32 s37, s39, s37'
    for n, (i, st) in enumerate(XO):
        pre = None if n == 0 or XO[n-1][0] == i else adv if XO[n-1][0] < i else adv + '\n' + adv
        xq.vm(pre, f'buffer_load_dwordx4 {v(X+28*st+4*i,4)}, v{246+st}, s[8:11], s37 offen', f'x{i}{st}')
    f.q[0:0] = [f's_mov_b64 s[82:83], s[20:21]\ns_mov_b32 s12, s30\ns_and_b32 s13, s31, 0xffff',
                f's_sub_u32 s20, s18, 1024\ns_subb_u32 s21, s19, 0\ns_and_b32 s21, s21, 0xffff\ns_mov_b32 s22, {448*3584+1024}\ns_mov_b32 s23, 0x20000\ns_and_b32 s17, s17, 0xffff\ns_mov_b32 s18, {448*3584}\ns_mov_b32 s19, 0x20000']
    if C['pf_ca'] == 1: assert ntot - len(f) + 2 >= npf; pf_ca()
    xq.emit(C['x_first'] + 2)
    hd = [f.q.pop(0), f.q.pop(0)]
    while ntot - len(f) < npf: f.emit(1)
    f.q[0:0] = hd
    if C['pf_ca'] == 2: pf_ca()
    k.e('s_mov_b64 s[0:1], s[24:25]')
    k.e('s_mov_b64 s[80:81], s[26:27]\ns_bitcmp1_b32 s3, 0\ns_cselect_b64 s[26:27], s[18:19], s[16:17]')
    if C['pf_mod'] == 1: pf_mod()
    if C['pf_a'] == 1: pf_w3(0)
    for n in range(C['p1_ld_pre']-2-C['x_first']): f.cyc(C['p1_fill']); xq.emit(1)
    f.flush(); f2.cyc(C['p1_f2'])
    k.st('p1iss'); page(k, 1, None, {1: 2, 2: 3, 3: 4})
    wlq = [('vm', f'global_load_dword v{WL+n}, v{WO+(n>>2)}, s[82:83] offset:{896*(n&3)}', 'wl') for n in range(8)]
    assert C['wl_early']; cq = Q(k)
    c2 = Q(k)
    if C['pf_mod'] == 2: c2.add(pf_mod)
    if C['pf_a'] == 2: c2.add(lambda: pf_w3(0))
    if C['pf_b']: cq.add(lambda: pf_w3(1))
    if C['wl_c2']: c2.add(*[lambda j=j: [k.vm_op(x[1], x[2]) for x in wlq[j:j+2]] for j in range(0, 8, 2)])
    elif 'cold' not in ABL: cq.q += wlq
    w3 = w3_dma(k, 0, R1N, R1L)
    def tail(sets):
        q = Q(k); ts = [T+4*st+o for st in sets for o in (0, 2)]
        for t in ts: q.add(f'v_add_f32 v{t}, v{t}, v{t+1}')
        for m in ('quad_perm:[1,0,3,2]', 'quad_perm:[2,3,0,1]', 'row_half_mirror'):
            for t in ts: q.add(f'v_add_f32_dpp v{t}, v{t}, v{t} {m} row_mask:0xf bank_mask:0xf')
        for txt in (f'v_mul_f32 v#0, {f2h(-1/448)}, v#0', f'v_fmamk_f32 v#2, v#2, {f2h(1/448)}, v233', 'v_fma_f32 v#2, -v#0, v#0, v#2', 'v_max_f32 v#2, v233, v#2',
                    'v_rsq_f32 v#2, v#2', 'v_mul_f32 v#0, v#0, v#2'):
            for st in sets: q.add(txt.replace('#0', str(T+4*st)).replace('#2', str(T+4*st+2)))
        for st in sets:
            t = T+4*st
            for d in range(4): q.add(f'v_pk_fma_f32 {P(UP+8*st+2*d)}, {P(UP+8*st+2*d)}, {P(t+2)}, {P(t)} op_sel_hi:[1,0,0]')
            for d in range(4): q.add(f'v_cvt_pk_bf16_f32 v{X+4*st+d}, v{UP+8*st+2*d}, v{UP+8*st+2*d+1}')
            q.add(('ds', f'ds_write_b128 v244, {v(X+4*st,4)} offset:{8*160*st}', None))
        return q
    t0 = Q(k)
    for n, (i, st) in enumerate(XO):
        k.wait(vm=f'x{i}{st}'); k.st(f'x{i}{st}')
        if len(xq): xq.emit(1)
        elif len(c2) and n >= C['c2_at']:
            if n == C['c2_at'] and C['c2_bar']: k.e('s_barrier')
            c2.emit(1)
        elif len(cq) and n >= C['cold_at']: cq.emit(C['cold_rate'])
        elif n < C['w3_at']: pass
        elif 2*R1N - len(w3) < C['p1_w3_ld']: w3.emit(1)
        for d in range(4):
            r = X+28*st+4*i+d; t = T+4*st+(d & 1)
            k.e(f'v_dot2_f32_bf16 v{t}, v{r}, s73, v{t}\nv_dot2_f32_bf16 v{t+2}, v{r}, v{r}, v{t+2}')
            if d or n > 8: t0.emit(1)
        if i == 0:
            for d in range(4): k.e(f'v_lshlrev_b32 v{UP+8*st+2*d}, 16, v{X+28*st+d}\nv_and_b32 v{UP+8*st+2*d+1}, 0xffff0000, v{X+28*st+d}')
        if C['p1_split'] and n == 7: t0 = tail([0])
    assert not len(xq) and not len(c2)
    k.st('p1dat')
    t0.flush(); tail([1] if C['p1_split'] else [0, 1]).flush()
    w3.emit(C['p1_w3_a']); cq.emit(C['cold_a'])
    k.wait(lg='all'); k.e('s_barrier'); k.st('p1bar')
    for ks in range(2):
        for t in range(4):
            for hf in range(2):
                k.ds_op(f'ds_read_b64_tr_b16 {v(BF+16*ks+4*t+2*hf,2)}, v245 offset:{ks*32*160+hf*16*160+t*32}', f'b{ks}{t}')
    w3.emit(C['p1_w3_b'])
    if C['cold_at'] < 99: cq.flush()
    for ks in range(2):
        for t in range(4):
            k.wait(lg=f'b{ks}{t}')
            c = '0' if ks == 0 else v(AC+4*t,4)
            k.e(f'v_mfma_f32_16x16x32_bf16 {v(AC+4*t,4)}, {v(M+4*ks,4)}, {v(BF+16*ks+4*t,4)}, {c}')
    w3.emit(C['p1_w3_c'])
    for r in range(4):
        k.e(f'v_cvt_pk_bf16_f32 v{X+2*r}, v{AC+r}, v{AC+4+r}\nv_cvt_pk_bf16_f32 v{X+2*r+1}, v{AC+8+r}, v{AC+12+r}')
        k.vm_op(f'buffer_store_dwordx2 {v(X+2*r,2)}, v248, s[12:15], s47 offen sc1', 'ust')
        if r < 3: k.e(f's_add_u32 s47, s47, {2*32*896}')
    k.st('p1st')
    if C['rdy'] == 0: k.e('s_load_dword s75, s[28:29], 0x0')
    assert C['ssig'] and len(w3) % 2 == 0
    n1 = R1N - len(w3)//2
    while not f2.xready(): f2.emit(1)
    for t in range(3 if 'xi' not in ABL else 2):
        k.e(f's_add_u32 m0, s44, {1024*t}')
        k.vm_op(f'buffer_load_dwordx4 v{T2+10+t}, s[8:11], s43 offen lds', 'xi')
    if C['cold_at'] == 99: cq.flush()
    f2.q += k.f3.q; k.f3.q = []
    if C['rdy'] == 1: k.e('s_load_dword s75, s[28:29], 0x0')
    f2.cyc(C['p1_fill_drain0'])
    if C['rdy'] == 2: k.e('s_load_dword s75, s[28:29], 0x0')
    for n in range(C['p1_w3_drain']): w3.emit(1); f2.cyc(C['p1_fill_drain'])
    f2.cyc(C['p1_fill_drain2'])
    if C['cold_at'] == 100: cq.flush()
    k.wait(vm='ust', lg='all'); k.e('s_barrier'); k.st('sig1')
    ready_loop(k, UP+2, UP+3)
    for i in range(4): k.e(f's_atomic_add s74, s[24:25], s40 offset:{1024*i}')
    k.tr1 = tr = w3_tr(k, 0, R1N)
    k.st('w0')
    def xreads():
        k.st('w7'); k.wait(vm='xi'); k.st('w8')
        la, lb = k.label('P2xa'), k.label('P2xb')
        k.e(f's_cmp_eq_u32 s49, 0\ns_cbranch_scc0 {la}')
        for r in range(16): k.e(f'ds_read_u16_d16_hi v{XV+r}, v1 offset:{2*DELT[r]}')
        k.e(f's_branch {lb}\n{la}:')
        for r in range(16): k.ds_op(f'ds_read_u16_d16_hi v{XV+r}, v1 offset:{2*DELT[15-r]}', 'xv')
        k.e(f'{lb}:')
    k.st('w1')
    n = 0
    while len(w3):
        if n == C['poll1_at'] and not C['ld1']:
            if C['mp1']:
                l = k.label('B0')
                k.e(f's_mov_b32 s76, -1\ns_atomic_and s76, s[24:25], s53 glc\ns_mov_b32 s78, 36\ns_mov_b32 s4, 0\ns_cmp_eq_u32 s3, 3\ns_cbranch_scc1 {l}\ns_mov_b32 s78, -1\ns_atomic_and s78, s[24:25], s56 glc\n{l}:')
            else: k.e('s_cmp_eq_u32 s3, 3\ns_cselect_b32 s5, s53, s56\ns_mov_b32 s0, 0\ns_mov_b32 s4, 0\ns_atomic_add s0, s[24:25], s53 glc\ns_atomic_add s4, s[24:25], s5 glc')
        if n == C['cold_n']:
            if n: k.e('s_barrier')
            cq.flush()
        w3.emit(1); f2.cyc(24); n += 1
        if len(tr) > 4*(R1N-min(n1, R1A)): tr.emit(2)
    def pollB():
        l = k.label('B0'); k.e(f's_mov_b32 s77, -1\ns_atomic_and s77, s[24:25], s53 glc\ns_cmp_eq_u32 s3, 3\ns_cbranch_scc1 {l}\ns_mov_b32 s4, -1\ns_atomic_and s4, s[24:25], s56 glc\n{l}:')
    page(k, 2, 1)
    if C['cold_at'] == 101:
        if len(cq): k.e('s_barrier')
        if C['poll1b'] == 1: pollB()
        cq.flush()
        if C['poll1b'] == 2: pollB()
    k.cq = cq
    if n1 < R1A: k.wait(vm=f'w3_{R1A-1}'); k.e('s_barrier')
    tr.emit(len(tr) - 4*(R1N-R1A))
    if C['poll1_at'] >= n: k.e('s_cmp_eq_u32 s3, 3\ns_cselect_b32 s78, 36, 0\ns_mov_b32 s4, 0')
    k.st('r1iss')
    k.f3.q = f2.q; assert len(k.f3) <= k.nf3
    def wdst():
        k.wait(vm='wl', lg='wbp')
        for t in range(2):
            for r in range(4): k.e(f'v_perm_b32 v{WO+4*t+r}, v{WL+2*r+1}, v{WL+2*r}, s{65+t}')
    k.wdq = Q(k)
    def wdbp():
        k.wait(vm='wl')
        for n in range(8): k.ds_op(f'ds_bpermute_b32 v{WL+n}, v234, v{WL+n}', 'wbp')
    if C['wl_nat']: k.wdq.add(wdbp)
    if C['cold_at'] < 99: wdst()
    else: k.wdq.add(wdst)
    for t in range(2): k.wdq.vm(None, f'buffer_store_dwordx4 {v(WO+4*t,4)}, v232, s[12:15], s64 offen offset:{1024*t} sc1', 'wdst')
    if C['ld1'] == 1: k.e('s_cmp_eq_u32 s3, 3\ns_cselect_b32 s5, s53, s56\ns_load_dword s0, s[24:25], s53 glc\ns_load_dword s4, s[24:25], s5 glc')
    xreads()
    k.f3.cyc(C['f3_pre']); k.st('w6')
    if C['ld1'] == 2: k.e('s_cmp_eq_u32 s3, 3\ns_cselect_b32 s5, s53, s56\ns_load_dword s0, s[24:25], s53 glc\ns_load_dword s4, s[24:25], s5 glc')
    k.f3.cyc(C['f3_post'])
    return None

ACC = 16; FB = 32; CC = 96; SG = 104; IC = 112; RS = 120; IS = 128; XV = 136; GA = 152; CB = 168; ZF = 184; ZB = 188; T2 = 192
def P2_pre(k):
    T = T2; f = Q(k)
    f.lines(f'''
    v_bfe_u32 v{TB}, v2, 2, 2
    v_xor_b32 v{T}, s3, v{TB}
    v_lshlrev_b32 v{TB}, 8, v{TB}
    v_lshl_add_u32 v{TB}, v{T}, 6, v{TB}
    v_bfe_u32 v{T}, v2, 4, 1
    v_lshl_add_u32 v{TB}, v{T}, 5, v{TB}
    v_and_b32 v{T}, 3, v2
    v_lshl_add_u32 v{TB}, v{T}, 3, v{TB}
    v_lshl_add_u32 v{TB}, v5, 11, v{TB}
    v_add_u32 v{TB}, {R1L}, v{TB}
    v_add_u32 v{TB+1}, 0x10000, v{TB}
    s_and_b32 s48, s3, 1
    s_lshr_b32 s49, s3, 1
    v_lshrrev_b32 v6, 3, v2
    s_lshl_b32 s6, s3, 4
    v_add_u32 v6, s6, v6
    v_mul_u32_u24 v6, 896, v6
    v_lshrrev_b32 v{T+8}, 4, v2
    v_xor_b32 v{T+8}, v{T+8}, v2
    v_and_b32 v{T+8}, 7, v{T+8}
    v_xor_b32 v{T+9}, 4, v{T+8}
    v_lshl_add_u32 v{T+9}, v{T+9}, 4, v6
    v_add_u32 v{T+9}, {8*896-1024}, v{T+9}
    v_lshl_add_u32 v{T+8}, v{T+8}, 4, v6
    s_mul_i32 s52, s36, 57344        ; U soffset
    s_mul_i32 s54, s49, 28
    s_lshl_b32 s55, s48, 1
    s_add_u32 s54, s54, s55
    s_lshl_b32 s54, s54, 10
    s_mul_i32 s55, s35, 57344
    s_add_u32 s55, s55, s54
    s_add_u32 s55, s55, {WS_CP}
    s_mov_b32 s70, s52
    s_mov_b32 s71, s55
    s_add_u32 s72, s52, 896
    s_and_b32 s6, s2, {ROTMASK}
    s_min_u32 s6, s6, 6
    s_lshl_b32 s6, s6, 7
    s_add_u32 s52, s52, s6
    s_lshl_b32 s6, s6, 5
    s_add_u32 s55, s55, s6
    s_lshl_b32 s24, s32, 9
    s_add_u32 s24, s24, {WS_FLAG}
    ''')
    f.add('s_add_u32 s24, s24, s30\ns_addc_u32 s25, s31, 0\ns_lshl_b32 s6, s34, 13\ns_add_u32 s30, s24, s6\ns_addc_u32 s31, s25, 0')
    f.lines('s_mov_b64 s[76:77], 0\ns_mov_b32 s78, 0\ns_xor_b32 s79, s34, 1\ns_lshl_b32 s79, s79, 13\ns_mov_b32 s74, 1')
    f.lines(('s_and_b32 s53, s2, 7' if RX else f's_lshr_b32 s53, s32, {RSH}') + f'''
    s_lshl_b32 s53, s53, 10
    s_lshl_b32 s6, s32, 9
    s_sub_u32 s53, s53, s6
    s_lshl_b32 s6, s3, 8
    s_add_u32 s53, s53, s6
    s_add_u32 s53, s53, {FL_BAR}     ; barrier counter offset (rel s[24:25]) of chunk 2w
    s_add_u32 s56, s53, 128
    s_and_b32 s6, s32, 1
    s_lshl_b32 s6, s6, 10
    s_sub_u32 s68, s56, s6           ; mod counter (even replicas only; used by wave 3)''')
    f.add(t1_txt('s50', 's36', 's48', 's6'))
    f.lines(f'''s_lshl_b32 s51, s35, 1
    s_add_u32 s51, s51, s49          ; beta
    s_lshl_b32 s41, s51, 7
    s_add_u32 s41, s41, {WS_MOD+GA_P}
    v_lshlrev_b32 v{T+13}, 2, v4
    v_lshl_add_u32 v{T+13}, v5, 11, v{T+13}
    s_lshl_b32 s42, s3, 8
    s_add_u32 s42, s42, {P2_GC}
    v_lshl_add_u32 v{T+14}, v5, 4, s42''')
    f.add(f'''s_lshl_b32 s7, s35, 6
    s_sub_u32 s6, 832, s7
    s_cmp_eq_u32 s49, 0
    s_cselect_b32 s7, s7, s6
    s_add_u32 s6, s7, 64
    s_cmp_eq_u32 s6, 896
    s_cselect_b32 s6, 448, s6
    s_cmp_eq_u32 s49, 0
    s_cselect_b32 s6, 0x7fff0000, s6
    v_mov_b32 v{T+3}, s6''')
    f.lines(f's_mul_i32 s43, s50, 896\ns_mul_i32 s44, s3, 3072\ns_add_u32 s44, s44, {P2_XI}')
    for t in range(3):
        f.lines(f'''v_add_u32 v{T}, {64*t}, v2
        v_mul_u32_u24 v{T+1}, 205, v{T}
        v_lshrrev_b32 v{T+1}, 10, v{T+1}
        v_mul_u32_u24 v{T+2}, 5, v{T+1}
        v_sub_u32 v{T}, v{T}, v{T+2}
        v_cmp_eq_u32 vcc, 4, v{T}
        v_lshl_add_u32 v{T}, v{T}, 4, s7
        v_mul_u32_u24 v{T+1}, {64*896}, v{T+1}
        v_cndmask_b32 v{T}, v{T}, v{T+3}, vcc
        v_add_u32 v{T+10+t}, v{T}, v{T+1}''')
    nx = len(f)
    U = GA; k.f3 = f3 = Q(k)
    f3.lines(f'''
    v_lshlrev_b32 v{U}, 6, v4
    v_add_u32 v{U}, s50, v{U}
    v_or_b32 v{U+1}, v{U}, v5
    v_cmp_eq_u32 vcc, 0, v{U+1}
    v_lshlrev_b32 v{TB+3}, 2, v4
    v_mov_b32 v{ZB}, 0x45004500
    v_cvt_f32_u32 v{U}, v{U}
    v_cndmask_b32 v{ZB}, 0, v{ZB}, vcc
    v_mov_b32 v{ZB+1}, v{ZB}
    v_mov_b32 v{ZB+2}, v{ZB}
    v_mov_b32 v{ZB+3}, v{ZB}
    v_mul_f32 v{U}, {f2h(1/2048)}, v{U}
    v_lshlrev_b32 v{U+1}, 2, v5
    v_cvt_f32_u32 v{U+1}, v{U+1}
    v_mul_f32 v{U+1}, v{U}, v{U+1}''')
    for r in range(8):
        f3.lines(f'''v_fmamk_f32 v{U+2}, v{U}, {f2h(DELT[2*r])}, v{U+1}
        v_fmamk_f32 v{U+3}, v{U}, {f2h(DELT[2*r+1])}, v{U+1}
        v_cos_f32 v{U+4}, v{U+2}
        v_cos_f32 v{U+5}, v{U+3}
        v_sin_f32 v{U+2}, v{U+2}
        v_sin_f32 v{U+3}, v{U+3}
        v_cvt_pk_bf16_f32 v{CC+r}, v{U+4}, v{U+5}
        v_cvt_pk_bf16_f32 v{SG+r}, v{U+2}, v{U+3}''')
    f3.add(f'''s_cmp_eq_u32 s36, 0
    s_cselect_b32 s73, 0, -1''')
    f3.lines(f'''v_mov_b32 v{U}, s73
    s_mul_i32 s73, s48, 0x80008000
    s_mul_i32 s38, s49, 0x80008000
    s_xor_b32 s37, s38, 0x80008000
    s_xor_b32 s38, s38, s73''')
    for r in range(8):
        f3.lines(f'''v_bitop3_b32 v{IC+r}, v{SG+r}, s73, v{U} bitop3:0x28
        v_xor_b32 v{RS+r}, s37, v{SG+r}
        v_bitop3_b32 v{IS+r}, v{CC+r}, s38, v{U} bitop3:0x28''')
    f.lines(f'''
    s_lshl_b32 s6, s48, 12
    v_lshlrev_b32 v9, 7, v4
    v_add_u32 v9, s6, v9
    v_bfe_u32 v{T+2}, v2, 1, 3
    v_xor_b32 v{T+2}, v{T+2}, v5
    v_lshl_add_u32 v9, v{T+2}, 4, v9
    v_xor_b32 v10, 32, v9
    v_xor_b32 v11, 64, v9
    v_xor_b32 v12, 96, v9
    s_lshl_b32 s6, s49, 12
    s_add_u32 s6, s6, 8192
    v_add_u32 v13, s6, v3
    ''')
    f.add('s_cmp_eq_u32 s36, 0\ns_cselect_b32 s46, s48, 0')
    f.lines(f's_add_u32 s6, s60, {P2_X}\nv_add_u32 v0, s6, v3')
    for r in range(0, 16, 2): f.add(f'v_mov_b64 {P(XV+r)}, 0')
    f.add(f'''s_cmp_eq_u32 s51, 1
    s_cselect_b32 s6, 4096, 0
    s_cselect_b32 s45, 7, s35
    v_mov_b32 v{T}, s6''')
    f.lines(f'''v_cmp_eq_u32 vcc, 0, v4
    v_add_u32 v15, {P2_X+4096}, v3
    v_mul_u32_u24 v1, 80, v4
    v_cndmask_b32 v{T}, 0, v{T}, vcc
    v_add_u32 v14, v0, v{T}
    v_lshl_add_u32 v7, v{T}, 1, v3
    v_add_u32 v7, {P2_X}, v7
    s_lshl_b32 s6, s46, 11
    v_add_u32 v6, s6, v7
    v_add_u32 v8, s6, v15
    v_add_u32 v1, s44, v1
    v_lshlrev_b32 v{T}, 3, v5
    v_sub_u32 v{T+1}, 10, v{T}
    s_lshl_b32 s45, s45, 7
    s_add_u32 s45, s45, {WS_ZF}''')
    f.add(f'''s_cmp_eq_u32 s49, 0
    s_cselect_b64 vcc, -1, 0
    v_cndmask_b32 v{T}, v{T+1}, v{T}, vcc
    v_add_u32 v1, v1, v{T}''')
    f.lines(f'''
    s_lshl_b32 s6, s32, 1
    s_add_u32 s6, s6, s34
    s_lshl_b32 s6, s6, 1
    s_add_u32 s6, s6, s48            ; rho
    s_mul_i32 s57, s6, 14
    s_add_u32 s57, s57, s51
    s_lshl_b32 s58, s57, 8
    s_add_u32 s58, s58, {WS_ST}
    s_lshl_b32 s57, s57, 11
    s_add_u32 s59, s57, {WS_X1}
    s_add_u32 s57, s57, {WS_X1C}
    v_lshlrev_b32 v{T+15}, 3, v4
    v_lshl_add_u32 v{T+15}, v5, 2, v{T+15}
    s_lshl_b32 s62, s34, 1
    s_xor_b32 s62, s62, s49
    s_or_b32 s63, s36, s48
    v_mov_b64 {P(T)}, 0
    v_mov_b64 {P(T+2)}, 0
    ''')
    k.nf3 = len(f3); tot = len(f); f.xready = lambda: tot - len(f) >= nx
    return f

def P2(k, C, _):
    T = T2
    if C['mp1']:
        for _ in range(8): k.ds_op('ds_read_b32 v16, v3')
        k.wait(lg='xv')
        l, d, sb = k.label('B1'), k.label('B1D'), k.label('B1B'); pace = C['mp1']
        def re(p, t, off):
            x = k.label('B1S')
            return f's_cmp_eq_u32 {t}, 36\ns_cbranch_scc1 {x}\ns_cmp_ge_u32 {p}, 36\ns_cbranch_scc1 {x}\ns_mov_b32 {p}, -1\ns_atomic_and {p}, s[24:25], {off} glc\n{x}:\n'
        k.e(f'''s_mov_b32 s1, {pace-1 if not C['poll1b'] else C['poll1c']}
{l}:
    s_max_i32 s6, s76, s77
    s_max_i32 s7, s78, s4
    s_min_i32 s0, s6, s7
    s_cmp_eq_u32 s0, 36
    s_cbranch_scc1 {d}
    s_add_u32 s1, s1, 1
    s_and_b32 s0, s1, {pace-1}
    s_cbranch_scc1 {l}
    s_cmp_gt_u32 s1, {SPIN_MAX*8}
    s_cbranch_scc1 {d}
    s_and_b32 s0, s1, {pace}
    s_cbranch_scc1 {sb}
''' + re('s76', 's6', 's53') + re('s78', 's7', 's56') + f's_branch {l}\n{sb}:\n' + re('s77', 's6', 's53') + re('s4', 's7', 's56') + f's_branch {l}\n{d}:\ns_mov_b32 m0, s60')
    else:
        l, d = k.label('B1'), k.label('B1D')
        k.e(f'''s_mov_b32 s1, 0
{l}:
    s_waitcnt lgkmcnt(0)
    s_add_u32 s0, s0, s4
    s_cmp_eq_u32 s0, 72
    s_cbranch_scc1 {d}
    s_add_u32 s1, s1, 1
    s_cmp_gt_u32 s1, {SPIN_MAX}
    s_cbranch_scc1 {d}
    s_mov_b32 s0, 0
    s_mov_b32 s4, 0
    s_atomic_add s0, s[24:25], s53 glc
    s_atomic_add s4, s[24:25], s5 glc
    s_branch {l}
{d}:
    s_mov_b32 m0, s60''')
    if not C['r1sep']: k.wait(vm=f'w3_{R1N-1}')
    k.e('s_barrier')
    k.lg = []; k.st('bar1')
    dq = Q(k)
    for c in range(7):
        dq.vm(f's_add_u32 m0, s60, {16384*c}\ns_add_u32 s52, s52, 128\ns_add_u32 s55, s55, 4096\ns_cmp_eq_u32 s52, s72\ns_cselect_b32 s52, s70, s52\ns_cselect_b32 s55, s71, s55' if c else None, f'buffer_load_dwordx4 v{T+8}, s[12:15], s52 offen sc1 lds')
        dq.vm(None, f'buffer_load_dwordx4 v{T+9}, s[12:15], s52 offen offset:1024 sc1 lds')
        dq.vm(f's_add_u32 m0, s60, {16384*c+8192}', 'buffer_load_dwordx4 v3, s[12:15], s55 offen sc1 lds')
        dq.vm(None, 'buffer_load_dwordx4 v3, s[12:15], s55 offen offset:1024 sc1 lds', f'ch{c}')
    gq = Q(k)
    gq.vm('s_mov_b32 m0, s42', f'buffer_load_dword v{T+13}, s[12:15], s41 offen sc1 lds', 'gc')
    k.r2 = r2 = w3_dma(k, R1N, 28, 0); NR2 = len(r2)
    tr = k.tr1
    dq.emit(C['p2_pre'])
    if C['r1sep']: k.wait(vm=f'w3_{R1N-1}'); k.e('s_barrier')
    f3 = k.f3
    while len(dq) > 12:
        if len(tr): tr.emit(4); f3.cyc(16)
        else: f3.cyc(40)
        dq.emit(1)
    assert not len(tr)
    if C['mp1']:
        for _ in range(4): k.ds_op('ds_read_b32 v16, v3')
    k.wait(lg='tr'); k.e('s_barrier')
    if C['p2_modi'] < 0: poll_issue(k, 's68', 's47', 3)
    for n in range(2):
        dq.emit(1); k.ds_op(f'ds_write_b128 v0, {v(T,4)} offset:{1024*n}'); k.e(f'v_subrev_u32 v{TB+n}, {R1L}, v{TB+n}')
    k.e(f'v_add_u32 v{TB+2}, 0x10000, v{TB+1}')
    for n in range(C['p2_pre2']-2): f3.cyc(40); dq.emit(1)
    def rdk(c, kk):
        b = FB + 32*(c & 1)
        k.ds_op(f'ds_read_b128 {v(b+8*kk,4)}, v{9+kk} offset:{16384*(c&3)}')
        k.ds_op(f'ds_read_b128 {v(b+8*kk+4,4)}, v13 offset:{16384*(c&3)+1024*kk}', f'r{c}{kk}')
        if c == 3: k.e(f'v_add_u32 v{9+kk}, 0x10000, v{9+kk}' + ('\nv_add_u32 v13, 0x10000, v13' if kk == 3 else ''))
    def mfk(c, kk):
        b = FB + 32*(c & 1)
        k.wait(lg=f'r{c}{kk}')
        cc = '0' if c == 0 and kk == 0 else v(ACC,16)
        k.e(f'v_mfma_f32_32x32x16_bf16 {v(ACC,16)}, {v(b+8*kk,4)}, {v(b+8*kk+4,4)}, {cc}')
    k.st('issued')
    zl = [k.label('ZA'), k.label('ZB'), k.label('ZC'), k.label('ZD'), k.label('ZE')]
    for c in range(7):
        if c == C['p2_modi']: poll_issue(k, 's68', 's47', 3)
        if c == C['p2_mod'] and 'mod' not in ABL: poll_check(k, 's68', 28, 's47', 3)
        k.wait(vm=f'ch{c}'); k.e('s_barrier'); k.st(f'c{c}')
        for kk in range(4):
            if c: mfk(c-1, kk)
            f3.cyc(C['p2_f3'])
            if len(dq): dq.emit(C['p2_rate'])
            elif len(k.cq) and c >= C['cq_from']: k.cq.emit(3)
            elif len(k.wdq) and c >= C['wd_from']: k.wdq.emit(1)
            else:
                if c == C['p2_mod'] and len(r2) % 2 == 0: gq.flush()
                if c >= C['r2_from'] and kk in C['r2_kk'] and NR2 - len(r2) < 4*(c-1): r2.emit(1)
            rdk(c, kk)
        if c == 2:
            k.e(f's_cmp_lg_u32 s63, 0\ns_cbranch_scc1 {zl[0]}\ns_mov_b32 s0, 0\ns_atomic_add s0, s[24:25], {FL_Z} glc\n{zl[0]}:')
    assert not len(dq) and not len(gq) and not len(tr) and not len(f3) and C['p2_mod'] >= 3
    k.st('A6')
    k.e(f'''s_cmp_lg_u32 s63, 0
    s_cbranch_scc1 {zl[1]}
    s_mov_b32 s1, 0
{zl[2]}:
    s_waitcnt lgkmcnt(0)
    s_cmp_eq_u32 s0, 4
    s_cbranch_scc1 {zl[3]}
    s_add_u32 s1, s1, 1
    s_cmp_gt_u32 s1, {SPIN_MAX}
    s_cbranch_scc1 {zl[3]}
    s_mov_b32 s0, 0
    s_atomic_add s0, s[24:25], {FL_Z} glc
    s_branch {zl[2]}
{zl[3]}:''')
    for i in range(4): k.vm_op(f'buffer_load_dword v{ZF+i}, v{TB+3}, s[12:15], s45 offen offset:{1024*i} sc1', 'zf', maybe=True)
    k.e(f'{zl[1]}:')
    for kk in range(4):
        mfk(6, kk)
        if len(k.wdq): k.wdq.emit(1)
        elif C['r2_6']: r2.emit(1)
    r2.emit(C['r2_a'])
    for hf in range(2):
        for r in range(4*hf, 4*hf+4): k.e(f'v_cvt_pk_bf16_f32 v{T+r}, v{ACC+2*r}, v{ACC+2*r+1}')
        k.ds_op(f'ds_write_b128 v14, {v(T+4*hf,4)} offset:{1024*hf}')
    r2.emit(C['r2_b']); assert NR2 - len(r2) <= 20
    assert not len(k.wdq); k.wait(vm='wdst' if C['wd_early'] else None, lg='all'); k.e('s_barrier'); k.st('Xbar')
    kinds = [('v6', 0, CC), ('v7', 2048, IC), ('v8', 0, RS), ('v15', 2048, IS)]
    rb = [(f'ds_read_b128 {v(FB+8*i+4*a_,4)}, {ad} offset:{off+1024*a_}', f'x{i}{a_}') for i, (ad, off, _) in enumerate(kinds) for a_ in range(2)]
    for x in rb[:4]: k.ds_op(*x)
    r2.emit(C['r2_pre'])
    for n in range(8):
        i, a_ = n >> 1, n & 1
        k.wait(lg=f'x{i}{a_}')
        k.e(f'v_mfma_f32_32x32x16_bf16 {v(ACC,16)}, {v(FB+8*i+4*a_,4)}, {v(kinds[i][2]+4*a_,4)}, {v(ACC,16) if n else 0}')
        if n < 2: k.ds_op(*rb[4+2*n]); k.ds_op(*rb[5+2*n])
        elif n in C['r2_sb']: r2.emit(1)
        if 3 <= n < 7:
            k.wait(vm='gc'); kk = n-3
            k.ds_op(f'ds_read_b128 {v(GA+4*kk,4)}, v{T+14} offset:{32*kk}'); k.ds_op(f'ds_read_b128 {v(CB+4*kk,4)}, v{T+14} offset:{128+32*kk}', 'gcr')
    r2.emit(C['r2_c']); k.r2n = R1N + (NR2 - len(r2))//2; assert k.r2n >= R1N + 4
    k.e(f's_cmp_lg_u32 s63, 0\ns_cbranch_scc1 {zl[4]}')
    sv = list(k.vm); k.wait(vm='zf'); k.vm = sv
    k.e(f'v_mfma_f32_32x32x16_bf16 {v(ACC,16)}, {v(ZF,4)}, {v(ZB,4)}, {v(ACC,16)}\n{zl[4]}:')
    k.wait(lg='gcr')
    if C['wd_early']:
        l = k.label('WS')
        k.e(f's_cmp_lg_u32 s69, 1\ns_cbranch_scc1 {l}\ns_atomic_add s74, s[24:25], s67\ns_atomic_add s74, s[24:25], s67 offset:1024\n{l}:')
    for hf in range(2):
        R = range(8*hf, 8*hf+8, 2)
        for r in R: k.e(f'v_pk_fma_f32 {P(XV+r)}, {P(ACC+r)}, {P(GA+r)}, {P(XV+r)}')
        for r in R: k.e(f'v_pk_mul_f32 {P(CB+r)}, {P(CB+r)}, {P(XV+r)}')
        for r in range(4*hf, 4*hf+4): k.e(f'v_cvt_pk_bf16_f32 v{FB+r}, v{CB+2*r}, v{CB+2*r+1}')
        k.vm_op(f'buffer_store_dwordx4 {v(FB+4*hf,4)}, v3, s[12:15], s57 offen offset:{1024*hf} sc1')
    k.e(f'v_pk_add_f32 {P(T)}, {P(XV)}, {P(XV+2)}\nv_pk_mul_f32 {P(T+2)}, {P(XV)}, {P(XV)}')
    for r in range(2, 16, 2):
        if r >= 4: k.e(f'v_pk_add_f32 {P(T)}, {P(T)}, {P(XV+r)}')
        k.e(f'v_pk_fma_f32 {P(T+2)}, {P(XV+r)}, {P(XV+r)}, {P(T+2)}')
    k.e(f'''v_add_f32 v{T}, v{T}, v{T+1}
    v_add_f32 v{T+1}, v{T+2}, v{T+3}
    v_cvt_pk_bf16_f32 v216, v{XV}, v{XV+1}
    v_cvt_pk_bf16_f32 v217, v{XV+2}, v{XV+3}
    v_permlane32_swap_b32 v{T}, v{T+1}
    v_add_f32 v{T}, v{T}, v{T+1}''')
    k.vm_op(f'buffer_store_dword v{T}, v{T+15}, s[12:15], s58 offen sc1', 'p2st')
    k.st('p2st')
    for r in range(2, 8): k.e(f'v_cvt_pk_bf16_f32 v{216+r}, v{XV+2*r}, v{XV+2*r+1}')
    k.e(f's_mov_b64 s[76:77], 0\ns_mov_b32 s78, 0\ns_mov_b32 s5, s59\ns_lshl_b32 s4, s34, 3\ns_add_u32 s4, s4, s35\ns_lshl_b32 s4, s4, 7\ns_lshl_b32 s6, s32, 9\ns_sub_u32 s4, s4, s6\ns_add_u32 s4, s4, {FL_WD}\ns_mov_b32 s28, s67\ns_mov_b32 s29, s69')

SM = 48
def sm(i): return f's{SM+i}' if i < 12 else f's{64+i-12}'
VH0, VH1, VWD, VA0, VA1 = 9, 142, 143, 14, 15
def setup34(k, C):
    q = Q(k); T = ET
    q.lines('s_and_b32 s69, s35, 1\ns_lshl_b32 s6, s34, 1\ns_or_b32 s69, s69, s6')
    q.lines(f'''
    s_lshl_b32 s39, s33, 7
    s_lshl_b32 s6, s32, 9
    s_sub_u32 s39, s39, s6
    s_add_u32 s39, s39, {FL_SIDE}
    s_lshl_b32 s7, s32, 2''')
    for st in range(4):
        q.lines(f'''s_xor_b32 s6, s69, {st}
        s_add_u32 s6, s6, s7             ; rho
        s_mul_i32 s{44+st}, s6, {28*1024}
        s_add_u32 s{44+st}, s{44+st}, {WS_X1C}
        s_and_b32 s{40+st}, s6, 1
        s_lshr_b32 s6, s6, 1
        s_lshl_b32 s6, s6, 2
        s_add_u32 s6, s6, s3
        s_mul_i32 s6, s6, 14
        s_add_u32 s6, s6, s33
        s_lshl_b32 s6, s6, 1
        s_add_u32 s6, s6, s{40+st}
        s_lshl_b32 s6, s6, 11
        s_add_u32 s{40+st}, s6, {WS_HH}''')
    q.lines(f'''
    s_xor_b32 s6, s69, s3
    s_add_u32 s6, s6, s7
    s_mul_i32 s37, s6, 3584
    s_add_u32 s37, s37, {WS_ST}
    s_lshl_b32 s6, s33, 2
    s_add_u32 s6, s6, s3
    s_lshl_b32 s38, s6, 10
    s_add_u32 s38, s38, {WS_WEXT}
    v_lshlrev_b32 v6, 3, v2
    v_add_u32 v7, {2*IMG}, v3
    v_add_u32 v8, {KSP}, v6
    s_mul_i32 s66, s3, 7168
    v_add_u32 v{VA0}, s66, v3
    v_add_u32 v{VA1}, 4096, v{VA0}
    s_xor_b32 s83, s34, {C['flip']}
    s_xor_b32 s6, s62, {2*C['flip']}
    s_add_u32 s70, s7, s6''')
    q.add('''s_cmp_eq_u32 s3, 2
    s_cselect_b32 s4, s39, s4
    s_cselect_b32 s39, 2, 28
    s_cmp_eq_u32 s3, 3
    s_cselect_b32 s4, s79, s4
    s_cselect_b32 s39, 7, s39''')
    q1 = q; q = Q(k)
    q.lines(f'''s_lshr_b32 s63, s3, 1            ; sw
    s_and_b32 s72, s3, 1
    s_lshl_b32 s6, s35, 2
    s_add_u32 s6, s6, s72
    s_mul_i32 s6, s6, {56*1024}
    s_add_u32 s6, s6, {WS_WDP}
    v_add_u32 v{VWD}, s6, v3
    s_mul_i32 s71, s83, 7
    s_sub_u32 s67, 8, s71
    s_sub_u32 s67, s67, s63
    s_add_u32 s68, s71, s63
    s_lshl_b32 s67, s67, 12
    s_lshl_b32 s68, s68, 12
    s_lshl_b32 s71, s71, 12''')
    q.add('s_cmp_eq_u32 s63, 0\ns_cselect_b32 s71, s71, s67')
    if C['wswap'] == 1: q.lines(f's_and_b32 s6, s32, 1\ns_mul_i32 s6, s6, {28*4096}\ns_add_u32 s67, s67, s6\ns_add_u32 s68, s68, s6\ns_add_u32 s71, s71, s6\ns_lshl_b32 s6, s6, 1\ns_sub_u32 s6, {28*4096}, s6')
    for i in range(14):
        base = 68 if i & 2 else 67 if i < 12 else 71
        if C['wswap'] == 1 and i & 1: q.add(f's_add_u32 {sm(i)}, {sm(i-1)}, s6')
        else: q.add(f's_add_u32 {sm(i)}, s{base}, {(2*(i >> 2) + 28*(i & 1))*4096}')
    q.lines(f'''
    s_lshl_b32 s6, s32, 1
    s_add_u32 s6, s6, s83
    s_lshl_b32 s6, s6, 2
    s_add_u32 s6, s6, s72
    s_mul_i32 s6, s6, {56*1024}
    s_add_u32 s6, s6, {WS_HH}
    s_lshl_b32 s67, s63, 11
    s_add_u32 s6, s6, s67
    s_lshl_b32 s67, s72, 8
    s_add_u32 s6, s6, s67
    v_and_b32 v4, 15, v2
    v_lshlrev_b32 v127, 4, v4
    v_lshrrev_b32 v{T+4}, 4, v2
    v_lshl_add_u32 v127, v{T+4}, 9, v127
    v_add_u32 v{VH0}, s6, v127
    v_xor_b32 v{VH1}, 2048, v{VH0}
    s_lshl_b32 s73, s3, 12
    v_add_u32 v10, s73, v3
    v_add_u32 v11, {WDL[0]}, v10
    s_mul_i32 s70, s70, {28*1024}
    s_add_u32 s70, s70, s67
    s_add_u32 s70, s70, {WS_X1}''')
    q.add(f'''s_lshl_b32 s6, s35, 2
    s_sub_u32 s7, 29, s6
    s_cmp_le_u32 s35, 3
    s_cselect_b32 s67, s6, s7
    s_add_u32 s68, s6, 2
    s_sub_u32 s69, s7, 2
    s_cmp_le_u32 s35, 2
    s_cselect_b32 s68, s68, s69
    s_sub_u32 s69, s7, 4
    s_cmp_le_u32 s35, 3
    s_cselect_b32 s69, 1, s69
    s_cmp_eq_u32 s35, 3
    s_cselect_b32 s68, 13, s68''')
    q.lines(f'''v_add_u32 v127, s70, v127
    s_mul_i32 s71, s3, 3072
    s_add_u32 s71, s71, {X1L}''')
    for t in range(2):
        q.lines(f'''s_lshl_b32 s6, s35, 6
        s_add_u32 s6, s6, {t}
        v_lshl_add_u32 v{T}, v4, 2, s6
        v_cmp_le_u32 vcc, 224, v{T}
        v_sub_u32 v{T+1}, 448, v{T}
        v_cndmask_b32 v{T+1}, v{T}, v{T+1}, vcc
        v_cndmask_b32 v{T+2}, 0, 1, vcc
        v_cmp_eq_u32 vcc, 224, v{T+1}
        v_cndmask_b32 v{T+1}, v{T+1}, 0, vcc
        v_lshrrev_b32 v{T+3}, 5, v{T+1}
        v_lshl_add_u32 v{T+3}, v{T+3}, 1, v{T+2}
        v_cmp_eq_u32 vcc, s68, v{T+3}
        v_mov_b32 v{T+2}, 2
        v_cndmask_b32 v{T+2}, v{T+2}, 1, vcc
        v_cmp_eq_u32 vcc, s67, v{T+3}
        v_bfe_u32 v{T+3}, v{T+1}, 4, 1
        v_cndmask_b32 v{T+2}, v{T+2}, 0, vcc
        v_lshlrev_b32 v{T+2}, 10, v{T+2}
        v_lshl_add_u32 v{T+2}, v{T+3}, 9, v{T+2}
        v_bfe_u32 v{T+3}, v{T+1}, 2, 1
        v_lshl_add_u32 v{T+2}, v{T+3}, 8, v{T+2}
        v_bfe_u32 v{T+3}, v{T+1}, 3, 1
        v_lshl_add_u32 v{T+2}, v{T+3}, 3, v{T+2}
        v_and_b32 v{T+3}, 3, v{T+1}
        v_lshl_add_u32 v{T+2}, v{T+3}, 1, v{T+2}
        v_lshl_add_u32 v{T+2}, v{T+4}, 6, v{T+2}
        v_add_u32 v{12+t}, s71, v{T+2}''')
    for b in range(3): q.add(f's_lshl_b32 s{67+b}, s{67+b}, 11')
    for sl in range(3):
        q.lines(f's_xor_b32 s6, s3, {sl+1}\ns_mul_i32 s6, s6, 12288\ns_add_u32 s6, s6, {RED+4096*sl}\nv_add_u32 v{124+sl}, s6, v{6 if C["w64"] else 3}')
    q.lines(f'''s_mul_i32 s6, s3, 12288
    s_add_u32 s6, s6, {RED}
    v_add_u32 v1, s6, v{6 if C['w64'] else 3}''')
    if C['flip']:
        q.lines('s_and_b32 s6, s2, 7\ns_xor_b32 s6, s6, 1\ns_lshl_b32 s6, s6, 1\ns_bfe_u32 s7, s32, 0x10001\ns_add_u32 s6, s6, s7')
        q.add('s_sub_u32 s7, 32, s6\ns_cmp_eq_u32 s6, 0\ns_cselect_b32 s7, 16, s7\ns_bitcmp1_b32 s32, 0\ns_cselect_b32 s36, s7, s6')
    q.add(t1_txt('s7', 's36', 's63', 's6'))
    q.lines(f'''s_lshl_b32 s72, s72, 10
    s_add_u32 s72, s72, s7
    s_mul_i32 s72, s72, 896
    s_lshl_b32 s6, s35, 7
    s_add_u32 s72, s72, s6
    v_mul_u32_u24 v0, {4*64*896}, v{T+4}
    v_lshl_add_u32 v0, v4, 3, v0
    s_mov_b32 s8, s80
    s_and_b32 s9, s81, 0xffff''')
    q.add('v_lshlrev_b32 v2, 7, v2')
    q.add(f's_bitcmp1_b32 s3, 0\ns_cselect_b32 s6, 0xffffff00, 0\ns_cselect_b32 s7, -1, 0\ns_cselect_b32 s6, s6, 0x100\ns_add_u32 s16, s12, s6\ns_addc_u32 s17, s13, s7\ns_mov_b32 s18, {WS_END+256}')
    return q1, q

C01 = [(2,0),(2,1),(3,0),(3,1),(6,0),(6,1),(7,0),(7,1),(10,0),(10,1),(11,0),(11,1)]
C2 = [(i,1) for i in (0,1,4,5,8,9,12,13)]
C3 = [(i,0) for i in (0,1,4,5,8,9,12,13)]
ORDER = C01 + C2 + C3
C0 = [p for p in C01 if p[1] == 0]; C1 = [p for p in C01 if p not in C0]
LORDER = C0 + C1 + C2 + C3
def hreg(i, rl, u): return a(8*LORDER.index((i, rl)) + 4*u, 4)
def hh(q, L, split=False):
    if 'hh' in ABL: return
    items = [(i, rl, u) for u in (1, 0) for i, rl in L] if split else [(i, rl, u) for i, rl in L for u in range(2)]
    for i, rl, u in items: q.vm(None, f'buffer_load_dwordx4 {hreg(i,rl,u)}, v{VH1 if rl else VH0}, s[{16 if u else 12}:{19 if u else 15}], {sm(i)} offen sc1', f'h{i}_{rl}_{u}')
def epi3(k, acc, st, pk=False):
    q = Q(k)
    K1 = ET + 2*(st & 1); SS = K1 + 1; T = ET + 4; PK = ET + 12
    for qq in range(4 if 'epi' not in ABL else 0):
        rr = range(4*qq, 4*qq+4); t = T + 4*(qq & 1)
        if pk: q.add(*[f'v_pk_mul_f32 {P(t+r)}, {P(acc+4*qq+r)}, {P(K1)} op_sel_hi:[1,0]' for r in (0, 2)])
        else: q.add(*[f'v_mul_f32 v{t+(r&3)}, v{acc+r}, v{K1}' for r in rr])
        for r in rr: q.add(f'v_exp_f32 v{t+(r&3)}, v{t+(r&3)}')
        if pk: q.add(*[f'v_pk_fma_f32 {P(t+r)}, {P(t+r)}, {P(K1)}, {P(K1)} op_sel:[0,1,1] op_sel_hi:[1,1,1]' for r in (0, 2)])
        else: q.add(*[f'v_fma_f32 v{t+(r&3)}, v{t+(r&3)}, v{SS}, v{SS}' for r in rr])
        for r in rr: q.add(f'v_rcp_f32 v{t+(r&3)}, v{t+(r&3)}')
        if pk: q.add(*[f'v_pk_mul_f32 {P(t+r)}, {P(t+r)}, {P(acc+16+4*qq+r)}' for r in (0, 2)])
        else: q.add(*[f'v_mul_f32 v{t+(r&3)}, v{t+(r&3)}, v{acc+16+r}' for r in rr])
        q.add(f'v_cvt_pk_bf16_f32 v{PK+2*qq}, v{t}, v{t+1}', f'v_cvt_pk_bf16_f32 v{PK+2*qq+1}, v{t+2}, v{t+3}')
        if qq & 1 and 'st' not in ABL: q.add(('vm', f'buffer_store_dwordx4 {v(PK+4*(qq>>1),4)}, v3, s[12:15], s{40+st} offen offset:{1024*(qq>>1)} sc1', f'hh{st}'))
    return q

def lcost(l, vmc=12):
    mn = l.split()[0]
    return 0 if mn.endswith(':') or mn.startswith('.') else 8 if mn in TRANS else vmc if mn.startswith(('buffer_', 'global_')) else 4
class Epi:
    def __init__(self, k, acc, st, vmc, join=False, extra=()):
        self.join = join; self.k = k; self.vmc = vmc; q = epi3(k, acc, st).q
        n = len(q)//2 if q else 0
        st_ = 'st' not in ABL
        self.ch = [q[0:22] + q[n:n+22], q[22:44] + q[n+22:n+44]] if q else [[], []]
        self.st = list(extra) + [q[44], q[n+44]] if q and st_ else []
    def __len__(self): return len(self.ch[0]) + len(self.ch[1]) + len(self.st)
    def pack(self, bud):
        while True:
            done = 44 - max(len(self.ch[0]), len(self.ch[1]))
            if self.st and done >= (44 if self.join else 22*(3 - len(self.st))) and bud >= self.vmc:
                x = self.st.pop(0); self.k.vm_op(x[1], x[2]); bud -= self.vmc; continue
            c = [ch for ch in sorted(self.ch, key=lambda c: -len(c)) if ch and lcost(ch[0]) <= bud]
            if not c: return
            if len(c) == 2 and lcost(c[0][0]) != lcost(c[1][0]):
                c.sort(key=lambda ch: lcost(ch[0]) * (1 if bud % 8 == 4 else -1))
            elif len(c) == 2 and len(self.ch[1]) - len(self.ch[0]) < 4: c = [self.ch[0]]
            x = c[0].pop(0); self.k.e(x); bud -= lcost(x)
def P3(k, C):
    su, su2 = setup34(k, C)
    def wd_reg(q, i):
        if 'wd' in C['abl']: return
        for f in range(4): q.vm(None, f'buffer_load_dwordx4 {wdreg(i,f)}, v{VWD}, s[12:15], {sm(i)} offen offset:{1024*f} sc1', f'wd{i}')
    def wd_lds(q, i):
        if 'wd' in C['abl']: return
        for f in range(4): q.vm(f's_add_u32 m0, s73, {WDL[WSLOT[i]]}' if f == 0 else None, f'buffer_load_dwordx4 v{VWD}, s[12:15], {sm(i)} offen offset:{1024*f} sc1 lds', f'wd{i}')
    def a_dma(q, st):
        for i in range(7):
            pre = f's_add_u32 m0, s66, {st*IMG+1024*i}' if i in (0, 4) else None
            q.vm(pre, f'buffer_load_dwordx4 v{VA0 if i < 4 else VA1}, s[12:15], s{44+st} offen offset:{1024*(i&3)} sc1 lds', f'a{st}')
    x1s = [('vm', f'buffer_store_dwordx4 {v(216+4*hf,4)}, v3, s[12:15], s5 offen offset:{1024*hf} sc1', None) for hf in range(2)]
    if C['x1at'] == 2:
        for x in x1s: k.vm_op(x[1])
    r3 = k.r2; page(k, 3, 1, {2: 5, 3: 6})
    if C['rr']: k.e('s_mov_b32 s82, s57\nv_lshlrev_b32 v129, 7, v2')
    wq = Q(k)
    for i in (REGI[0:4] + REGI[5:9] + REGI[4:5] if not C['wswap'] else [0, 4, 12, 2, 8, 1, 5, 9, 13]): wd_reg(wq, i)
    LI = sorted(WSLOT, key=WSLOT.get)
    n1 = len(su); su.q += su2.q; tot = len(su)
    for n in range(C['r3_drain']): su.cyc(C['su_drain']//(C['r3_drain']+1)); r3.emit(1)
    su.cyc(C['su_drain']//(C['r3_drain']+1))
    r3n = 28 - (len(r3)+1)//2
    k.wait(vm='p2st')
    if C['rr']: k.e('s_mov_b64 exec, 0xffff'); k.vm_op('buffer_load_dword v130, v129, s[12:15], s82 offen sc1'); k.e('s_mov_b64 exec, -1')
    k.e('s_barrier'); k.st('sigA')
    gsignal(k, 0, 2)
    if 0 in C['pollA']: mp_issue(k, 0, 0, 0)
    if not C['wd_early']:
        l = k.label('WS')
        k.e(f's_mov_b32 s75, 99\ns_cmp_lg_u32 s29, 1\ns_cbranch_scc1 {l}\ns_atomic_add s74, s[24:25], s28\ns_atomic_add s74, s[24:25], s28 offset:1024\n{l}:')
    tr = w3_tr(k, R1N, 28); nl = 4*(28 - k.r2n)
    n = 0
    while len(r3) > C['r4']:
        r3.emit(1); n += 1
        if n in C['pollA']: mp_issue(k, 0, C['pollA'].index(n), 0)
        if n == C['pollW'] and C['wd_early']:
            assert tot - len(su) >= n1
            l = k.label('XW'); k.e(f's_mov_b32 s75, 99\ns_cmp_lg_u32 s3, 1\ns_cbranch_scc1 {l}\ns_mov_b32 s75, -1\ns_atomic_and s75, s[24:25], s4 glc\n{l}:')
        if len(tr) > nl: tr.emit(min(4, len(tr)-nl))
        else: su.cyc(32)
    tr.emit(len(tr) - nl)
    while tot - len(su) < n1: su.emit(1)
    k.st('w3done'); assert len(su)
    k.e(f's_mul_i32 s0, s3, 3072\ns_mov_b32 m0, s0\ns_add_u32 s28, s44, s0\ns_lshl_b32 s26, s3, 12\ns_add_u32 s26, s26, 12288\ns_add_u32 s27, s26, s44')
    lds_pad(k, 3, 128); k.wait(lg='tr')
    mp_check(k, 0, 7, 0)
    if not C['tr_late']: r3n = 28
    assert r3n - R1N >= 11
    k.wait(vm=f'w3_{r3n-1}'); k.e('s_barrier'); k.st('flagA')
    for i in range(3): k.vm_op(f'buffer_load_dwordx4 v3, s[12:15], s28 offen offset:{1024*i} sc1 lds', 'a0a')
    k.e('s_mov_b32 m0, s26')
    def xpoll():
        l = k.label('XP'); k.e(f's_cmp_lt_u32 s3, {2 if C["wd_early"] else 1}\ns_cbranch_scc1 {l}\ns_mov_b32 s75, -1\ns_atomic_and s75, s[24:25], s4 glc\n{l}:')
    if C['xp'] == 0: xpoll()
    nl = 4*(28 - r3n)
    for i in range(4): k.vm_op(f'buffer_load_dwordx4 v3, s[12:15], s27 offen offset:{1024*i} sc1 lds', 'a0b'); tr.emit(min(4, len(tr)-nl))
    a1q = Q(k); a_dma(a1q, 1); assert k.r2n - R1N >= 8 or not C['a1_pre']
    for i in range(C['a1_pre']): a1q.emit(1); tr.emit(min(4, len(tr)-nl))
    tr.emit(len(tr)-nl)
    def xcheck(only=None):
        l, d = k.label('XC'), k.label('XD')
        if only is not None: k.e(f's_cmp_lg_u32 s3, {only}\ns_cbranch_scc1 {d}')
        k.e(f'''s_cmp_ge_i32 s75, s39
    s_cbranch_scc1 {d}
    s_mov_b32 s1, 0
{l}:
    s_waitcnt lgkmcnt(0)
    s_cmp_ge_i32 s75, s39
    s_cbranch_scc1 {d}
    s_add_u32 s1, s1, 1
    s_cmp_gt_u32 s1, {SPIN_MAX}
    s_cbranch_scc1 {d}
    s_mov_b32 s75, -1
    s_atomic_and s75, s[24:25], s4 glc
    s_branch {l}
{d}:''')
    if C['wd_early']: xcheck(1)
    if C['xp'] == 1: xpoll()
    while tot - len(su) < n1 + 29 + 7*(C['wswap'] == 1): su.emit(1)
    su.debt = 0; su.cyc(C['su_go'])
    vq = [Q(k) for _ in range(4)]
    vq[0].q += a1q.q
    vq[0].q += r3.q; assert C['r4'] % 2 == 0 and (not C['r4'] or (len(su) and C['su_ks'] >= 9 and C['a1_bar']))
    if C['x1at'] == 0: vq[0].q += x1s
    assert len(vq[0]) <= 9
    while len(vq[0]) < 9: vq[0].add(wq.q.pop(0) if len(wq) and C['wd_early'] else (lambda: None))
    for i in range(3): vq[0].vm(None, f'buffer_load_dwordx4 {v(128+4*i,4)}, v3, s[12:15], s37 offen offset:{1024*i} sc1', 'st')
    vq[0].add(lambda: (k.e('v_mov_b64 v[112:113], 0\nv_mov_b64 v[114:115], 0\ns_mov_b32 exec_hi, 0'), k.vm_op('buffer_load_dwordx4 v[112:115], v3, s[12:15], s37 offen offset:3072 sc1', 'st'), k.e('s_mov_b32 exec_hi, -1')))
    a_dma(vq[0], 2)
    vq[0].vm(None, f'buffer_load_dwordx4 {v(WX,4)}, v3, s[12:15], s38 offen sc1', 'wx')
    vq[0].q += wq.q[:C['wd_st'][0]]; wq.q = wq.q[C['wd_st'][0]:]
    vq[1].q += wq.q[:C['x0']] if 'wd' not in ABL else [lambda: None]*C['x0']; wq.q = wq.q[C['x0']:]
    a_dma(vq[1], 3); wd_lds(vq[1], LI[0]); wd_lds(vq[1], LI[1])
    for st in (1, 2):
        vq[st].q += wq.q[:C['wd_st'][st]]; wq.q = wq.q[C['wd_st'][st]:]
        if st == 1: wd_lds(vq[1], LI[2])
    assert len(vq[2]) >= C['sigB0'][1] or ABL
    wd_lds(vq[2], LI[3]); wd_lds(vq[2], LI[4])
    vq[3].q += wq.q
    sq = Q(k)
    for r in range(4): sq.lines(f'v_add_f32 v{128+r}, v{128+r}, v{132+r}\nv_add_f32 v{136+r}, v{136+r}, v{112+r}')
    for r in range(4): sq.add(f'v_add_f32 v{128+r}, v{128+r}, v{136+r}')
    sq.lines(f'''v_lshlrev_b32 v139, 1, v4
    v_bfe_u32 v140, v3, 8, 1
    v_permlane16_swap_b32 v128, v130
    v_permlane16_swap_b32 v129, v131
    v_add_f32 v128, v128, v130
    v_add_f32 v129, v129, v131
    v_add_u32 v139, v139, v140
    v_lshl_add_u32 v139, v5, 5, v139
    v_mov_b32 v130, v128
    v_mov_b32 v131, v129
    s_mul_i32 s6, s3, {IMG}
    v_lshl_add_u32 v138, v139, 4, s6
    v_permlane32_swap_b32 v128, v130
    v_permlane32_swap_b32 v129, v131
    v_add_f32 v128, v128, v130
    v_add_f32 v129, v129, v131
    v_mul_f32 v128, {f2h(-1/448)}, v128
    v_mul_f32 v129, {f2h(1/448)}, v129
    v_fma_f32 v129, -v128, v128, v129
    v_max_f32 v129, 0, v129
    v_add_f32 v129, {f2h(1e-5)}, v129
    v_rsq_f32 v130, v129
    v_sqrt_f32 v131, v129
    v_cvt_pk_bf16_f32 v132, v128, v128
    v_mul_f32 v130, {f2h(-LOG2E)}, v130
    v_cvt_pk_bf16_f32 v136, v131, v131
    v_and_b32 v137, 0xffff0000, v132
    v_and_b32 v136, 0xffff0000, v136
    v_sub_f32 v137, v128, v137
    v_sub_f32 v136, v131, v136
    v_cmp_eq_u32 vcc, 0, v5
    v_cvt_pk_bf16_f32 v133, v137, v131
    v_cvt_pk_bf16_f32 v134, v131, v136
    v_mov_b32 v135, 0
    v_cndmask_b32 v132, 0, v132, vcc
    v_cndmask_b32 v133, 0, v133, vcc
    v_cndmask_b32 v134, 0, v134, vcc
    s_lshl_b32 s6, s3, 9
    s_add_u32 s6, s6, {KSP}
    v_lshl_add_u32 v137, v139, 3, s6''')
    sq.add(('ds', 'ds_write_b128 v138, v[132:135] offset:28672', 'stw'), ('ds', 'ds_write_b64 v137, v[130:131]', 'stw'))
    wxq = Q(k)
    wxq.add(f'v_mov_b64 {P(WX+4)}, {P(WX)}', f'v_mov_b64 {P(WX+6)}, {P(WX+2)}')
    for r in range(3): wxq.add(f'v_permlane32_swap_b32 v{WX+r}, v{WX+4+r}')
    L = 8; KS = 29 - L
    seq = [(st, ks) for st in range(4) for ks in range(29)]
    X0 = C['x0']; seq.remove((0, 28)); seq.insert(28 + X0, (0, 28))
    def breg(n): return v(RING+4*(n&3),4) if n < 87+KS else v(ACC0+4*(n-87-KS),4)
    def rd(n):
        st, ks = seq[n]
        base, off = ('v3', st*IMG) if st < 2 else ('v7', (st-2)*IMG)
        k.ds_op(f'ds_read_b128 {breg(n)}, {base} offset:{off+1024*ks}', f'b{n}')
    PD = 3
    page(k, 4, 1)
    k.wait(vm='a0a'); k.e('s_barrier'); k.st('P3go')
    for n in range(PD): rd(n)
    k.lq = lq = Q(k); k.nl = 0
    fill = Q(k); rate = 0; nv = [len(q) for q in vq]; assert max(nv) <= 28
    def mf(n, mt):
        st, ks = seq[n]; acc = ACC0 + 32*(st & 1)
        if ks < 28: A = a(8*ks+4*mt, 4); k.wait(lg=f'b{n}')
        else: A = v(WX+4*mt, 4); k.wait(vm='wx', lg=f'b{n}')
        c = '0' if ks == 0 else v(acc+16*mt, 16)
        k.e(f'v_mfma_f32_32x32x16_bf16 {v(acc+16*mt,16)}, {A}, {breg(n)}, {c}')
    def events(st, ks):
        e = (st, ks); bar = False
        if e == (3, C['c0_ks']): mp_check(k, 0, 14, 0, C['flip']); bar = True
        if e == (3, C['c01_ks']): mp_check(k, 128, 7, 3, C['flip']); bar = True
        if e == C['sigB0']: k.wait(vm=['hh0', 'a3']); bar = True
        if e == C['sigB01']: k.wait(vm='hh1' if 'dr' not in ABL else None); bar = True
        if e == (3, C['sigB2']): k.wait(vm='hh2' if 'dr' not in ABL else None); bar = True
        if bar and not ('bar' in ABL and st == 3): k.e('s_barrier')
        return
    def events2(st, ks):
        e = (st, ks)
        if e == C['sigB0']: gsignal(k, 0, 1)
        if e == C['sigB01']: gsignal(k, 128, 1)
        if e == (3, C['sigB2']):
            gsignal(k, 256, 2); k.st('sigB2')
            if C['rrh']: reread(k, 's42', 5)
        if e in C['pollB01']: mp_issue(k, 128, C['pollB01'].index(e), 3, C['flip'])
        if e in C['pollB0']: mp_issue(k, 0, C['pollB0'].index(e), 0, C['flip'])
        if e == (3, C['c0_ks']):
            for b in range(3): lq.vm(f's_add_u32 m0, s71, {1024*b}', f'buffer_load_dwordx4 v127, s[12:15], s{67+b} offen sc1 lds', 'x1')
            hh(lq, C0)
        if e == (3, C['c01_ks']): k.st('B01ok'); hh(lq, C1)
    nrd = PD
    for n, (st, ks) in enumerate(seq[:87+KS]):
        k.st(f'k{st}_{ks}')
        s2, k2 = seq[nrd]
        if (s2, k2) == (0, 28): assert not len(tr)
        if (s2, k2) == (0, 12): xcheck(); k.wait(vm='a0b' if C['a1_bar'] else 'a1'); k.e('s_barrier')
        elif n == C['a1b_ks'] and C['a1_bar']: k.wait(vm=['a1', 'w3_27']); k.e('s_barrier')
        elif (s2, k2) == (0, 28):
            assert not len(fill); k.wait(vm='a2', lg='stw'); k.e('s_barrier')
            k.ds_op(f'ds_read_b64 {v(ET,2)}, v8', 'ks0'); k.wait(vm='wx'); fill = wxq; rate = 8
        if nrd >= 87+KS: assert not len(fill)
        rd(nrd); nrd += 1
        if nrd > 87+KS: rd(nrd); nrd += 1
        if ks == (27 if st < 3 else 5) and st: k.ds_op(f'ds_read_b64 {v(ET+2*(st&1),2)}, v8 offset:{512*st}', f'ks{st}')
        if ks == (2 if st > 1 else X0+2) and st > 0:
            if C['gap']: fill = Epi(k, ACC0 + 32*((st-1) & 1), st-1, C['vmc'], C['join'], x1s if st == 1 and C['x1at'] == 1 else ())
            else:
                fill = epi3(k, ACC0 + 32*((st-1) & 1), st-1)
                rate = fill.cost() / (2*C['epi_span'][st-1])
        if (st, ks) == (0, C['su_ks']): fill = su; rate = su.cost() / (2*C['su_span'])
        if (st, ks) == (0, C['st_ks']): assert not len(fill); k.wait(vm='st'); fill = sq; rate = sq.cost() / (2*(24 + X0 - C['st_ks']))
        events(st, ks)
        for mt in range(2):
            mf(n, mt); n0 = len(k.L)
            if mt == 0: events2(st, ks)
            if st == 0 and (len(tr) > 2*C['r4'] or n >= C['a1b_ks']): tr.emit(C['tr_rate'])
            if st == 0 and ks < 28: assert len(tr) <= 4*(27 - ks - 2) or not len(tr)
            if mt == 1 and (st, ks) == C['pg5']: page(k, 5, 3)
            if mt == 0 and len(vq[st]) > ((nv[st]*(27-ks))//28 if 0 < st < 3 and 'wd' not in ABL else 0): vq[st].emit(1)
            elif mt == 0 and st == 3 and len(lq):
                assert (k.nl - 3)//2 < ks; lq.emit(1); k.nl += 1
            if isinstance(fill, Epi):
                was = len(fill)
                fill.pack(C['gap'][st-1] - sum(lcost(l, C['vmc']) for l in k.L[n0:]) - 8*mt)
                if was and not len(fill) and os.environ.get('VERB'): print('epi done', st, ks)
            else: fill.cyc(rate)
        if ks == 28:
            assert not len(fill) and not len(vq[st]), (st, len(fill), len(vq[st]))
            k.st(f'S{st}')
    G = ACC0+32; U = G+16; K1 = ET+2; PK = ET+12; k.st('gph')
    for j in range(L):
        if nrd < len(seq): rd(nrd); nrd += 1
        if not j & 1: events(3, KS + j//2)
        mf(87+KS+j, 0)
        if not j & 1: events2(3, KS + j//2)
        if j & 1: lq.emit(1)
        if j < 7: k.e(f'v_mov_b64 {P(128+2*j)}, 0')
    sg = Q(k); k.st('uph')
    for qq in range(4):
        rr = range(G+4*qq, G+4*qq+4); pk = qq >= C['sg_pk']
        if pk: sg.add(*[f'v_pk_mul_f32 {P(r)}, {P(r)}, {P(K1)} op_sel_hi:[1,0]' for r in rr[::2]])
        else: sg.add(*[f'v_mul_f32 v{r}, v{r}, v{K1}' for r in rr])
        sg.add(*[f'v_exp_f32 v{r}, v{r}' for r in rr])
        if pk: sg.add(*[f'v_pk_fma_f32 {P(r)}, {P(r)}, {P(K1)}, {P(K1)} op_sel:[0,1,1] op_sel_hi:[1,1,1]' for r in rr[::2]])
        else: sg.add(*[f'v_fma_f32 v{r}, v{r}, v{K1+1}, v{K1+1}' for r in rr])
        sg.add(*[f'v_rcp_f32 v{r}, v{r}' for r in rr])
    for j in range(L):
        if not j & 1: events(3, KS + (L+j)//2)
        mf(87+KS+j, 1)
        if not j & 1: events2(3, KS + (L+j)//2)
        if j == 0: lq.emit(1); ldsread(k, LDSI[0])
        elif j == 1:
            lq.emit(1)
            if C['pg6'] == 'u': page(k, 6, 3)
        else:
            if j & 1 and C['u_ld']: lq.emit(1)
            sg.cyc(C['sg_rate'])
    k.st('S3')
    if -1 in C['p4_poll2']: mp_issue(k, 256, C['p4_poll2'].index(-1), 1, not C['flip'])
    for n in range(C['e_ld']): sg.cyc(64); lq.emit(1)
    sg.flush()
    for hf in range(2):
        for r in range(8*hf, 8*hf+8, 2): k.e(f'v_pk_mul_f32 {P(G+r)}, {P(G+r)}, {P(U+r)}')
        for r in range(4*hf, 4*hf+4): k.e(f'v_cvt_pk_bf16_f32 v{PK+r}, v{G+2*r}, v{G+2*r+1}')
        k.vm_op(f'buffer_store_dwordx4 {v(PK+4*hf,4)}, v3, s[12:15], s43 offen offset:{1024*hf} sc1', 'hh3')
    k.st('epi3')
    if C['pg6'] == 'e': page(k, 6, 3)
    if C['sigB2'] > 28:
        k.wait(vm='hh2'); k.e('s_barrier'); gsignal(k, 256, 2); k.st('sigB2')
        if C['rrh']: reread(k, 's42', 5)

RG = [RING, WX]
def ldsread(k, i):
    slot = LDSI.index(i); ws = WSLOT[i]
    base, off = ('v11', WDL[ws]-WDL[0]) if ws < 2 else ('v10', WDL[ws])
    k.wait(vm=f'wd{i}')
    for f in range(4): k.ds_op(f'ds_read_b128 {v(RG[slot&1]+4*f,4)}, {base} offset:{off+1024*f}', f'wl{i}')
def P4(k, C):
    XRG = list(range(128, 142)) + [122, 123]
    GB = 112; R = RING; R0 = 144
    def acc(rl, u, t): return ACC0 + 32*rl + 16*u + 4*t
    lq = k.lq; started = set(); redw = Q(k)
    ml = []
    for i, rl in C01 + C2: ml += [(i, rl, 0), (i, rl, 1)]
    for u in (1, 0): ml += [(i, rl, u) for i, rl in C3]
    burst = C['p4_burst0']
    for g, (i, rl, u) in enumerate(ml):
        n = g >> 1; post = []
        if not g & 1:
            k.st(f'n{n}'); bar = False
            if n == C['p4_sig3']: k.wait(vm='hh3' if 'dr' not in ABL else None); bar = True; post.append(lambda: (gsignal(k, 384, 0), k.st('sigB3'))); C['rrh'] and post.append(lambda: reread(k, 's43', 5))
            if n == C['p4_c2']: mp_check(k, 256, 7, 1, not C['flip']); bar = True; hh(lq, C2)
            if n == C['p4_c3']: mp_check(k, 384, 7, 2, not C['flip']); bar = True; hh(lq, C3, True); burst = C['p4_burst']
            if bar and 'bar' not in ABL: k.e('s_barrier')
            if n == C['p4_c2']: k.st('B2ok')
            if n == C['p4_c3']: k.st('B3ok'); lq.emit(C['p4_b0'])
            if n in C['p4_poll2']: post.append(lambda n=n: mp_issue(k, 256, C['p4_poll2'].index(n), 1, not C['flip']))
            if n in C['p4_poll3']: post.append(lambda n=n: mp_issue(k, 384, C['p4_poll3'].index(n), 2, not C['flip']))
            if n == 1:
                redw.add(f's_lshl_b32 s6, s35, 8\ns_add_u32 s6, s6, {WS_MOD+GB_N}', 'v_mov_b64 v[122:123], 0\nv_lshlrev_b32 v4, 4, v4')
                redw.vm(None, f'buffer_load_dwordx4 {v(GB,4)}, v4, s[12:15], s6 offen sc1', 'gb')
                redw.add('v_and_b32 v14, 4, v13\nv_sub_u32 v15, 2, v14', 'v_add_u32 v14, v13, v15\nv_add_u32 v15, v14, v15')
            if n == 4:
                assert not len(redw); k.wait(vm='x1')
                for t in range(4):
                    for r in range(4): redw.add(('ds', f'ds_read_u16_d16_hi v{XRG[4*t+r]}, v{12+t} offset:{16*r}', 'xr'), lambda: None)
        nxt = None
        if (rl, u) == (1, 1) and g < 24:
            sl = (g >> 2) + 1
            if sl < 5: nxt = LDSI[sl]; k.wait(vm=f'wd{nxt}'); ws = WSLOT[nxt]; base, off = ('v11', WDL[ws]-WDL[0]) if ws < 2 else ('v10', WDL[ws])
            elif sl == 5: nxt = -1
        def wr(ad, r, t, tag):
            if C['w64']: redw.add(*[('ds', f'ds_write_b64 v{ad}, {v(r+2*x,2)} offset:{1024*t+512*x}', tag) for x in range(2)])
            else: redw.add(('ds', f'ds_write_b128 v{ad}, {v(r,4)} offset:{1024*t}', tag))
        def rdr(r, off, tag):
            if C['w64']: k.ds_op(f'ds_read2st64_b64 {v(r,4)}, v1 offset0:{off//512} offset1:{off//512+1}', tag)
            else: k.ds_op(f'ds_read_b128 {v(r,4)}, v1 offset:{off}', tag)
        if g == 40:
            assert not len(redw)
            for uu in range(2):
                for t in range(4): wr(125+uu, acc(1,uu,t), t, 'rw')
        if g == 48:
            for t in range(4): wr(124, acc(0,1,t), t, 'rv')
        if g == 49 and C['bar2']: assert len(redw) <= 8; k.wait(lg='rw'); k.e('s_barrier')
        if g == 53: assert not len(redw); k.wait(lg='rv'); k.e('s_barrier')
        k.wait(vm=f'h{i}_{rl}_{u}', lg=f'wl{i}' if i in LDSI else None)
        assert not any(isinstance(x, tuple) and x[2] == f'h{i}_{rl}_{u}' for x in lq.q), (i, rl, u)
        k.pend = getattr(k, 'pend', []) + post
        for t in range(4):
            B = v(RG[LDSI.index(i)&1]+4*t, 4) if i in LDSI else wdreg(i, t)
            D = v(acc(rl,u,t), 4); c = D if (rl,u,t) in started else '0'; started.add((rl,u,t))
            k.e(f'v_mfma_f32_16x16x32_bf16 {D}, {hreg(i,rl,u)}, {B}, {c}')
            if t == 0: lq.emit(1)
            elif t == 2:
                if len(redw): redw.emit(1)
                elif burst > 0: lq.emit(1); burst -= 1
            elif k.pend: k.pend.pop(0)()
            if nxt == -1: lds_pad(k, 1, 116)
            elif nxt is not None: k.ds_op(f'ds_read_b128 {v(RG[sl&1]+4*t,4)}, {base} offset:{off+1024*t}', f'wl{nxt}')
            if C['w64'] and g > 40 and t == 0: redw.emit(1)
            if C['bar2']:
                if g in (49, 50, 51, 52) and t & 1: x = 2*(g-49) + (t >> 1); rdr(R+16*(x&1)+4*(x>>1), (1+(x&1))*4096+(x>>1)*1024, 'r12')
                if g == 53: rdr(R0+4*t, 1024*t, 'r0')
                if g in (54, 55):
                    if (g, t) == (54, 0): k.wait(lg='r12')
                    for r in range(8*(g-54)+2*t, 8*(g-54)+2*t+2): k.e(f'v_add_f32 v{R+r}, v{R+r}, v{R+16+r}')
            elif g >= 53: rdr((R, R+16, R0)[g-53]+4*t, ((1, 2, 0)[g-53])*4096+1024*t, f'rr{g}')
    assert not len(redw) and not len(lq) and not k.pend
    k.st('P4mf')
    if not C['bar2']:
        k.wait(lg='rr54')
        for r in range(0, 16, 2): k.e(f'v_pk_add_f32 {P(R+r)}, {P(R+r)}, {P(R+16+r)}')
    k.wait(vm='gb', lg='all')
    for r in range(0, 16, 2): k.e(f'v_pk_add_f32 {P(R+r)}, {P(R+r)}, {P(R0+r)}')
    for r in range(4): k.e(f's_add_u32 s{48+r}, s72, {r*64*896}')
    for h in range(2):
        for t in range(4): k.e(f'v_pk_add_f32 {P(R+4*t+2*h)}, {P(R+4*t+2*h)}, {P(acc(0,0,t)+2*h)}')
        for t in range(4):
            x = XRG[4*t+2*h]
            k.e(f'v_pk_fma_f32 {P(x)}, {P(R+4*t+2*h)}, {P(GB+(t&2))}, {P(x)} op_sel:[0,{t&1},0] op_sel_hi:[1,{t&1},1]')
        for r in (2*h, 2*h+1):
            k.e(f'v_cvt_pk_bf16_f32 v{R0+2*r}, v{XRG[r]}, v{XRG[4+r]}\nv_cvt_pk_bf16_f32 v{R0+2*r+1}, v{XRG[8+r]}, v{XRG[12+r]}')
            k.vm_op(f'buffer_store_dwordx2 {P(R0+2*r)}, v0, s[8:11], s{48+r} offen {C["out_pol"]}')

S_W = 8192
def side(k, C):
    wq = side_head(k, False, C)
    side_tail(k, wq, C)
    k.e('s_endpgm\n' + ('.p2align 12\n' if PAGES else '') + 'SD_Z:'); k.reset_counts()
    side_head(k, True, C)
    k.e('s_branch SD_G3')

ROTB = int(os.environ.get('ROTB', 3))
W = 16; SL = 128; AC = 142; TS = 150; DF = 160; CS = 176
def side_head(k, Z, C):
    T = TS; tg = 'Z' if Z else 'B'
    k.e(f'''
    v_lshrrev_b32 v1, 6, v0
    v_and_b32 v2, 63, v0
    v_readfirstlane_b32 s3, v1
    v_lshrrev_b32 v6, 3, v2
    v_and_b32 v8, 7, v2
    s_mul_i32 s39, s3, 112
    v_add_u32 v7, s39, v6
    v_mul_u32_u24 v7, 5376, v7
    v_lshl_add_u32 v7, v8, 4, v7     ; w_mod voffset
    s_mul_i32 s62, s33, {8*ROTB if not Z else 0}
    v_add_u32 v9, s62, v2
    v_add_u32 v11, 56, v9
    v_subrev_u32 v10, 112, v9
    v_min_u32 v9, v9, v10
    v_subrev_u32 v10, 112, v11
    v_min_u32 v11, v11, v10
    v_add_lshl_u32 v9, v9, s39, 1    ; c voffsets
    v_add_lshl_u32 v11, v11, s39, 1
    s_mul_i32 s62, s62, 5376
    s_mov_b32 s10, {448*5376}
    s_mov_b32 s11, 0x20000
    s_mov_b32 s46, 896
    s_mov_b32 s47, 0x20000
    s_mov_b32 s14, {WS_END}
    s_mov_b32 s15, 0x20000
    ''')
    if Z: k.e('s_lshl_b32 s34, s33, 1\ns_add_u32 s35, s34, 1\ns_lshl_b32 s40, s34, 7\ns_lshl_b32 s41, s35, 7\ns_cmp_eq_u32 s33, 3\ns_cselect_b32 s41, 0x7ff00000, s41')
    else: k.e('s_add_u32 s40, s32, 7\ns_lshl_b32 s40, s40, 7\ns_add_u32 s41, s33, 1\ns_mul_i32 s41, s41, 896\ns_add_u32 s41, s41, s40')
    k.e(f'''
    v_lshlrev_b32 v3, 4, v2
    v_and_b32 v4, 31, v2
    v_lshrrev_b32 v5, 5, v2
    s_and_b32 s42, s3, 1             ; mat
    s_lshr_b32 s43, s3, 1
    s_mov_b32 s52, {f2h(1/448)}
    s_mov_b32 s53, {f2h(-448.0)}
    s_waitcnt lgkmcnt(0)
    s_mov_b32 s44, s22
    s_and_b32 s45, s23, 0xffff
    s_mov_b32 s8, s24
    s_and_b32 s9, s25, 0xffff
    s_mov_b32 s12, s30
    s_and_b32 s13, s31, 0xffff
    ''')
    if Z:
        k.e(f'''s_cmp_lg_u32 s2, {NSIDE-1}
    s_cbranch_scc1 SD_NZ
    v_lshlrev_b32 v10, 4, v0         ; WG 31: zero the barrier counters (16 KB), then raise d_debug[0]
    v_mov_b64 v[16:17], 0
    v_mov_b64 v[18:19], 0
    s_mov_b32 s6, {WS_FLAG+FL_BAR}''')
        for i in range(4): k.e('buffer_store_dwordx4 v[16:19], v10, s[12:15], s6 offen sc1\ns_add_u32 s6, s6, 4096')
        k.e('s_mov_b32 s74, 1\ns_waitcnt vmcnt(0)\ns_barrier\ns_cmp_lg_u32 s3, 0\ns_cbranch_scc1 SD_NZ\ns_atomic_or s74, s[28:29], 0x0\nSD_NZ:')
    k.stamp(1); k.st('sd0')
    k.vm_op('buffer_load_ushort v10, v9, s[44:47], 0 offen', 'c')
    k.vm_op('buffer_load_ushort v11, v11, s[44:47], 0 offen', 'c')
    lq = Q(k)
    for t in range(2):
        for i in range(14):
            wrap = (not Z) and any((ROTB*q + i) % 14 == 0 for q in range(4))
            pre = (f's_add_u32 s62, s62, {8*5376}\n' + (f's_cmp_eq_u32 s62, {112*5376}\ns_cselect_b32 s62, 0, s62\n' if wrap or i == 0 else '') if i or t else '') + f's_add_u32 s63, s62, s{40+t}'
            lq.vm(pre, f'buffer_load_dwordx4 {v(W+56*t+4*i,4)}, v7, s[8:11], s63 offen', f'w{t}_{i}')
    lq.emit(2)
    def ang0(dst, step, ef, df, ph):
        return f'''v_mul_f32 v{dst}, v{ef}, v{df}
        v_mul_f32 v{step}, s52, v{dst}
        v_floor_f32 v{step}, v{step}
        v_fma_f32 v{dst}, v{step}, s53, v{dst}
        v_fma_f32 v{dst}, v{dst}, s52, {ph}
        v_mul_f32 v{step}, s52, v{ef}'''
    f = Q(k)
    f.lines(f'''v_lshlrev_b32 v{T}, 3, v8
    v_add_u32 v{T}, v{T}, v6
    v_lshlrev_b32 v{T}, 2, v{T}
    s_lshl_b32 s57, s3, 8
    v_add_u32 v9, s57, v{T}          ; partial write addr
    v_lshlrev_b32 v241, 2, v2        ; partial read addr
    v_lshlrev_b32 v244, 2, v6
    v_mov_b32 v245, 0''')
    for i in range(0, 8, 2): f.add(f'v_mov_b64 {P(AC+i)}, 0')
    if not Z:
        f.lines(f'''
        s_lshl_b32 s6, s33, 2
        v_lshl_add_u32 v12, v5, 1, s6    ; 4kk+2h
        s_lshl_b32 s6, s32, 6
        v_add_u32 v{T}, s6, v12
        v_cvt_f32_u32 v{T}, v{T}         ; d0
        v_lshlrev_b32 v12, 2, v12        ; bpermute addr
        s_lshl_b32 s6, s43, 5
        v_add_u32 v{T+1}, s6, v4
        v_cmp_eq_u32 vcc, 0, v{T+1}
        v_cvt_f32_u32 v{T+1}, v{T+1}''')
        f.add(f'''s_cmp_eq_u32 s42, 1
        s_cselect_b32 s6, {f2h(-0.25)}, 0
        s_cselect_b32 s7, {f2h(224.0)}, 0''')
        f.lines(f'''v_mov_b32 v{T+2}, s6
        v_mov_b32 v{T+3}, s7
        v_cndmask_b32 v{T+3}, v{T+1}, v{T+3}, vcc
        v_cndmask_b32 v{T+4}, v{T+2}, 0, vcc''')
        for jj in range(4):
            if jj: f.add(f'v_add_f32 v{T+1}, {f2h(64.0)}, v{T+1}')
            f.lines(ang0(T+5, T+6, T+3 if jj == 0 else T+1, T, f'v{T+4}' if jj == 0 else f'v{T+2}'))
            for n in range(8): f.add(f'v_fmamk_f32 v{CS+8*jj+n}, v{T+6}, {f2h(16*(n&3)+(n>>2))}, v{T+5}')
            for n in range(8): f.add(f'v_cos_f32 v{CS+8*jj+n}, v{CS+8*jj+n}')
        f.lines(f'''s_mul_i32 s58, s3, 28
        s_lshl_b32 s7, s32, 2
        s_add_u32 s58, s58, s7
        s_add_u32 s58, s58, s33
        s_lshl_b32 s58, s58, 10
        s_add_u32 s58, s58, {WS_CP}
        s_mul_i32 s7, s33, 7
        s_add_u32 s7, s7, s32
        s_lshl_b32 s59, s7, 10
        s_add_u32 s59, s59, {WS_FLAG}''')
        f.add('s_cmp_lt_u32 s7, 20\ns_cselect_b32 s59, s59, 0x7fff0000\ns_cmp_eq_u32 s3, 3\ns_cselect_b32 s59, s59, 0x7fff0000')
    else:
        f.lines(f'v_cvt_f32_u32 v{T+1}, v0\ns_lshl_b32 s6, s33, 7\nv_cvt_f32_u32 v{T}, s6')
        for t in range(2):
            f.lines(ang0(13, 14, T+1, T, '0') + f'\nv_add_f32 v{T}, {f2h(64.0)}, v{T}')
            for n in range(0, 64, 4):
                for i in range(4): f.add(f'v_fmamk_f32 v{T+2+i}, v14, {f2h(n+i)}, v13')
                for i in range(4): f.add(f'v_cos_f32 v{T+2+i}, v{T+2+i}')
                for i in range(2): f.add(f'v_cvt_pk_bf16_f32 v{CS+32*t+n//2+i}, v{T+2+2*i}, v{T+3+2*i}')
    for n in range(8): f.cyc(56); lq.emit(1)
    f.cyc(100)
    if Z: f.cyc(C['z_f0'])
    k.stamp(2)
    k.wait(vm='c')
    for txt in ('v_lshlrev_b32 v#, 16, v#', f'v_mul_f32 v@, {f2h(-LOG2E)}, v#', 'v_exp_f32 v@, v@', 'v_add_f32 v@, 1.0, v@', 'v_rcp_f32 v@, v@', 'v_mul_f32 v#, v#, v@', 'v_cvt_pk_bf16_f32 v#, v#, v245'):
        for r in range(2): k.e(txt.replace('#', str(10+r)).replace('@', str(246+r)))
    for i in range(14): k.ds_op(f'ds_bpermute_b32 v{SL+i}, v244, v{10+i//7} offset:{32*(i%7)}', f'sl{i}')
    lq.emit(2)
    if Z:
        while len(f): f.cyc(C['z_pace']); lq.emit(1)
    f.flush()
    k.stamp(3)
    def gemv(t, split=99, mid=None):
        if t:
            for i in range(0, 8, 2): k.e(f'v_mov_b64 {P(AC+i)}, 0')
        for i in range(14):
            if i == split: mid()
            k.wait(vm=f'w{t}_{i}', lg=f'sl{i}')
            if Z or len(lq) > 14 or (t == 0 and i < C['sd_l1']): lq.emit(1)
            k.e(f'v_lshlrev_b32 v{T}, 16, v{SL+i}')
            for d in range(4): k.e(f'v_dot2_f32_bf16 v{AC+2*d}, v{W+56*t+4*i+d}, v{SL+i}, v{AC+2*d}')
            for d in range(4): k.e(f'v_dot2_f32_bf16 v{AC+2*d+1}, v{W+56*t+4*i+d}, v{T}, v{AC+2*d+1}')
        for i in range(4): k.e(f'v_permlane32_swap_b32 v{AC+i}, v{AC+4+i}')
        for i in range(0, 4, 2): k.e(f'v_pk_add_f32 {P(AC+i)}, {P(AC+i)}, {P(AC+4+i)}')
        for i in range(2): k.e(f'v_permlane16_swap_b32 v{AC+i}, v{AC+2+i}')
        k.e(f'''v_pk_add_f32 {P(AC)}, {P(AC)}, {P(AC+2)}
        v_add_f32_dpp v{AC+2}, v{AC}, v{AC} row_ror:8 row_mask:0xf bank_mask:0xf
        v_add_f32_dpp v{AC+2}, v{AC+1}, v{AC+1} row_ror:8 row_mask:0xf bank_mask:0xc''')
        k.ds_op(f'ds_write_b32 v9, v{AC+2} offset:{1024*t}')
    def gemv_fin(t):
        for i in range(2): k.ds_op(f'ds_read2st64_b32 {P(AC+2*i)}, v241 offset0:{4*t+2*i} offset1:{4*t+2*i+1}')
        k.wait(lg='all')
        k.e(f'''v_pk_add_f32 {P(AC)}, {P(AC)}, {P(AC+2)}
        v_add_f32 v{AC}, v{AC}, v{AC+1}
        v_cvt_pk_bf16_f32 v{AC}, v{AC}, v{AC}
        v_and_b32 v{AC}, 0xffff0000, v{AC}''')
        if not Z: k.e(f'''v_add_f32 v{AC+1}, 1.0, v{AC}
        v_cvt_pk_bf16_f32 v{AC+1}, v{AC+1}, v{AC+1}
        v_and_b32 v{AC+1}, 0xffff0000, v{AC+1}''')
    def zfin():
        for t in range(2):
            gemv_fin(t)
            if t: k.e(f's_cmp_eq_u32 s33, 3\ns_cselect_b32 s6, 0, -1\nv_and_b32 v{AC}, s6, v{AC}')
            else: k.e(f'v_lshl_add_u32 v{T}, v2, 1, s57\nv_mov_b32 v{T+1}, s57')
            k.e(f'ds_write_b16_d16_hi v{T}, v{AC} offset:{4096+128*t}')
        for i in range(16): k.ds_op(f'ds_read_b128 {v(W+4*i,4)}, v{T+1} offset:{4096+16*i}', f'z{i}')
        k.e(f'''v_mov_b64 {P(AC+2)}, 0
        v_mov_b64 {P(AC+4)}, 0
        s_lshl_b32 s6, s33, 10
        s_add_u32 s6, s6, {WS_ZF}
        v_lshlrev_b32 v{T}, 2, v0
        v_cmp_ge_u32 vcc, 224, v0
        v_mov_b32 v{T+2}, 0x7fff0000
        v_add_u32 v{T+1}, 896, v{T}
        v_cndmask_b32 v{T}, v{T+2}, v{T}, vcc
        v_subrev_u32 v{T+3}, 1, v0
        v_cmp_gt_u32 vcc, 31, v{T+3}
        v_cndmask_b32 v{T+1}, v{T+2}, v{T+1}, vcc''')
        for i in range(16):
            k.wait(lg=f'z{i}')
            for d in range(4): k.e(f'v_dot2_f32_bf16 v{AC+2+d}, v{CS+4*i+d}, v{W+4*i+d}, v{AC+2+d}')
        k.e(f'''v_pk_add_f32 {P(AC+2)}, {P(AC+2)}, {P(AC+4)}
        v_add_f32 v{AC+2}, v{AC+2}, v{AC+3}
        v_cvt_pk_bf16_f32 v{AC+3}, v{AC+2}, v{AC+2}
        v_and_b32 v{AC+3}, 0xffff0000, v{AC+3}
        v_sub_f32 v{AC+3}, v{AC+2}, v{AC+3}
        v_cvt_pk_bf16_f32 v{AC+2}, v{AC+2}, v{AC+3}''')
        k.vm_op(f'buffer_store_dword v{AC+2}, v{T}, s[12:15], s6 offen sc1')
        k.vm_op(f'buffer_store_dword v{AC+2}, v{T+1}, s[12:15], s6 offen sc1')
    gemv(0); k.stamp(4)
    if not Z:
        k.wait(lg='all'); k.e('s_barrier'); gemv_fin(0); k.stamp(5)
        for n in range(8): k.e(f'ds_bpermute_b32 v{DF+n}, v12, v{AC+1} offset:{4*(16*(n&3)+(n>>2))}')
        k.e('s_waitcnt lgkmcnt(0)')
        for jj in range(4):
            if jj == 3:
                k.e('s_cmp_eq_u32 s43, 1\ns_cselect_b32 s58, s59, s58\ns_cselect_b32 s6, 0, -1')
            for n in range(0, 8, 2): k.e(f'v_pk_mul_f32 {P(CS+8*jj+n)}, {P(CS+8*jj+n)}, {P(DF+n)}')
            for r in range(4): k.e(f'v_cvt_pk_bf16_f32 v{W+4*jj+r}, v{CS+8*jj+2*r}, v{CS+8*jj+2*r+1}')
            if jj == 3:
                for r in range(4): k.e(f'v_and_b32 v{W+12+r}, s6, v{W+12+r}')
            k.vm_op(f'buffer_store_dwordx4 {v(W+4*jj,4)}, v3, s[12:15], s58 offen sc1', 'cp')
            if jj < 3: k.e(f's_add_u32 s58, s58, {4*28*1024}')
    else: k.stamp(5)
    k.stamp(6); k.st('sd1'); k.e('s_load_dword s75, s[28:29], 0x0')
    if C['sd_bar'] and not Z: k.e('s_barrier')
    lq.emit(C['sd_l1b'])
    k.e(f'''
    s_lshr_b32 s36, s32, 1
    s_lshl_b32 s6, s33, 2
    s_add_u32 s36, s36, s6           ; idx
    s_and_b32 s6, s32, 1
    s_mul_i32 s6, s6, 14
    s_add_u32 s37, s6, s36           ; 2m+half
    s_cmp_eq_u32 s42, 0
    s_cselect_b32 s48, s16, s18
    s_cselect_b32 s49, s17, s19
    s_and_b32 s49, s49, 0xffff
    s_cmp_lt_u32 s36, 14
    s_cselect_b32 s50, {448*3584}, 0
    s_mov_b32 s51, 0x20000
    v_bfe_u32 v{T}, v2, 4, 1
    v_lshlrev_b32 v{T}, 2, v{T}
    v_xor_b32 v{T}, v{T}, v8
    v_mul_u32_u24 v15, 3584, v6
    v_lshl_add_u32 v15, v{T}, 4, v15
    s_mul_i32 s54, s43, {224*3584}
    s_lshl_b32 s6, s37, 7
    s_add_u32 s54, s54, s6
    s_mul_i32 s55, s42, 57344
    s_mul_i32 s6, s43, 28672
    s_add_u32 s56, s55, s6
    s_add_u32 m0, s56, {S_W + (16*1024 if C['sd_ord'] else 0)}
    s_add_u32 s54, s54, {16*8*3584 if C['sd_ord'] else 0}
    s_cmp_eq_u32 s43, {0 if C['sd_ord'] else 's43'}
    s_cselect_b32 s64, 1, -1
    s_cselect_b32 s66, -27, s64
    s_cselect_b32 s68, s64, 27
    s_mul_i32 s65, s64, {8*3584}
    s_mul_i32 s67, s66, {8*3584}
    s_mul_i32 s69, s68, {8*3584}
    s_lshl_b32 s64, s64, 10
    s_lshl_b32 s66, s66, 10
    s_lshl_b32 s68, s68, 10
    s_lshl_b32 s58, s32, 7
    s_lshl_b32 s6, s3, 12
    s_add_u32 s58, s58, s6
    s_add_u32 s24, s30, {WS_FLAG}
    s_addc_u32 s25, s31, 0
    s_mov_b32 s74, 1
    ''')
    wq = Q(k)
    for i in range(28):
        r = (66 if i == 12 else 68 if i == 17 else 64) if C['sd_ord'] else 64
        wq.vm(f's_add_u32 m0, m0, s{r}\ns_add_u32 s54, s54, s{r+1}' if i else None, 'buffer_load_dwordx4 v15, s[48:51], s54 offen lds', 'wst')
    if not Z: k.e(f'''
    s_lshl_b32 s6, s32, 6
    v_add_u32 v{DF}, s6, v2          ; col
    v_cmp_le_u32 vcc, 224, v{DF}
    v_sub_u32 v{DF+1}, 448, v{DF}
    v_cndmask_b32 v{DF+1}, v{DF}, v{DF+1}, vcc
    v_cndmask_b32 v{DF+2}, 0, 32, vcc
    v_cmp_eq_u32 vcc, 224, v{DF+1}
    v_cndmask_b32 v{DF+1}, v{DF+1}, 0, vcc
    v_lshrrev_b32 v{DF+3}, 5, v{DF+1}
    v_lshl_add_u32 v{DF+2}, v{DF+3}, 6, v{DF+2}
    v_and_b32 v{DF+1}, 31, v{DF+1}
    v_add_u32 v{DF+1}, v{DF+1}, v{DF+2} ; position
    s_mov_b32 s60, {WS_MOD+GA_P}
    s_cmp_eq_u32 s33, 3
    s_cselect_b64 vcc, -1, 0
    s_cselect_b32 s60, {WS_MOD+GB_N}, s60
    v_cndmask_b32 v{DF+1}, v{DF+1}, v{DF}, vcc
    s_mov_b32 s61, 0x7fff0000
    s_cmp_eq_u32 s33, 1
    s_cselect_b32 s61, {WS_MOD+SB_K}, s61
    s_cselect_b32 s60, 0x7fff0000, s60
    s_cmp_eq_u32 s33, 2
    s_cselect_b64 vcc, -1, 0
    s_cselect_b32 s60, {WS_MOD+CB1_P}, s60
    s_cselect_b32 s61, {WS_MOD+CB1_K}, s61
    v_lshlrev_b32 v{DF+1}, 2, v{DF+1}
    v_lshlrev_b32 v{DF}, 1, v{DF}
    ''')
    def midsig():
        k.wait(vm='cp', lg='all'); k.e('s_barrier'); ready_loop(k, 242, 243)
        for i in range(4): k.e(f's_atomic_add s74, s[24:25], s58 offset:{FL_BAR+1024*i}')
        k.stamp(7); k.st('sd2'); lq.flush()
    assert C['sd_split'] < 14
    gemv(1, C['sd_split'] if not Z else 99, midsig)
    k.wait(lg='all'); k.e('s_barrier')
    if Z: ready_loop(k, 242, 243); k.stamp(7)
    if Z:
        zfin()
        k.wait(vm='all'); k.e('s_barrier'); signal(k, FL_Z)
        return
    k.e('s_cmp_lg_u32 s3, 0\ns_cbranch_scc1 SD_G4')
    gemv_fin(1)
    k.e(f'''v_cndmask_b32 v{AC}, v{AC}, v{AC+1}, vcc
    buffer_store_dword v{AC}, v{DF+1}, s[12:15], s60 offen sc1
    buffer_store_short_d16_hi v{AC}, v{DF}, s[12:15], s61 offen sc1
    s_barrier
    s_waitcnt vmcnt(0)''')
    for r in list(range(0, 16, 2)) + [3, 5]: k.e(f's_atomic_add s74, s[24:25], {FL_BAR+1024*r+7*128}')
    k.e('s_branch SD_G3\nSD_G4:\ns_barrier')
    return wq

def side_tail(k, wq, C):
    T = TS
    k.e('SD_G3:'); k.vm = []; k.lg = []
    k.stamp(8); k.st('sd3')
    k.e('s_cmp_lt_u32 s36, 14\ns_cbranch_scc0 ' + ('SD_PF' if C['sd_pf'] else 'KP_END'))
    f = Q(k)
    f.lines(f'''
    s_lshr_b32 s38, s37, 1
    s_lshl_b32 s38, s38, 7
    s_add_u32 s38, s38, {FL_SIDE}
    s_and_b32 s39, s32, 1
    s_lshl_b32 s39, s39, 11
    s_add_u32 s39, s39, {FL_MODS}''')
    f.lines(f'''v_bfe_u32 v{T}, v2, 2, 2
    v_lshl_add_u32 v{T+1}, v5, 3, v{T}
    v_lshlrev_b32 v8, 7, v{T+1}
    v_lshrrev_b32 v{T}, 1, v{T}
    v_xor_b32 v{T}, s43, v{T}
    v_lshl_add_u32 v8, v{T}, 6, v8
    v_bfe_u32 v{T}, v2, 4, 1
    v_lshl_add_u32 v8, v{T}, 5, v8
    v_and_b32 v{T}, 3, v2
    v_lshl_add_u32 v8, v{T}, 3, v8
    s_add_u32 s55, s55, {S_W}
    v_add_u32 v8, s55, v8            ; tr read addr
    v_and_b32 v9, 1, v2
    v_mul_u32_u24 v9, 1152, v9
    v_lshl_add_u32 v9, v5, 4, v9     ; vec read addr
    s_lshl_b32 s19, s37, 2
    s_add_u32 s19, s19, s3
    s_lshl_b32 s19, s19, 9
    s_add_u32 s19, s19, {WS_WEXT}''')
    if C['sd_late']:
        f.flush(); poll_issue(k, 's39', 's0', 1); poll_check(k, 's39', 28, 's0', 1); k.e('s_barrier')
    while len(wq): wq.emit(1); f.emit(3)
    poll_issue(k, 's39', 's0', 1)
    k.wait(vm='all'); k.e('s_barrier')
    poll_check(k, 's39', 28, 's0', 1)
    k.e(f's_cmp_lg_u32 s3, 1\ns_cbranch_scc1 SD_V\ns_mov_b32 m0, 4096\ns_mov_b32 s6, {WS_MOD+CB1_K}')
    k.e('buffer_load_dwordx4 v3, s[12:15], s6 offen sc1 lds\ns_mov_b32 m0, 4224\ns_nop 0\nbuffer_load_dwordx4 v3, s[12:15], s6 offen offset:1024 sc1 lds\nSD_V:')
    for ks in range(28):
        for hf in range(2): k.ds_op(f'ds_read_b64_tr_b16 {a(4*ks+2*hf,2)}, v8 offset:{2048*ks+512*hf}')
    k.wait(vm='all'); k.e('s_barrier'); k.stamp(9); k.st('sd4')
    A2 = 240
    def rd(ks): k.ds_op(f'ds_read_b128 {v(W+4*ks,4)}, v9 offset:{4096+32*ks}', f'a{ks}')
    for ks in range(6): rd(ks)
    for ks in range(28):
        k.wait(lg=f'a{ks}')
        c = '0' if ks == 0 else v(A2,16)
        k.e(f'v_mfma_f32_32x32x16_bf16 {v(A2,16)}, {v(W+4*ks,4)}, {a(4*ks,4)}, {c}')
        if ks+6 < 28: rd(ks+6)
    k.e(f'''
    v_cvt_pk_bf16_f32 v9, v{A2}, v{A2+1}
    v_lshlrev_b32 v12, 16, v9
    v_and_b32 v13, 0xffff0000, v9
    v_sub_f32 v12, v{A2}, v12
    v_sub_f32 v13, v{A2+1}, v13
    v_cvt_pk_bf16_f32 v8, v{A2}, v12
    v_cvt_pk_bf16_f32 v10, v13, v{A2+1}
    v_mov_b32 v11, 0
    s_mov_b32 exec_hi, 0
    ''')
    k.vm_op('buffer_store_dwordx4 v[8:11], v3, s[12:15], s19 offen sc1')
    k.e('s_mov_b32 exec_hi, -1'); k.wait(vm='all'); k.e('s_barrier'); signal(k, 's38')
    if C['sd_pf']:
        k.e(f'''SD_PF:
    s_add_u32 s24, s30, {WS_FLAG+FL_WD}
    s_addc_u32 s25, s31, 0
    s_and_b32 s34, s32, 1
    s_lshl_b32 s6, s34, 10
    s_lshl_b32 s7, s3, 8
    s_add_u32 s6, s6, s7
    s_cmp_eq_u32 s3, 3
    s_cselect_b32 s7, 0, 128
    s_add_u32 s7, s7, s6
    s_lshl_b32 s35, s33, 2
    s_add_u32 s35, s35, s3
    s_mul_i32 s35, s35, 56
    v_min_u32 v6, 55, v2
    v_add_u32 v6, s35, v6
    v_lshrrev_b32 v7, 5, v6
    v_and_b32 v6, 31, v6
    v_mul_u32_u24 v7, 57344, v7
    v_lshl_add_u32 v6, v6, 7, v7
    s_mul_i32 s34, s34, {7*4096}
    s_sub_u32 s35, {WS_WDP+7*4096}, s34
    s_add_u32 s34, s34, {WS_WDP}
    s_mov_b32 s1, 0
SD_PL:
    s_mov_b32 s0, 0
    s_mov_b32 s4, 0
    s_atomic_add s0, s[24:25], s6 glc
    s_atomic_add s4, s[24:25], s7 glc
    s_add_u32 s1, s1, 1
    s_waitcnt lgkmcnt(0)
    s_add_u32 s0, s0, s4
    s_cmp_eq_u32 s0, 56
    s_cbranch_scc1 SD_PD
    s_sleep 8
    s_cmp_lt_u32 s1, {SPIN_MAX}
    s_cbranch_scc1 SD_PL
SD_PD:
    s_barrier''')
        for j, (own, lo) in enumerate(C['sd_pf']):
            k.e(f's_add_u32 s6, s{34 if own else 35}, {4096*lo}\nbuffer_load_dword v{16+j}, v6, s[12:15], s6 offen sc1')
    if K.MARK and K.MARK.startswith('sd'): k.mark_spin()
    k.stamp_out(0, 11)
```

```python
import re

TRANS = ('v_exp_f32','v_log_f32','v_rcp_f32','v_rsq_f32','v_sqrt_f32','v_sin_f32','v_cos_f32')

def _regs(op):
    op = op.strip()
    if op.startswith('-'): op = op[1:]
    m = re.fullmatch(r'abs\((.*)\)', op) or re.fullmatch(r'\|(.*)\|', op)
    if m: op = m.group(1)
    m = re.fullmatch(r'([vas])(\d+)', op)
    if m: return {(m.group(1), int(m.group(2)))}
    m = re.fullmatch(r'([vas])\[(\d+):(\d+)\]', op)
    if m: return {(m.group(1), i) for i in range(int(m.group(2)), int(m.group(3))+1)}
    if op in ('vcc','vcc_lo','vcc_hi'): return {('x','vcc')}
    if op in ('exec','exec_lo','exec_hi'): return {('x','exec')}
    if op == 'm0': return {('x','m0')}
    return set()

class Ins:
    def __init__(self, text):
        self.text = text
        t = text.split(';')[0].strip()
        self.label = t.endswith(':')
        self.kind = 'other'; self.w = set(); self.r = set()
        self.states = 1
        self.dpp = False; self.trans = False; self.dot = False; self.perm = False
        self.A = self.B = self.C = set(); self.passes = 0
        self.store_data = set(); self.ldsdma = False; self.rdlane = False
        if self.label or not t or t.startswith('.'):
            self.kind = 'none'; self.states = 0; return
        parts = t.split(None, 1)
        mn = parts[0]; self.mn = mn
        rest = parts[1] if len(parts) > 1 else ''
        ops = []; cur = ''; depth = 0
        for ch in rest:
            if ch in '[(': depth += 1
            if ch in '])': depth -= 1
            if ch == ',' and depth == 0: ops.append(cur.strip()); cur = ''
            else: cur += ch
        if cur.strip(): ops.append(cur.strip())
        mods = ''
        if ops:
            last = ops[-1].split(None, 1)
            ops[-1] = last[0]; mods = last[1] if len(last) > 1 else ''
        R = [_regs(o) for o in ops]
        allbut0 = set().union(*R[1:]) if len(R) > 1 else set()
        if mn == 's_nop':
            self.kind = 'nop'; self.states = int(ops[0], 0) + 1
        elif mn.startswith('v_mfma'):
            self.kind = 'mfma'; self.w = R[0]; self.A = R[1]; self.B = R[2]; self.C = R[3]
            self.r = self.A | self.B | self.C
            self.passes = 8 if '32x32x16' in mn else 4 if '16x16x32' in mn else None
            assert self.passes
        elif mn.startswith('v_'):
            self.kind = 'valu'
            base = re.sub(r'_(e32|e64|dpp|sdwa)$', '', mn)
            self.w = set(R[0]); self.r = set(allbut0)
            self.trans = base in TRANS
            self.dpp = mn.endswith('_dpp') or 'quad_perm' in mods or 'row_' in mods
            self.dot = base.startswith('v_dot')
            if self.dpp: self.r |= R[0]
            if base.startswith(('v_fmac','v_dot2c','v_pk_fmac')): self.r |= R[0]
            if base.startswith('v_permlane'):
                self.perm = True; self.w = R[0] | R[1]; self.r = R[0] | R[1]
            if base.startswith(('v_add_co','v_sub_co','v_addc_co','v_subb_co')):
                self.w |= R[1]; self.r = set().union(*R[2:])
            if base in ('v_readfirstlane_b32','v_readlane_b32'): self.rdlane = True
            if base.startswith('v_cmpx'): self.w |= {('x','exec')}
        elif mn.startswith(('buffer_','global_')):
            self.kind = 'vmem'
            if mn in ('buffer_inv','buffer_wbl2'): return
            lds = ' lds' in (' '+mods) or '_lds_' in mn
            if lds:
                self.ldsdma = True; self.r = set().union(*R) | {('x','m0')}
            elif '_load' in mn:
                self.w = R[0]; self.r = allbut0
                if 'd16' in mn: self.r |= R[0]
            else:
                self.r = set().union(*R)
                di = 0 if mn.startswith('buffer_') else 1
                if 'atomic' in mn and 'sc0' in mods:
                    self.w = R[0]
                if mn.endswith(('x3','x4')): self.store_data = R[di]
        elif mn.startswith('ds_'):
            self.kind = 'ds'
            if mn.startswith(('ds_read','ds_bpermute','ds_permute','ds_swizzle')):
                self.w = R[0]; self.r = allbut0
                if 'd16' in mn: self.r |= R[0]
            else: self.r = set().union(*R)
        elif mn.startswith('s_'):
            self.kind = 'salu'
            if mn.startswith(('s_cmp','s_waitcnt','s_barrier','s_cbranch','s_branch','s_endpgm','s_sleep','s_setprio','s_bitcmp')):
                self.r = set().union(*R) if R else set()
            else:
                self.w = set(R[0]) if R else set(); self.r = allbut0
                if 'saveexec' in mn: self.w |= {('x','exec')}
        else:
            raise ValueError(text)

def need(p, c):
    n = 0
    vw = {x for x in p.w if x[0] in 'va'}
    sw = {x for x in p.w if x[0] == 's' or x == ('x','vcc')}
    if p.kind == 'valu':
        if c.kind == 'mfma' and vw & c.r: n = max(n, 3 if p.dot else 2)
        if c.kind == 'valu':
            if c.dpp and vw & c.r: n = max(n, 2)
            if c.perm and vw & c.r: n = max(n, 2)
            if c.rdlane and vw & c.r: n = max(n, 1)
            if p.trans and not c.trans and vw & c.r: n = max(n, 1)
            if sw & c.r: n = max(n, 4 if c.rdlane else 2)
            if 'sdwa' in p.mn and vw & (c.r | c.w): n = max(n, 1)
        if p.trans and c.kind in ('vmem','ds') and vw & c.r: n = max(n, 1)
        if p.dot and vw & (c.r | c.w):
            same = c.kind == 'valu' and c.dot and c.mn == p.mn and vw <= c.w and not _dot_ab(c) & vw
            if not same: n = max(n, 3)
        if c.kind == 'vmem' and sw & c.r: n = max(n, 5)
        if c.kind == 'salu' and sw & c.r: n = max(n, 1)
        if ('x','exec') in p.w:
            if c.kind == 'mfma' or c.perm or c.rdlane: n = max(n, 4)
            if c.dpp: n = max(n, 5)
    if p.kind in ('vmem','ds') and c.kind == 'valu' and c.dpp and vw & c.r: n = max(n, 2)
    if p.kind == 'salu' and ('x','m0') in p.w and c.ldsdma: n = max(n, 1)
    if p.store_data and c.w & p.store_data: n = max(n, 2 if c.kind in ('valu','mfma') else 1)
    if p.kind == 'mfma':
        big = {4: 8, 8: 12}[p.passes]
        if c.kind == 'mfma':
            if p.w & (c.A | c.B): n = max(n, big)
            if p.w & c.C:
                if not (p.w == c.C and p.passes == c.passes): n = max(n, big - 2)
            elif p.w & c.w: n = max(n, big)
        elif c.kind in ('valu','vmem','ds'):
            if p.w & (c.r | c.w): n = max(n, big)
            if c.kind == 'valu' and p.C & c.w: n = max(n, {4: 3, 8: 7}[p.passes])
    return n

def _dot_ab(c):
    t = c.text.split(';')[0].split(None,1)[1].split(',')
    return _regs(t[1]) | _regs(t[2].split()[0])

def pad_hazards(lines):
    out = []; win = []
    pend = {}
    for ln in lines:
        c = Ins(ln)
        if c.kind == 'none':
            if c.label:
                for snap in pend.pop(ln.strip()[:-1], []):
                    for p, d in snap:
                        e = [x for x in win if x[0] is p]
                        if e: e[0][1] = min(e[0][1], d)
                        else: win.append([p, d])
            out.append(ln); continue
        k = 0
        for p, d in win: k = max(k, need(p, c) - d)
        while k > 0:
            s = min(k, 16); out.append(f'    s_nop {s-1}')
            for e in win: e[1] += s
            k -= s
        out.append(ln)
        for e in win: e[1] += c.states
        win = [e for e in win if e[1] < 24]
        win.append([c, 0])
        if c.kind == 'salu' and c.mn.startswith(('s_cbranch', 's_branch')):
            pend.setdefault(ln.split(';')[0].split()[1], []).append([(p, d) for p, d in win])
        if c.kind == 'salu' and c.mn in ('s_branch','s_endpgm'): win = []
    return out

class K:
    def __init__(self):
        self.L = []; self.vm = []; self.lg = []; self.uid = 0
    def e(self, s):
        for x in s.strip().split('\n'):
            x = x.strip()
            if x: self.L.append(x if x.endswith(':') else '    ' + x)
    STAMPS = False
    NAMES = None
    CLK = 's_memrealtime'
    MARK = None
    def mark_spin(self):
        if K.MARK:
            l, d = self.label('MS'), self.label('MD')
            self.e(f's_waitcnt lgkmcnt(0)\ns_sub_u32 s6, s98, s100\ns_mul_i32 s6, s6, 10\ns_add_u32 s6, s6, 3000\ns_mov_b32 s7, 0\n{l}:\ns_memrealtime s[0:1]\ns_waitcnt lgkmcnt(0)\ns_sub_u32 s0, s0, s100\ns_add_u32 s7, s7, 1\ns_cmp_gt_u32 s7, 100000\ns_cbranch_scc1 {d}\ns_cmp_lt_u32 s0, s6\ns_cbranch_scc1 {l}\n{d}:')
    def st(self, name):
        if K.MARK and name == 'start': self.e('s_memrealtime s[100:101]')
        if K.MARK == name: self.e('s_memrealtime s[98:99]')
        if K.STAMPS and K.NAMES and name in K.NAMES: self.stamp(K.NAMES.index(name)+1)
    def stamp(self, i):
        if K.STAMPS:
            r = self.sreg(i); self.e(f'{K.CLK} s[{r}:{r+1}]'); self.nst = max(getattr(self,'nst',0), i+1)
    def sreg(self, i): return 100 - 2*i
    def stamp_out(self, kid, n, allwaves=False):
        if not K.STAMPS: return
        lab = self.label('STO')
        self.e(f's_waitcnt vmcnt(0) lgkmcnt(0)')
        self.stamp(n-1)
        self.e(f's_waitcnt lgkmcnt(0)\ns_mov_b64 exec, 1\ns_lshl_b32 s6, s2, 3\ns_add_u32 s6, s6, s3\ns_lshl_b32 s6, s6, 6\ns_add_u32 s6, s6, {0x1200000 + kid*0x40000}\ns_mov_b32 s14, 0x2000000\nv_mov_b32 v1, 0')
        for i in range(n): self.e(f'v_mov_b32 v2, s{self.sreg(i)}\nbuffer_store_dword v2, v1, s[12:15], s6 offen offset:{4*i}')
    def label(self, base):
        self.uid += 1; return f'{base}_{self.uid}'
    def reset_counts(self): self.vm = []; self.lg = []
    def vm_op(self, s, tag=None, maybe=False):
        self.e(s); self.vm.append((tag, maybe))
    def ds_op(self, s, tag=None, maybe=False):
        self.e(s); self.lg.append((tag, maybe))
    @staticmethod
    def _cnt(q, tags):
        if not isinstance(tags, (list, tuple, set)): tags = [tags]
        idx = [i for i, (t, _) in enumerate(q) if t in tags]
        if not idx: return None
        return max(idx), sum(1 for t, m in q[max(idx)+1:] if not m)
    def wait(self, vm=None, lg=None):
        parts = []
        if vm is not None:
            if vm == 'all': parts.append('vmcnt(0)'); self.vm = []
            else:
                r = self._cnt(self.vm, vm)
                if r is not None:
                    i, n = r
                    parts.append(f'vmcnt({min(n,63)})'); self.vm = self.vm[i+1:]
        if lg is not None:
            if lg == 'all': parts.append('lgkmcnt(0)'); self.lg = []
            else:
                r = self._cnt(self.lg, lg)
                if r is not None:
                    i, n = r
                    parts.append(f'lgkmcnt({min(n,15)})'); self.lg = self.lg[i+1:]
        if parts: self.e('s_waitcnt ' + ' '.join(parts))

def v(a, n=1): return f'v{a}' if n == 1 else f'v[{a}:{a+n-1}]'
def a(i, n=1): return f'a{i}' if n == 1 else f'a[{i}:{i+n-1}]'
def s(i, n=1): return f's{i}' if n == 1 else f's[{i}:{i+n-1}]'
import struct
def f2h(x): return '0x%08x' % struct.unpack('<I', struct.pack('<f', x))[0]

def hoist_cmp(lines):
    out = []
    for ln in lines:
        if ln.strip().startswith(('s_cmp_lg_u32 s3,', 's_add_u32 m0,', 's_mov_b32 m0,')) and out and out[-1].strip().startswith('v_mfma'):
            j = len(out) - 1
            if out[j-1].strip().startswith('s_waitcnt'): j -= 1
            out.insert(j, ln)
        else: out.append(ln)
    return out
def align8(lines):
    import subprocess, tempfile, os
    def sizes(L):
        d = tempfile.mkdtemp(); t = '.amdgcn_target "amdgcn-amd-amdhsa--gfx950"\n.text\n.p2align 12\n' + '\n'.join(L) + '\n'
        open(d+'/a.s','w').write(t)
        subprocess.run(['clang','-x','assembler','-target','amdgcn-amd-amdhsa','-mcpu=gfx950','-c',d+'/a.s','-o',d+'/a.o'], check=True)
        o = subprocess.run(['llvm-objdump','-t',d+'/a.o'], capture_output=True, text=True).stdout
        return {int(l.split()[-1][3:]): int(l.split()[0],16) for l in o.split('\n') if l.split() and l.split()[-1].startswith('AL_')}
    M = []
    for i, l in enumerate(lines): M += [f'AL_{i}:', l]
    ad = sizes(M + [f'AL_{len(lines)}:'])
    OK = ('v_mul_f32','v_add_f32','v_exp_f32','v_rcp_f32','v_mov_b32','v_and_b32','v_add_u32','v_sub_f32','v_max_f32')
    out = list(lines); shift = 0; cand = None
    for i, l in enumerate(lines):
        t = l.strip(); mn = t.split()[0] if t else ''
        if t.startswith('.p2align'): shift = 0; cand = None; continue
        if mn.startswith('v_mfma'):
            if (ad[i] + shift) % 8 and cand is not None:
                c = out[cand].strip(); m = c.split()[0]; out[cand] = '    ' + m + '_e64' + c[len(m):]; shift += 4
            cand = None
        elif mn in OK and ad[i+1] - ad[i] == 4 and cand is None: cand = i
    return out
def kernel_text(name, lines, nvgpr, nagpr=0, nsgpr=96, align=8):
    acc = max(4, (nvgpr + 3)//4*4)
    nfv = acc + nagpr if nagpr else nvgpr
    import os
    L = pad_hazards(hoist_cmp(lines) if os.environ.get('HOIST', '1') == '1' else lines)
    if os.environ.get('AL8') == '1': L = align8(L)
    body = '\n'.join(L)
    code = f""".globl {name}
.p2align {align}
.p2align 8
.type {name},@function
{name}:
{body}
"""
    desc = f""".p2align 6
.amdhsa_kernel {name}
  .amdhsa_next_free_vgpr {nfv}
  .amdhsa_next_free_sgpr {nsgpr}
  .amdhsa_accum_offset {acc}
  .amdhsa_group_segment_fixed_size 0
  .amdhsa_kernarg_size 112
  .amdhsa_user_sgpr_count 2
  .amdhsa_user_sgpr_kernarg_segment_ptr 1
  .amdhsa_system_sgpr_workgroup_id_x 1
  .amdhsa_float_denorm_mode_32 3
.end_amdhsa_kernel
"""
    return code, desc
```

```python
from asmlib import *
from layout2 import *
import math, os
NSIDE = 32; NMAIN = 224; GRID = 256
LDS_ALL = 163840
RX = int(os.environ.get('RX', 0)); RSH = int(os.environ.get('RSH', 0)); NREP = 18; assert not RX and not RSH
SPIN_MAX = 1 << 20
DELT = [16*a + 8*(n >> 2) + (n & 3) for a in range(2) for n in range(8)]
LOG2E = math.log2(math.e)
CFG = dict(sd_pf=[], x_first=0, poll1b=2, poll1c=15, sd_bar=1, rdy=2, z_f0=700, z_pace=64, mp1=8, ld1=0, f3_post=0, r1sep=0, ssig=1, sd_split=0, sd_l1=0, p1_w3_t=0, sd_late=0, p1_fill0=40, p1_ld_pre=10, p1_fill=64, pf_ca=1, pf_mod=2, pf_a=2, c2_at=6, sd_l1b=8, wl_early=1, w3_at=8, cold_at=101, c2_bar=1, cq_from=2, cold_rate=3, cold_a=0, join=0, x1at=0, xs_first=1, pw=0, pw_pad=(5,18), z_at=3, wswap=0, cold_n=99, pf_b=1, wl_c2=0, sd_ord=1, wl_nat=0, p1_split=0, p1_f2=150, p1_fill_drain0=300, p1_w3_ld=2, p1_w3_a=0, p1_w3_b=0, p1_w3_c=0, p1_w3_drain=6, p1_fill_drain=32, p1_fill_drain2=0, poll1_at=11, f3_pre=0, p2_f3=16,
           p2_pre=4, p2_pre2=4, p2_rate=1, r2_from=2, r2_kk=(1,3), r2_sb=(2,4,6), r2_6=1, wd_from=9, pollW=4, r2_a=1, r2_b=2, r2_c=0, p2_modi=-1, p2_mod=4, r2_pre=1, su_drain=420, r3_drain=10, pollA=(0,5,9), paceA=4, wd_flag=0, pg5=(2,5), pg6='e', hrot=0, abl=(), a1_bar=1, r4=0, a1b_ks=25, wd_early=0, xp=1, tr_rate=1, su_ks=12, tr_late=1, su_go=200, x0=6, su_span=10, a1_pre=2, st_ks=25, wd_st=(7,2,16),
           w64=0, bar2=0, rr=0, flip=0, rrh=0, gap=(24,24,28), vmc=8, epi_span=(20,18,12), sigB0=(2,12), pollB0=((2,20),), c0_ks=6, sigB01=(3,6), pollB01=((3,10),(3,14)), c01_ks=22, sigB2=28, u_ld=1, e_ld=2, p4_burst0=0, sg_pk=2, sg_rate=28, p4_poll2=(-1,1,3), p4_c2=6, p4_sig3=6, p4_poll3=(6,8,10), p4_c3=14, p4_b0=0, p4_burst=0, out_pol='sc1')

ABL = set()
class Q:
    def __init__(self, k): self.k = k; self.q = []; self.debt = 0
    def add(self, *atoms): self.q.extend(atoms)
    def lines(self, txt): self.q.extend([l.strip() for l in txt.strip().split('\n') if l.strip()])
    def vm(self, pre, txt, tag=None):
        if pre: self.q.append(lambda: (self.k.e(pre), self.k.vm_op(txt, tag)))
        else: self.q.append(('vm', txt, tag))
    def emit(self, n=1):
        c = 0
        while self.q and c < n:
            x = self.q.pop(0)
            if isinstance(x, tuple):
                (self.k.vm_op if x[0] == 'vm' else self.k.ds_op)(x[1], x[2]); c += 1
            elif callable(x): x(); c += 1
            else: self.k.e(x); c += len(x.strip().split('\n'))
    def cyc(self, budget):
        self.debt += budget
        while self.q and self.debt > 0:
            n0 = len(self.k.L); self.emit(1)
            for l in self.k.L[n0:]:
                mn = l.split()[0]
                self.debt -= 8 if mn in TRANS else 12 if mn.startswith('buffer_') else 4
        if not self.q: self.debt = 0
    def cost(self):
        return sum((12 if isinstance(x, tuple) else 8 if x.split()[0] in TRANS else 4*len(x.strip().split('\n'))) for x in self.q)
    def flush(self): self.emit(1 << 30)
    def __len__(self): return len(self.q)

PAGES = int(os.environ.get('PAGES', 1))
def page(k, n, ret=None, touch=None):
    assert PAGES
    for w, p in (touch or {}).items(): k.e(f's_cmp_eq_u32 s3, {w}\ns_cbranch_scc1 PT_{p}')
    k.e(f's_branch PL_{n}')
    for x in getattr(k, 'ool', []): k.e(x)
    k.ool = []
    k.e(f'PE_{n}:\n.p2align 12\nPT_{n}:')
    if ret is not None: k.e(f's_branch PL_{ret}' + '\ns_nop 0'*int(os.environ.get('PADN', 1)))
    k.e(f'PL_{n}:')
def t1_txt(dst, g, b, tmp):
    return f'''s_sub_u32 {tmp}, 64, {g}
    s_cmp_eq_u32 {g}, 0
    s_cselect_b32 {tmp}, 32, {tmp}
    s_cmp_eq_u32 {b}, 0
    s_cselect_b32 {dst}, {g}, {tmp}'''
def srd_txt(d, base, size): return f's_mov_b32 s{d}, s{base}\ns_and_b32 s{d+1}, s{base+1}, 0xffff\ns_mov_b32 s{d+2}, {size}\ns_mov_b32 s{d+3}, 0x20000'
P = lambda r: v(r, 2)

def signal(k, off, wave=0):
    l = k.label('SIG')
    k.e(f's_cmp_lg_u32 s3, {wave}\ns_cbranch_scc1 {l}\ns_mov_b32 s74, 1\ns_atomic_add s74, s[24:25], {off}\n{l}:')
def poll_issue(k, off, r='s0', wave=0):
    l = k.label('PI')
    k.e(f's_cmp_lg_u32 s3, {wave}\ns_cbranch_scc1 {l}\ns_mov_b32 {r}, 0\ns_atomic_add {r}, s[24:25], {off} glc\n{l}:')
def poll_check(k, off, target, r='s0', wave=0):
    l, d = k.label('PC'), k.label('PD')
    k.e(f'''s_cmp_lg_u32 s3, {wave}
    s_cbranch_scc1 {d}
    s_mov_b32 s1, 0
{l}:
    s_waitcnt lgkmcnt(0)
    s_cmp_ge_u32 {r}, {target}
    s_cbranch_scc1 {d}
    s_add_u32 s1, s1, 1
    s_cmp_gt_u32 s1, {SPIN_MAX}
    s_cbranch_scc1 {d}
    s_mov_b32 {r}, 0
    s_atomic_add {r}, s[24:25], {off} glc
    s_branch {l}
{d}:''')
MP = [76, 77, 78]
def gsignal(k, off, wave):
    l = k.label('SIG')
    k.e(f's_cmp_lg_u32 s3, {wave}\ns_cbranch_scc1 {l}\ns_atomic_add s74, s[30:31], {off}\n{l}:')
def fladdr(off, other): return f's[24:25], s79 offset:{off}' if other else f's[30:31], {off}'
def mp_issue(k, off, j, wave, other=False):
    if 'pol' in ABL and off: return
    l = k.label('MI')
    k.e(f's_cmp_lg_u32 s3, {wave}\ns_cbranch_scc1 {l}\ns_mov_b32 s{MP[j]}, -1\ns_atomic_and s{MP[j]}, {fladdr(off, other)} glc\n{l}:')
def mp_check(k, off, target, wave, other=False, pace=4):
    if 'chk' in ABL and (off, target) != (0, 7): return
    l, d = k.label('MC'), k.label('MD'); r = [k.label('MR') for _ in MP]
    t = f's_cmp_lg_u32 s3, {wave}\ns_cbranch_scc1 {d}\ns_mov_b32 s1, -1\n{l}:\n'
    for p in MP: t += f's_cmp_ge_i32 s{p}, {target}\ns_cbranch_scc1 {d}\n'
    t += f's_add_u32 s1, s1, 1\ns_cmp_gt_u32 s1, {SPIN_MAX*4}\ns_cbranch_scc1 {d}\ns_and_b32 s0, s1, {pace-1}\ns_cbranch_scc1 {l}\n'
    for p, x in zip(MP, r): t += f's_cmp_lg_u32 s{p}, -1\ns_cbranch_scc1 {x}\n'
    t += f's_branch {l}\n'
    for p, x in zip(MP, r): t += f'{x}:\ns_cmp_ge_i32 s{p}, {target}\ns_cbranch_scc1 {d}\ns_mov_b32 s{p}, -1\ns_atomic_and s{p}, {fladdr(off, other)} glc\ns_branch {l}\n'
    k.e(t + f'{d}:')
PWR = [[22], [23, 26], [27, 28, 29], [60, 61, 82]]
def pw_signal(k, f): k.e(f's_atomic_add s74, s[24:25], s20 offset:{128*f}')
def pw_poll(k, f, j, other): k.e(f's_mov_b32 s{PWR[f][j]}, -1\ns_atomic_and s{PWR[f][j]}, s[24:25], s{21 if other else 20} offset:{128*f} glc')
def pw_pre(k, f):
    R = PWR[f]
    if len(R) > 1: k.e(f's_max_i32 s0, s{R[0]}, s{R[1]}')
    if len(R) > 2: k.e(f's_max_i32 s0, s0, s{R[2]}')
    k.e(f's_cmp_ge_i32 s{R[0] if len(R) == 1 else 0}, 14')
def pw_check(k, f, other, pace=4):
    R = PWR[f]; l, d = k.label('WC'), k.label('WD'); r = [k.label('WR') for _ in R]
    k.e(f's_cbranch_scc0 {l}S\n{d}:')
    t = f'{l}S:\ns_mov_b32 s1, -1\n{l}:\n'
    for p in R: t += f's_cmp_ge_i32 s{p}, 14\ns_cbranch_scc1 {d}\n'
    t += f's_add_u32 s1, s1, 1\ns_cmp_gt_u32 s1, {SPIN_MAX*4}\ns_cbranch_scc1 {d}\ns_and_b32 s0, s1, {pace-1}\ns_cbranch_scc1 {l}\n'
    for p, x in zip(R, r): t += f's_cmp_lg_u32 s{p}, -1\ns_cbranch_scc1 {x}\n'
    t += f's_branch {l}\n'
    for p, x in zip(R, r): t += f'{x}:\ns_cmp_ge_i32 s{p}, 14\ns_cbranch_scc1 {d}\ns_mov_b32 s{p}, -1\ns_atomic_and s{p}, s[24:25], s{21 if other else 20} offset:{128*f} glc\ns_branch {l}\n'
    k.ool.append(t)
def reread(k, soff, junk):
    k.e('s_mov_b64 exec, 0xffff'); k.vm_op(f'buffer_load_dword v{junk}, v2, s[12:15], {soff} offen sc1'); k.e('s_mov_b64 exec, -1')
def lds_pad(k, n, junk):
    for _ in range(n): k.ds_op(f'ds_read_b32 v{junk}, v6')
def ready_loop(k, vz, vr):
    l, g = k.label('BS'), k.label('BG')
    k.e(f'''s_cmp_lg_u32 s75, 0
    s_cbranch_scc1 {g}
    s_mov_b32 s1, 0
    v_mov_b32 v{vz}, 0
{l}:
    s_sleep 8
    global_load_dword v{vr}, v{vz}, s[28:29] sc1
    s_add_u32 s1, s1, 1
    s_waitcnt vmcnt(0)
    v_readfirstlane_b32 s75, v{vr}
    s_cmp_gt_u32 s1, {SPIN_MAX}
    s_cbranch_scc1 {g}
    s_cmp_lg_u32 s75, 0
    s_cbranch_scc0 {l}
{g}:''')

P2_X, P2_GC, P2_XI = 114688, 126976, 151552
IMG = 29696; KSP = 4*IMG
ACC0 = 16; RING = 80; WX = 96; ET = 104
REGI = [0, 1, 4, 5, 8, 9, 12, 13, 2]; LDSI = [3, 6, 7, 10, 11]
WDL = [120832, 120832+16384, 0, 16384, 32768]
X1L = 59392; RED = 71680; XR = 128
R1A = int(os.environ.get('R1A', 0)); R1N = int(os.environ.get('R1N', 10)); R1L = 65536 - 8192*R1A
ROTMASK = int(os.environ.get('ROT', 0))
TLB_OFF = 0x23000
VD, VM, VS, TB = 208, 209, 210, 211
WSLOT = {3: 0, 6: 1, 7: 2, 10: 3, 11: 4}
def wdreg(i, f):
    n = REGI.index(i)*4 + f
    return v(144+4*n, 4) if n < 28 else a(224+4*(n-28), 4)
def acc4(rl, t): return ACC0 + 32*rl + 16*t

def gen_kp(cfg=None):
    C = dict(CFG); C.update(cfg or {})
    if C['wswap']: WSLOT.update({6: 0, 10: 1, 3: 2, 7: 3, 11: 4})
    ABL.clear(); ABL.update(C['abl'])
    k = K(); k.stamp(0); k.st('start')
    k.e(f'''
    {'s_load_dwordx2 s[4:5], s[0:1], 0' if C['xs_first'] else ''}
    s_load_dwordx16 s[16:31], s[0:1], 48
    s_getpc_b64 s[6:7]
KP_PC:
    s_lshr_b32 s33, s2, 3
    v_and_b32 v1, 15, v0
    v_lshl_add_u32 v1, s33, 4, v1
    v_lshlrev_b32 v1, 7, v1
    v_min_u32 v1, KP_LAST-KP_PC-4, v1
    global_load_dword a255, v1, s[6:7]
    s_andn2_b32 s32, s2, 24
    s_cmp_lt_u32 s32, 7
    s_cbranch_scc1 KP_SIDE
    s_cmp_eq_u32 s32, 7
    s_cbranch_scc1 SD_Z
    {'s_load_dwordx2 s[4:5], s[0:1], 0' if not C['xs_first'] else ''}
    s_cmp_ge_u32 s2, {GRID}
    s_cbranch_scc1 KP_END
    v_lshrrev_b32 v1, 6, v0
    v_and_b32 v2, 63, v0
    v_readfirstlane_b32 s3, v1
    v_lshlrev_b32 v3, 4, v2          ; lane*16
    v_and_b32 v4, 31, v2             ; lane&31
    v_lshrrev_b32 v5, 5, v2          ; h
    s_mov_b32 s14, {WS_END}
    s_mov_b32 s15, 0x20000
    s_and_b32 s34, s2, 1             ; hi
    s_lshr_b32 s35, s2, 3
    s_sub_u32 s35, s35, {NSIDE//8}
    s_mul_i32 s33, s35, 37
    s_lshr_b32 s33, s33, 8           ; gl = q/7
    s_and_b32 s6, s2, 7
    s_lshl_b32 s6, s6, 1
    s_lshr_b32 s7, s33, 1
    s_add_u32 s6, s6, s7             ; pair p
    s_sub_u32 s7, 32, s6
    s_cmp_eq_u32 s6, 0
    s_cselect_b32 s7, 16, s7
    s_bitcmp1_b32 s33, 0
    s_cselect_b32 s36, s7, s6        ; g
    s_and_b32 s32, s2, 6
    s_lshl_b32 s32, s32, 1
    s_add_u32 s32, s32, s33          ; G
    s_mul_i32 s33, s33, 7
    s_sub_u32 s35, s35, s33          ; lo
    s_mul_i32 s33, s34, 7
    s_add_u32 s33, s33, s35          ; mem
    ''')
    f = P1(k, C)
    P2(k, C, f)
    P3(k, C)
    P4(k, C)
    k.st('end')
    if K.MARK and not K.MARK.startswith('sd'): k.mark_spin()
    k.stamp_out(0, len(K.NAMES or [])+2)
    k.e('s_endpgm')
    for x in k.ool: k.e(x)
    k.ool = []
    k.e('PE_7:\n' + ('.p2align 12\n' if PAGES else '') + 'KP_SIDE:'); k.reset_counts(); side(k, C)
    k.e('KP_END:\ns_endpgm\nKP_LAST:')
    return k.L

def w3slot(n, lo): return n if lo == 0 or n < 14 else n + 2
def w3_dma(k, lo, hi, ldsbase):
    q = Q(k)
    for ks in range(lo, hi):
        j, mu, a_ = ks >> 2, (ks >> 1) & 1, ks & 1
        row = 32*j + 16*a_ if not mu else 433 - 32*j - 16*a_
        vo = VS if ks == 2 else VM if mu else VD
        so = '0' if ks in (0, 2) else 's61'
        pre = f's_add_u32 m0, s60, {ldsbase + w3slot(ks-lo, lo)*8192}\n' + (f's_mov_b32 s61, {row*3584}' if so != '0' else 's_nop 0')
        if ('w3a' in ABL and lo == 0) or ('w3b' in ABL and lo): q.add(lambda: None, lambda: None); continue
        q.vm(pre, f'buffer_load_dwordx4 v{vo}, s[16:19], {so} offen lds')
        q.vm(None, f'buffer_load_dwordx4 v{vo}, s[20:23], {so} offen offset:1024 lds', f'w3_{ks}')
    return q
def w3_tr(k, lo, hi):
    q = Q(k)
    for ks in range(lo, hi):
        n = w3slot(ks - lo, lo)
        for mt in range(2):
            for hf in range(2):
                if 'tr' in ABL: q.add(lambda: None); continue
                q.add(('ds', f'ds_read_b64_tr_b16 {a(8*ks+4*mt+2*hf,2)}, v{TB+(n>>3)} offset:{(n&7)*8192+mt*1024+hf*4096}', 'tr'))
    return q

def P1(k, C):
    X = 16; UP = 72; M = 88; T = 96; WL = 216; WO = 224; BF = 40; AC = 160
    k.e(f'''
    v_lshrrev_b32 v6, 3, v2
    s_lshl_b32 s6, s3, 4
    v_add_u32 v6, s6, v6
    v_and_b32 v7, 7, v2
    v_mul_u32_u24 v246, {32*896}, v6
    v_lshl_add_u32 v246, v7, 4, v246
    v_add_u32 v247, {8*32*896}, v246 ; set 1
    s_mul_i32 s39, s36, 896
    s_lshl_b32 s40, s35, 7
    s_mov_b32 s10, {2048*896}
    s_mov_b32 s11, 0x20000
    s_add_u32 s37, s39, s40
    s_add_u32 s38, s39, 896
    ''')
    f = Q(k)
    wa = f'''
    s_sub_u32 s6, s2, {NSIDE}
    s_mul_i32 s7, s6, 9363
    s_lshr_b32 s7, s7, 16
    s_mul_i32 s64, s7, 7
    s_sub_u32 s64, s6, s64           ; jt
    s_lshl_b32 s7, s7, 2
    s_add_u32 s7, s7, s3             ; rb
    s_min_u32 s65, s7, 111
    s_mul_i32 s65, s65, {16*896}
    s_lshl_b32 s67, s64, 7
    s_add_u32 s65, s65, s67
    v_mul_u32_u24 v{WO}, {4*896}, v5
    v_and_b32 v232, 15, v2
    v_bfe_u32 v{WO+1}, v2, 4, 1
    v_lshlrev_b32 v234, 3, v232
    v_lshl_add_u32 v234, v{WO+1}, 2, v234
    {f'v_lshl_add_u32 v{WO}, v4, 2, v{WO}' if C['wl_nat'] or 'wl' in ABL else f'v_add_u32 v{WO}, v234, v{WO}'}
    v_lshl_add_u32 v234, v5, 7, v234
    v_lshlrev_b32 v232, 4, v232
    v_lshl_add_u32 v232, v5, 8, v232
    v_lshl_add_u32 v232, v{WO+1}, 11, v232     ; packed store voffset
    v_add_u32 v{WO}, s65, v{WO}
    v_add_u32 v{WO+1}, {8*896}, v{WO}'''
    wb = f'''
    s_lshl_b32 s64, s64, 2
    s_bfe_u32 s65, s7, 0x20001
    s_add_u32 s64, s64, s65
    s_mul_i32 s64, s64, 14
    s_lshr_b32 s65, s7, 3
    s_add_u32 s64, s64, s65
    s_lshl_b32 s64, s64, 3
    s_and_b32 s65, s7, 1
    s_add_u32 s64, s64, s65
    s_lshl_b32 s64, s64, 9
    s_add_u32 s64, s64, {WS_WDP}
    s_lshl_b32 s65, s32, 9
    s_sub_u32 s67, s67, s65
    s_add_u32 s67, s67, {FL_WD}
    s_cmp_lt_u32 s6, 196
    s_cselect_b32 s64, s64, 0x7fff0000
    s_cselect_b32 s69, s3, 0
    s_mov_b32 s65, 0x05040100
    s_mov_b32 s66, 0x07060302'''
    f.lines(f'''
    s_and_b32 s6, s2, 7
    s_mul_i32 s7, s3, 7
    s_add_u32 s7, s7, s6
    s_add_u32 s7, s7, 14
    s_lshl_b32 s43, s3, 1
    s_add_u32 s43, s43, 1''')
    f.add('s_cmp_eq_u32 s6, 7\ns_cselect_b32 s7, s43, s7')
    f.lines(f'''s_lshl_b32 s7, s7, 7
    s_lshr_b32 s6, s2, 3
    s_sub_u32 s6, s6, {NSIDE//8}
    s_mul_i32 s6, s6, {16*5376}
    s_add_u32 s7, s7, s6
    v_mul_u32_u24 v250, 5376, v2
    s_and_b32 s43, s2, 7
    s_add_u32 s43, s43, 7
    s_lshl_b32 s43, s43, 7
    s_add_u32 s43, s43, s6
    s_mul_i32 s6, s3, {4*5376}
    s_add_u32 s43, s43, s6
    v_add_u32 v249, s43, v250
    v_add_u32 v250, s7, v250
    s_lshr_b32 s7, s3, 1
    s_mul_i32 s7, s7, 1792
    v_lshl_add_u32 v252, v2, 7, s7
    s_sub_u32 s6, s2, {NSIDE}''')
    f.add(f'''s_add_u32 s7, s6, 224
    s_cmp_eq_u32 s6, 128
    s_cselect_b32 s7, 224, s7
    s_cmp_lt_u32 s6, 128
    s_cselect_b32 s7, s6, s7
    s_mul_i32 s7, s7, 3584
    v_add_u32 v251, s7, v252
    s_cmp_ge_u32 s6, 96
    s_addc_u32 s6, s6, 128
    s_mul_i32 s6, s6, 3584
    v_add_u32 v252, s6, v252''')
    npf = len(f)
    def pf_mod(): k.e('s_mov_b64 exec, 0xffff'); k.vm_op('global_load_dword a254, v250, s[0:1]'); k.e('s_mov_b64 exec, -1')
    def pf_ca(): k.e('s_mov_b64 exec, 15'); k.vm_op('global_load_dword a251, v249, s[24:25]'); k.e('s_mov_b64 exec, -1')
    def pf_w3(h): k.e('s_mov_b64 exec, 0x3fff'); k.vm_op(f'global_load_dword a{253-h}, v{251+h}, s[26:27]'); k.e('s_mov_b64 exec, -1')
    f.lines(f'''
    v_lshrrev_b32 v{T}, 4, v2
    v_bfe_u32 v{T+1}, v2, 2, 2
    v_xor_b32 v{T+1}, v{T+1}, v{T}
    v_and_b32 v{T+2}, 3, v2
    v_lshlrev_b32 v{T+2}, 4, v{T+2}
    v_lshl_add_u32 v{T+1}, v{T+1}, 6, v{T+2}
    s_lshl_b32 s6, s33, 8
    v_add_u32 v{T+1}, s6, v{T+1}
    s_lshl_b32 s6, s3, 2
    v_add_u32 v{T}, s6, v{T}         ; row in k-step
    v_mul_u32_u24 v{VD}, 3584, v{T}
    v_sub_u32 v{VM}, {15*3584}, v{VD}
    v_add_u32 v{VD}, v{VD}, v{T+1}
    v_add_u32 v{VM}, v{VM}, v{T+1}
    v_cmp_eq_u32 vcc, 0, v{T}
    v_mov_b32 v{T+1}, {433*3584}
    v_mov_b32 v{T+2}, {(433-224)*3584}
    v_cndmask_b32 v{T+1}, v{T+1}, v{T+2}, vcc
    v_add_u32 v{VS}, v{VM}, v{T+1}
    s_lshl_b32 s60, s3, 11
    ''')
    nearly = len(f)
    f.lines(f'''
    s_and_b32 s46, s3, 1
    s_lshl_b32 s46, s46, 4
    s_lshr_b32 s47, s3, 1            ; isI
    v_and_b32 v11, 15, v2
    v_add_u32 v12, s46, v11          ; g row
    v_cvt_f32_u32 v13, v12''')
    f.add(f'''s_cmp_eq_u32 s47, 1
    s_cselect_b32 s6, {f2h(0.25)}, 0
    s_cselect_b32 s7, {f2h(32.0)}, 0''')
    f.lines(f'''
    v_cmp_eq_u32 vcc, 0, v12
    v_mov_b32 v{T}, s6
    v_mov_b32 v{T+1}, s7
    v_cndmask_b32 v13, v13, v{T+1}, vcc
    v_cndmask_b32 v{T}, v{T}, 0, vcc
    v_mul_f32 v13, {f2h(1/64)}, v13
    v_lshrrev_b32 v14, 4, v2
    v_lshlrev_b32 v14, 2, v14
    v_cvt_f32_u32 v{T+1}, v14
    v_fma_f32 v{T}, v13, v{T+1}, v{T}
    ''')
    for ks in range(2):
        for n in range(8): f.add(f'v_fmamk_f32 v{T+2+n}, v13, {f2h(32*ks + 16*(n >> 2) + (n & 3))}, v{T}')
        for n in range(8): f.add(f'v_cos_f32 v{T+2+n}, v{T+2+n}')
        for r in range(4): f.add(f'v_cvt_pk_bf16_f32 v{M+4*ks+r}, v{T+2+2*r}, v{T+3+2*r}')
    f.lines(f'''
    v_mul_u32_u24 v6, 160, v6
    v_lshl_add_u32 v244, v7, 4, v6   ; N write addr
    v_lshrrev_b32 v7, 2, v2
    v_mul_u32_u24 v7, 160, v7
    v_and_b32 v12, 3, v2
    v_lshl_add_u32 v245, v12, 3, v7  ; N tr read addr
    v_add_u32 v14, s46, v14
    v_mul_u32_u24 v14, {2*32*896}, v14
    v_lshl_add_u32 v248, v11, 3, v14 ; U voffset
    s_mul_i32 s47, s47, {32*896}
    s_add_u32 s47, s47, s39
    s_add_u32 s47, s47, s40          ; U soffset
    s_mov_b32 s73, 0x3f803f80
    ''')
    for i in range(0, 8, 2): f.add(f'v_mov_b64 {P(T+i)}, 0')
    f.add(f'v_mov_b32 v233, {f2h(1e-5)}')
    f.lines(wa); f.add(wb)
    f.lines(f's_mul_i32 s6, s3, {(NREP-2)//4*1024}\ns_add_u32 s40, s40, s6\ns_lshl_b32 s6, s32, 9\ns_sub_u32 s40, s40, s6\ns_add_u32 s40, s40, {FL_BAR}')
    f2 = P2_pre(k)
    ntot = len(f); f.emit(C['p1_fill0'])
    k.st('ka0'); k.e('s_waitcnt lgkmcnt(0)'); k.st('ka1'); k.e('s_mov_b32 s8, s4\ns_and_b32 s9, s5, 0xffff')
    xq = Q(k)
    XO = [(i, st) for i in range(7) for st in range(2)] if not C['p1_split'] else [(0, 0), (0, 1)] + [(i, st) for st in range(2) for i in range(1, 7)]
    adv = 's_add_u32 s37, s37, 128\ns_cmp_ge_u32 s37, s38\ns_cselect_b32 s37, s39, s37'
    for n, (i, st) in enumerate(XO):
        pre = None if n == 0 or XO[n-1][0] == i else adv if XO[n-1][0] < i else adv + '\n' + adv
        xq.vm(pre, f'buffer_load_dwordx4 {v(X+28*st+4*i,4)}, v{246+st}, s[8:11], s37 offen', f'x{i}{st}')
    f.q[0:0] = [f's_mov_b64 s[82:83], s[20:21]\ns_mov_b32 s12, s30\ns_and_b32 s13, s31, 0xffff',
                f's_sub_u32 s20, s18, 1024\ns_subb_u32 s21, s19, 0\ns_and_b32 s21, s21, 0xffff\ns_mov_b32 s22, {448*3584+1024}\ns_mov_b32 s23, 0x20000\ns_and_b32 s17, s17, 0xffff\ns_mov_b32 s18, {448*3584}\ns_mov_b32 s19, 0x20000']
    if C['pf_ca'] == 1: assert ntot - len(f) + 2 >= npf; pf_ca()
    xq.emit(C['x_first'] + 2)
    hd = [f.q.pop(0), f.q.pop(0)]
    while ntot - len(f) < npf: f.emit(1)
    f.q[0:0] = hd
    if C['pf_ca'] == 2: pf_ca()
    k.e('s_mov_b64 s[0:1], s[24:25]')
    k.e('s_mov_b64 s[80:81], s[26:27]\ns_bitcmp1_b32 s3, 0\ns_cselect_b64 s[26:27], s[18:19], s[16:17]')
    if C['pf_mod'] == 1: pf_mod()
    if C['pf_a'] == 1: pf_w3(0)
    for n in range(C['p1_ld_pre']-2-C['x_first']): f.cyc(C['p1_fill']); xq.emit(1)
    f.flush(); f2.cyc(C['p1_f2'])
    k.st('p1iss'); page(k, 1, None, {1: 2, 2: 3, 3: 4})
    wlq = [('vm', f'global_load_dword v{WL+n}, v{WO+(n>>2)}, s[82:83] offset:{896*(n&3)}', 'wl') for n in range(8)]
    assert C['wl_early']; cq = Q(k)
    c2 = Q(k)
    if C['pf_mod'] == 2: c2.add(pf_mod)
    if C['pf_a'] == 2: c2.add(lambda: pf_w3(0))
    if C['pf_b']: cq.add(lambda: pf_w3(1))
    if C['wl_c2']: c2.add(*[lambda j=j: [k.vm_op(x[1], x[2]) for x in wlq[j:j+2]] for j in range(0, 8, 2)])
    elif 'cold' not in ABL: cq.q += wlq
    w3 = w3_dma(k, 0, R1N, R1L)
    def tail(sets):
        q = Q(k); ts = [T+4*st+o for st in sets for o in (0, 2)]
        for t in ts: q.add(f'v_add_f32 v{t}, v{t}, v{t+1}')
        for m in ('quad_perm:[1,0,3,2]', 'quad_perm:[2,3,0,1]', 'row_half_mirror'):
            for t in ts: q.add(f'v_add_f32_dpp v{t}, v{t}, v{t} {m} row_mask:0xf bank_mask:0xf')
        for txt in (f'v_mul_f32 v#0, {f2h(-1/448)}, v#0', f'v_fmamk_f32 v#2, v#2, {f2h(1/448)}, v233', 'v_fma_f32 v#2, -v#0, v#0, v#2', 'v_max_f32 v#2, v233, v#2',
                    'v_rsq_f32 v#2, v#2', 'v_mul_f32 v#0, v#0, v#2'):
            for st in sets: q.add(txt.replace('#0', str(T+4*st)).replace('#2', str(T+4*st+2)))
        for st in sets:
            t = T+4*st
            for d in range(4): q.add(f'v_pk_fma_f32 {P(UP+8*st+2*d)}, {P(UP+8*st+2*d)}, {P(t+2)}, {P(t)} op_sel_hi:[1,0,0]')
            for d in range(4): q.add(f'v_cvt_pk_bf16_f32 v{X+4*st+d}, v{UP+8*st+2*d}, v{UP+8*st+2*d+1}')
            q.add(('ds', f'ds_write_b128 v244, {v(X+4*st,4)} offset:{8*160*st}', None))
        return q
    t0 = Q(k)
    for n, (i, st) in enumerate(XO):
        k.wait(vm=f'x{i}{st}'); k.st(f'x{i}{st}')
        if len(xq): xq.emit(1)
        elif len(c2) and n >= C['c2_at']:
            if n == C['c2_at'] and C['c2_bar']: k.e('s_barrier')
            c2.emit(1)
        elif len(cq) and n >= C['cold_at']: cq.emit(C['cold_rate'])
        elif n < C['w3_at']: pass
        elif 2*R1N - len(w3) < C['p1_w3_ld']: w3.emit(1)
        for d in range(4):
            r = X+28*st+4*i+d; t = T+4*st+(d & 1)
            k.e(f'v_dot2_f32_bf16 v{t}, v{r}, s73, v{t}\nv_dot2_f32_bf16 v{t+2}, v{r}, v{r}, v{t+2}')
            if d or n > 8: t0.emit(1)
        if i == 0:
            for d in range(4): k.e(f'v_lshlrev_b32 v{UP+8*st+2*d}, 16, v{X+28*st+d}\nv_and_b32 v{UP+8*st+2*d+1}, 0xffff0000, v{X+28*st+d}')
        if C['p1_split'] and n == 7: t0 = tail([0])
    assert not len(xq) and not len(c2)
    k.st('p1dat')
    t0.flush(); tail([1] if C['p1_split'] else [0, 1]).flush()
    w3.emit(C['p1_w3_a']); cq.emit(C['cold_a'])
    k.wait(lg='all'); k.e('s_barrier'); k.st('p1bar')
    for ks in range(2):
        for t in range(4):
            for hf in range(2):
                k.ds_op(f'ds_read_b64_tr_b16 {v(BF+16*ks+4*t+2*hf,2)}, v245 offset:{ks*32*160+hf*16*160+t*32}', f'b{ks}{t}')
    w3.emit(C['p1_w3_b'])
    if C['cold_at'] < 99: cq.flush()
    for ks in range(2):
        for t in range(4):
            k.wait(lg=f'b{ks}{t}')
            c = '0' if ks == 0 else v(AC+4*t,4)
            k.e(f'v_mfma_f32_16x16x32_bf16 {v(AC+4*t,4)}, {v(M+4*ks,4)}, {v(BF+16*ks+4*t,4)}, {c}')
    w3.emit(C['p1_w3_c'])
    for r in range(4):
        k.e(f'v_cvt_pk_bf16_f32 v{X+2*r}, v{AC+r}, v{AC+4+r}\nv_cvt_pk_bf16_f32 v{X+2*r+1}, v{AC+8+r}, v{AC+12+r}')
        k.vm_op(f'buffer_store_dwordx2 {v(X+2*r,2)}, v248, s[12:15], s47 offen sc1', 'ust')
        if r < 3: k.e(f's_add_u32 s47, s47, {2*32*896}')
    k.st('p1st')
    if C['rdy'] == 0: k.e('s_load_dword s75, s[28:29], 0x0')
    assert C['ssig'] and len(w3) % 2 == 0
    n1 = R1N - len(w3)//2
    while not f2.xready(): f2.emit(1)
    for t in range(3 if 'xi' not in ABL else 2):
        k.e(f's_add_u32 m0, s44, {1024*t}')
        k.vm_op(f'buffer_load_dwordx4 v{T2+10+t}, s[8:11], s43 offen lds', 'xi')
    if C['cold_at'] == 99: cq.flush()
    f2.q += k.f3.q; k.f3.q = []
    if C['rdy'] == 1: k.e('s_load_dword s75, s[28:29], 0x0')
    f2.cyc(C['p1_fill_drain0'])
    if C['rdy'] == 2: k.e('s_load_dword s75, s[28:29], 0x0')
    for n in range(C['p1_w3_drain']): w3.emit(1); f2.cyc(C['p1_fill_drain'])
    f2.cyc(C['p1_fill_drain2'])
    if C['cold_at'] == 100: cq.flush()
    k.wait(vm='ust', lg='all'); k.e('s_barrier'); k.st('sig1')
    ready_loop(k, UP+2, UP+3)
    for i in range(4): k.e(f's_atomic_add s74, s[24:25], s40 offset:{1024*i}')
    k.tr1 = tr = w3_tr(k, 0, R1N)
    k.st('w0')
    def xreads():
        k.st('w7'); k.wait(vm='xi'); k.st('w8')
        la, lb = k.label('P2xa'), k.label('P2xb')
        k.e(f's_cmp_eq_u32 s49, 0\ns_cbranch_scc0 {la}')
        for r in range(16): k.e(f'ds_read_u16_d16_hi v{XV+r}, v1 offset:{2*DELT[r]}')
        k.e(f's_branch {lb}\n{la}:')
        for r in range(16): k.ds_op(f'ds_read_u16_d16_hi v{XV+r}, v1 offset:{2*DELT[15-r]}', 'xv')
        k.e(f'{lb}:')
    k.st('w1')
    n = 0
    while len(w3):
        if n == C['poll1_at'] and not C['ld1']:
            if C['mp1']:
                l = k.label('B0')
                k.e(f's_mov_b32 s76, -1\ns_atomic_and s76, s[24:25], s53 glc\ns_mov_b32 s78, 36\ns_mov_b32 s4, 0\ns_cmp_eq_u32 s3, 3\ns_cbranch_scc1 {l}\ns_mov_b32 s78, -1\ns_atomic_and s78, s[24:25], s56 glc\n{l}:')
            else: k.e('s_cmp_eq_u32 s3, 3\ns_cselect_b32 s5, s53, s56\ns_mov_b32 s0, 0\ns_mov_b32 s4, 0\ns_atomic_add s0, s[24:25], s53 glc\ns_atomic_add s4, s[24:25], s5 glc')
        if n == C['cold_n']:
            if n: k.e('s_barrier')
            cq.flush()
        w3.emit(1); f2.cyc(24); n += 1
        if len(tr) > 4*(R1N-min(n1, R1A)): tr.emit(2)
    def pollB():
        l = k.label('B0'); k.e(f's_mov_b32 s77, -1\ns_atomic_and s77, s[24:25], s53 glc\ns_cmp_eq_u32 s3, 3\ns_cbranch_scc1 {l}\ns_mov_b32 s4, -1\ns_atomic_and s4, s[24:25], s56 glc\n{l}:')
    page(k, 2, 1)
    if C['cold_at'] == 101:
        if len(cq): k.e('s_barrier')
        if C['poll1b'] == 1: pollB()
        cq.flush()
        if C['poll1b'] == 2: pollB()
    k.cq = cq
    if n1 < R1A: k.wait(vm=f'w3_{R1A-1}'); k.e('s_barrier')
    tr.emit(len(tr) - 4*(R1N-R1A))
    if C['poll1_at'] >= n: k.e('s_cmp_eq_u32 s3, 3\ns_cselect_b32 s78, 36, 0\ns_mov_b32 s4, 0')
    k.st('r1iss')
    k.f3.q = f2.q; assert len(k.f3) <= k.nf3
    def wdst():
        k.wait(vm='wl', lg='wbp')
        for t in range(2):
            for r in range(4): k.e(f'v_perm_b32 v{WO+4*t+r}, v{WL+2*r+1}, v{WL+2*r}, s{65+t}')
    k.wdq = Q(k)
    def wdbp():
        k.wait(vm='wl')
        for n in range(8): k.ds_op(f'ds_bpermute_b32 v{WL+n}, v234, v{WL+n}', 'wbp')
    if C['wl_nat']: k.wdq.add(wdbp)
    if C['cold_at'] < 99: wdst()
    else: k.wdq.add(wdst)
    for t in range(2): k.wdq.vm(None, f'buffer_store_dwordx4 {v(WO+4*t,4)}, v232, s[12:15], s64 offen offset:{1024*t} sc1', 'wdst')
    if C['ld1'] == 1: k.e('s_cmp_eq_u32 s3, 3\ns_cselect_b32 s5, s53, s56\ns_load_dword s0, s[24:25], s53 glc\ns_load_dword s4, s[24:25], s5 glc')
    xreads()
    k.f3.cyc(C['f3_pre']); k.st('w6')
    if C['ld1'] == 2: k.e('s_cmp_eq_u32 s3, 3\ns_cselect_b32 s5, s53, s56\ns_load_dword s0, s[24:25], s53 glc\ns_load_dword s4, s[24:25], s5 glc')
    k.f3.cyc(C['f3_post'])
    return None

ACC = 16; FB = 32; CC = 96; SG = 104; IC = 112; RS = 120; IS = 128; XV = 136; GA = 152; CB = 168; ZF = 184; ZB = 188; T2 = 192
def P2_pre(k):
    T = T2; f = Q(k)
    f.lines(f'''
    v_bfe_u32 v{TB}, v2, 2, 2
    v_xor_b32 v{T}, s3, v{TB}
    v_lshlrev_b32 v{TB}, 8, v{TB}
    v_lshl_add_u32 v{TB}, v{T}, 6, v{TB}
    v_bfe_u32 v{T}, v2, 4, 1
    v_lshl_add_u32 v{TB}, v{T}, 5, v{TB}
    v_and_b32 v{T}, 3, v2
    v_lshl_add_u32 v{TB}, v{T}, 3, v{TB}
    v_lshl_add_u32 v{TB}, v5, 11, v{TB}
    v_add_u32 v{TB}, {R1L}, v{TB}
    v_add_u32 v{TB+1}, 0x10000, v{TB}
    s_and_b32 s48, s3, 1
    s_lshr_b32 s49, s3, 1
    v_lshrrev_b32 v6, 3, v2
    s_lshl_b32 s6, s3, 4
    v_add_u32 v6, s6, v6
    v_mul_u32_u24 v6, 896, v6
    v_lshrrev_b32 v{T+8}, 4, v2
    v_xor_b32 v{T+8}, v{T+8}, v2
    v_and_b32 v{T+8}, 7, v{T+8}
    v_xor_b32 v{T+9}, 4, v{T+8}
    v_lshl_add_u32 v{T+9}, v{T+9}, 4, v6
    v_add_u32 v{T+9}, {8*896-1024}, v{T+9}
    v_lshl_add_u32 v{T+8}, v{T+8}, 4, v6
    s_mul_i32 s52, s36, 57344        ; U soffset
    s_mul_i32 s54, s49, 28
    s_lshl_b32 s55, s48, 1
    s_add_u32 s54, s54, s55
    s_lshl_b32 s54, s54, 10
    s_mul_i32 s55, s35, 57344
    s_add_u32 s55, s55, s54
    s_add_u32 s55, s55, {WS_CP}
    s_mov_b32 s70, s52
    s_mov_b32 s71, s55
    s_add_u32 s72, s52, 896
    s_and_b32 s6, s2, {ROTMASK}
    s_min_u32 s6, s6, 6
    s_lshl_b32 s6, s6, 7
    s_add_u32 s52, s52, s6
    s_lshl_b32 s6, s6, 5
    s_add_u32 s55, s55, s6
    s_lshl_b32 s24, s32, 9
    s_add_u32 s24, s24, {WS_FLAG}
    ''')
    f.add('s_add_u32 s24, s24, s30\ns_addc_u32 s25, s31, 0\ns_lshl_b32 s6, s34, 13\ns_add_u32 s30, s24, s6\ns_addc_u32 s31, s25, 0')
    f.lines('s_mov_b64 s[76:77], 0\ns_mov_b32 s78, 0\ns_xor_b32 s79, s34, 1\ns_lshl_b32 s79, s79, 13\ns_mov_b32 s74, 1')
    f.lines(('s_and_b32 s53, s2, 7' if RX else f's_lshr_b32 s53, s32, {RSH}') + f'''
    s_lshl_b32 s53, s53, 10
    s_lshl_b32 s6, s32, 9
    s_sub_u32 s53, s53, s6
    s_lshl_b32 s6, s3, 8
    s_add_u32 s53, s53, s6
    s_add_u32 s53, s53, {FL_BAR}     ; barrier counter offset (rel s[24:25]) of chunk 2w
    s_add_u32 s56, s53, 128
    s_and_b32 s6, s32, 1
    s_lshl_b32 s6, s6, 10
    s_sub_u32 s68, s56, s6           ; mod counter (even replicas only; used by wave 3)''')
    f.add(t1_txt('s50', 's36', 's48', 's6'))
    f.lines(f'''s_lshl_b32 s51, s35, 1
    s_add_u32 s51, s51, s49          ; beta
    s_lshl_b32 s41, s51, 7
    s_add_u32 s41, s41, {WS_MOD+GA_P}
    v_lshlrev_b32 v{T+13}, 2, v4
    v_lshl_add_u32 v{T+13}, v5, 11, v{T+13}
    s_lshl_b32 s42, s3, 8
    s_add_u32 s42, s42, {P2_GC}
    v_lshl_add_u32 v{T+14}, v5, 4, s42''')
    f.add(f'''s_lshl_b32 s7, s35, 6
    s_sub_u32 s6, 832, s7
    s_cmp_eq_u32 s49, 0
    s_cselect_b32 s7, s7, s6
    s_add_u32 s6, s7, 64
    s_cmp_eq_u32 s6, 896
    s_cselect_b32 s6, 448, s6
    s_cmp_eq_u32 s49, 0
    s_cselect_b32 s6, 0x7fff0000, s6
    v_mov_b32 v{T+3}, s6''')
    f.lines(f's_mul_i32 s43, s50, 896\ns_mul_i32 s44, s3, 3072\ns_add_u32 s44, s44, {P2_XI}')
    for t in range(3):
        f.lines(f'''v_add_u32 v{T}, {64*t}, v2
        v_mul_u32_u24 v{T+1}, 205, v{T}
        v_lshrrev_b32 v{T+1}, 10, v{T+1}
        v_mul_u32_u24 v{T+2}, 5, v{T+1}
        v_sub_u32 v{T}, v{T}, v{T+2}
        v_cmp_eq_u32 vcc, 4, v{T}
        v_lshl_add_u32 v{T}, v{T}, 4, s7
        v_mul_u32_u24 v{T+1}, {64*896}, v{T+1}
        v_cndmask_b32 v{T}, v{T}, v{T+3}, vcc
        v_add_u32 v{T+10+t}, v{T}, v{T+1}''')
    nx = len(f)
    U = GA; k.f3 = f3 = Q(k)
    f3.lines(f'''
    v_lshlrev_b32 v{U}, 6, v4
    v_add_u32 v{U}, s50, v{U}
    v_or_b32 v{U+1}, v{U}, v5
    v_cmp_eq_u32 vcc, 0, v{U+1}
    v_lshlrev_b32 v{TB+3}, 2, v4
    v_mov_b32 v{ZB}, 0x45004500
    v_cvt_f32_u32 v{U}, v{U}
    v_cndmask_b32 v{ZB}, 0, v{ZB}, vcc
    v_mov_b32 v{ZB+1}, v{ZB}
    v_mov_b32 v{ZB+2}, v{ZB}
    v_mov_b32 v{ZB+3}, v{ZB}
    v_mul_f32 v{U}, {f2h(1/2048)}, v{U}
    v_lshlrev_b32 v{U+1}, 2, v5
    v_cvt_f32_u32 v{U+1}, v{U+1}
    v_mul_f32 v{U+1}, v{U}, v{U+1}''')
    for r in range(8):
        f3.lines(f'''v_fmamk_f32 v{U+2}, v{U}, {f2h(DELT[2*r])}, v{U+1}
        v_fmamk_f32 v{U+3}, v{U}, {f2h(DELT[2*r+1])}, v{U+1}
        v_cos_f32 v{U+4}, v{U+2}
        v_cos_f32 v{U+5}, v{U+3}
        v_sin_f32 v{U+2}, v{U+2}
        v_sin_f32 v{U+3}, v{U+3}
        v_cvt_pk_bf16_f32 v{CC+r}, v{U+4}, v{U+5}
        v_cvt_pk_bf16_f32 v{SG+r}, v{U+2}, v{U+3}''')
    f3.add(f'''s_cmp_eq_u32 s36, 0
    s_cselect_b32 s73, 0, -1''')
    f3.lines(f'''v_mov_b32 v{U}, s73
    s_mul_i32 s73, s48, 0x80008000
    s_mul_i32 s38, s49, 0x80008000
    s_xor_b32 s37, s38, 0x80008000
    s_xor_b32 s38, s38, s73''')
    for r in range(8):
        f3.lines(f'''v_bitop3_b32 v{IC+r}, v{SG+r}, s73, v{U} bitop3:0x28
        v_xor_b32 v{RS+r}, s37, v{SG+r}
        v_bitop3_b32 v{IS+r}, v{CC+r}, s38, v{U} bitop3:0x28''')
    f.lines(f'''
    s_lshl_b32 s6, s48, 12
    v_lshlrev_b32 v9, 7, v4
    v_add_u32 v9, s6, v9
    v_bfe_u32 v{T+2}, v2, 1, 3
    v_xor_b32 v{T+2}, v{T+2}, v5
    v_lshl_add_u32 v9, v{T+2}, 4, v9
    v_xor_b32 v10, 32, v9
    v_xor_b32 v11, 64, v9
    v_xor_b32 v12, 96, v9
    s_lshl_b32 s6, s49, 12
    s_add_u32 s6, s6, 8192
    v_add_u32 v13, s6, v3
    ''')
    f.add('s_cmp_eq_u32 s36, 0\ns_cselect_b32 s46, s48, 0')
    f.lines(f's_add_u32 s6, s60, {P2_X}\nv_add_u32 v0, s6, v3')
    for r in range(0, 16, 2): f.add(f'v_mov_b64 {P(XV+r)}, 0')
    f.add(f'''s_cmp_eq_u32 s51, 1
    s_cselect_b32 s6, 4096, 0
    s_cselect_b32 s45, 7, s35
    v_mov_b32 v{T}, s6''')
    f.lines(f'''v_cmp_eq_u32 vcc, 0, v4
    v_add_u32 v15, {P2_X+4096}, v3
    v_mul_u32_u24 v1, 80, v4
    v_cndmask_b32 v{T}, 0, v{T}, vcc
    v_add_u32 v14, v0, v{T}
    v_lshl_add_u32 v7, v{T}, 1, v3
    v_add_u32 v7, {P2_X}, v7
    s_lshl_b32 s6, s46, 11
    v_add_u32 v6, s6, v7
    v_add_u32 v8, s6, v15
    v_add_u32 v1, s44, v1
    v_lshlrev_b32 v{T}, 3, v5
    v_sub_u32 v{T+1}, 10, v{T}
    s_lshl_b32 s45, s45, 7
    s_add_u32 s45, s45, {WS_ZF}''')
    f.add(f'''s_cmp_eq_u32 s49, 0
    s_cselect_b64 vcc, -1, 0
    v_cndmask_b32 v{T}, v{T+1}, v{T}, vcc
    v_add_u32 v1, v1, v{T}''')
    f.lines(f'''
    s_lshl_b32 s6, s32, 1
    s_add_u32 s6, s6, s34
    s_lshl_b32 s6, s6, 1
    s_add_u32 s6, s6, s48            ; rho
    s_mul_i32 s57, s6, 14
    s_add_u32 s57, s57, s51
    s_lshl_b32 s58, s57, 8
    s_add_u32 s58, s58, {WS_ST}
    s_lshl_b32 s57, s57, 11
    s_add_u32 s59, s57, {WS_X1}
    s_add_u32 s57, s57, {WS_X1C}
    v_lshlrev_b32 v{T+15}, 3, v4
    v_lshl_add_u32 v{T+15}, v5, 2, v{T+15}
    s_lshl_b32 s62, s34, 1
    s_xor_b32 s62, s62, s49
    s_or_b32 s63, s36, s48
    v_mov_b64 {P(T)}, 0
    v_mov_b64 {P(T+2)}, 0
    ''')
    k.nf3 = len(f3); tot = len(f); f.xready = lambda: tot - len(f) >= nx
    return f

def P2(k, C, _):
    T = T2
    if C['mp1']:
        for _ in range(8): k.ds_op('ds_read_b32 v16, v3')
        k.wait(lg='xv')
        l, d, sb = k.label('B1'), k.label('B1D'), k.label('B1B'); pace = C['mp1']
        def re(p, t, off):
            x = k.label('B1S')
            return f's_cmp_eq_u32 {t}, 36\ns_cbranch_scc1 {x}\ns_cmp_ge_u32 {p}, 36\ns_cbranch_scc1 {x}\ns_mov_b32 {p}, -1\ns_atomic_and {p}, s[24:25], {off} glc\n{x}:\n'
        k.e(f'''s_mov_b32 s1, {pace-1 if not C['poll1b'] else C['poll1c']}
{l}:
    s_max_i32 s6, s76, s77
    s_max_i32 s7, s78, s4
    s_min_i32 s0, s6, s7
    s_cmp_eq_u32 s0, 36
    s_cbranch_scc1 {d}
    s_add_u32 s1, s1, 1
    s_and_b32 s0, s1, {pace-1}
    s_cbranch_scc1 {l}
    s_cmp_gt_u32 s1, {SPIN_MAX*8}
    s_cbranch_scc1 {d}
    s_and_b32 s0, s1, {pace}
    s_cbranch_scc1 {sb}
''' + re('s76', 's6', 's53') + re('s78', 's7', 's56') + f's_branch {l}\n{sb}:\n' + re('s77', 's6', 's53') + re('s4', 's7', 's56') + f's_branch {l}\n{d}:\ns_mov_b32 m0, s60')
    else:
        l, d = k.label('B1'), k.label('B1D')
        k.e(f'''s_mov_b32 s1, 0
{l}:
    s_waitcnt lgkmcnt(0)
    s_add_u32 s0, s0, s4
    s_cmp_eq_u32 s0, 72
    s_cbranch_scc1 {d}
    s_add_u32 s1, s1, 1
    s_cmp_gt_u32 s1, {SPIN_MAX}
    s_cbranch_scc1 {d}
    s_mov_b32 s0, 0
    s_mov_b32 s4, 0
    s_atomic_add s0, s[24:25], s53 glc
    s_atomic_add s4, s[24:25], s5 glc
    s_branch {l}
{d}:
    s_mov_b32 m0, s60''')
    if not C['r1sep']: k.wait(vm=f'w3_{R1N-1}')
    k.e('s_barrier')
    k.lg = []; k.st('bar1')
    dq = Q(k)
    for c in range(7):
        dq.vm(f's_add_u32 m0, s60, {16384*c}\ns_add_u32 s52, s52, 128\ns_add_u32 s55, s55, 4096\ns_cmp_eq_u32 s52, s72\ns_cselect_b32 s52, s70, s52\ns_cselect_b32 s55, s71, s55' if c else None, f'buffer_load_dwordx4 v{T+8}, s[12:15], s52 offen sc1 lds')
        dq.vm(None, f'buffer_load_dwordx4 v{T+9}, s[12:15], s52 offen offset:1024 sc1 lds')
        dq.vm(f's_add_u32 m0, s60, {16384*c+8192}', 'buffer_load_dwordx4 v3, s[12:15], s55 offen sc1 lds')
        dq.vm(None, 'buffer_load_dwordx4 v3, s[12:15], s55 offen offset:1024 sc1 lds', f'ch{c}')
    gq = Q(k)
    gq.vm('s_mov_b32 m0, s42', f'buffer_load_dword v{T+13}, s[12:15], s41 offen sc1 lds', 'gc')
    k.r2 = r2 = w3_dma(k, R1N, 28, 0); NR2 = len(r2)
    tr = k.tr1
    dq.emit(C['p2_pre'])
    if C['r1sep']: k.wait(vm=f'w3_{R1N-1}'); k.e('s_barrier')
    f3 = k.f3
    while len(dq) > 12:
        if len(tr): tr.emit(4); f3.cyc(16)
        else: f3.cyc(40)
        dq.emit(1)
    assert not len(tr)
    if C['mp1']:
        for _ in range(4): k.ds_op('ds_read_b32 v16, v3')
    k.wait(lg='tr'); k.e('s_barrier')
    if C['p2_modi'] < 0: poll_issue(k, 's68', 's47', 3)
    for n in range(2):
        dq.emit(1); k.ds_op(f'ds_write_b128 v0, {v(T,4)} offset:{1024*n}'); k.e(f'v_subrev_u32 v{TB+n}, {R1L}, v{TB+n}')
    k.e(f'v_add_u32 v{TB+2}, 0x10000, v{TB+1}')
    for n in range(C['p2_pre2']-2): f3.cyc(40); dq.emit(1)
    def rdk(c, kk):
        b = FB + 32*(c & 1)
        k.ds_op(f'ds_read_b128 {v(b+8*kk,4)}, v{9+kk} offset:{16384*(c&3)}')
        k.ds_op(f'ds_read_b128 {v(b+8*kk+4,4)}, v13 offset:{16384*(c&3)+1024*kk}', f'r{c}{kk}')
        if c == 3: k.e(f'v_add_u32 v{9+kk}, 0x10000, v{9+kk}' + ('\nv_add_u32 v13, 0x10000, v13' if kk == 3 else ''))
    def mfk(c, kk):
        b = FB + 32*(c & 1)
        k.wait(lg=f'r{c}{kk}')
        cc = '0' if c == 0 and kk == 0 else v(ACC,16)
        k.e(f'v_mfma_f32_32x32x16_bf16 {v(ACC,16)}, {v(b+8*kk,4)}, {v(b+8*kk+4,4)}, {cc}')
    k.st('issued')
    k.ool = ool = []
    zl = [k.label('ZA'), k.label('ZB'), k.label('ZC'), k.label('ZD'), k.label('ZE')]
    for c in range(7):
        if c == C['p2_modi']: poll_issue(k, 's68', 's47', 3)
        if c == C['p2_mod'] and 'mod' not in ABL: poll_check(k, 's68', 28, 's47', 3)
        k.wait(vm=f'ch{c}'); k.e('s_barrier'); k.st(f'c{c}')
        for kk in range(4):
            if c: mfk(c-1, kk)
            f3.cyc(C['p2_f3'])
            if len(dq): dq.emit(C['p2_rate'])
            elif len(k.cq) and c >= C['cq_from']: k.cq.emit(3)
            elif len(k.wdq) and c >= C['wd_from']: k.wdq.emit(1)
            else:
                if c == C['p2_mod'] and len(r2) % 2 == 0: gq.flush()
                if c >= C['r2_from'] and kk in C['r2_kk'] and NR2 - len(r2) < 4*(c-1): r2.emit(1)
            rdk(c, kk)
        if c == C['z_at']:
            assert not len(f3); k.e('s_cmp_eq_u32 s63, 0\ns_cselect_b64 vcc, -1, 0')
            k.e(f's_cbranch_vccnz {zl[0]}\n{zl[0]}R:')
            ool.append(f'{zl[0]}:\ns_mov_b32 s0, 0\ns_atomic_add s0, s[24:25], {FL_Z} glc\ns_branch {zl[0]}R')
    assert not len(dq) and not len(gq) and not len(tr) and not len(f3) and C['p2_mod'] >= 3
    k.st('A6')
    k.e(f's_cbranch_vccnz {zl[1]}\n{zl[1]}R:')
    for i in range(4): k.vm.append(('zf', True))
    ool.append(f'''{zl[1]}:
    s_mov_b32 s1, 0
{zl[2]}:
    s_waitcnt lgkmcnt(0)
    s_cmp_eq_u32 s0, 4
    s_cbranch_scc1 {zl[3]}
    s_add_u32 s1, s1, 1
    s_cmp_gt_u32 s1, {SPIN_MAX}
    s_cbranch_scc1 {zl[3]}
    s_mov_b32 s0, 0
    s_atomic_add s0, s[24:25], {FL_Z} glc
    s_branch {zl[2]}
{zl[3]}:
''' + ''.join(f'buffer_load_dword v{ZF+i}, v{TB+3}, s[12:15], s45 offen offset:{1024*i} sc1\n' for i in range(4)) + f's_branch {zl[1]}R')
    for kk in range(4):
        mfk(6, kk)
        if len(k.wdq): k.wdq.emit(1)
        elif C['r2_6']: r2.emit(1)
    r2.emit(C['r2_a'])
    for hf in range(2):
        for r in range(4*hf, 4*hf+4): k.e(f'v_cvt_pk_bf16_f32 v{T+r}, v{ACC+2*r}, v{ACC+2*r+1}')
        k.ds_op(f'ds_write_b128 v14, {v(T+4*hf,4)} offset:{1024*hf}')
    r2.emit(C['r2_b']); assert NR2 - len(r2) <= 20
    assert not len(k.wdq); k.wait(vm='wdst' if C['wd_early'] else None, lg='all'); k.e('s_barrier'); k.st('Xbar')
    kinds = [('v6', 0, CC), ('v7', 2048, IC), ('v8', 0, RS), ('v15', 2048, IS)]
    rb = [(f'ds_read_b128 {v(FB+8*i+4*a_,4)}, {ad} offset:{off+1024*a_}', f'x{i}{a_}') for i, (ad, off, _) in enumerate(kinds) for a_ in range(2)]
    for x in rb[:4]: k.ds_op(*x)
    r2.emit(C['r2_pre'])
    for n in range(8):
        i, a_ = n >> 1, n & 1
        k.wait(lg=f'x{i}{a_}')
        k.e(f'v_mfma_f32_32x32x16_bf16 {v(ACC,16)}, {v(FB+8*i+4*a_,4)}, {v(kinds[i][2]+4*a_,4)}, {v(ACC,16) if n else 0}')
        if n < 2: k.ds_op(*rb[4+2*n]); k.ds_op(*rb[5+2*n])
        elif n in C['r2_sb']: r2.emit(1)
        if 3 <= n < 7:
            k.wait(vm='gc'); kk = n-3
            k.ds_op(f'ds_read_b128 {v(GA+4*kk,4)}, v{T+14} offset:{32*kk}'); k.ds_op(f'ds_read_b128 {v(CB+4*kk,4)}, v{T+14} offset:{128+32*kk}', 'gcr')
    r2.emit(C['r2_c']); k.r2n = R1N + (NR2 - len(r2))//2; assert k.r2n >= R1N + 4
    k.e(f's_cbranch_vccnz {zl[4]}\n{zl[4]}R:')
    ool.append(f'{zl[4]}:\ns_waitcnt vmcnt({K._cnt(k.vm, "zf")[1]})\nv_mfma_f32_32x32x16_bf16 {v(ACC,16)}, {v(ZF,4)}, {v(ZB,4)}, {v(ACC,16)}\ns_nop 11\ns_branch {zl[4]}R')
    k.wait(lg='gcr')
    if C['wd_early']:
        l = k.label('WS')
        k.e(f's_cmp_lg_u32 s69, 1\ns_cbranch_scc1 {l}\ns_atomic_add s74, s[24:25], s67\ns_atomic_add s74, s[24:25], s67 offset:1024\n{l}:')
    for hf in range(2):
        R = range(8*hf, 8*hf+8, 2)
        for r in R: k.e(f'v_pk_fma_f32 {P(XV+r)}, {P(ACC+r)}, {P(GA+r)}, {P(XV+r)}')
        for r in R: k.e(f'v_pk_mul_f32 {P(CB+r)}, {P(CB+r)}, {P(XV+r)}')
        for r in range(4*hf, 4*hf+4): k.e(f'v_cvt_pk_bf16_f32 v{FB+r}, v{CB+2*r}, v{CB+2*r+1}')
        k.vm_op(f'buffer_store_dwordx4 {v(FB+4*hf,4)}, v3, s[12:15], s57 offen offset:{1024*hf} sc1')
    k.e(f'v_pk_add_f32 {P(T)}, {P(XV)}, {P(XV+2)}\nv_pk_mul_f32 {P(T+2)}, {P(XV)}, {P(XV)}')
    for r in range(2, 16, 2):
        if r >= 4: k.e(f'v_pk_add_f32 {P(T)}, {P(T)}, {P(XV+r)}')
        k.e(f'v_pk_fma_f32 {P(T+2)}, {P(XV+r)}, {P(XV+r)}, {P(T+2)}')
    k.e(f'''v_add_f32 v{T}, v{T}, v{T+1}
    v_add_f32 v{T+1}, v{T+2}, v{T+3}
    v_cvt_pk_bf16_f32 v216, v{XV}, v{XV+1}
    v_cvt_pk_bf16_f32 v217, v{XV+2}, v{XV+3}
    v_permlane32_swap_b32 v{T}, v{T+1}
    v_add_f32 v{T}, v{T}, v{T+1}''')
    k.vm_op(f'buffer_store_dword v{T}, v{T+15}, s[12:15], s58 offen sc1', 'p2st')
    k.st('p2st')
    for r in range(2, 8): k.e(f'v_cvt_pk_bf16_f32 v{216+r}, v{XV+2*r}, v{XV+2*r+1}')
    k.e(f's_mov_b64 s[76:77], 0\ns_mov_b32 s78, 0\ns_mov_b32 s5, s59\ns_lshl_b32 s4, s34, 3\ns_add_u32 s4, s4, s35\ns_lshl_b32 s4, s4, 7\ns_lshl_b32 s6, s32, 9\ns_sub_u32 s4, s4, s6\ns_add_u32 s4, s4, {FL_WD}\ns_mov_b32 s28, s67\ns_mov_b32 s29, s69')

SM = 48
def sm(i): return f's{SM+i}' if i < 12 else f's{64+i-12}'
VH0, VH1, VWD, VA0, VA1 = 9, 142, 143, 14, 15
def setup34(k, C):
    q = Q(k); T = ET
    q.lines('s_and_b32 s69, s35, 1\ns_lshl_b32 s6, s34, 1\ns_or_b32 s69, s69, s6')
    q.lines(f'''
    s_lshl_b32 s39, s33, 7
    s_lshl_b32 s6, s32, 9
    s_sub_u32 s39, s39, s6
    s_add_u32 s39, s39, {FL_SIDE}
    s_lshl_b32 s7, s32, 2''')
    for st in range(4):
        q.lines(f'''s_xor_b32 s6, s69, {st}
        s_add_u32 s6, s6, s7             ; rho
        s_mul_i32 s{44+st}, s6, {28*1024}
        s_add_u32 s{44+st}, s{44+st}, {WS_X1C}
        s_and_b32 s{40+st}, s6, 1
        s_lshr_b32 s6, s6, 1
        s_lshl_b32 s6, s6, 2
        s_add_u32 s6, s6, s3
        s_mul_i32 s6, s6, 14
        s_add_u32 s6, s6, s33
        s_lshl_b32 s6, s6, 1
        s_add_u32 s6, s6, s{40+st}
        s_lshl_b32 s6, s6, 11
        s_add_u32 s{40+st}, s6, {WS_HH}''')
    q.lines(f'''
    s_xor_b32 s6, s69, s3
    s_add_u32 s6, s6, s7
    s_mul_i32 s37, s6, 3584
    s_add_u32 s37, s37, {WS_ST}
    s_lshl_b32 s6, s33, 2
    s_add_u32 s6, s6, s3
    s_lshl_b32 s38, s6, 10
    s_add_u32 s38, s38, {WS_WEXT}
    v_lshlrev_b32 v6, 3, v2
    v_add_u32 v7, {2*IMG}, v3
    v_add_u32 v8, {KSP}, v6
    s_mul_i32 s66, s3, 7168
    v_add_u32 v{VA0}, s66, v3
    v_add_u32 v{VA1}, 4096, v{VA0}
    s_xor_b32 s83, s34, {C['flip']}
    s_xor_b32 s6, s62, {2*C['flip']}
    s_add_u32 s70, s7, s6''')
    q.add('''s_cmp_eq_u32 s3, 2
    s_cselect_b32 s4, s39, s4
    s_cselect_b32 s39, 2, 28
    s_cmp_eq_u32 s3, 3
    s_cselect_b32 s4, s79, s4
    s_cselect_b32 s39, 7, s39''')
    q1 = q; q = Q(k)
    q.lines(f'''s_lshr_b32 s63, s3, 1            ; sw
    s_and_b32 s72, s3, 1
    s_lshl_b32 s6, s35, 2
    s_add_u32 s6, s6, s72
    s_mul_i32 s6, s6, {56*1024}
    s_add_u32 s6, s6, {WS_WDP}
    v_add_u32 v{VWD}, s6, v3
    s_mul_i32 s71, s83, 7
    s_sub_u32 s67, 8, s71
    s_sub_u32 s67, s67, s63
    s_add_u32 s68, s71, s63
    s_lshl_b32 s67, s67, 12
    s_lshl_b32 s68, s68, 12
    s_lshl_b32 s71, s71, 12''')
    q.add('s_cmp_eq_u32 s63, 0\ns_cselect_b32 s71, s71, s67')
    if C['wswap'] == 1: q.lines(f's_and_b32 s6, s32, 1\ns_mul_i32 s6, s6, {28*4096}\ns_add_u32 s67, s67, s6\ns_add_u32 s68, s68, s6\ns_add_u32 s71, s71, s6\ns_lshl_b32 s6, s6, 1\ns_sub_u32 s6, {28*4096}, s6')
    for i in range(14):
        base = 68 if i & 2 else 67 if i < 12 else 71
        if C['wswap'] == 1 and i & 1: q.add(f's_add_u32 {sm(i)}, {sm(i-1)}, s6')
        else: q.add(f's_add_u32 {sm(i)}, s{base}, {(2*(i >> 2) + 28*(i & 1))*4096}')
    q.lines(f'''
    s_lshl_b32 s6, s32, 1
    s_add_u32 s6, s6, s83
    s_lshl_b32 s6, s6, 2
    s_add_u32 s6, s6, s72
    s_mul_i32 s6, s6, {56*1024}
    s_add_u32 s6, s6, {WS_HH}
    s_lshl_b32 s67, s63, 11
    s_add_u32 s6, s6, s67
    s_lshl_b32 s67, s72, 8
    s_add_u32 s6, s6, s67
    v_and_b32 v4, 15, v2
    v_lshlrev_b32 v127, 4, v4
    v_lshrrev_b32 v{T+4}, 4, v2
    v_lshl_add_u32 v127, v{T+4}, 9, v127
    v_add_u32 v{VH0}, s6, v127
    v_xor_b32 v{VH1}, 2048, v{VH0}
    s_lshl_b32 s73, s3, 12
    v_add_u32 v10, s73, v3
    v_add_u32 v11, {WDL[0]}, v10
    s_mul_i32 s70, s70, {28*1024}
    s_add_u32 s70, s70, s67
    s_add_u32 s70, s70, {WS_X1}''')
    q.add(f'''s_lshl_b32 s6, s35, 2
    s_sub_u32 s7, 29, s6
    s_add_u32 s68, s6, 2
    s_sub_u32 s69, s7, 2
    s_cmp_le_u32 s35, 2
    s_cselect_b32 s68, s68, s69
    s_sub_u32 s67, s7, 4
    s_cmp_le_u32 s35, 3
    s_cselect_b32 s67, s6, s67
    s_cselect_b32 s69, 1, s7
    s_cmp_eq_u32 s35, 3
    s_cselect_b32 s68, 13, s68''')
    q.lines(f'''v_add_u32 v127, s70, v127
    s_mul_i32 s71, s3, 3072
    s_add_u32 s71, s71, {X1L}''')
    for t in range(2):
        q.lines(f'''s_lshl_b32 s6, s35, 6
        s_add_u32 s6, s6, {t}
        v_lshl_add_u32 v{T}, v4, 2, s6
        v_cmp_le_u32 vcc, 224, v{T}
        v_sub_u32 v{T+1}, 448, v{T}
        v_cndmask_b32 v{T+1}, v{T}, v{T+1}, vcc
        v_cndmask_b32 v{T+2}, 0, 1, vcc
        v_cmp_eq_u32 vcc, 224, v{T+1}
        v_cndmask_b32 v{T+1}, v{T+1}, 0, vcc
        v_lshrrev_b32 v{T+3}, 5, v{T+1}
        v_lshl_add_u32 v{T+3}, v{T+3}, 1, v{T+2}
        v_cmp_eq_u32 vcc, s68, v{T+3}
        v_mov_b32 v{T+2}, 2
        v_cndmask_b32 v{T+2}, v{T+2}, 1, vcc
        v_cmp_eq_u32 vcc, s67, v{T+3}
        v_bfe_u32 v{T+3}, v{T+1}, 4, 1
        v_cndmask_b32 v{T+2}, v{T+2}, 0, vcc
        v_lshlrev_b32 v{T+2}, 10, v{T+2}
        v_lshl_add_u32 v{T+2}, v{T+3}, 9, v{T+2}
        v_bfe_u32 v{T+3}, v{T+1}, 2, 1
        v_lshl_add_u32 v{T+2}, v{T+3}, 8, v{T+2}
        v_bfe_u32 v{T+3}, v{T+1}, 3, 1
        v_lshl_add_u32 v{T+2}, v{T+3}, 3, v{T+2}
        v_and_b32 v{T+3}, 3, v{T+1}
        v_lshl_add_u32 v{T+2}, v{T+3}, 1, v{T+2}
        v_lshl_add_u32 v{T+2}, v{T+4}, 6, v{T+2}
        v_add_u32 v{12+t}, s71, v{T+2}''')
    for b in range(3): q.add(f's_lshl_b32 s{67+b}, s{67+b}, 11')
    for sl in range(3):
        q.lines(f's_xor_b32 s6, s3, {sl+1}\ns_mul_i32 s6, s6, 12288\ns_add_u32 s6, s6, {RED+4096*sl}\nv_add_u32 v{124+sl}, s6, v{6 if C["w64"] else 3}')
    q.lines(f'''s_mul_i32 s6, s3, 12288
    s_add_u32 s6, s6, {RED}
    v_add_u32 v1, s6, v{6 if C['w64'] else 3}''')
    if C['flip']:
        q.lines('s_and_b32 s6, s2, 7\ns_xor_b32 s6, s6, 1\ns_lshl_b32 s6, s6, 1\ns_bfe_u32 s7, s32, 0x10001\ns_add_u32 s6, s6, s7')
        q.add('s_sub_u32 s7, 32, s6\ns_cmp_eq_u32 s6, 0\ns_cselect_b32 s7, 16, s7\ns_bitcmp1_b32 s32, 0\ns_cselect_b32 s36, s7, s6')
    q.add(t1_txt('s7', 's36', 's63', 's6'))
    q.lines(f'''s_lshl_b32 s72, s72, 10
    s_add_u32 s72, s72, s7
    s_mul_i32 s72, s72, 896
    s_lshl_b32 s6, s35, 7
    s_add_u32 s72, s72, s6
    v_mul_u32_u24 v0, {4*64*896}, v{T+4}
    v_lshl_add_u32 v0, v4, 3, v0
    s_mov_b32 s8, s80
    s_and_b32 s9, s81, 0xffff''')
    q.add('v_lshlrev_b32 v2, 7, v2')
    q.add(f's_bitcmp1_b32 s3, 0\ns_cselect_b32 s6, 0xffffff00, 0\ns_cselect_b32 s7, -1, 0\ns_cselect_b32 s6, s6, 0x100\ns_add_u32 s16, s12, s6\ns_addc_u32 s17, s13, s7\ns_mov_b32 s18, {WS_END+256}')
    if C['pw']:
        q.lines(f'''s_mul_i32 s20, s32, 1536
        s_and_b32 s6, s3, 1
        s_lshl_b32 s6, s6, 9
        s_add_u32 s20, s20, s6
        s_add_u32 s20, s20, {FL_B}
        s_lshl_b32 s6, s34, 10
        s_sub_u32 s21, s20, s6
        s_add_u32 s21, s21, 1024
        s_add_u32 s20, s20, s6
        s_mov_b64 s[22:23], 0
        s_mov_b64 s[26:27], 0
        s_mov_b64 s[28:29], 0
        s_mov_b64 s[60:61], 0
        s_mov_b32 s82, 0''')
    return q1, q

C01 = [(2,0),(2,1),(3,0),(3,1),(6,0),(6,1),(7,0),(7,1),(10,0),(10,1),(11,0),(11,1)]
C2 = [(i,1) for i in (0,1,4,5,8,9,12,13)]
C3 = [(i,0) for i in (0,1,4,5,8,9,12,13)]
ORDER = C01 + C2 + C3
C0 = [p for p in C01 if p[1] == 0]; C1 = [p for p in C01 if p not in C0]
LORDER = C0 + C1 + C2 + C3
def hreg(i, rl, u): return a(8*LORDER.index((i, rl)) + 4*u, 4)
def hh(q, L, split=False):
    if 'hh' in ABL: return
    items = [(i, rl, u) for u in (1, 0) for i, rl in L] if split else [(i, rl, u) for i, rl in L for u in range(2)]
    for i, rl, u in items: q.vm(None, f'buffer_load_dwordx4 {hreg(i,rl,u)}, v{VH1 if rl else VH0}, s[{16 if u else 12}:{19 if u else 15}], {sm(i)} offen sc1', f'h{i}_{rl}_{u}')
def epi3(k, acc, st, pk=False):
    q = Q(k)
    K1 = ET + 2*(st & 1); SS = K1 + 1; T = ET + 4; PK = ET + 12
    for qq in range(4 if 'epi' not in ABL else 0):
        rr = range(4*qq, 4*qq+4); t = T + 4*(qq & 1)
        if pk: q.add(*[f'v_pk_mul_f32 {P(t+r)}, {P(acc+4*qq+r)}, {P(K1)} op_sel_hi:[1,0]' for r in (0, 2)])
        else: q.add(*[f'v_mul_f32 v{t+(r&3)}, v{acc+r}, v{K1}' for r in rr])
        for r in rr: q.add(f'v_exp_f32 v{t+(r&3)}, v{t+(r&3)}')
        if pk: q.add(*[f'v_pk_fma_f32 {P(t+r)}, {P(t+r)}, {P(K1)}, {P(K1)} op_sel:[0,1,1] op_sel_hi:[1,1,1]' for r in (0, 2)])
        else: q.add(*[f'v_fma_f32 v{t+(r&3)}, v{t+(r&3)}, v{SS}, v{SS}' for r in rr])
        for r in rr: q.add(f'v_rcp_f32 v{t+(r&3)}, v{t+(r&3)}')
        if pk: q.add(*[f'v_pk_mul_f32 {P(t+r)}, {P(t+r)}, {P(acc+16+4*qq+r)}' for r in (0, 2)])
        else: q.add(*[f'v_mul_f32 v{t+(r&3)}, v{t+(r&3)}, v{acc+16+r}' for r in rr])
        q.add(f'v_cvt_pk_bf16_f32 v{PK+2*qq}, v{t}, v{t+1}', f'v_cvt_pk_bf16_f32 v{PK+2*qq+1}, v{t+2}, v{t+3}')
        if qq & 1 and 'st' not in ABL: q.add(('vm', f'buffer_store_dwordx4 {v(PK+4*(qq>>1),4)}, v3, s[12:15], s{40+st} offen offset:{1024*(qq>>1)} sc1', f'hh{st}'))
    return q

BRC = int(os.environ.get('BRC', 4))
def lcost(l, vmc=12):
    mn = l.split()[0]
    return 0 if mn.endswith(':') or mn.startswith('.') else 8 if mn in TRANS else vmc if mn.startswith(('buffer_', 'global_')) else BRC if mn.startswith(('s_cbranch', 's_branch')) else 4
class Epi:
    def __init__(self, k, acc, st, vmc, join=False, extra=()):
        self.join = join; self.k = k; self.vmc = vmc; q = epi3(k, acc, st).q
        n = len(q)//2 if q else 0
        st_ = 'st' not in ABL
        self.ch = [q[0:22] + q[n:n+22], q[22:44] + q[n+22:n+44]] if q else [[], []]
        self.st = list(extra) + [q[44], q[n+44]] if q and st_ else []
    def __len__(self): return len(self.ch[0]) + len(self.ch[1]) + len(self.st)
    def pack(self, bud):
        while True:
            done = 44 - max(len(self.ch[0]), len(self.ch[1]))
            if self.st and done >= (44 if self.join else 22*(3 - len(self.st))) and bud >= self.vmc:
                x = self.st.pop(0); self.k.vm_op(x[1], x[2]); bud -= self.vmc; continue
            c = [ch for ch in sorted(self.ch, key=lambda c: -len(c)) if ch and lcost(ch[0]) <= bud]
            if not c: return
            if len(c) == 2 and lcost(c[0][0]) != lcost(c[1][0]):
                c.sort(key=lambda ch: lcost(ch[0]) * (1 if bud % 8 == 4 else -1))
            elif len(c) == 2 and len(self.ch[1]) - len(self.ch[0]) < 4: c = [self.ch[0]]
            x = c[0].pop(0); self.k.e(x); bud -= lcost(x)
def P3(k, C):
    su, su2 = setup34(k, C)
    def wd_reg(q, i):
        if 'wd' in C['abl']: return
        for f in range(4): q.vm(None, f'buffer_load_dwordx4 {wdreg(i,f)}, v{VWD}, s[12:15], {sm(i)} offen offset:{1024*f} sc1', f'wd{i}')
    def wd_lds(q, i):
        if 'wd' in C['abl']: return
        for f in range(4): q.vm(f's_add_u32 m0, s73, {WDL[WSLOT[i]]}' if f == 0 else None, f'buffer_load_dwordx4 v{VWD}, s[12:15], {sm(i)} offen offset:{1024*f} sc1 lds', f'wd{i}')
    def a_dma(q, st):
        for i in range(7):
            pre = f's_add_u32 m0, s66, {st*IMG+1024*i}' if i in (0, 4) else None
            q.vm(pre, f'buffer_load_dwordx4 v{VA0 if i < 4 else VA1}, s[12:15], s{44+st} offen offset:{1024*(i&3)} sc1 lds', f'a{st}')
    x1s = [('vm', f'buffer_store_dwordx4 {v(216+4*hf,4)}, v3, s[12:15], s5 offen offset:{1024*hf} sc1', None) for hf in range(2)]
    if C['x1at'] == 2:
        for x in x1s: k.vm_op(x[1])
    r3 = k.r2; page(k, 3, 1, {2: 5, 3: 6})
    if C['rr']: k.e('s_mov_b32 s82, s57\nv_lshlrev_b32 v129, 7, v2')
    wq = Q(k)
    for i in (REGI[0:4] + REGI[5:9] + REGI[4:5] if not C['wswap'] else [0, 4, 12, 2, 8, 1, 5, 9, 13]): wd_reg(wq, i)
    LI = sorted(WSLOT, key=WSLOT.get)
    n1 = len(su); su.q += su2.q; tot = len(su)
    for n in range(C['r3_drain']): su.cyc(C['su_drain']//(C['r3_drain']+1)); r3.emit(1)
    su.cyc(C['su_drain']//(C['r3_drain']+1))
    r3n = 28 - (len(r3)+1)//2
    k.wait(vm='p2st')
    if C['rr']: k.e('s_mov_b64 exec, 0xffff'); k.vm_op('buffer_load_dword v130, v129, s[12:15], s82 offen sc1'); k.e('s_mov_b64 exec, -1')
    k.e('s_barrier'); k.st('sigA')
    gsignal(k, 0, 2)
    if 0 in C['pollA']: mp_issue(k, 0, 0, 0)
    if not C['wd_early']:
        l = k.label('WS')
        k.e(f's_mov_b32 s75, 99\ns_cmp_lg_u32 s29, 1\ns_cbranch_scc1 {l}\ns_atomic_add s74, s[24:25], s28\ns_atomic_add s74, s[24:25], s28 offset:1024\n{l}:')
    tr = w3_tr(k, R1N, 28); nl = 4*(28 - k.r2n)
    n = 0
    while len(r3) > C['r4']:
        r3.emit(1); n += 1
        if n in C['pollA']: mp_issue(k, 0, C['pollA'].index(n), 0)
        if n == C['pollW'] and C['wd_early']:
            assert tot - len(su) >= n1
            l = k.label('XW'); k.e(f's_mov_b32 s75, 99\ns_cmp_lg_u32 s3, 1\ns_cbranch_scc1 {l}\ns_mov_b32 s75, -1\ns_atomic_and s75, s[24:25], s4 glc\n{l}:')
        if len(tr) > nl: tr.emit(min(4, len(tr)-nl))
        else: su.cyc(32)
    tr.emit(len(tr) - nl)
    while tot - len(su) < n1: su.emit(1)
    k.st('w3done'); assert len(su) > 14*C['pw']
    k.e(f's_mul_i32 s0, s3, 3072\ns_mov_b32 m0, s0\ns_add_u32 s28, s44, s0\ns_lshl_b32 s26, s3, 12\ns_add_u32 s26, s26, 12288\ns_add_u32 s27, s26, s44')
    lds_pad(k, 3, 128); k.wait(lg='tr')
    mp_check(k, 0, 7, 0, False, C['paceA'])
    if not C['tr_late']: r3n = 28
    assert r3n - R1N >= 11
    k.wait(vm=f'w3_{r3n-1}'); k.e('s_barrier'); k.st('flagA')
    for i in range(3): k.vm_op(f'buffer_load_dwordx4 v3, s[12:15], s28 offen offset:{1024*i} sc1 lds', 'a0a')
    k.e('s_mov_b32 m0, s26')
    def xpoll():
        l = k.label('XP'); k.e(f's_cmp_lt_u32 s3, {2 if C["wd_early"] else 1}\ns_cbranch_scc1 {l}\ns_mov_b32 s75, -1\ns_atomic_and s75, s[24:25], s4 glc\n{l}:')
    if C['xp'] == 0: xpoll()
    nl = 4*(28 - r3n)
    for i in range(4): k.vm_op(f'buffer_load_dwordx4 v3, s[12:15], s27 offen offset:{1024*i} sc1 lds', 'a0b'); tr.emit(min(4, len(tr)-nl))
    a1q = Q(k); a_dma(a1q, 1); assert k.r2n - R1N >= 8 or not C['a1_pre']
    for i in range(C['a1_pre']): a1q.emit(1); tr.emit(min(4, len(tr)-nl))
    tr.emit(len(tr)-nl)
    def xcheck(only=None):
        if 'xc' in ABL: return
        if 'xc1' in ABL: only = 1
        if 'xc2' in ABL: only = 2
        if 'xc3' in ABL: only = 3
        l, d = k.label('XC'), k.label('XD')
        if only is not None: k.e(f's_cmp_lg_u32 s3, {only}\ns_cbranch_scc1 {d}')
        k.e(f'''s_cmp_ge_i32 s75, s39
    s_cbranch_scc1 {d}
    s_mov_b32 s1, 0
{l}:
    s_waitcnt lgkmcnt(0)
    s_cmp_ge_i32 s75, s39
    s_cbranch_scc1 {d}
    s_add_u32 s1, s1, 1
    s_cmp_gt_u32 s1, {SPIN_MAX}
    s_cbranch_scc1 {d}
    s_mov_b32 s75, -1
    s_atomic_and s75, s[24:25], s4 glc
    s_branch {l}
{d}:''')
    if C['wd_early']: xcheck(1)
    if C['xp'] == 1: xpoll()
    while tot - len(su) < n1 + 29 + 7*(C['wswap'] == 1): su.emit(1)
    su.debt = 0; su.cyc(C['su_go'])
    vq = [Q(k) for _ in range(4)]
    vq[0].q += a1q.q
    vq[0].q += r3.q; assert C['r4'] % 2 == 0 and (not C['r4'] or (len(su) and C['su_ks'] >= 9 and C['a1_bar']))
    if C['x1at'] == 0: vq[0].q += x1s
    assert len(vq[0]) <= 9
    while len(vq[0]) < 9: vq[0].add(wq.q.pop(0) if len(wq) and C['wd_early'] else (lambda: None))
    for i in range(3): vq[0].vm(None, f'buffer_load_dwordx4 {v(128+4*i,4)}, v3, s[12:15], s37 offen offset:{1024*i} sc1', 'st')
    vq[0].add(lambda: (k.e('v_mov_b64 v[112:113], 0\nv_mov_b64 v[114:115], 0\ns_mov_b32 exec_hi, 0'), k.vm_op('buffer_load_dwordx4 v[112:115], v3, s[12:15], s37 offen offset:3072 sc1', 'st'), k.e('s_mov_b32 exec_hi, -1')))
    a_dma(vq[0], 2)
    vq[0].vm(None, f'buffer_load_dwordx4 {v(WX,4)}, v3, s[12:15], s38 offen sc1', 'wx')
    vq[0].q += wq.q[:C['wd_st'][0]]; wq.q = wq.q[C['wd_st'][0]:]
    vq[1].q += wq.q[:C['x0']] if 'wd' not in ABL else [lambda: None]*C['x0']; wq.q = wq.q[C['x0']:]
    a_dma(vq[1], 3); wd_lds(vq[1], LI[0]); wd_lds(vq[1], LI[1])
    for st in (1, 2):
        vq[st].q += wq.q[:C['wd_st'][st]]; wq.q = wq.q[C['wd_st'][st]:]
        if st == 1: wd_lds(vq[1], LI[2])
    assert len(vq[2]) >= C['sigB0'][1] or ABL
    wd_lds(vq[2], LI[3]); wd_lds(vq[2], LI[4])
    vq[3].q += wq.q
    sq = Q(k)
    for r in range(4): sq.lines(f'v_add_f32 v{128+r}, v{128+r}, v{132+r}\nv_add_f32 v{136+r}, v{136+r}, v{112+r}')
    for r in range(4): sq.add(f'v_add_f32 v{128+r}, v{128+r}, v{136+r}')
    sq.lines(f'''v_lshlrev_b32 v139, 1, v4
    v_bfe_u32 v140, v3, 8, 1
    v_permlane16_swap_b32 v128, v130
    v_permlane16_swap_b32 v129, v131
    v_add_f32 v128, v128, v130
    v_add_f32 v129, v129, v131
    v_add_u32 v139, v139, v140
    v_lshl_add_u32 v139, v5, 5, v139
    v_mov_b32 v130, v128
    v_mov_b32 v131, v129
    s_mul_i32 s6, s3, {IMG}
    v_lshl_add_u32 v138, v139, 4, s6
    v_permlane32_swap_b32 v128, v130
    v_permlane32_swap_b32 v129, v131
    v_add_f32 v128, v128, v130
    v_add_f32 v129, v129, v131
    v_mul_f32 v128, {f2h(-1/448)}, v128
    v_mul_f32 v129, {f2h(1/448)}, v129
    v_fma_f32 v129, -v128, v128, v129
    v_max_f32 v129, 0, v129
    v_add_f32 v129, {f2h(1e-5)}, v129
    v_rsq_f32 v130, v129
    v_sqrt_f32 v131, v129
    v_cvt_pk_bf16_f32 v132, v128, v128
    v_mul_f32 v130, {f2h(-LOG2E)}, v130
    v_cvt_pk_bf16_f32 v136, v131, v131
    v_and_b32 v137, 0xffff0000, v132
    v_and_b32 v136, 0xffff0000, v136
    v_sub_f32 v137, v128, v137
    v_sub_f32 v136, v131, v136
    v_cmp_eq_u32 vcc, 0, v5
    v_cvt_pk_bf16_f32 v133, v137, v131
    v_cvt_pk_bf16_f32 v134, v131, v136
    v_mov_b32 v135, 0
    v_cndmask_b32 v132, 0, v132, vcc
    v_cndmask_b32 v133, 0, v133, vcc
    v_cndmask_b32 v134, 0, v134, vcc
    s_lshl_b32 s6, s3, 9
    s_add_u32 s6, s6, {KSP}
    v_lshl_add_u32 v137, v139, 3, s6''')
    sq.add(('ds', 'ds_write_b128 v138, v[132:135] offset:28672', 'stw'), ('ds', 'ds_write_b64 v137, v[130:131]', 'stw'))
    wxq = Q(k)
    wxq.add(f'v_mov_b64 {P(WX+4)}, {P(WX)}', f'v_mov_b64 {P(WX+6)}, {P(WX+2)}')
    for r in range(3): wxq.add(f'v_permlane32_swap_b32 v{WX+r}, v{WX+4+r}')
    L = 8; KS = 29 - L
    seq = [(st, ks) for st in range(4) for ks in range(29)]
    X0 = C['x0']; seq.remove((0, 28)); seq.insert(28 + X0, (0, 28))
    def breg(n): return v(RING+4*(n&3),4) if n < 87+KS else v(ACC0+4*(n-87-KS),4)
    def rd(n):
        st, ks = seq[n]
        base, off = ('v3', st*IMG) if st < 2 else ('v7', (st-2)*IMG)
        k.ds_op(f'ds_read_b128 {breg(n)}, {base} offset:{off+1024*ks}', f'b{n}')
    PD = 3
    page(k, 4, 1)
    k.wait(vm='a0a'); k.e('s_barrier'); k.st('P3go')
    for n in range(PD): rd(n)
    k.lq = lq = Q(k); k.nl = 0
    fill = Q(k); rate = 0; nv = [len(q) for q in vq]; assert max(nv) <= 28
    def mf(n, mt):
        st, ks = seq[n]; acc = ACC0 + 32*(st & 1)
        if ks < 28: A = a(8*ks+4*mt, 4); k.wait(lg=f'b{n}')
        else: A = v(WX+4*mt, 4); k.wait(vm='wx', lg=f'b{n}')
        c = '0' if ks == 0 else v(acc+16*mt, 16)
        k.e(f'v_mfma_f32_32x32x16_bf16 {v(acc+16*mt,16)}, {A}, {breg(n)}, {c}')
    def events(st, ks):
        e = (st, ks); bar = False
        if C['pw']:
            if e == C['sigB0']: k.wait(vm=['hh0', 'a3']); k.e('s_barrier')
            if e == (3, C['c0_ks']): pw_pre(k, 0)
            if e == (3, C['c01_ks']): pw_pre(k, 1)
            return
        if e == (3, C['c0_ks']): mp_check(k, 0, 14, 0, C['flip']); bar = True
        if e == (3, C['c01_ks']): mp_check(k, 128, 7, 3, C['flip']); bar = True
        if e == C['sigB0']: k.wait(vm=['hh0', 'a3']); bar = True
        if e == C['sigB01']: k.wait(vm='hh1' if 'dr' not in ABL else None); bar = True
        if e == (3, C['sigB2']): k.wait(vm='hh2' if 'dr' not in ABL else None); bar = True
        if bar and not ('bar' in ABL and st == 3): k.e('s_barrier')
        return
    def events2(st, ks):
        e = (st, ks)
        if C['pw']:
            if e == (3, C['c0_ks']): pw_check(k, 0, C['flip'])
            if e == (3, C['c01_ks']): pw_check(k, 1, C['flip'])
            if e == C['sigB0']: pw_signal(k, 0)
            if e == C['sigB01']: k.wait(vm='hh1'); pw_signal(k, 1)
            if e == (3, C['sigB2']): k.wait(vm='hh2'); pw_signal(k, 2)
            if e in C['pollB01']: pw_poll(k, 1, C['pollB01'].index(e), C['flip'])
            if e in C['pollB0']: pw_poll(k, 0, 0, C['flip'])
        else:
            if e == C['sigB0']: gsignal(k, 0, 1)
            if e == C['sigB01']: gsignal(k, 128, 1)
            if e == (3, C['sigB2']):
                gsignal(k, 256, 2); k.st('sigB2')
                if C['rrh']: reread(k, 's42', 5)
            if e in C['pollB01']: mp_issue(k, 128, C['pollB01'].index(e), 3, C['flip'])
            if e in C['pollB0']: mp_issue(k, 0, C['pollB0'].index(e), 0, C['flip'])
        if e == (3, C['c0_ks']):
            lq.vm('s_mov_b32 m0, s71', 'buffer_load_dwordx4 v127, s[12:15], s67 offen sc1 lds', 'x1')
            lq.add(lambda: (k.e('s_add_u32 m0, s71, 1024'), k.vm_op('buffer_load_dwordx4 v127, s[12:15], s68 offen sc1 lds', 'x1'),
                            k.e('s_add_u32 m0, s71, 2048\ns_mov_b64 exec, 0xffff'), k.vm_op('buffer_load_dwordx4 v127, s[12:15], s69 offen sc1 lds', 'x1'), k.e('s_mov_b64 exec, -1')))
            hh(lq, C0)
        if e == (3, C['c01_ks']): k.st('B01ok'); hh(lq, C1)
    nrd = PD
    for n, (st, ks) in enumerate(seq[:87+KS]):
        k.st(f'k{st}_{ks}')
        s2, k2 = seq[nrd]
        if (s2, k2) == (0, 28): assert not len(tr)
        if (s2, k2) == (0, 12): xcheck(); k.wait(vm='a0b' if C['a1_bar'] else 'a1'); k.e('s_barrier')
        elif n == C['a1b_ks'] and C['a1_bar']: k.wait(vm=['a1', 'w3_27']); k.e('s_barrier')
        elif (s2, k2) == (0, 28):
            assert not len(fill); k.wait(vm='a2', lg='stw'); k.e('s_barrier')
            k.ds_op(f'ds_read_b64 {v(ET,2)}, v8', 'ks0'); k.wait(vm='wx'); fill = wxq; rate = 8
        if nrd >= 87+KS: assert not len(fill)
        rd(nrd); nrd += 1
        if C['pw'] and st == 3 and C['pw_pad'][0] <= ks < C['pw_pad'][1]: lds_pad(k, 1, 5)
        if nrd > 87+KS: rd(nrd); nrd += 1
        if ks == (27 if st < 3 else 5) and st: k.ds_op(f'ds_read_b64 {v(ET+2*(st&1),2)}, v8 offset:{512*st}', f'ks{st}')
        if ks == (2 if st > 1 else X0+2) and st > 0:
            if C['gap']: fill = Epi(k, ACC0 + 32*((st-1) & 1), st-1, C['vmc'], C['join'], x1s if st == 1 and C['x1at'] == 1 else ())
            else:
                fill = epi3(k, ACC0 + 32*((st-1) & 1), st-1)
                rate = fill.cost() / (2*C['epi_span'][st-1])
        if (st, ks) == (0, C['su_ks']): fill = su; rate = su.cost() / (2*C['su_span'])
        if (st, ks) == (0, C['st_ks']): assert not len(fill); k.wait(vm='st'); fill = sq; rate = sq.cost() / (2*(24 + X0 - C['st_ks']))
        events(st, ks)
        for mt in range(2):
            mf(n, mt); n0 = len(k.L)
            if mt == 0: events2(st, ks)
            if st == 0 and (len(tr) > 2*C['r4'] or n >= C['a1b_ks']): tr.emit(C['tr_rate'])
            if st == 0 and ks < 28: assert len(tr) <= 4*(27 - ks - 2) or not len(tr)
            if mt == 1 and (st, ks) == C['pg5']: page(k, 5, 3)
            if mt == 0 and len(vq[st]) > ((nv[st]*(27-ks))//28 if 0 < st < 3 and 'wd' not in ABL else 0): vq[st].emit(1)
            elif mt == 0 and st == 3 and len(lq):
                assert (k.nl - 2)//2 < ks; lq.emit(1); k.nl += 1
            if isinstance(fill, Epi):
                was = len(fill)
                fill.pack(C['gap'][st-1] - sum(lcost(l, C['vmc']) for l in k.L[n0:]) - 8*mt)
                if was and not len(fill) and os.environ.get('VERB'): print('epi done', st, ks)
            else: fill.cyc(rate)
        if ks == 28:
            assert not len(fill) and not len(vq[st]), (st, len(fill), len(vq[st]))
            k.st(f'S{st}')
    G = ACC0+32; U = G+16; K1 = ET+2; PK = ET+12; k.st('gph')
    for j in range(L):
        if nrd < len(seq): rd(nrd); nrd += 1
        if not j & 1: events(3, KS + j//2)
        mf(87+KS+j, 0)
        if not j & 1: events2(3, KS + j//2)
        if j & 1: lq.emit(1)
        if j < 7: k.e(f'v_mov_b64 {P(128+2*j)}, 0')
        if C['pw'] and 1 <= j < 4: lds_pad(k, 1, 5)
    sg = Q(k); k.st('uph')
    for qq in range(4):
        rr = range(G+4*qq, G+4*qq+4); pk = qq >= C['sg_pk']
        if pk: sg.add(*[f'v_pk_mul_f32 {P(r)}, {P(r)}, {P(K1)} op_sel_hi:[1,0]' for r in rr[::2]])
        else: sg.add(*[f'v_mul_f32 v{r}, v{r}, v{K1}' for r in rr])
        sg.add(*[f'v_exp_f32 v{r}, v{r}' for r in rr])
        if pk: sg.add(*[f'v_pk_fma_f32 {P(r)}, {P(r)}, {P(K1)}, {P(K1)} op_sel:[0,1,1] op_sel_hi:[1,1,1]' for r in rr[::2]])
        else: sg.add(*[f'v_fma_f32 v{r}, v{r}, v{K1+1}, v{K1+1}' for r in rr])
        sg.add(*[f'v_rcp_f32 v{r}, v{r}' for r in rr])
    for j in range(L):
        if not j & 1: events(3, KS + (L+j)//2)
        mf(87+KS+j, 1)
        if not j & 1: events2(3, KS + (L+j)//2)
        if j == 0: lq.emit(1); ldsread(k, LDSI[0])
        elif j == 1:
            lq.emit(1)
            if C['pg6'] == 'u': page(k, 6, 3)
        else:
            if j & 1 and C['u_ld']: lq.emit(1)
            sg.cyc(C['sg_rate'])
    k.st('S3')
    if -1 in C['p4_poll2']:
        if C['pw']: pw_poll(k, 2, C['p4_poll2'].index(-1), not C['flip'])
        else: mp_issue(k, 256, C['p4_poll2'].index(-1), 1, not C['flip'])
    assert not (C['pw'] and (C['sigB2'] > 28 or C['rrh'] or C['rr'] or C['r4'] or C['sigB0'][1] < 12))
    for n in range(C['e_ld']): sg.cyc(64); lq.emit(1)
    sg.flush()
    for hf in range(2):
        for r in range(8*hf, 8*hf+8, 2): k.e(f'v_pk_mul_f32 {P(G+r)}, {P(G+r)}, {P(U+r)}')
        for r in range(4*hf, 4*hf+4): k.e(f'v_cvt_pk_bf16_f32 v{PK+r}, v{G+2*r}, v{G+2*r+1}')
        k.vm_op(f'buffer_store_dwordx4 {v(PK+4*hf,4)}, v3, s[12:15], s43 offen offset:{1024*hf} sc1', 'hh3')
    k.st('epi3')
    if C['pg6'] == 'e': page(k, 6, 3)
    if C['sigB2'] > 28:
        k.wait(vm='hh2'); k.e('s_barrier'); gsignal(k, 256, 2); k.st('sigB2')
        if C['rrh']: reread(k, 's42', 5)

RG = [RING, WX]
def ldsread(k, i):
    slot = LDSI.index(i); ws = WSLOT[i]
    base, off = ('v11', WDL[ws]-WDL[0]) if ws < 2 else ('v10', WDL[ws])
    k.wait(vm=f'wd{i}')
    for f in range(4): k.ds_op(f'ds_read_b128 {v(RG[slot&1]+4*f,4)}, {base} offset:{off+1024*f}', f'wl{i}')
def P4(k, C):
    XRG = list(range(128, 142)) + [122, 123]
    GB = 112; R = RING; R0 = 144
    def acc(rl, u, t): return ACC0 + 32*rl + 16*u + 4*t
    lq = k.lq; started = set(); redw = Q(k)
    ml = []
    for i, rl in C01 + C2: ml += [(i, rl, 0), (i, rl, 1)]
    for u in (1, 0): ml += [(i, rl, u) for i, rl in C3]
    burst = C['p4_burst0']
    for g, (i, rl, u) in enumerate(ml):
        n = g >> 1; post = []; first = None
        if not g & 1:
            k.st(f'n{n}'); bar = False
            if C['pw']:
                if n == 2: k.e('s_barrier')
                if n == C['p4_sig3']: post.append(lambda: (k.wait(vm='hh3'), pw_signal(k, 3)))
                if n == C['p4_c2']: pw_pre(k, 2); first = lambda: (pw_check(k, 2, not C['flip']), hh(lq, C2))
                if n == C['p4_c3']: pw_pre(k, 3); first = lambda: (pw_check(k, 3, not C['flip']), hh(lq, C3, True))
                if n in C['p4_poll2']: post.append(lambda n=n: pw_poll(k, 2, C['p4_poll2'].index(n), not C['flip']))
                if n in C['p4_poll3']: post.append(lambda n=n: pw_poll(k, 3, C['p4_poll3'].index(n), not C['flip']))
            else:
                if n == C['p4_sig3']: k.wait(vm='hh3' if 'dr' not in ABL else None); bar = True; post.append(lambda: (gsignal(k, 384, 0), k.st('sigB3'))); C['rrh'] and post.append(lambda: reread(k, 's43', 5))
                if n == C['p4_c2']: mp_check(k, 256, 7, 1, not C['flip']); bar = True; hh(lq, C2)
                if n == C['p4_c3']: mp_check(k, 384, 7, 2, not C['flip']); bar = True; hh(lq, C3, True); burst = C['p4_burst']
                if bar and 'bar' not in ABL: k.e('s_barrier')
                if n == C['p4_c2']: k.st('B2ok')
                if n == C['p4_c3']: k.st('B3ok'); lq.emit(C['p4_b0'])
                if n in C['p4_poll2']: post.append(lambda n=n: mp_issue(k, 256, C['p4_poll2'].index(n), 1, not C['flip']))
                if n in C['p4_poll3']: post.append(lambda n=n: mp_issue(k, 384, C['p4_poll3'].index(n), 2, not C['flip']))
            if n == 1:
                redw.add(f's_lshl_b32 s6, s35, 8\ns_add_u32 s6, s6, {WS_MOD+GB_N}', 'v_mov_b64 v[122:123], 0\nv_lshlrev_b32 v4, 4, v4')
                redw.vm(None, f'buffer_load_dwordx4 {v(GB,4)}, v4, s[12:15], s6 offen sc1', 'gb')
                redw.add('v_and_b32 v14, 4, v13\nv_sub_u32 v15, 2, v14', 'v_add_u32 v14, v13, v15\nv_add_u32 v15, v14, v15')
            if n == 4:
                assert not len(redw); k.wait(vm='x1')
                for t in range(4):
                    for r in range(4): redw.add(('ds', f'ds_read_u16_d16_hi v{XRG[4*t+r]}, v{12+t} offset:{16*r}', 'xr'), lambda: None)
        nxt = None
        if (rl, u) == (1, 1) and g < 24:
            sl = (g >> 2) + 1
            if sl < 5: nxt = LDSI[sl]; k.wait(vm=f'wd{nxt}'); ws = WSLOT[nxt]; base, off = ('v11', WDL[ws]-WDL[0]) if ws < 2 else ('v10', WDL[ws])
            elif sl == 5: nxt = -1
        def wr(ad, r, t, tag):
            if C['w64']: redw.add(*[('ds', f'ds_write_b64 v{ad}, {v(r+2*x,2)} offset:{1024*t+512*x}', tag) for x in range(2)])
            else: redw.add(('ds', f'ds_write_b128 v{ad}, {v(r,4)} offset:{1024*t}', tag))
        def rdr(r, off, tag):
            if C['w64']: k.ds_op(f'ds_read2st64_b64 {v(r,4)}, v1 offset0:{off//512} offset1:{off//512+1}', tag)
            else: k.ds_op(f'ds_read_b128 {v(r,4)}, v1 offset:{off}', tag)
        if g == 40:
            assert not len(redw)
            for uu in range(2):
                for t in range(4): wr(125+uu, acc(1,uu,t), t, 'rw')
        if g == 48:
            for t in range(4): wr(124, acc(0,1,t), t, 'rv')
        if g == 49 and C['bar2']: assert len(redw) <= 8; k.wait(lg='rw'); k.e('s_barrier')
        if g == 53: assert not len(redw); k.wait(lg='rv'); k.e('s_barrier')
        k.wait(vm=f'h{i}_{rl}_{u}', lg=f'wl{i}' if i in LDSI else None)
        assert not any(isinstance(x, tuple) and x[2] == f'h{i}_{rl}_{u}' for x in lq.q), (i, rl, u)
        k.pend = getattr(k, 'pend', []) + post
        for t in range(4):
            B = v(RG[LDSI.index(i)&1]+4*t, 4) if i in LDSI else wdreg(i, t)
            D = v(acc(rl,u,t), 4); c = D if (rl,u,t) in started else '0'; started.add((rl,u,t))
            k.e(f'v_mfma_f32_16x16x32_bf16 {D}, {hreg(i,rl,u)}, {B}, {c}')
            if t == 0:
                if first: first()
                lq.emit(1)
            elif t == 2:
                if len(redw): redw.emit(1)
                elif burst > 0: lq.emit(1); burst -= 1
            elif k.pend: k.pend.pop(0)()
            if nxt == -1: lds_pad(k, 1, 116)
            elif nxt is not None: k.ds_op(f'ds_read_b128 {v(RG[sl&1]+4*t,4)}, {base} offset:{off+1024*t}', f'wl{nxt}')
            if C['w64'] and g > 40 and t == 0: redw.emit(1)
            if C['bar2']:
                if g in (49, 50, 51, 52) and t & 1: x = 2*(g-49) + (t >> 1); rdr(R+16*(x&1)+4*(x>>1), (1+(x&1))*4096+(x>>1)*1024, 'r12')
                if g == 53: rdr(R0+4*t, 1024*t, 'r0')
                if g in (54, 55):
                    if (g, t) == (54, 0): k.wait(lg='r12')
                    for r in range(8*(g-54)+2*t, 8*(g-54)+2*t+2): k.e(f'v_add_f32 v{R+r}, v{R+r}, v{R+16+r}')
            elif g >= 53: rdr((R, R+16, R0)[g-53]+4*t, ((1, 2, 0)[g-53])*4096+1024*t, f'rr{g}')
    assert not len(redw) and not len(lq) and not k.pend
    k.st('P4mf')
    if not C['bar2']:
        k.wait(lg='rr54')
        for r in range(0, 16, 2): k.e(f'v_pk_add_f32 {P(R+r)}, {P(R+r)}, {P(R+16+r)}')
    k.wait(vm='gb', lg='all')
    for r in range(0, 16, 2): k.e(f'v_pk_add_f32 {P(R+r)}, {P(R+r)}, {P(R0+r)}')
    for r in range(4): k.e(f's_add_u32 s{48+r}, s72, {r*64*896}')
    for h in range(2):
        for t in range(4): k.e(f'v_pk_add_f32 {P(R+4*t+2*h)}, {P(R+4*t+2*h)}, {P(acc(0,0,t)+2*h)}')
        for t in range(4):
            x = XRG[4*t+2*h]
            k.e(f'v_pk_fma_f32 {P(x)}, {P(R+4*t+2*h)}, {P(GB+(t&2))}, {P(x)} op_sel:[0,{t&1},0] op_sel_hi:[1,{t&1},1]')
        for r in (2*h, 2*h+1):
            k.e(f'v_cvt_pk_bf16_f32 v{R0+2*r}, v{XRG[r]}, v{XRG[4+r]}\nv_cvt_pk_bf16_f32 v{R0+2*r+1}, v{XRG[8+r]}, v{XRG[12+r]}')
            k.vm_op(f'buffer_store_dwordx2 {P(R0+2*r)}, v0, s[8:11], s{48+r} offen {C["out_pol"]}')

S_W = 8192
def side(k, C):
    wq = side_head(k, False, C)
    side_tail(k, wq, C)
    k.e('s_endpgm\n' + ('.p2align 12\n' if PAGES else '') + 'SD_Z:'); k.reset_counts()
    side_head(k, True, C)
    k.e('s_branch SD_G3')

ROTB = int(os.environ.get('ROTB', 3))
W = 16; SL = 128; AC = 142; TS = 150; DF = 160; CS = 176
def side_head(k, Z, C):
    T = TS; tg = 'Z' if Z else 'B'
    k.e(f'''
    v_lshrrev_b32 v1, 6, v0
    v_and_b32 v2, 63, v0
    v_readfirstlane_b32 s3, v1
    v_lshrrev_b32 v6, 3, v2
    v_and_b32 v8, 7, v2
    s_mul_i32 s39, s3, 112
    v_add_u32 v7, s39, v6
    v_mul_u32_u24 v7, 5376, v7
    v_lshl_add_u32 v7, v8, 4, v7     ; w_mod voffset
    s_mul_i32 s62, s33, {8*ROTB if not Z else 0}
    v_add_u32 v9, s62, v2
    v_add_u32 v11, 56, v9
    v_subrev_u32 v10, 112, v9
    v_min_u32 v9, v9, v10
    v_subrev_u32 v10, 112, v11
    v_min_u32 v11, v11, v10
    v_add_lshl_u32 v9, v9, s39, 1    ; c voffsets
    v_add_lshl_u32 v11, v11, s39, 1
    s_mul_i32 s62, s62, 5376
    s_mov_b32 s10, {448*5376}
    s_mov_b32 s11, 0x20000
    s_mov_b32 s46, 896
    s_mov_b32 s47, 0x20000
    s_mov_b32 s14, {WS_END}
    s_mov_b32 s15, 0x20000
    ''')
    if Z: k.e('s_lshl_b32 s34, s33, 1\ns_add_u32 s35, s34, 1\ns_lshl_b32 s40, s34, 7\ns_lshl_b32 s41, s35, 7\ns_cmp_eq_u32 s33, 3\ns_cselect_b32 s41, 0x7ff00000, s41')
    else: k.e('s_add_u32 s40, s32, 7\ns_lshl_b32 s40, s40, 7\ns_add_u32 s41, s33, 1\ns_mul_i32 s41, s41, 896\ns_add_u32 s41, s41, s40')
    k.e(f'''
    v_lshlrev_b32 v3, 4, v2
    v_and_b32 v4, 31, v2
    v_lshrrev_b32 v5, 5, v2
    s_and_b32 s42, s3, 1             ; mat
    s_lshr_b32 s43, s3, 1
    s_mov_b32 s52, {f2h(1/448)}
    s_mov_b32 s53, {f2h(-448.0)}
    s_waitcnt lgkmcnt(0)
    s_mov_b32 s44, s22
    s_and_b32 s45, s23, 0xffff
    s_mov_b32 s8, s24
    s_and_b32 s9, s25, 0xffff
    s_mov_b32 s12, s30
    s_and_b32 s13, s31, 0xffff
    ''')
    if Z:
        k.e(f'''s_cmp_lg_u32 s2, {NSIDE-1}
    s_cbranch_scc1 SD_NZ
    v_lshlrev_b32 v10, 4, v0         ; WG 31: zero the barrier counters (16 KB), then raise d_debug[0]
    v_mov_b64 v[16:17], 0
    v_mov_b64 v[18:19], 0
    s_mov_b32 s6, {WS_FLAG+FL_BAR}''')
        for i in range(4): k.e('buffer_store_dwordx4 v[16:19], v10, s[12:15], s6 offen sc1\ns_add_u32 s6, s6, 4096')
        k.e('s_mov_b32 s74, 1\ns_waitcnt vmcnt(0)\ns_barrier\ns_cmp_lg_u32 s3, 0\ns_cbranch_scc1 SD_NZ\ns_atomic_or s74, s[28:29], 0x0\nSD_NZ:')
    k.stamp(1); k.st('sd0')
    k.vm_op('buffer_load_ushort v10, v9, s[44:47], 0 offen', 'c')
    k.vm_op('buffer_load_ushort v11, v11, s[44:47], 0 offen', 'c')
    lq = Q(k)
    for t in range(2):
        for i in range(14):
            wrap = (not Z) and any((ROTB*q + i) % 14 == 0 for q in range(4))
            pre = (f's_add_u32 s62, s62, {8*5376}\n' + (f's_cmp_eq_u32 s62, {112*5376}\ns_cselect_b32 s62, 0, s62\n' if wrap or i == 0 else '') if i or t else '') + f's_add_u32 s63, s62, s{40+t}'
            lq.vm(pre, f'buffer_load_dwordx4 {v(W+56*t+4*i,4)}, v7, s[8:11], s63 offen', f'w{t}_{i}')
    lq.emit(2)
    def ang0(dst, step, ef, df, ph):
        return f'''v_mul_f32 v{dst}, v{ef}, v{df}
        v_mul_f32 v{step}, s52, v{dst}
        v_floor_f32 v{step}, v{step}
        v_fma_f32 v{dst}, v{step}, s53, v{dst}
        v_fma_f32 v{dst}, v{dst}, s52, {ph}
        v_mul_f32 v{step}, s52, v{ef}'''
    f = Q(k)
    f.lines(f'''v_lshlrev_b32 v{T}, 3, v8
    v_add_u32 v{T}, v{T}, v6
    v_lshlrev_b32 v{T}, 2, v{T}
    s_lshl_b32 s57, s3, 8
    v_add_u32 v9, s57, v{T}          ; partial write addr
    v_lshlrev_b32 v241, 2, v2        ; partial read addr
    v_lshlrev_b32 v244, 2, v6
    v_mov_b32 v245, 0''')
    for i in range(0, 8, 2): f.add(f'v_mov_b64 {P(AC+i)}, 0')
    if not Z:
        f.lines(f'''
        s_lshl_b32 s6, s33, 2
        v_lshl_add_u32 v12, v5, 1, s6    ; 4kk+2h
        s_lshl_b32 s6, s32, 6
        v_add_u32 v{T}, s6, v12
        v_cvt_f32_u32 v{T}, v{T}         ; d0
        v_lshlrev_b32 v12, 2, v12        ; bpermute addr
        s_lshl_b32 s6, s43, 5
        v_add_u32 v{T+1}, s6, v4
        v_cmp_eq_u32 vcc, 0, v{T+1}
        v_cvt_f32_u32 v{T+1}, v{T+1}''')
        f.add(f'''s_cmp_eq_u32 s42, 1
        s_cselect_b32 s6, {f2h(-0.25)}, 0
        s_cselect_b32 s7, {f2h(224.0)}, 0''')
        f.lines(f'''v_mov_b32 v{T+2}, s6
        v_mov_b32 v{T+3}, s7
        v_cndmask_b32 v{T+3}, v{T+1}, v{T+3}, vcc
        v_cndmask_b32 v{T+4}, v{T+2}, 0, vcc''')
        for jj in range(4):
            if jj: f.add(f'v_add_f32 v{T+1}, {f2h(64.0)}, v{T+1}')
            f.lines(ang0(T+5, T+6, T+3 if jj == 0 else T+1, T, f'v{T+4}' if jj == 0 else f'v{T+2}'))
            for n in range(8): f.add(f'v_fmamk_f32 v{CS+8*jj+n}, v{T+6}, {f2h(16*(n&3)+(n>>2))}, v{T+5}')
            for n in range(8): f.add(f'v_cos_f32 v{CS+8*jj+n}, v{CS+8*jj+n}')
        f.lines(f'''s_mul_i32 s58, s3, 28
        s_lshl_b32 s7, s32, 2
        s_add_u32 s58, s58, s7
        s_add_u32 s58, s58, s33
        s_lshl_b32 s58, s58, 10
        s_add_u32 s58, s58, {WS_CP}
        s_mul_i32 s7, s33, 7
        s_add_u32 s7, s7, s32
        s_lshl_b32 s59, s7, 10
        s_add_u32 s59, s59, {WS_FLAG}''')
        if not C['pw']: f.add('s_cmp_lt_u32 s7, 20\ns_cselect_b32 s59, s59, 0x7fff0000\ns_cmp_eq_u32 s3, 3\ns_cselect_b32 s59, s59, 0x7fff0000')
        else: f.add(f's_cmp_lt_u32 s7, 24\ns_mov_b32 s6, 0x7f000000\ns_cselect_b32 s6, {FL_B+8192}, s6\ns_cmp_lt_u32 s7, 20\ns_cselect_b32 s6, 0, s6\ns_cmp_eq_u32 s3, 2\ns_cselect_b32 s6, {FL_B}, s6\ns_add_u32 s59, s59, s6')
    else:
        f.lines(f'v_cvt_f32_u32 v{T+1}, v0\ns_lshl_b32 s6, s33, 7\nv_cvt_f32_u32 v{T}, s6')
        for t in range(2):
            f.lines(ang0(13, 14, T+1, T, '0') + f'\nv_add_f32 v{T}, {f2h(64.0)}, v{T}')
            for n in range(0, 64, 4):
                for i in range(4): f.add(f'v_fmamk_f32 v{T+2+i}, v14, {f2h(n+i)}, v13')
                for i in range(4): f.add(f'v_cos_f32 v{T+2+i}, v{T+2+i}')
                for i in range(2): f.add(f'v_cvt_pk_bf16_f32 v{CS+32*t+n//2+i}, v{T+2+2*i}, v{T+3+2*i}')
    for n in range(8): f.cyc(56); lq.emit(1)
    f.cyc(100)
    if Z: f.cyc(C['z_f0'])
    k.stamp(2)
    k.wait(vm='c')
    for txt in ('v_lshlrev_b32 v#, 16, v#', f'v_mul_f32 v@, {f2h(-LOG2E)}, v#', 'v_exp_f32 v@, v@', 'v_add_f32 v@, 1.0, v@', 'v_rcp_f32 v@, v@', 'v_mul_f32 v#, v#, v@', 'v_cvt_pk_bf16_f32 v#, v#, v245'):
        for r in range(2): k.e(txt.replace('#', str(10+r)).replace('@', str(246+r)))
    for i in range(14): k.ds_op(f'ds_bpermute_b32 v{SL+i}, v244, v{10+i//7} offset:{32*(i%7)}', f'sl{i}')
    lq.emit(2)
    if Z:
        while len(f): f.cyc(C['z_pace']); lq.emit(1)
    f.flush()
    k.stamp(3)
    def gemv(t, split=99, mid=None):
        if t:
            for i in range(0, 8, 2): k.e(f'v_mov_b64 {P(AC+i)}, 0')
        for i in range(14):
            if i == split: mid()
            k.wait(vm=f'w{t}_{i}', lg=f'sl{i}')
            if Z or len(lq) > 14 or (t == 0 and i < C['sd_l1']): lq.emit(1)
            k.e(f'v_lshlrev_b32 v{T}, 16, v{SL+i}')
            for d in range(4): k.e(f'v_dot2_f32_bf16 v{AC+2*d}, v{W+56*t+4*i+d}, v{SL+i}, v{AC+2*d}')
            for d in range(4): k.e(f'v_dot2_f32_bf16 v{AC+2*d+1}, v{W+56*t+4*i+d}, v{T}, v{AC+2*d+1}')
        for i in range(4): k.e(f'v_permlane32_swap_b32 v{AC+i}, v{AC+4+i}')
        for i in range(0, 4, 2): k.e(f'v_pk_add_f32 {P(AC+i)}, {P(AC+i)}, {P(AC+4+i)}')
        for i in range(2): k.e(f'v_permlane16_swap_b32 v{AC+i}, v{AC+2+i}')
        k.e(f'''v_pk_add_f32 {P(AC)}, {P(AC)}, {P(AC+2)}
        v_add_f32_dpp v{AC+2}, v{AC}, v{AC} row_ror:8 row_mask:0xf bank_mask:0xf
        v_add_f32_dpp v{AC+2}, v{AC+1}, v{AC+1} row_ror:8 row_mask:0xf bank_mask:0xc''')
        k.ds_op(f'ds_write_b32 v9, v{AC+2} offset:{1024*t}')
    def gemv_fin(t):
        for i in range(2): k.ds_op(f'ds_read2st64_b32 {P(AC+2*i)}, v241 offset0:{4*t+2*i} offset1:{4*t+2*i+1}')
        k.wait(lg='all')
        k.e(f'''v_pk_add_f32 {P(AC)}, {P(AC)}, {P(AC+2)}
        v_add_f32 v{AC}, v{AC}, v{AC+1}
        v_cvt_pk_bf16_f32 v{AC}, v{AC}, v{AC}
        v_and_b32 v{AC}, 0xffff0000, v{AC}''')
        if not Z: k.e(f'''v_add_f32 v{AC+1}, 1.0, v{AC}
        v_cvt_pk_bf16_f32 v{AC+1}, v{AC+1}, v{AC+1}
        v_and_b32 v{AC+1}, 0xffff0000, v{AC+1}''')
    def zfin():
        for t in range(2):
            gemv_fin(t)
            if t: k.e(f's_cmp_eq_u32 s33, 3\ns_cselect_b32 s6, 0, -1\nv_and_b32 v{AC}, s6, v{AC}')
            else: k.e(f'v_lshl_add_u32 v{T}, v2, 1, s57\nv_mov_b32 v{T+1}, s57')
            k.e(f'ds_write_b16_d16_hi v{T}, v{AC} offset:{4096+128*t}')
        for i in range(16): k.ds_op(f'ds_read_b128 {v(W+4*i,4)}, v{T+1} offset:{4096+16*i}', f'z{i}')
        k.e(f'''v_mov_b64 {P(AC+2)}, 0
        v_mov_b64 {P(AC+4)}, 0
        s_lshl_b32 s6, s33, 10
        s_add_u32 s6, s6, {WS_ZF}
        v_lshlrev_b32 v{T}, 2, v0
        v_cmp_ge_u32 vcc, 224, v0
        v_mov_b32 v{T+2}, 0x7fff0000
        v_add_u32 v{T+1}, 896, v{T}
        v_cndmask_b32 v{T}, v{T+2}, v{T}, vcc
        v_subrev_u32 v{T+3}, 1, v0
        v_cmp_gt_u32 vcc, 31, v{T+3}
        v_cndmask_b32 v{T+1}, v{T+2}, v{T+1}, vcc''')
        for i in range(16):
            k.wait(lg=f'z{i}')
            for d in range(4): k.e(f'v_dot2_f32_bf16 v{AC+2+d}, v{CS+4*i+d}, v{W+4*i+d}, v{AC+2+d}')
        k.e(f'''v_pk_add_f32 {P(AC+2)}, {P(AC+2)}, {P(AC+4)}
        v_add_f32 v{AC+2}, v{AC+2}, v{AC+3}
        v_cvt_pk_bf16_f32 v{AC+3}, v{AC+2}, v{AC+2}
        v_and_b32 v{AC+3}, 0xffff0000, v{AC+3}
        v_sub_f32 v{AC+3}, v{AC+2}, v{AC+3}
        v_cvt_pk_bf16_f32 v{AC+2}, v{AC+2}, v{AC+3}''')
        k.vm_op(f'buffer_store_dword v{AC+2}, v{T}, s[12:15], s6 offen sc1')
        k.vm_op(f'buffer_store_dword v{AC+2}, v{T+1}, s[12:15], s6 offen sc1')
    gemv(0); k.stamp(4)
    if not Z:
        k.wait(lg='all'); k.e('s_barrier'); gemv_fin(0); k.stamp(5)
        for n in range(8): k.e(f'ds_bpermute_b32 v{DF+n}, v12, v{AC+1} offset:{4*(16*(n&3)+(n>>2))}')
        k.e('s_waitcnt lgkmcnt(0)')
        for jj in range(4):
            if jj == 3:
                k.e('s_cmp_eq_u32 s43, 1\ns_cselect_b32 s58, s59, s58\ns_cselect_b32 s6, 0, -1')
            for n in range(0, 8, 2): k.e(f'v_pk_mul_f32 {P(CS+8*jj+n)}, {P(CS+8*jj+n)}, {P(DF+n)}')
            for r in range(4): k.e(f'v_cvt_pk_bf16_f32 v{W+4*jj+r}, v{CS+8*jj+2*r}, v{CS+8*jj+2*r+1}')
            if jj == 3:
                for r in range(4): k.e(f'v_and_b32 v{W+12+r}, s6, v{W+12+r}')
            k.vm_op(f'buffer_store_dwordx4 {v(W+4*jj,4)}, v3, s[12:15], s58 offen sc1', 'cp')
            if jj < 3: k.e(f's_add_u32 s58, s58, {4*28*1024}')
    else: k.stamp(5)
    k.stamp(6); k.st('sd1'); k.e('s_load_dword s75, s[28:29], 0x0')
    if C['sd_bar'] and not Z: k.e('s_barrier')
    lq.emit(C['sd_l1b'])
    k.e(f'''
    s_lshr_b32 s36, s32, 1
    s_lshl_b32 s6, s33, 2
    s_add_u32 s36, s36, s6           ; idx
    s_and_b32 s6, s32, 1
    s_mul_i32 s6, s6, 14
    s_add_u32 s37, s6, s36           ; 2m+half
    s_cmp_eq_u32 s42, 0
    s_cselect_b32 s48, s16, s18
    s_cselect_b32 s49, s17, s19
    s_and_b32 s49, s49, 0xffff
    s_cmp_lt_u32 s36, 14
    s_cselect_b32 s50, {448*3584}, 0
    s_mov_b32 s51, 0x20000
    v_bfe_u32 v{T}, v2, 4, 1
    v_lshlrev_b32 v{T}, 2, v{T}
    v_xor_b32 v{T}, v{T}, v8
    v_mul_u32_u24 v15, 3584, v6
    v_lshl_add_u32 v15, v{T}, 4, v15
    s_mul_i32 s54, s43, {224*3584}
    s_lshl_b32 s6, s37, 7
    s_add_u32 s54, s54, s6
    s_mul_i32 s55, s42, 57344
    s_mul_i32 s6, s43, 28672
    s_add_u32 s56, s55, s6
    s_add_u32 m0, s56, {S_W + (16*1024 if C['sd_ord'] else 0)}
    s_add_u32 s54, s54, {16*8*3584 if C['sd_ord'] else 0}
    s_cmp_eq_u32 s43, {0 if C['sd_ord'] else 's43'}
    s_cselect_b32 s64, 1, -1
    s_cselect_b32 s66, -27, s64
    s_cselect_b32 s68, s64, 27
    s_mul_i32 s65, s64, {8*3584}
    s_mul_i32 s67, s66, {8*3584}
    s_mul_i32 s69, s68, {8*3584}
    s_lshl_b32 s64, s64, 10
    s_lshl_b32 s66, s66, 10
    s_lshl_b32 s68, s68, 10
    s_lshl_b32 s58, s32, 7
    s_lshl_b32 s6, s3, 12
    s_add_u32 s58, s58, s6
    s_add_u32 s24, s30, {WS_FLAG}
    s_addc_u32 s25, s31, 0
    s_mov_b32 s74, 1
    ''')
    wq = Q(k)
    for i in range(28):
        r = (66 if i == 12 else 68 if i == 17 else 64) if C['sd_ord'] else 64
        wq.vm(f's_add_u32 m0, m0, s{r}\ns_add_u32 s54, s54, s{r+1}' if i else None, 'buffer_load_dwordx4 v15, s[48:51], s54 offen lds', 'wst')
    if not Z: k.e(f'''
    s_lshl_b32 s6, s32, 6
    v_add_u32 v{DF}, s6, v2          ; col
    v_cmp_le_u32 vcc, 224, v{DF}
    v_sub_u32 v{DF+1}, 448, v{DF}
    v_cndmask_b32 v{DF+1}, v{DF}, v{DF+1}, vcc
    v_cndmask_b32 v{DF+2}, 0, 32, vcc
    v_cmp_eq_u32 vcc, 224, v{DF+1}
    v_cndmask_b32 v{DF+1}, v{DF+1}, 0, vcc
    v_lshrrev_b32 v{DF+3}, 5, v{DF+1}
    v_lshl_add_u32 v{DF+2}, v{DF+3}, 6, v{DF+2}
    v_and_b32 v{DF+1}, 31, v{DF+1}
    v_add_u32 v{DF+1}, v{DF+1}, v{DF+2} ; position
    s_mov_b32 s60, {WS_MOD+GA_P}
    s_cmp_eq_u32 s33, 3
    s_cselect_b64 vcc, -1, 0
    s_cselect_b32 s60, {WS_MOD+GB_N}, s60
    v_cndmask_b32 v{DF+1}, v{DF+1}, v{DF}, vcc
    s_mov_b32 s61, 0x7fff0000
    s_cmp_eq_u32 s33, 1
    s_cselect_b32 s61, {WS_MOD+SB_K}, s61
    s_cselect_b32 s60, 0x7fff0000, s60
    s_cmp_eq_u32 s33, 2
    s_cselect_b64 vcc, -1, 0
    s_cselect_b32 s60, {WS_MOD+CB1_P}, s60
    s_cselect_b32 s61, {WS_MOD+CB1_K}, s61
    v_lshlrev_b32 v{DF+1}, 2, v{DF+1}
    v_lshlrev_b32 v{DF}, 1, v{DF}
    ''')
    def midsig():
        k.wait(vm='cp', lg='all'); k.e('s_barrier'); ready_loop(k, 242, 243)
        for i in range(4): k.e(f's_atomic_add s74, s[24:25], s58 offset:{FL_BAR+1024*i}')
        k.stamp(7); k.st('sd2'); lq.flush()
    assert C['sd_split'] < 14
    gemv(1, C['sd_split'] if not Z else 99, midsig)
    k.wait(lg='all'); k.e('s_barrier')
    if Z: ready_loop(k, 242, 243); k.stamp(7)
    if Z:
        zfin()
        k.wait(vm='all'); k.e('s_barrier'); signal(k, FL_Z)
        return
    k.e('s_cmp_lg_u32 s3, 0\ns_cbranch_scc1 SD_G4')
    gemv_fin(1)
    k.e(f'''v_cndmask_b32 v{AC}, v{AC}, v{AC+1}, vcc
    buffer_store_dword v{AC}, v{DF+1}, s[12:15], s60 offen sc1
    buffer_store_short_d16_hi v{AC}, v{DF}, s[12:15], s61 offen sc1
    s_barrier
    s_waitcnt vmcnt(0)''')
    for r in list(range(0, 16, 2)) + [3, 5]: k.e(f's_atomic_add s74, s[24:25], {FL_BAR+1024*r+7*128}')
    k.e('s_branch SD_G3\nSD_G4:\ns_barrier')
    return wq

def side_tail(k, wq, C):
    T = TS
    k.e('SD_G3:'); k.vm = []; k.lg = []
    k.stamp(8); k.st('sd3')
    k.e('s_cmp_lt_u32 s36, 14\ns_cbranch_scc0 ' + ('SD_PF' if C['sd_pf'] else 'KP_END'))
    f = Q(k)
    f.lines(f'''
    s_lshr_b32 s38, s37, 1
    s_lshl_b32 s38, s38, 7
    s_add_u32 s38, s38, {FL_SIDE}
    s_and_b32 s39, s32, 1
    s_lshl_b32 s39, s39, 11
    s_add_u32 s39, s39, {FL_MODS}''')
    f.lines(f'''v_bfe_u32 v{T}, v2, 2, 2
    v_lshl_add_u32 v{T+1}, v5, 3, v{T}
    v_lshlrev_b32 v8, 7, v{T+1}
    v_lshrrev_b32 v{T}, 1, v{T}
    v_xor_b32 v{T}, s43, v{T}
    v_lshl_add_u32 v8, v{T}, 6, v8
    v_bfe_u32 v{T}, v2, 4, 1
    v_lshl_add_u32 v8, v{T}, 5, v8
    v_and_b32 v{T}, 3, v2
    v_lshl_add_u32 v8, v{T}, 3, v8
    s_add_u32 s55, s55, {S_W}
    v_add_u32 v8, s55, v8            ; tr read addr
    v_and_b32 v9, 1, v2
    v_mul_u32_u24 v9, 1152, v9
    v_lshl_add_u32 v9, v5, 4, v9     ; vec read addr
    s_lshl_b32 s19, s37, 2
    s_add_u32 s19, s19, s3
    s_lshl_b32 s19, s19, 9
    s_add_u32 s19, s19, {WS_WEXT}''')
    if C['sd_late']:
        f.flush(); poll_issue(k, 's39', 's0', 1); poll_check(k, 's39', 28, 's0', 1); k.e('s_barrier')
    while len(wq): wq.emit(1); f.emit(3)
    poll_issue(k, 's39', 's0', 1)
    k.wait(vm='all'); k.e('s_barrier')
    poll_check(k, 's39', 28, 's0', 1)
    k.e(f's_cmp_lg_u32 s3, 1\ns_cbranch_scc1 SD_V\ns_mov_b32 m0, 4096\ns_mov_b32 s6, {WS_MOD+CB1_K}')
    k.e('buffer_load_dwordx4 v3, s[12:15], s6 offen sc1 lds\ns_mov_b32 m0, 4224\ns_nop 0\nbuffer_load_dwordx4 v3, s[12:15], s6 offen offset:1024 sc1 lds\nSD_V:')
    for ks in range(28):
        for hf in range(2): k.ds_op(f'ds_read_b64_tr_b16 {a(4*ks+2*hf,2)}, v8 offset:{2048*ks+512*hf}')
    k.wait(vm='all'); k.e('s_barrier'); k.stamp(9); k.st('sd4')
    A2 = 240
    def rd(ks): k.ds_op(f'ds_read_b128 {v(W+4*ks,4)}, v9 offset:{4096+32*ks}', f'a{ks}')
    for ks in range(6): rd(ks)
    for ks in range(28):
        k.wait(lg=f'a{ks}')
        c = '0' if ks == 0 else v(A2,16)
        k.e(f'v_mfma_f32_32x32x16_bf16 {v(A2,16)}, {v(W+4*ks,4)}, {a(4*ks,4)}, {c}')
        if ks+6 < 28: rd(ks+6)
    k.e(f'''
    v_cvt_pk_bf16_f32 v9, v{A2}, v{A2+1}
    v_lshlrev_b32 v12, 16, v9
    v_and_b32 v13, 0xffff0000, v9
    v_sub_f32 v12, v{A2}, v12
    v_sub_f32 v13, v{A2+1}, v13
    v_cvt_pk_bf16_f32 v8, v{A2}, v12
    v_cvt_pk_bf16_f32 v10, v13, v{A2+1}
    v_mov_b32 v11, 0
    s_mov_b32 exec_hi, 0
    ''')
    k.vm_op('buffer_store_dwordx4 v[8:11], v3, s[12:15], s19 offen sc1')
    k.e('s_mov_b32 exec_hi, -1'); k.wait(vm='all'); k.e('s_barrier'); signal(k, 's38')
    if C['sd_pf']:
        k.e(f'''SD_PF:
    s_add_u32 s24, s30, {WS_FLAG+FL_WD}
    s_addc_u32 s25, s31, 0
    s_and_b32 s34, s32, 1
    s_lshl_b32 s6, s34, 10
    s_lshl_b32 s7, s3, 8
    s_add_u32 s6, s6, s7
    s_cmp_eq_u32 s3, 3
    s_cselect_b32 s7, 0, 128
    s_add_u32 s7, s7, s6
    s_lshl_b32 s35, s33, 2
    s_add_u32 s35, s35, s3
    s_mul_i32 s35, s35, 56
    v_min_u32 v6, 55, v2
    v_add_u32 v6, s35, v6
    v_lshrrev_b32 v7, 5, v6
    v_and_b32 v6, 31, v6
    v_mul_u32_u24 v7, 57344, v7
    v_lshl_add_u32 v6, v6, 7, v7
    s_mul_i32 s34, s34, {7*4096}
    s_sub_u32 s35, {WS_WDP+7*4096}, s34
    s_add_u32 s34, s34, {WS_WDP}
    s_mov_b32 s1, 0
SD_PL:
    s_mov_b32 s0, 0
    s_mov_b32 s4, 0
    s_atomic_add s0, s[24:25], s6 glc
    s_atomic_add s4, s[24:25], s7 glc
    s_add_u32 s1, s1, 1
    s_waitcnt lgkmcnt(0)
    s_add_u32 s0, s0, s4
    s_cmp_eq_u32 s0, 56
    s_cbranch_scc1 SD_PD
    s_sleep 8
    s_cmp_lt_u32 s1, {SPIN_MAX}
    s_cbranch_scc1 SD_PL
SD_PD:
    s_barrier''')
        for j, (own, lo) in enumerate(C['sd_pf']):
            k.e(f's_add_u32 s6, s{34 if own else 35}, {4096*lo}\nbuffer_load_dword v{16+j}, v6, s[12:15], s6 offen sc1')
    if K.MARK and K.MARK.startswith('sd'): k.mark_spin()
    k.stamp_out(0, 11)
```

```python
from asmlib import *
from layout2 import *
import math, os
NSIDE = 32; NMAIN = 224; GRID = 256
LDS_ALL = 163840
RX = int(os.environ.get('RX', 0)); RSH = int(os.environ.get('RSH', 0)); NREP = 18; assert not RX and not RSH
SPIN_MAX = 1 << 20
DELT = [16*a + 8*(n >> 2) + (n & 3) for a in range(2) for n in range(8)]
LOG2E = math.log2(math.e)
CFG = dict(sd_pf=[], x_first=0, poll1b=2, poll1c=15, sd_bar=1, rdy=2, z_f0=700, z_pace=64, mp1=8, ld1=0, f3_post=0, r1sep=0, ssig=1, sd_split=0, sd_l1=0, p1_w3_t=0, sd_late=0, p1_fill0=40, p1_ld_pre=10, p1_fill=64, pf_ca=1, pf_mod=2, pf_a=2, c2_at=6, sd_l1b=8, wl_early=1, w3_at=8, cold_at=101, c2_bar=1, cq_from=2, cold_rate=3, cold_a=0, join=0, x1at=0, xs_first=1, pw=0, pw_pad=(5,18), w2=0, l2=(0,0), l2f=0, z_at=3, wswap=0, cold_n=99, pf_b=1, wl_c2=0, sd_ord=1, wl_nat=0, p1_split=0, p1_f2=120, p1_fill_drain0=300, p1_w3_ld=2, p1_w3_a=0, p1_w3_b=0, p1_w3_c=0, p1_w3_drain=4, p1_fill_drain=32, p1_fill_drain2=0, poll1_at=11, f3_pre=0, p2_f3=16,
           p2_pre=4, p2_pre2=4, p2_rate=1, r2_from=2, r2_kk=(1,3), r2_sb=(2,4,6), r2_6=1, wd_from=9, pollW=4, r2_a=1, r2_b=2, r2_c=0, p2_modi=-1, p2_mod=4, r2_pre=1, su_drain=420, r3_drain=10, pollA=(0,5,9), paceA=4, wd_flag=0, pg5=(2,5), pg6='e', hrot=0, abl=(), a1_bar=1, r4=0, a1b_ks=25, wd_early=0, xp=1, tr_rate=1, su_ks=12, tr_late=1, su_go=200, x0=6, su_span=10, a1_pre=2, st_ks=25, wd_st=(7,0,12),
           w64=0, bar2=0, rr=0, flip=0, rrh=0, gap=(24,24,28), vmc=8, epi_span=(20,18,12), sigB0=(2,12), pollB0=((2,20),), c0_n=3, w3s=13, c0_ks=6, sigB01=(3,6), pollB01=((3,10),(3,14)), c01_ks=22, sigB2=28, u_ld=1, e_ld=2, p4_burst0=0, sg_pk=2, sg_rate=28, p4_poll2=(0,2,4), p4_c2=7, p4_sig3=7, p4_poll3=(8,10,12), p4_c3=15, p4_b0=0, p4_burst=0, out_pol='sc1')

ABL = set()
class Q:
    def __init__(self, k): self.k = k; self.q = []; self.debt = 0
    def add(self, *atoms): self.q.extend(atoms)
    def lines(self, txt): self.q.extend([l.strip() for l in txt.strip().split('\n') if l.strip()])
    def vm(self, pre, txt, tag=None):
        if pre: self.q.append(lambda: (self.k.e(pre), self.k.vm_op(txt, tag)))
        else: self.q.append(('vm', txt, tag))
    def emit(self, n=1):
        c = 0
        while self.q and c < n:
            x = self.q.pop(0)
            if isinstance(x, tuple):
                (self.k.vm_op if x[0] == 'vm' else self.k.ds_op)(x[1], x[2]); c += 1
            elif callable(x): x(); c += 1
            else: self.k.e(x); c += len(x.strip().split('\n'))
    def cyc(self, budget):
        self.debt += budget
        while self.q and self.debt > 0:
            n0 = len(self.k.L); self.emit(1)
            for l in self.k.L[n0:]:
                mn = l.split()[0]
                self.debt -= 8 if mn in TRANS else 12 if mn.startswith('buffer_') else 4
        if not self.q: self.debt = 0
    def cost(self):
        return sum((12 if isinstance(x, tuple) else 8 if x.split()[0] in TRANS else 4*len(x.strip().split('\n'))) for x in self.q)
    def flush(self): self.emit(1 << 30)
    def __len__(self): return len(self.q)

PAGES = int(os.environ.get('PAGES', 1))
def page(k, n, ret=None, touch=None):
    assert PAGES
    for w, p in (touch or {}).items(): k.e(f's_cmp_eq_u32 s3, {w}\ns_cbranch_scc1 PT_{p}')
    k.e(f's_branch PL_{n}')
    for x in getattr(k, 'ool', []): k.e(x)
    k.ool = []
    k.e(f'PE_{n}:\n.p2align 12\nPT_{n}:')
    if ret is not None: k.e(f's_branch PL_{ret}' + '\ns_nop 0'*int(os.environ.get('PADN', 1)))
    k.e(f'PL_{n}:')
def t1_txt(dst, g, b, tmp):
    return f'''s_sub_u32 {tmp}, 64, {g}
    s_cmp_eq_u32 {g}, 0
    s_cselect_b32 {tmp}, 32, {tmp}
    s_cmp_eq_u32 {b}, 0
    s_cselect_b32 {dst}, {g}, {tmp}'''
def srd_txt(d, base, size): return f's_mov_b32 s{d}, s{base}\ns_and_b32 s{d+1}, s{base+1}, 0xffff\ns_mov_b32 s{d+2}, {size}\ns_mov_b32 s{d+3}, 0x20000'
P = lambda r: v(r, 2)

def signal(k, off, wave=0):
    l = k.label('SIG')
    k.e(f's_cmp_lg_u32 s3, {wave}\ns_cbranch_scc1 {l}\ns_mov_b32 s74, 1\ns_atomic_add s74, s[24:25], {off}\n{l}:')
def poll_issue(k, off, r='s0', wave=0):
    l = k.label('PI')
    k.e(f's_cmp_lg_u32 s3, {wave}\ns_cbranch_scc1 {l}\ns_mov_b32 {r}, 0\ns_atomic_add {r}, s[24:25], {off} glc\n{l}:')
def poll_check(k, off, target, r='s0', wave=0):
    l, d = k.label('PC'), k.label('PD')
    k.e(f'''s_cmp_lg_u32 s3, {wave}
    s_cbranch_scc1 {d}
    s_mov_b32 s1, 0
{l}:
    s_waitcnt lgkmcnt(0)
    s_cmp_ge_u32 {r}, {target}
    s_cbranch_scc1 {d}
    s_add_u32 s1, s1, 1
    s_cmp_gt_u32 s1, {SPIN_MAX}
    s_cbranch_scc1 {d}
    s_mov_b32 {r}, 0
    s_atomic_add {r}, s[24:25], {off} glc
    s_branch {l}
{d}:''')
MP = [76, 77, 78]
def gsignal(k, off, wave):
    l = k.label('SIG')
    k.e(f's_cmp_lg_u32 s3, {wave}\ns_cbranch_scc1 {l}\ns_atomic_add s74, s[30:31], {off}\n{l}:')
def fladdr(off, other): return f's[24:25], s79 offset:{off}' if other else f's[30:31], {off}'
def mp_issue(k, off, j, wave, other=False):
    if 'pol' in ABL and off: return
    l = k.label('MI')
    k.e(f's_cmp_lg_u32 s3, {wave}\ns_cbranch_scc1 {l}\ns_mov_b32 s{MP[j]}, -1\ns_atomic_and s{MP[j]}, {fladdr(off, other)} glc\n{l}:')
def mp_check(k, off, target, wave, other=False, pace=4):
    if 'chk' in ABL and (off, target) != (0, 7): return
    l, d = k.label('MC'), k.label('MD'); r = [k.label('MR') for _ in MP]
    t = f's_cmp_lg_u32 s3, {wave}\ns_cbranch_scc1 {d}\ns_mov_b32 s1, -1\n{l}:\n'
    for p in MP: t += f's_cmp_ge_i32 s{p}, {target}\ns_cbranch_scc1 {d}\n'
    t += f's_add_u32 s1, s1, 1\ns_cmp_gt_u32 s1, {SPIN_MAX*4}\ns_cbranch_scc1 {d}\ns_and_b32 s0, s1, {pace-1}\ns_cbranch_scc1 {l}\n'
    for p, x in zip(MP, r): t += f's_cmp_lg_u32 s{p}, -1\ns_cbranch_scc1 {x}\n'
    t += f's_branch {l}\n'
    for p, x in zip(MP, r): t += f'{x}:\ns_cmp_ge_i32 s{p}, {target}\ns_cbranch_scc1 {d}\ns_mov_b32 s{p}, -1\ns_atomic_and s{p}, {fladdr(off, other)} glc\ns_branch {l}\n'
    k.e(t + f'{d}:')
PWR = [[22], [23, 26], [27, 28, 29], [60, 61, 82]]
def pw_signal(k, f): k.e(f's_atomic_add s74, s[24:25], s20 offset:{128*f}')
def pw_poll(k, f, j, other): k.e(f's_mov_b32 s{PWR[f][j]}, -1\ns_atomic_and s{PWR[f][j]}, s[24:25], s{21 if other else 20} offset:{128*f} glc')
def pw_pre(k, f):
    R = PWR[f]
    if len(R) > 1: k.e(f's_max_i32 s0, s{R[0]}, s{R[1]}')
    if len(R) > 2: k.e(f's_max_i32 s0, s0, s{R[2]}')
    k.e(f's_cmp_ge_i32 s{R[0] if len(R) == 1 else 0}, 14')
def pw_check(k, f, other, pace=4):
    R = PWR[f]; l, d = k.label('WC'), k.label('WD'); r = [k.label('WR') for _ in R]
    k.e(f's_cbranch_scc0 {l}S\n{d}:')
    t = f'{l}S:\ns_mov_b32 s1, -1\n{l}:\n'
    for p in R: t += f's_cmp_ge_i32 s{p}, 14\ns_cbranch_scc1 {d}\n'
    t += f's_add_u32 s1, s1, 1\ns_cmp_gt_u32 s1, {SPIN_MAX*4}\ns_cbranch_scc1 {d}\ns_and_b32 s0, s1, {pace-1}\ns_cbranch_scc1 {l}\n'
    for p, x in zip(R, r): t += f's_cmp_lg_u32 s{p}, -1\ns_cbranch_scc1 {x}\n'
    t += f's_branch {l}\n'
    for p, x in zip(R, r): t += f'{x}:\ns_cmp_ge_i32 s{p}, 14\ns_cbranch_scc1 {d}\ns_mov_b32 s{p}, -1\ns_atomic_and s{p}, s[24:25], s{21 if other else 20} offset:{128*f} glc\ns_branch {l}\n'
    k.ool.append(t)
def reread(k, soff, junk):
    k.e('s_mov_b64 exec, 0xffff'); k.vm_op(f'buffer_load_dword v{junk}, v2, s[12:15], {soff} offen sc1'); k.e('s_mov_b64 exec, -1')
def lds_pad(k, n, junk):
    for _ in range(n): k.ds_op(f'ds_read_b32 v{junk}, v6')
def ready_loop(k, vz, vr):
    l, g = k.label('BS'), k.label('BG')
    k.e(f'''s_cmp_lg_u32 s75, 0
    s_cbranch_scc1 {g}
    s_mov_b32 s1, 0
    v_mov_b32 v{vz}, 0
{l}:
    s_sleep 8
    global_load_dword v{vr}, v{vz}, s[28:29] sc1
    s_add_u32 s1, s1, 1
    s_waitcnt vmcnt(0)
    v_readfirstlane_b32 s75, v{vr}
    s_cmp_gt_u32 s1, {SPIN_MAX}
    s_cbranch_scc1 {g}
    s_cmp_lg_u32 s75, 0
    s_cbranch_scc0 {l}
{g}:''')

P2_X, P2_GC, P2_XI = 114688, 126976, 151552
IMG = 29696; KSP = 4*IMG
ACC0 = 16; RING = 80; WX = 96; ET = 104
REGI = [0, 1, 4, 5, 8, 9, 12, 13, 2]; LDSI = [3, 6, 7, 10, 11]
WDL = [120832, 120832+16384, 0, 16384, 32768]
X1L = 59392; RED = 71680; XR = 128
R1A = int(os.environ.get('R1A', 0)); R1N = int(os.environ.get('R1N', 10)); R1L = 65536 - 8192*R1A
ROTMASK = int(os.environ.get('ROT', 0))
TLB_OFF = 0x23000
VD, VM, VS, TB = 208, 209, 210, 211
WSLOT = {3: 0, 6: 1, 7: 2, 10: 3, 11: 4}
def wdreg(i, f):
    n = REGI.index(i)*4 + f
    return v(144+4*n, 4) if n < 28 else a(224+4*(n-28), 4)
def acc4(rl, t): return ACC0 + 32*rl + 16*t

def gen_kp(cfg=None):
    C = dict(CFG); C.update(cfg or {})
    if C['wswap']: WSLOT.update({6: 0, 10: 1, 3: 2, 7: 3, 11: 4})
    ABL.clear(); ABL.update(C['abl'])
    k = K(); k.stamp(0); k.st('start')
    k.e(f'''
    {'s_load_dwordx2 s[4:5], s[0:1], 0' if C['xs_first'] else ''}
    s_load_dwordx16 s[16:31], s[0:1], 48
    s_getpc_b64 s[6:7]
KP_PC:
    s_lshr_b32 s33, s2, 3
    v_and_b32 v1, 15, v0
    v_lshl_add_u32 v1, s33, 4, v1
    v_lshlrev_b32 v1, 7, v1
    v_min_u32 v1, KP_LAST-KP_PC-4, v1
    global_load_dword a255, v1, s[6:7]
    s_andn2_b32 s32, s2, 24
    s_cmp_lt_u32 s32, 7
    s_cbranch_scc1 KP_SIDE
    s_cmp_eq_u32 s32, 7
    s_cbranch_scc1 SD_Z
    {'s_load_dwordx2 s[4:5], s[0:1], 0' if not C['xs_first'] else ''}
    s_cmp_ge_u32 s2, {GRID}
    s_cbranch_scc1 KP_END
    v_lshrrev_b32 v1, 6, v0
    v_and_b32 v2, 63, v0
    v_readfirstlane_b32 s3, v1
    v_lshlrev_b32 v3, 4, v2          ; lane*16
    v_and_b32 v4, 31, v2             ; lane&31
    v_lshrrev_b32 v5, 5, v2          ; h
    s_mov_b32 s14, {WS_END}
    s_mov_b32 s15, 0x20000
    s_and_b32 s34, s2, 1             ; hi
    s_lshr_b32 s35, s2, 3
    s_sub_u32 s35, s35, {NSIDE//8}
    s_mul_i32 s33, s35, 37
    s_lshr_b32 s33, s33, 8           ; gl = q/7
    s_and_b32 s6, s2, 7
    s_lshl_b32 s6, s6, 1
    s_lshr_b32 s7, s33, 1
    s_add_u32 s6, s6, s7             ; pair p
    s_sub_u32 s7, 32, s6
    s_cmp_eq_u32 s6, 0
    s_cselect_b32 s7, 16, s7
    s_bitcmp1_b32 s33, 0
    s_cselect_b32 s36, s7, s6        ; g
    s_and_b32 s32, s2, 6
    s_lshl1_add_u32 s32, s32, s33          ; G
    s_mul_i32 s33, s33, 7
    s_sub_u32 s35, s35, s33          ; lo
    s_mul_i32 s33, s34, 7
    s_add_u32 s33, s33, s35          ; mem
    ''')
    f = P1(k, C)
    P2(k, C, f)
    P3(k, C)
    P4(k, C)
    k.st('end')
    if K.MARK and not K.MARK.startswith('sd'): k.mark_spin()
    k.stamp_out(0, len(K.NAMES or [])+2)
    k.e('s_endpgm')
    for x in k.ool: k.e(x)
    k.ool = []
    k.e('PE_7:\n' + ('.p2align 12\n' if PAGES else '') + 'KP_SIDE:'); k.reset_counts(); side(k, C)
    k.e('KP_END:\ns_endpgm\nKP_LAST:')
    return k.L

def w3slot(n, lo): return n if lo == 0 or n < 14 else n + 2
def w3_dma(k, lo, hi, ldsbase):
    q = Q(k)
    for ks in range(lo, hi):
        j, mu, a_ = ks >> 2, (ks >> 1) & 1, ks & 1
        row = 32*j + 16*a_ if not mu else 433 - 32*j - 16*a_
        vo = VS if ks == 2 else VM if mu else VD
        so = '0' if ks in (0, 2) else 's61'
        pre = f's_add_u32 m0, s60, {ldsbase + w3slot(ks-lo, lo)*8192}\n' + (f's_mov_b32 s61, {row*3584}' if so != '0' else 's_nop 0')
        if ('w3a' in ABL and lo == 0) or ('w3b' in ABL and lo): q.add(lambda: None, lambda: None); continue
        q.vm(pre, f'buffer_load_dwordx4 v{vo}, s[16:19], {so} offen lds')
        q.vm(None, f'buffer_load_dwordx4 v{vo}, s[20:23], {so} offen offset:1024 lds', f'w3_{ks}')
    return q
def w3_tr(k, lo, hi):
    q = Q(k)
    for ks in range(lo, hi):
        n = w3slot(ks - lo, lo)
        for mt in range(2):
            for hf in range(2):
                if 'tr' in ABL: q.add(lambda: None); continue
                q.add(('ds', f'ds_read_b64_tr_b16 {a(8*ks+4*mt+2*hf,2)}, v{TB+(n>>3)} offset:{(n&7)*8192+mt*1024+hf*4096}', 'tr'))
    return q

def P1(k, C):
    X = 16; UP = 72; M = 88; T = 96; WL = 216; WO = 224; BF = 40; AC = 160
    k.e(f'''
    v_lshrrev_b32 v6, 3, v2
    s_lshl_b32 s6, s3, 4
    v_add_u32 v6, s6, v6
    v_and_b32 v7, 7, v2
    v_mul_u32_u24 v246, {32*896}, v6
    v_lshl_add_u32 v246, v7, 4, v246
    v_add_u32 v247, {8*32*896}, v246 ; set 1
    s_mul_i32 s39, s36, 896
    s_lshl_b32 s40, s35, 7
    s_mov_b32 s10, {2048*896}
    s_mov_b32 s11, 0x20000
    s_add_u32 s37, s39, s40
    s_add_u32 s38, s39, 896
    ''')
    f = Q(k)
    wa = f'''
    s_sub_u32 s6, s2, {NSIDE}
    s_mul_i32 s7, s6, 9363
    s_lshr_b32 s7, s7, 16
    s_mul_i32 s64, s7, 7
    s_sub_u32 s64, s6, s64           ; jt
    s_lshl2_add_u32 s7, s7, s3             ; rb
    s_min_u32 s65, s7, 111
    s_mul_i32 s65, s65, {16*896}
    s_lshl_b32 s67, s64, 7
    s_add_u32 s65, s65, s67
    v_mul_u32_u24 v{WO}, {4*896}, v5
    v_and_b32 v232, 15, v2
    v_bfe_u32 v{WO+1}, v2, 4, 1
    v_lshlrev_b32 v234, 3, v232
    v_lshl_add_u32 v234, v{WO+1}, 2, v234
    {f'v_lshl_add_u32 v{WO}, v4, 2, v{WO}' if C['wl_nat'] or 'wl' in ABL else f'v_add_u32 v{WO}, v234, v{WO}'}
    v_lshl_add_u32 v234, v5, 7, v234
    v_lshlrev_b32 v232, 4, v232
    v_lshl_add_u32 v232, v5, 8, v232
    v_lshl_add_u32 v232, v{WO+1}, 11, v232     ; packed store voffset
    v_add_u32 v{WO}, s65, v{WO}
    v_add_u32 v{WO+1}, {8*896}, v{WO}'''
    wb = f'''
    s_lshl_b32 s64, s64, 2
    s_bfe_u32 s65, s7, 0x20001
    s_add_u32 s64, s64, s65
    s_mul_i32 s64, s64, 14
    s_lshr_b32 s65, s7, 3
    s_add_u32 s64, s64, s65
    s_lshl_b32 s64, s64, 3
    s_and_b32 s65, s7, 1
    s_add_u32 s64, s64, s65
    s_lshl_b32 s64, s64, 9
    s_add_u32 s64, s64, {WS_WDP}
    s_lshl_b32 s65, s32, 9
    s_sub_u32 s67, s67, s65
    s_add_u32 s67, s67, {FL_WD}
    s_cmp_lt_u32 s6, 196
    s_cselect_b32 s64, s64, 0x7fff0000
    s_cselect_b32 s69, s3, 0
    s_mov_b32 s65, 0x05040100
    s_mov_b32 s66, 0x07060302'''
    f.lines(f'''
    s_and_b32 s6, s2, 7
    s_mul_i32 s7, s3, 7
    s_add_u32 s7, s7, s6
    s_add_u32 s7, s7, 14
    s_lshl1_add_u32 s43, s3, 1''')
    f.add('s_cmp_eq_u32 s6, 7\ns_cselect_b32 s7, s43, s7')
    f.lines(f'''s_lshl_b32 s7, s7, 7
    s_lshr_b32 s6, s2, 3
    s_sub_u32 s6, s6, {NSIDE//8}
    s_mul_i32 s6, s6, {16*5376}
    s_add_u32 s7, s7, s6
    v_mul_u32_u24 v250, 5376, v2
    s_and_b32 s43, s2, 7
    s_add_u32 s43, s43, 7
    s_lshl_b32 s43, s43, 7
    s_add_u32 s43, s43, s6
    s_mul_i32 s6, s3, {4*5376}
    s_add_u32 s43, s43, s6
    v_add_u32 v249, s43, v250
    v_add_u32 v250, s7, v250
    s_lshr_b32 s7, s3, 1
    s_mul_i32 s7, s7, 1792
    v_lshl_add_u32 v252, v2, 7, s7
    s_sub_u32 s6, s2, {NSIDE}''')
    f.add(f'''s_add_u32 s7, s6, 224
    s_cmp_eq_u32 s6, 128
    s_cselect_b32 s7, 224, s7
    s_cmp_lt_u32 s6, 128
    s_cselect_b32 s7, s6, s7
    s_mul_i32 s7, s7, 3584
    v_add_u32 v251, s7, v252
    s_cmp_ge_u32 s6, 96
    s_addc_u32 s6, s6, 128
    s_mul_i32 s6, s6, 3584
    v_add_u32 v252, s6, v252''')
    npf = len(f)
    def pf_mod(): k.e('s_mov_b64 exec, 0xffff'); k.vm_op('global_load_dword a254, v250, s[0:1]'); k.e('s_mov_b64 exec, -1')
    def pf_ca(): k.e('s_mov_b64 exec, 15'); k.vm_op('global_load_dword a251, v249, s[24:25]'); k.e('s_mov_b64 exec, -1')
    def pf_w3(h): k.e('s_mov_b64 exec, 0x3fff'); k.vm_op(f'global_load_dword a{253-h}, v{251+h}, s[26:27]'); k.e('s_mov_b64 exec, -1')
    f.lines(f'''
    v_lshrrev_b32 v{T}, 4, v2
    v_bfe_u32 v{T+1}, v2, 2, 2
    v_xor_b32 v{T+1}, v{T+1}, v{T}
    v_and_b32 v{T+2}, 3, v2
    v_lshlrev_b32 v{T+2}, 4, v{T+2}
    v_lshl_add_u32 v{T+1}, v{T+1}, 6, v{T+2}
    s_lshl_b32 s6, s33, 8
    v_add_u32 v{T+1}, s6, v{T+1}
    s_lshl_b32 s6, s3, 2
    v_add_u32 v{T}, s6, v{T}         ; row in k-step
    v_mul_u32_u24 v{VD}, 3584, v{T}
    v_sub_u32 v{VM}, {15*3584}, v{VD}
    v_add_u32 v{VD}, v{VD}, v{T+1}
    v_add_u32 v{VM}, v{VM}, v{T+1}
    v_cmp_eq_u32 vcc, 0, v{T}
    v_mov_b32 v{T+1}, {433*3584}
    v_mov_b32 v{T+2}, {(433-224)*3584}
    v_cndmask_b32 v{T+1}, v{T+1}, v{T+2}, vcc
    v_add_u32 v{VS}, v{VM}, v{T+1}
    s_lshl_b32 s60, s3, 11
    ''')
    nearly = len(f)
    f.lines(f'''
    s_and_b32 s46, s3, 1
    s_lshl_b32 s46, s46, 4
    s_lshr_b32 s47, s3, 1            ; isI
    v_and_b32 v11, 15, v2
    v_add_u32 v12, s46, v11          ; g row
    v_cvt_f32_u32 v13, v12''')
    f.add(f'''s_cmp_eq_u32 s47, 1
    s_cselect_b32 s6, {f2h(0.25)}, 0
    s_cselect_b32 s7, {f2h(32.0)}, 0''')
    f.lines(f'''
    v_cmp_eq_u32 vcc, 0, v12
    v_mov_b32 v{T}, s6
    v_mov_b32 v{T+1}, s7
    v_cndmask_b32 v13, v13, v{T+1}, vcc
    v_cndmask_b32 v{T}, v{T}, 0, vcc
    v_mul_f32 v13, {f2h(1/64)}, v13
    v_lshrrev_b32 v14, 4, v2
    v_lshlrev_b32 v14, 2, v14
    v_cvt_f32_u32 v{T+1}, v14
    v_fma_f32 v{T}, v13, v{T+1}, v{T}
    ''')
    for ks in range(2):
        for n in range(8): f.add(f'v_fmamk_f32 v{T+2+n}, v13, {f2h(32*ks + 16*(n >> 2) + (n & 3))}, v{T}')
        for n in range(8): f.add(f'v_cos_f32 v{T+2+n}, v{T+2+n}')
        for r in range(4): f.add(f'v_cvt_pk_bf16_f32 v{M+4*ks+r}, v{T+2+2*r}, v{T+3+2*r}')
    f.lines(f'''
    v_mul_u32_u24 v6, 160, v6
    v_lshl_add_u32 v244, v7, 4, v6   ; N write addr
    v_lshrrev_b32 v7, 2, v2
    v_mul_u32_u24 v7, 160, v7
    v_and_b32 v12, 3, v2
    v_lshl_add_u32 v245, v12, 3, v7  ; N tr read addr
    v_add_u32 v14, s46, v14
    v_mul_u32_u24 v14, {2*32*896}, v14
    v_lshl_add_u32 v248, v11, 3, v14 ; U voffset
    s_mul_i32 s47, s47, {32*896}
    s_add_u32 s47, s47, s39
    s_add_u32 s47, s47, s40          ; U soffset
    s_mov_b32 s73, 0x3f803f80
    ''')
    for i in range(0, 8, 2): f.add(f'v_mov_b64 {P(T+i)}, 0')
    f.add(f'v_mov_b32 v233, {f2h(1e-5)}')
    f.lines(wa); f.add(wb)
    f.lines(f's_mul_i32 s6, s3, {(NREP-2)//4*1024}\ns_add_u32 s40, s40, s6\ns_lshl_b32 s6, s32, 9\ns_sub_u32 s40, s40, s6\ns_add_u32 s40, s40, {FL_BAR}')
    f2 = P2_pre(k)
    ntot = len(f); f.emit(C['p1_fill0'])
    k.st('ka0'); k.e('s_waitcnt lgkmcnt(0)'); k.st('ka1'); k.e('s_mov_b32 s8, s4\ns_and_b32 s9, s5, 0xffff')
    xq = Q(k)
    XO = [(i, st) for i in range(7) for st in range(2)] if not C['p1_split'] else [(0, 0), (0, 1)] + [(i, st) for st in range(2) for i in range(1, 7)]
    adv = 's_add_u32 s37, s37, 128\ns_cmp_ge_u32 s37, s38\ns_cselect_b32 s37, s39, s37'
    for n, (i, st) in enumerate(XO):
        pre = None if n == 0 or XO[n-1][0] == i else adv if XO[n-1][0] < i else adv + '\n' + adv
        xq.vm(pre, f'buffer_load_dwordx4 {v(X+28*st+4*i,4)}, v{246+st}, s[8:11], s37 offen', f'x{i}{st}')
    f.q[0:0] = [f's_mov_b64 s[82:83], s[20:21]\ns_mov_b32 s12, s30\ns_and_b32 s13, s31, 0xffff',
                f's_sub_u32 s20, s18, 1024\ns_subb_u32 s21, s19, 0\ns_and_b32 s21, s21, 0xffff\ns_mov_b32 s22, {448*3584+1024}\ns_mov_b32 s23, 0x20000\ns_and_b32 s17, s17, 0xffff\ns_mov_b32 s18, {448*3584}\ns_mov_b32 s19, 0x20000']
    if C['pf_ca'] == 1: assert ntot - len(f) + 2 >= npf; pf_ca()
    xq.emit(C['x_first'] + 2)
    hd = [f.q.pop(0), f.q.pop(0)]
    while ntot - len(f) < npf: f.emit(1)
    f.q[0:0] = hd
    if C['pf_ca'] == 2: pf_ca()
    k.e('s_mov_b64 s[0:1], s[24:25]')
    k.e('s_mov_b64 s[80:81], s[26:27]\ns_bitcmp1_b32 s3, 0\ns_cselect_b64 s[26:27], s[18:19], s[16:17]')
    if C['pf_mod'] == 1: pf_mod()
    if C['pf_a'] == 1: pf_w3(0)
    for n in range(C['p1_ld_pre']-2-C['x_first']): f.cyc(C['p1_fill']); xq.emit(1)
    f.flush(); f2.cyc(C['p1_f2'])
    k.st('p1iss'); page(k, 1, None, {1: 2, 2: 3, 3: 4})
    wlq = [('vm', f'global_load_dword v{WL+n}, v{WO+(n>>2)}, s[82:83] offset:{896*(n&3)}', 'wl') for n in range(8)]
    assert C['wl_early']; cq = Q(k)
    c2 = Q(k)
    if C['pf_mod'] == 2: c2.add(pf_mod)
    if C['pf_a'] == 2: c2.add(lambda: pf_w3(0))
    if C['pf_b']: cq.add(lambda: pf_w3(1))
    if C['wl_c2']: c2.add(*[lambda j=j: [k.vm_op(x[1], x[2]) for x in wlq[j:j+2]] for j in range(0, 8, 2)])
    elif 'cold' not in ABL: cq.q += wlq
    w3 = w3_dma(k, 0, R1N, R1L)
    def tail(sets):
        q = Q(k); ts = [T+4*st+o for st in sets for o in (0, 2)]
        for t in ts: q.add(f'v_add_f32 v{t}, v{t}, v{t+1}')
        for m in ('quad_perm:[1,0,3,2]', 'quad_perm:[2,3,0,1]', 'row_half_mirror'):
            for t in ts: q.add(f'v_add_f32_dpp v{t}, v{t}, v{t} {m} row_mask:0xf bank_mask:0xf')
        for txt in (f'v_mul_f32 v#0, {f2h(-1/448)}, v#0', f'v_fmamk_f32 v#2, v#2, {f2h(1/448)}, v233', 'v_fma_f32 v#2, -v#0, v#0, v#2', 'v_max_f32 v#2, v233, v#2',
                    'v_rsq_f32 v#2, v#2', 'v_mul_f32 v#0, v#0, v#2'):
            for st in sets: q.add(txt.replace('#0', str(T+4*st)).replace('#2', str(T+4*st+2)))
        for st in sets:
            t = T+4*st
            for d in range(4): q.add(f'v_pk_fma_f32 {P(UP+8*st+2*d)}, {P(UP+8*st+2*d)}, {P(t+2)}, {P(t)} op_sel_hi:[1,0,0]')
            for d in range(4): q.add(f'v_cvt_pk_bf16_f32 v{X+4*st+d}, v{UP+8*st+2*d}, v{UP+8*st+2*d+1}')
            q.add(('ds', f'ds_write_b128 v244, {v(X+4*st,4)} offset:{8*160*st}', None))
        return q
    t0 = Q(k)
    for n, (i, st) in enumerate(XO):
        k.wait(vm=f'x{i}{st}'); k.st(f'x{i}{st}')
        if len(xq): xq.emit(1)
        elif len(c2) and n >= C['c2_at']:
            if n == C['c2_at'] and C['c2_bar']: k.e('s_barrier')
            c2.emit(1)
        elif len(cq) and n >= C['cold_at']: cq.emit(C['cold_rate'])
        elif n < C['w3_at']: pass
        elif 2*R1N - len(w3) < C['p1_w3_ld']: w3.emit(1)
        for d in range(4):
            r = X+28*st+4*i+d; t = T+4*st+(d & 1)
            k.e(f'v_dot2_f32_bf16 v{t}, v{r}, s73, v{t}\nv_dot2_f32_bf16 v{t+2}, v{r}, v{r}, v{t+2}')
            if d or n > 8: t0.emit(1)
        if i == 0:
            for d in range(4): k.e(f'v_lshlrev_b32 v{UP+8*st+2*d}, 16, v{X+28*st+d}\nv_and_b32 v{UP+8*st+2*d+1}, 0xffff0000, v{X+28*st+d}')
        if C['p1_split'] and n == 7: t0 = tail([0])
    assert not len(xq) and not len(c2)
    k.st('p1dat')
    t0.flush(); tail([1] if C['p1_split'] else [0, 1]).flush()
    w3.emit(C['p1_w3_a']); cq.emit(C['cold_a'])
    k.wait(lg='all'); k.e('s_barrier'); k.st('p1bar')
    for ks in range(2):
        for t in range(4):
            for hf in range(2):
                k.ds_op(f'ds_read_b64_tr_b16 {v(BF+16*ks+4*t+2*hf,2)}, v245 offset:{ks*32*160+hf*16*160+t*32}', f'b{ks}{t}')
    w3.emit(C['p1_w3_b'])
    if C['cold_at'] < 99: cq.flush()
    for ks in range(2):
        for t in range(4):
            k.wait(lg=f'b{ks}{t}')
            c = '0' if ks == 0 else v(AC+4*t,4)
            k.e(f'v_mfma_f32_16x16x32_bf16 {v(AC+4*t,4)}, {v(M+4*ks,4)}, {v(BF+16*ks+4*t,4)}, {c}')
    w3.emit(C['p1_w3_c'])
    for r in range(4):
        k.e(f'v_cvt_pk_bf16_f32 v{X+2*r}, v{AC+r}, v{AC+4+r}\nv_cvt_pk_bf16_f32 v{X+2*r+1}, v{AC+8+r}, v{AC+12+r}')
        k.vm_op(f'buffer_store_dwordx2 {v(X+2*r,2)}, v248, s[12:15], s47 offen sc1', 'ust')
        if r < 3: k.e(f's_add_u32 s47, s47, {2*32*896}')
    k.st('p1st')
    if C['rdy'] == 0: k.e('s_load_dword s75, s[28:29], 0x0')
    assert C['ssig'] and len(w3) % 2 == 0
    n1 = R1N - len(w3)//2
    while not f2.xready(): f2.emit(1)
    for t in range(3 if 'xi' not in ABL else 2):
        k.e(f's_add_u32 m0, s44, {960*t}' + (f'\ns_add_u32 s43, s43, {12*64*896}' if t else ''))
        k.vm_op(f'buffer_load_dwordx4 v{T2+10}, s[8:11], s43 offen lds', 'xi')
    if C['cold_at'] == 99: cq.flush()
    f2.q += k.f3.q; k.f3.q = []
    if C['rdy'] == 1: k.e('s_load_dword s75, s[28:29], 0x0')
    f2.cyc(C['p1_fill_drain0'])
    if C['rdy'] == 2: k.e('s_load_dword s75, s[28:29], 0x0')
    for n in range(C['p1_w3_drain']): w3.emit(1); f2.cyc(C['p1_fill_drain'])
    f2.cyc(C['p1_fill_drain2'])
    if C['cold_at'] == 100: cq.flush()
    k.wait(vm='ust', lg='all'); k.e('s_barrier'); k.st('sig1')
    ready_loop(k, UP+2, UP+3)
    for i in range(4): k.e(f's_atomic_add s74, s[24:25], s40 offset:{1024*i}')
    k.tr1 = tr = w3_tr(k, 0, R1N)
    k.st('w0')
    def xreads():
        k.st('w7'); k.wait(vm='xi'); k.st('w8')
        la, lb = k.label('P2xa'), k.label('P2xb')
        k.e(f's_cmp_eq_u32 s49, 0\ns_cbranch_scc0 {la}')
        for r in range(16): k.e(f'ds_read_u16_d16_hi v{XV+r}, v1 offset:{2*DELT[r]}')
        k.e(f's_branch {lb}\n{la}:')
        for r in range(16): k.ds_op(f'ds_read_u16_d16_hi v{XV+r}, v1 offset:{2*DELT[15-r]}', 'xv')
        k.e(f'{lb}:')
    k.st('w1')
    n = 0
    while len(w3):
        if n == C['poll1_at'] and not C['ld1']:
            if C['mp1']:
                l = k.label('B0')
                k.e(f's_mov_b32 s76, -1\ns_atomic_and s76, s[24:25], s53 glc\ns_mov_b32 s78, 36\ns_mov_b32 s4, 0\ns_cmp_eq_u32 s3, 3\ns_cbranch_scc1 {l}\ns_mov_b32 s78, -1\ns_atomic_and s78, s[24:25], s56 glc\n{l}:')
            else: k.e('s_cmp_eq_u32 s3, 3\ns_cselect_b32 s5, s53, s56\ns_mov_b32 s0, 0\ns_mov_b32 s4, 0\ns_atomic_add s0, s[24:25], s53 glc\ns_atomic_add s4, s[24:25], s5 glc')
        if n == C['cold_n']:
            if n: k.e('s_barrier')
            cq.flush()
        w3.emit(1); f2.cyc(24); n += 1
        if len(tr) > 4*(R1N-min(n1, R1A)): tr.emit(2)
    def pollB():
        l = k.label('B0'); k.e(f's_mov_b32 s77, -1\ns_atomic_and s77, s[24:25], s53 glc\ns_cmp_eq_u32 s3, 3\ns_cbranch_scc1 {l}\ns_mov_b32 s4, -1\ns_atomic_and s4, s[24:25], s56 glc\n{l}:')
    page(k, 2, 1)
    if C['cold_at'] == 101:
        if len(cq): k.e('s_barrier')
        if C['poll1b'] == 1: pollB()
        cq.flush()
        if C['poll1b'] == 2: pollB()
    k.cq = cq
    if n1 < R1A: k.wait(vm=f'w3_{R1A-1}'); k.e('s_barrier')
    tr.emit(len(tr) - 4*(R1N-R1A))
    if C['poll1_at'] >= n: k.e('s_cmp_eq_u32 s3, 3\ns_cselect_b32 s78, 36, 0\ns_mov_b32 s4, 0')
    k.st('r1iss')
    k.f3.q = f2.q; assert len(k.f3) <= k.nf3
    def wdst():
        k.wait(vm='wl', lg='wbp')
        for t in range(2):
            for r in range(4): k.e(f'v_perm_b32 v{WO+4*t+r}, v{WL+2*r+1}, v{WL+2*r}, s{65+t}')
    k.wdq = Q(k)
    def wdbp():
        k.wait(vm='wl')
        for n in range(8): k.ds_op(f'ds_bpermute_b32 v{WL+n}, v234, v{WL+n}', 'wbp')
    if C['wl_nat']: k.wdq.add(wdbp)
    if C['cold_at'] < 99: wdst()
    else: k.wdq.add(wdst)
    for t in range(2): k.wdq.vm(None, f'buffer_store_dwordx4 {v(WO+4*t,4)}, v232, s[12:15], s64 offen offset:{1024*t} sc1', 'wdst')
    if C['ld1'] == 1: k.e('s_cmp_eq_u32 s3, 3\ns_cselect_b32 s5, s53, s56\ns_load_dword s0, s[24:25], s53 glc\ns_load_dword s4, s[24:25], s5 glc')
    xreads()
    k.f3.cyc(C['f3_pre']); k.st('w6')
    if C['ld1'] == 2: k.e('s_cmp_eq_u32 s3, 3\ns_cselect_b32 s5, s53, s56\ns_load_dword s0, s[24:25], s53 glc\ns_load_dword s4, s[24:25], s5 glc')
    k.f3.cyc(C['f3_post'])
    return None

ACC = 16; FB = 32; CC = 96; SG = 104; IC = 112; RS = 120; IS = 128; XV = 136; GA = 152; CB = 168; ZF = 184; ZB = 188; T2 = 192
def P2_pre(k):
    T = T2; f = Q(k)
    f.lines(f'''
    v_bfe_u32 v{TB}, v2, 2, 2
    v_xor_b32 v{T}, s3, v{TB}
    v_lshlrev_b32 v{TB}, 8, v{TB}
    v_lshl_add_u32 v{TB}, v{T}, 6, v{TB}
    v_bfe_u32 v{T}, v2, 4, 1
    v_lshl_add_u32 v{TB}, v{T}, 5, v{TB}
    v_and_b32 v{T}, 3, v2
    v_lshl_add_u32 v{TB}, v{T}, 3, v{TB}
    v_lshl_add_u32 v{TB}, v5, 11, v{TB}
    v_add_u32 v{TB}, {R1L}, v{TB}
    v_add_u32 v{TB+1}, 0x10000, v{TB}
    s_and_b32 s48, s3, 1
    s_lshr_b32 s49, s3, 1
    v_lshrrev_b32 v6, 3, v2
    s_lshl_b32 s6, s3, 4
    v_add_u32 v6, s6, v6
    v_mul_u32_u24 v6, 896, v6
    v_lshrrev_b32 v{T+8}, 4, v2
    v_xor_b32 v{T+8}, v{T+8}, v2
    v_and_b32 v{T+8}, 7, v{T+8}
    v_xor_b32 v{T+9}, 4, v{T+8}
    v_lshl_add_u32 v{T+9}, v{T+9}, 4, v6
    v_add_u32 v{T+9}, {8*896-1024}, v{T+9}
    v_lshl_add_u32 v{T+8}, v{T+8}, 4, v6
    s_mul_i32 s52, s36, 57344        ; U soffset
    s_mul_i32 s54, s49, 28
    s_lshl_b32 s55, s48, 1
    s_add_u32 s54, s54, s55
    s_lshl_b32 s54, s54, 10
    s_mul_i32 s55, s35, 57344
    s_add_u32 s55, s55, s54
    s_add_u32 s55, s55, {WS_CP}
    s_lshl_b32 s24, s32, 9
    s_add_u32 s24, s24, {WS_FLAG}
    ''')
    f.add('s_add_u32 s24, s24, s30\ns_addc_u32 s25, s31, 0\ns_lshl_b32 s6, s34, 13\ns_add_u32 s30, s24, s6\ns_addc_u32 s31, s25, 0')
    f.lines('s_mov_b64 s[76:77], 0\ns_mov_b32 s78, 0\ns_xor_b32 s79, s34, 1\ns_lshl_b32 s79, s79, 13\ns_mov_b32 s74, 1')
    f.lines(f'''s_lshl1_add_u32 s53, s32, s3
    s_lshl_b32 s53, s53, 8
    s_add_u32 s53, s53, {FL_BAR}     ; barrier counter offset (rel s[24:25]) of chunk 2w
    s_add_u32 s56, s53, 128
    s_and_b32 s6, s32, 1
    s_lshl_b32 s6, s6, 10
    s_sub_u32 s68, s56, s6           ; mod counter (even replicas only; used by wave 3)''')
    f.add(t1_txt('s50', 's36', 's48', 's6'))
    f.lines(f'''s_lshl1_add_u32 s51, s35, s49          ; beta
    s_lshl_b32 s41, s51, 7
    s_add_u32 s41, s41, {WS_MOD+GA_P}
    v_lshlrev_b32 v{T+13}, 2, v4
    v_lshl_add_u32 v{T+13}, v5, 11, v{T+13}
    s_lshl_b32 s42, s3, 8
    s_add_u32 s42, s42, {P2_GC}
    v_lshl_add_u32 v{T+14}, v5, 4, s42''')
    f.add(f'''s_lshl_b32 s7, s35, 6
    s_sub_u32 s6, 832, s7
    s_cmp_eq_u32 s49, 0
    s_cselect_b32 s7, s7, s6
    s_add_u32 s6, s7, 64
    s_cmp_eq_u32 s6, 896
    s_cselect_b32 s6, 448, s6
    s_cmp_eq_u32 s49, 0
    s_cselect_b32 s6, 0x7fff0000, s6
    v_mov_b32 v{T+3}, s6''')
    f.lines(f's_mul_i32 s43, s50, 896\ns_mul_i32 s44, s3, 3072\ns_add_u32 s44, s44, {P2_XI}')
    f.lines(f'''v_mul_u32_u24 v{T+1}, 205, v2
    v_lshrrev_b32 v{T+1}, 10, v{T+1}
    v_mul_u32_u24 v{T+2}, 5, v{T+1}
    v_sub_u32 v{T}, v2, v{T+2}
    v_cmp_eq_u32 vcc, 4, v{T}
    v_lshl_add_u32 v{T}, v{T}, 4, s7
    v_mul_u32_u24 v{T+1}, {64*896}, v{T+1}
    v_cndmask_b32 v{T}, v{T}, v{T+3}, vcc
    v_add_u32 v{T+10}, v{T}, v{T+1}''')
    nx = len(f)
    U = GA; k.f3 = f3 = Q(k)
    f3.lines(f'''
    v_lshlrev_b32 v{U}, 6, v4
    v_add_u32 v{U}, s50, v{U}
    s_lshl_b32 s37, s49, 31
    s_xor_b32 s37, s37, {f2h(-1/2048)}
    v_cvt_f32_u32 v{U}, v{U}
    v_mul_f32 v{U}, s37, v{U}
    v_lshlrev_b32 v{U+1}, 2, v5
    v_cvt_f32_u32 v{U+1}, v{U+1}
    v_mul_f32 v{U+1}, v{U}, v{U+1}''')
    for r in range(8):
        f3.lines(f'''v_fmamk_f32 v{U+2}, v{U}, {f2h(DELT[2*r])}, v{U+1}
        v_fmamk_f32 v{U+3}, v{U}, {f2h(DELT[2*r+1])}, v{U+1}
        v_cos_f32 v{U+4}, v{U+2}
        v_cos_f32 v{U+5}, v{U+3}
        v_sin_f32 v{U+2}, v{U+2}
        v_sin_f32 v{U+3}, v{U+3}
        v_cvt_pk_bf16_f32 v{CC+r}, v{U+4}, v{U+5}
        v_cvt_pk_bf16_f32 v{RS+r}, v{U+2}, v{U+3}''')
    f3.add(f'''s_cmp_eq_u32 s36, 0
    s_cselect_b32 s73, 0, -1''')
    f3.lines(f'''v_mov_b32 v{U}, s73
    s_xor_b32 s38, s48, s49
    s_mul_i32 s38, s38, 0x80008000
    s_xor_b32 s73, s38, 0x80008000''')
    for r in range(8):
        f3.lines(f'''v_bitop3_b32 v{IC+r}, v{RS+r}, s73, v{U} bitop3:0x28
        v_bitop3_b32 v{IS+r}, v{CC+r}, s38, v{U} bitop3:0x28''')
    f.lines(f'''
    s_lshl_b32 s6, s48, 12
    v_lshlrev_b32 v9, 7, v4
    v_add_u32 v9, s6, v9
    v_bfe_u32 v{T+2}, v2, 1, 3
    v_xor_b32 v{T+2}, v{T+2}, v5
    v_lshl_add_u32 v9, v{T+2}, 4, v9
    v_xor_b32 v10, 32, v9
    v_xor_b32 v11, 64, v9
    v_xor_b32 v12, 96, v9
    s_lshl_b32 s6, s49, 12
    s_add_u32 s6, s6, 8192
    v_add_u32 v13, s6, v3
    ''')
    f.add('s_cmp_eq_u32 s36, 0\ns_cselect_b32 s46, s48, 0')
    f.lines(f's_add_u32 s6, s60, {P2_X}\nv_add_u32 v0, s6, v3')
    for r in range(0, 16, 2): f.add(f'v_mov_b64 {P(XV+r)}, 0')
    f.add(f'''s_cmp_eq_u32 s51, 1
    s_cselect_b32 s6, 4096, 0
    v_mov_b32 v{T}, s6''')
    f.lines(f'''v_cmp_eq_u32 vcc, 0, v4
    v_add_u32 v15, {P2_X+4096}, v3
    v_mul_u32_u24 v1, 80, v4
    v_cndmask_b32 v{T}, 0, v{T}, vcc
    v_add_u32 v14, v0, v{T}
    v_lshl_add_u32 v7, v{T}, 1, v3
    v_add_u32 v7, {P2_X}, v7
    s_lshl_b32 s6, s46, 11
    v_add_u32 v6, s6, v7
    v_add_u32 v8, s6, v15
    v_add_u32 v1, s44, v1
    v_lshlrev_b32 v{T}, 3, v5
    v_sub_u32 v{T+1}, 10, v{T}''')
    f.add(f'''s_cmp_eq_u32 s49, 0
    s_cselect_b64 vcc, -1, 0
    v_cndmask_b32 v{T}, v{T+1}, v{T}, vcc
    v_add_u32 v1, v1, v{T}''')
    f.lines(f'''
    s_lshl1_add_u32 s6, s32, s34
    s_lshl1_add_u32 s6, s6, s48            ; rho
    s_mul_i32 s57, s6, 14
    s_add_u32 s57, s57, s51
    s_lshl_b32 s58, s57, 8
    s_add_u32 s58, s58, {WS_ST}
    s_lshl_b32 s57, s57, 11
    s_add_u32 s59, s57, {WS_X1}
    s_add_u32 s57, s57, {WS_X1C}
    v_lshlrev_b32 v{T+15}, 3, v4
    v_lshl_add_u32 v{T+15}, v5, 2, v{T+15}
    s_lshl_b32 s62, s34, 1
    s_xor_b32 s62, s62, s49
    s_or_b32 s63, s36, s48
    v_mov_b64 {P(T)}, 0
    v_mov_b64 {P(T+2)}, 0
    ''')
    k.nf3 = len(f3); tot = len(f); f.xready = lambda: tot - len(f) >= nx
    return f

def P2(k, C, _):
    T = T2
    l = k.label('ZP')
    k.e(f'''v_lshlrev_b32 v{TB+3}, 2, v4
    s_cmp_lg_u32 s63, 0
    s_cbranch_scc1 {l}
    v_mov_b64 {P(ZB)}, 0
    v_mov_b64 {P(ZB+2)}, 0
    s_cmp_eq_u32 s51, 1
    s_cselect_b32 s45, 7, s35
    s_lshl_b32 s45, s45, 7
    s_add_u32 s45, s45, {WS_ZF}
    s_mov_b64 exec, 1
    v_mov_b32 v{ZB}, 0x45004500
    v_mov_b32 v{ZB+1}, v{ZB}
    v_mov_b64 {P(ZB+2)}, {P(ZB)}
    s_mov_b64 exec, -1
{l}:''')
    if C['mp1']:
        for _ in range(8): k.ds_op('ds_read_b32 v16, v3')
        k.wait(lg='xv')
        l, d, sb = k.label('B1'), k.label('B1D'), k.label('B1B'); pace = C['mp1']
        def re(p, t, off):
            x = k.label('B1S')
            return f's_cmp_eq_u32 {t}, 36\ns_cbranch_scc1 {x}\ns_cmp_ge_u32 {p}, 36\ns_cbranch_scc1 {x}\ns_mov_b32 {p}, -1\ns_atomic_and {p}, s[24:25], {off} glc\n{x}:\n'
        k.e(f'''s_mov_b32 s1, {pace-1 if not C['poll1b'] else C['poll1c']}
{l}:
    s_max_i32 s6, s76, s77
    s_max_i32 s7, s78, s4
    s_min_i32 s0, s6, s7
    s_cmp_eq_u32 s0, 36
    s_cbranch_scc1 {d}
    s_add_u32 s1, s1, 1
    s_and_b32 s0, s1, {pace-1}
    s_cbranch_scc1 {l}
    s_cmp_gt_u32 s1, {SPIN_MAX*8}
    s_cbranch_scc1 {d}
    s_and_b32 s0, s1, {pace}
    s_cbranch_scc1 {sb}
''' + re('s76', 's6', 's53') + re('s78', 's7', 's56') + f's_branch {l}\n{sb}:\n' + re('s77', 's6', 's53') + re('s4', 's7', 's56') + f's_branch {l}\n{d}:\ns_mov_b32 m0, s60')
    else:
        l, d = k.label('B1'), k.label('B1D')
        k.e(f'''s_mov_b32 s1, 0
{l}:
    s_waitcnt lgkmcnt(0)
    s_add_u32 s0, s0, s4
    s_cmp_eq_u32 s0, 72
    s_cbranch_scc1 {d}
    s_add_u32 s1, s1, 1
    s_cmp_gt_u32 s1, {SPIN_MAX}
    s_cbranch_scc1 {d}
    s_mov_b32 s0, 0
    s_mov_b32 s4, 0
    s_atomic_add s0, s[24:25], s53 glc
    s_atomic_add s4, s[24:25], s5 glc
    s_branch {l}
{d}:
    s_mov_b32 m0, s60''')
    if not C['r1sep']: k.wait(vm=f'w3_{R1N-1}')
    k.e('s_barrier')
    k.lg = []; k.st('bar1')
    dq = Q(k)
    for c in range(7):
        dq.vm(f's_add_u32 m0, s60, {16384*c}\ns_add_u32 s52, s52, 128' if c else None, f'buffer_load_dwordx4 v{T+8}, s[12:15], s52 offen sc1 lds')
        dq.vm(None, f'buffer_load_dwordx4 v{T+9}, s[12:15], s52 offen offset:1024 sc1 lds')
        dq.vm(f's_add_u32 m0, s60, {16384*c+8192}' + ('\ns_add_u32 s55, s55, 4096' if c else ''), 'buffer_load_dwordx4 v3, s[12:15], s55 offen sc1 lds')
        dq.vm(None, 'buffer_load_dwordx4 v3, s[12:15], s55 offen offset:1024 sc1 lds', f'ch{c}')
    gq = Q(k)
    gq.vm('s_mov_b32 m0, s42', f'buffer_load_dword v{T+13}, s[12:15], s41 offen sc1 lds', 'gc')
    k.r2 = r2 = w3_dma(k, R1N, 28, 0); NR2 = len(r2)
    tr = k.tr1
    dq.emit(C['p2_pre'])
    if C['r1sep']: k.wait(vm=f'w3_{R1N-1}'); k.e('s_barrier')
    f3 = k.f3
    while len(dq) > 12:
        if len(tr): tr.emit(4); f3.cyc(16)
        else: f3.cyc(40)
        dq.emit(1)
    assert not len(tr)
    if C['mp1']:
        for _ in range(4): k.ds_op('ds_read_b32 v16, v3')
    k.wait(lg='tr'); k.e('s_barrier')
    if C['p2_modi'] < 0: poll_issue(k, 's68', 's47', 3)
    for n in range(2):
        dq.emit(1); k.ds_op(f'ds_write_b128 v0, {v(T,4)} offset:{1024*n}'); k.e(f'v_subrev_u32 v{TB+n}, {R1L}, v{TB+n}')
    k.e(f'v_add_u32 v{TB+2}, 0x10000, v{TB+1}')
    for n in range(C['p2_pre2']-2): f3.cyc(40); dq.emit(1)
    def rdk(c, kk):
        b = FB + 32*(c & 1)
        k.ds_op(f'ds_read_b128 {v(b+8*kk,4)}, v{9+kk} offset:{16384*(c&3)}')
        k.ds_op(f'ds_read_b128 {v(b+8*kk+4,4)}, v13 offset:{16384*(c&3)+1024*kk}', f'r{c}{kk}')
        if c == 3: k.e(f'v_add_u32 v{9+kk}, 0x10000, v{9+kk}' + ('\nv_add_u32 v13, 0x10000, v13' if kk == 3 else ''))
    def mfk(c, kk):
        b = FB + 32*(c & 1)
        k.wait(lg=f'r{c}{kk}')
        cc = '0' if c == 0 and kk == 0 else v(ACC,16)
        k.e(f'v_mfma_f32_32x32x16_bf16 {v(ACC,16)}, {v(b+8*kk,4)}, {v(b+8*kk+4,4)}, {cc}')
    k.st('issued')
    k.ool = ool = []
    zl = [k.label('ZA'), k.label('ZB'), k.label('ZC'), k.label('ZD'), k.label('ZE')]
    for c in range(7):
        if c == C['p2_modi']: poll_issue(k, 's68', 's47', 3)
        if c == C['p2_mod'] and 'mod' not in ABL: poll_check(k, 's68', 28, 's47', 3)
        k.wait(vm=f'ch{c}'); k.e('s_barrier'); k.st(f'c{c}')
        for kk in range(4):
            if c: mfk(c-1, kk)
            f3.cyc(C['p2_f3'])
            if len(dq): dq.emit(C['p2_rate'])
            elif len(k.cq) and c >= C['cq_from']: k.cq.emit(3)
            elif len(k.wdq) and c >= C['wd_from']: k.wdq.emit(1)
            else:
                if c == C['p2_mod'] and len(r2) % 2 == 0: gq.flush()
                if c >= C['r2_from'] and kk in C['r2_kk'] and NR2 - len(r2) < 4*(c-1): r2.emit(1)
            rdk(c, kk)
        if c == C['z_at']:
            assert not len(f3); k.e('s_cmp_eq_u32 s63, 0\ns_cselect_b64 vcc, -1, 0')
            k.e(f's_cbranch_vccnz {zl[0]}\n{zl[0]}R:')
            ool.append(f'''{zl[0]}:
    s_mov_b32 s0, 0
    s_atomic_add s0, s[24:25], {FL_Z} glc
    s_branch {zl[0]}R''')
    assert not len(dq) and not len(gq) and not len(tr) and not len(f3) and C['p2_mod'] >= 3
    k.st('A6')
    k.e(f's_cbranch_vccnz {zl[1]}\n{zl[1]}R:')
    for i in range(4): k.vm.append(('zf', True))
    ool.append(f'''{zl[1]}:
    s_mov_b32 s1, 0
{zl[2]}:
    s_waitcnt lgkmcnt(0)
    s_cmp_eq_u32 s0, 4
    s_cbranch_scc1 {zl[3]}
    s_add_u32 s1, s1, 1
    s_cmp_gt_u32 s1, {SPIN_MAX}
    s_cbranch_scc1 {zl[3]}
    s_mov_b32 s0, 0
    s_atomic_add s0, s[24:25], {FL_Z} glc
    s_branch {zl[2]}
{zl[3]}:
''' + ''.join(f'buffer_load_dword v{ZF+i}, v{TB+3}, s[12:15], s45 offen offset:{1024*i} sc1\n' for i in range(4)) + f's_branch {zl[1]}R')
    for kk in range(4):
        mfk(6, kk)
        if len(k.wdq): k.wdq.emit(1)
        elif C['r2_6']: r2.emit(1)
    r2.emit(C['r2_a'])
    for hf in range(2):
        for r in range(4*hf, 4*hf+4): k.e(f'v_cvt_pk_bf16_f32 v{T+r}, v{ACC+2*r}, v{ACC+2*r+1}')
        k.ds_op(f'ds_write_b128 v14, {v(T+4*hf,4)} offset:{1024*hf}')
    r2.emit(C['r2_b']); assert NR2 - len(r2) <= 20
    assert not len(k.wdq); k.wait(vm='wdst' if C['wd_early'] else None, lg='all'); k.e('s_barrier'); k.st('Xbar')
    kinds = [('v6', 0, CC), ('v7', 2048, IC), ('v8', 0, RS), ('v15', 2048, IS)]
    rb = [(f'ds_read_b128 {v(FB+8*i+4*a_,4)}, {ad} offset:{off+1024*a_}', f'x{i}{a_}') for i, (ad, off, _) in enumerate(kinds) for a_ in range(2)]
    for x in rb[:4]: k.ds_op(*x)
    r2.emit(C['r2_pre'])
    for n in range(8):
        i, a_ = n >> 1, n & 1
        k.wait(lg=f'x{i}{a_}')
        k.e(f'v_mfma_f32_32x32x16_bf16 {v(ACC,16)}, {v(FB+8*i+4*a_,4)}, {v(kinds[i][2]+4*a_,4)}, {v(ACC,16) if n else 0}')
        if n < 2: k.ds_op(*rb[4+2*n]); k.ds_op(*rb[5+2*n])
        elif n in C['r2_sb']: r2.emit(1)
        if 3 <= n < 7:
            k.wait(vm='gc'); kk = n-3
            k.ds_op(f'ds_read_b128 {v(GA+4*kk,4)}, v{T+14} offset:{32*kk}'); k.ds_op(f'ds_read_b128 {v(CB+4*kk,4)}, v{T+14} offset:{128+32*kk}', 'gcr')
    r2.emit(C['r2_c']); k.r2n = R1N + (NR2 - len(r2))//2; assert k.r2n >= R1N + 4
    k.e(f's_cbranch_vccnz {zl[4]}\n{zl[4]}R:')
    ool.append(f'{zl[4]}:\ns_waitcnt vmcnt({K._cnt(k.vm, "zf")[1]})\nv_mfma_f32_32x32x16_bf16 {v(ACC,16)}, {v(ZF,4)}, {v(ZB,4)}, {v(ACC,16)}\ns_nop 11\ns_branch {zl[4]}R')
    k.wait(lg='gcr')
    if C['wd_early']:
        l = k.label('WS')
        k.e(f's_cmp_lg_u32 s69, 1\ns_cbranch_scc1 {l}\ns_atomic_add s74, s[24:25], s67\ns_atomic_add s74, s[24:25], s67 offset:1024\n{l}:')
    for hf in range(2):
        R = range(8*hf, 8*hf+8, 2)
        for r in R: k.e(f'v_pk_fma_f32 {P(XV+r)}, {P(ACC+r)}, {P(GA+r)}, {P(XV+r)}')
        for r in R: k.e(f'v_pk_mul_f32 {P(CB+r)}, {P(CB+r)}, {P(XV+r)}')
        for r in range(4*hf, 4*hf+4): k.e(f'v_cvt_pk_bf16_f32 v{FB+r}, v{CB+2*r}, v{CB+2*r+1}')
        k.vm_op(f'buffer_store_dwordx4 {v(FB+4*hf,4)}, v3, s[12:15], s57 offen offset:{1024*hf} sc1')
    k.e(f'v_pk_add_f32 {P(T)}, {P(XV)}, {P(XV+2)}\nv_pk_mul_f32 {P(T+2)}, {P(XV)}, {P(XV)}')
    for r in range(2, 16, 2):
        if r >= 4: k.e(f'v_pk_add_f32 {P(T)}, {P(T)}, {P(XV+r)}')
        k.e(f'v_pk_fma_f32 {P(T+2)}, {P(XV+r)}, {P(XV+r)}, {P(T+2)}')
    k.e(f'''v_add_f32 v{T}, v{T}, v{T+1}
    v_add_f32 v{T+1}, v{T+2}, v{T+3}
    v_cvt_pk_bf16_f32 v216, v{XV}, v{XV+1}
    v_cvt_pk_bf16_f32 v217, v{XV+2}, v{XV+3}
    v_permlane32_swap_b32 v{T}, v{T+1}
    v_add_f32 v{T}, v{T}, v{T+1}''')
    k.vm_op(f'buffer_store_dword v{T}, v{T+15}, s[12:15], s58 offen sc1', 'p2st')
    k.st('p2st')
    for r in range(2, 8): k.e(f'v_cvt_pk_bf16_f32 v{216+r}, v{XV+2*r}, v{XV+2*r+1}')
    k.e(f's_mov_b64 s[76:77], 0\ns_mov_b32 s78, 0\ns_mov_b32 s5, s59\ns_lshl_b32 s4, s34, 3\ns_add_u32 s4, s4, s35\ns_lshl_b32 s4, s4, 7\ns_lshl_b32 s6, s32, 9\ns_sub_u32 s4, s4, s6\ns_add_u32 s4, s4, {FL_WD}\ns_mov_b32 s28, s67\ns_mov_b32 s29, s69')

SM = 48
def sm(i): return f's{SM+i}' if i < 12 else f's{64+i-12}'
VH0, VH1, VWD, VA0, VA1 = 9, 142, 143, 14, 15
def setup34(k, C):
    q = Q(k); T = ET
    q.lines('s_and_b32 s69, s35, 1\ns_lshl_b32 s6, s34, 1\ns_or_b32 s69, s69, s6')
    q.lines(f'''
    s_lshl_b32 s39, s33, 7
    s_lshl_b32 s6, s32, 9
    s_sub_u32 s39, s39, s6
    s_add_u32 s39, s39, {FL_SIDE}
    s_lshl_b32 s7, s32, 2''')
    q.lines(f'''s_add_u32 s6, s69, s7            ; rho of stage 0
    s_mul_i32 s44, s6, {28*1024}
    s_add_u32 s44, s44, {WS_X1C}
    s_lshr_b32 s6, s6, 1
    s_lshl2_add_u32 s6, s6, s3
    s_mul_i32 s6, s6, 14
    s_add_u32 s6, s6, s33
    s_lshl_b32 s40, s6, 12
    s_and_b32 s6, s69, 1
    s_lshl_b32 s41, s6, 11
    s_add_u32 s40, s40, s41
    s_add_u32 s40, s40, {WS_HH}
    s_xor_b32 s41, s40, 2048
    s_mul_i32 s6, s6, {-56*1024}
    s_add_u32 s45, s44, s6
    s_add_u32 s45, s45, {28*1024}
    s_mul_i32 s6, s34, {-112*1024}
    s_add_u32 s6, s6, {56*1024}
    s_add_u32 s46, s44, s6
    s_add_u32 s47, s45, s6
    s_lshl_b32 s6, s6, 2
    s_add_u32 s42, s40, s6
    s_add_u32 s43, s41, s6''')
    q.lines(f'''
    s_xor_b32 s6, s69, s3
    s_add_u32 s6, s6, s7
    s_mul_i32 s37, s6, 3584
    s_add_u32 s37, s37, {WS_ST}
    s_lshl2_add_u32 s6, s33, s3
    s_lshl_b32 s38, s6, 10
    s_add_u32 s38, s38, {WS_WEXT}
    v_lshlrev_b32 v6, 3, v2
    v_add_u32 v7, {2*IMG}, v3
    v_add_u32 v8, {KSP}, v6
    s_mul_i32 s66, s3, 7168
    v_add_u32 v{VA0}, s66, v3
    v_add_u32 v{VA1}, 4096, v{VA0}
    s_xor_b32 s83, s34, {C['flip']}
    s_xor_b32 s6, s62, {2*C['flip']}
    s_add_u32 s70, s7, s6''')
    q.add('''s_cmp_eq_u32 s3, 2
    s_cselect_b32 s4, s39, s4
    s_cselect_b32 s39, 2, 28
    s_cmp_eq_u32 s3, 3
    s_cselect_b32 s4, s79, s4
    s_cselect_b32 s39, 7, s39''')
    q1 = q; q = Q(k)
    q.lines(f'''s_lshr_b32 s63, s3, 1            ; sw
    s_and_b32 s72, s3, 1
    s_lshl2_add_u32 s6, s35, s72
    s_mul_i32 s6, s6, {56*1024}
    s_add_u32 s6, s6, {WS_WDP}
    v_add_u32 v{VWD}, s6, v3
    s_mul_i32 s71, s83, 7
    s_sub_u32 s67, 8, s71
    s_sub_u32 s67, s67, s63
    s_add_u32 s68, s71, s63
    s_lshl_b32 s67, s67, 12
    s_lshl_b32 s68, s68, 12
    s_lshl_b32 s71, s71, 12''')
    q.add('s_cmp_eq_u32 s63, 0\ns_cselect_b32 s71, s71, s67')
    if C['wswap'] == 1: q.lines(f's_and_b32 s6, s32, 1\ns_mul_i32 s6, s6, {28*4096}\ns_add_u32 s67, s67, s6\ns_add_u32 s68, s68, s6\ns_add_u32 s71, s71, s6\ns_lshl_b32 s6, s6, 1\ns_sub_u32 s6, {28*4096}, s6')
    for i in range(14):
        base = 68 if i & 2 else 67 if i < 12 else 71
        if C['wswap'] == 1 and i & 1: q.add(f's_add_u32 {sm(i)}, {sm(i-1)}, s6')
        else: q.add(f's_add_u32 {sm(i)}, s{base}, {(2*(i >> 2) + 28*(i & 1))*4096}')
    q.lines(f'''
    s_lshl1_add_u32 s6, s32, s83
    s_lshl2_add_u32 s6, s6, s72
    s_mul_i32 s6, s6, {56*1024}
    s_add_u32 s6, s6, {WS_HH}
    s_lshl_b32 s67, s63, 11
    s_add_u32 s6, s6, s67
    s_lshl_b32 s67, s72, 8
    s_add_u32 s6, s6, s67
    v_and_b32 v4, 15, v2
    v_lshlrev_b32 v127, 4, v4
    v_lshrrev_b32 v{T+4}, 4, v2
    v_lshl_add_u32 v127, v{T+4}, 9, v127
    v_add_u32 v{VH0}, s6, v127
    v_xor_b32 v{VH1}, 2048, v{VH0}
    s_lshl_b32 s73, s3, 12
    v_add_u32 v10, s73, v3
    v_add_u32 v11, {WDL[0]}, v10
    s_mul_i32 s70, s70, {28*1024}
    s_add_u32 s70, s70, s67
    s_add_u32 s70, s70, {WS_X1}''')
    q.lines('''s_lshl_b32 s6, s35, 2
    s_sub_u32 s69, 29, s6
    s_sub_u32 s67, 27, s6
    s_sub_u32 s68, 25, s6
    s_add_u32 s7, s6, 2''')
    q.add('s_cmp_le_u32 s35, 2\ns_cselect_b32 s68, s7, s68')
    q.add('s_cmp_le_u32 s35, 3\ns_cselect_b32 s67, s6, s67\ns_cselect_b32 s69, 1, s69\ns_cselect_b32 s7, 0, 2')
    def fq(dst, iq, t): return f'''v_bfe_u32 v{t}, v{iq}, 2, 1
    v_lshl_add_u32 v{dst}, v{t}, 9, v{T+3}
    v_and_b32 v{t}, 1, v{iq}
    v_lshl_add_u32 v{dst}, v{t}, 8, v{dst}
    v_and_b32 v{t}, 2, v{iq}
    v_lshl_add_u32 v{dst}, v{t}, 2, v{dst}'''
    q.lines(f'''v_add_u32 v127, s70, v127
    s_mul_i32 s71, s3, 3072
    s_add_u32 s71, s71, {X1L}
    s_lshl_b32 s6, s35, 4
    v_add_u32 v{T}, s6, v4
    v_cmp_le_u32 vcc, 56, v{T}           ; mirrored columns
    v_lshrrev_b32 v{T+2}, 3, v4
    v_lshl_add_u32 v{T+5}, v{T+4}, 6, s71
    v_cndmask_b32 v{T}, 0, 7, vcc
    v_lshl_add_u32 v{T+3}, v{T+2}, 10, v{T+5}
    v_bitop3_b32 v{T+1}, v4, v{T}, 7 bitop3:0x28
    ''' + fq(13, T+1, T+6) + f'''
    v_and_b32 v{T+6}, 4, v{T}
    v_add3_u32 v13, v13, v{T+6}, 2
    v_and_b32 v{T}, 1, v{T}
    v_add_u32 v{T+1}, v{T+1}, v{T}
    v_cmp_eq_u32 vcc, 8, v{T+1}
    v_mul_u32_u24 v{T+2}, s7, v{T+2}
    v_sub_u32 v{T+2}, 2, v{T+2}
    v_lshl_add_u32 v{T+2}, v{T+2}, 10, v{T+5}
    ''' + fq(12, T+1, T+6) + f'''
    v_cndmask_b32 v12, v12, v{T+2}, vcc''')
    for b in range(3): q.add(f's_lshl_b32 s{67+b}, s{67+b}, 11')
    assert not C['w64']
    for sl in range(3): q.lines(f'v_xor_b32 v{124+sl}, {4096*(sl+1)}, v10\nv_add_u32 v{124+sl}, {RED+16384*sl}, v{124+sl}')
    q.add(f'v_add_u32 v1, {RED}, v10')
    if C['flip']:
        q.lines('s_and_b32 s6, s2, 7\ns_xor_b32 s6, s6, 1\ns_lshl_b32 s6, s6, 1\ns_bfe_u32 s7, s32, 0x10001\ns_add_u32 s6, s6, s7')
        q.add('s_sub_u32 s7, 32, s6\ns_cmp_eq_u32 s6, 0\ns_cselect_b32 s7, 16, s7\ns_bitcmp1_b32 s32, 0\ns_cselect_b32 s36, s7, s6')
    q.add(t1_txt('s7', 's36', 's63', 's6'))
    q.lines(f'''s_lshl_b32 s72, s72, 10
    s_add_u32 s72, s72, s7
    s_mul_i32 s72, s72, 896
    s_lshl_b32 s6, s35, 7
    s_add_u32 s72, s72, s6
    v_mul_u32_u24 v0, {4*64*896}, v{T+4}
    v_lshl_add_u32 v0, v4, 3, v0
    s_mov_b32 s8, s80
    s_and_b32 s9, s81, 0xffff''')
    q.add('v_lshlrev_b32 v2, 7, v2')
    q.add(f's_bitcmp1_b32 s3, 0\ns_cselect_b32 s6, 0xffffff00, 0\ns_cselect_b32 s7, -1, 0\ns_cselect_b32 s6, s6, 0x100\ns_add_u32 s16, s12, s6\ns_addc_u32 s17, s13, s7\ns_mov_b32 s18, {WS_END+256}')
    if C['pw']:
        q.lines(f'''s_mul_i32 s20, s32, 1536
        s_and_b32 s6, s3, 1
        s_lshl_b32 s6, s6, 9
        s_add_u32 s20, s20, s6
        s_add_u32 s20, s20, {FL_B}
        s_lshl_b32 s6, s34, 10
        s_sub_u32 s21, s20, s6
        s_add_u32 s21, s21, 1024
        s_add_u32 s20, s20, s6
        s_mov_b64 s[22:23], 0
        s_mov_b64 s[26:27], 0
        s_mov_b64 s[28:29], 0
        s_mov_b64 s[60:61], 0
        s_mov_b32 s82, 0''')
    return q1, q

C01 = [(2,0),(2,1),(3,0),(3,1),(6,0),(6,1),(7,0),(7,1),(10,0),(10,1),(11,0),(11,1)]
C2 = [(i,1) for i in (0,1,4,5,8,9,12,13)]
C3 = [(i,0) for i in (0,1,4,5,8,9,12,13)]
ORDER = C01 + C2 + C3
C0 = [p for p in C01 if p[1] == 0]; C1 = [p for p in C01 if p not in C0]
LORDER = C0 + C1 + C2 + C3
def hreg(i, rl, u): return a(8*LORDER.index((i, rl)) + 4*u, 4)
def hh(q, L, split=False):
    if 'hh' in ABL: return
    items = [(i, rl, u) for u in (1, 0) for i, rl in L] if split else [(i, rl, u) for i, rl in L for u in range(2)]
    for i, rl, u in items: q.vm(None, f'buffer_load_dwordx4 {hreg(i,rl,u)}, v{VH1 if rl else VH0}, s[{16 if u else 12}:{19 if u else 15}], {sm(i)} offen sc1', f'h{i}_{rl}_{u}')
def epi3(k, acc, st, pk=False):
    q = Q(k)
    K1 = ET + 2*(st & 1); SS = K1 + 1; T = ET + 4; PK = ET + 12
    for qq in range(4 if 'epi' not in ABL else 0):
        rr = range(4*qq, 4*qq+4); t = T + 4*(qq & 1)
        if pk: q.add(*[f'v_pk_mul_f32 {P(t+r)}, {P(acc+4*qq+r)}, {P(K1)} op_sel_hi:[1,0]' for r in (0, 2)])
        else: q.add(*[f'v_mul_f32 v{t+(r&3)}, v{acc+r}, v{K1}' for r in rr])
        for r in rr: q.add(f'v_exp_f32 v{t+(r&3)}, v{t+(r&3)}')
        if pk: q.add(*[f'v_pk_fma_f32 {P(t+r)}, {P(t+r)}, {P(K1)}, {P(K1)} op_sel:[0,1,1] op_sel_hi:[1,1,1]' for r in (0, 2)])
        else: q.add(*[f'v_fma_f32 v{t+(r&3)}, v{t+(r&3)}, v{SS}, v{SS}' for r in rr])
        for r in rr: q.add(f'v_rcp_f32 v{t+(r&3)}, v{t+(r&3)}')
        if pk: q.add(*[f'v_pk_mul_f32 {P(t+r)}, {P(t+r)}, {P(acc+16+4*qq+r)}' for r in (0, 2)])
        else: q.add(*[f'v_mul_f32 v{t+(r&3)}, v{t+(r&3)}, v{acc+16+r}' for r in rr])
        q.add(f'v_cvt_pk_bf16_f32 v{PK+2*qq}, v{t}, v{t+1}', f'v_cvt_pk_bf16_f32 v{PK+2*qq+1}, v{t+2}, v{t+3}')
        if qq & 1 and 'st' not in ABL: q.add(('vm', f'buffer_store_dwordx4 {v(PK+4*(qq>>1),4)}, v3, s[12:15], s{40+st} offen offset:{1024*(qq>>1)} sc1', f'hh{st}'))
    return q

BRC = int(os.environ.get('BRC', 4))
def lcost(l, vmc=12):
    mn = l.split()[0]
    return 0 if mn.endswith(':') or mn.startswith('.') else 8 if mn in TRANS else vmc if mn.startswith(('buffer_', 'global_')) else BRC if mn.startswith(('s_cbranch', 's_branch')) else 4
class Epi:
    def __init__(self, k, acc, st, vmc, join=False, extra=()):
        self.join = join; self.k = k; self.vmc = vmc; q = epi3(k, acc, st).q
        n = len(q)//2 if q else 0
        st_ = 'st' not in ABL
        self.ch = [q[0:22] + q[n:n+22], q[22:44] + q[n+22:n+44]] if q else [[], []]
        self.st = list(extra) + [q[44], q[n+44]] if q and st_ else []
    def __len__(self): return len(self.ch[0]) + len(self.ch[1]) + len(self.st)
    def pack(self, bud):
        while True:
            done = 44 - max(len(self.ch[0]), len(self.ch[1]))
            if self.st and done >= (44 if self.join else 22*(3 - len(self.st))) and bud >= self.vmc:
                x = self.st.pop(0); self.k.vm_op(x[1], x[2]); bud -= self.vmc; continue
            c = [ch for ch in sorted(self.ch, key=lambda c: -len(c)) if ch and lcost(ch[0]) <= bud]
            if not c: return
            if len(c) == 2 and lcost(c[0][0]) != lcost(c[1][0]):
                c.sort(key=lambda ch: lcost(ch[0]) * (1 if bud % 8 == 4 else -1))
            elif len(c) == 2 and len(self.ch[1]) - len(self.ch[0]) < 4: c = [self.ch[0]]
            x = c[0].pop(0); self.k.e(x); bud -= lcost(x)
def P3(k, C):
    su, su2 = setup34(k, C)
    def wd_reg(q, i):
        if 'wd' in C['abl']: return
        for f in range(4): q.vm(None, f'buffer_load_dwordx4 {wdreg(i,f)}, v{VWD}, s[12:15], {sm(i)} offen offset:{1024*f} sc1', f'wd{i}')
    def wd_lds(q, i):
        if 'wd' in C['abl']: return
        for f in range(4): q.vm(f's_add_u32 m0, s73, {WDL[WSLOT[i]]}' if f == 0 else None, f'buffer_load_dwordx4 v{VWD}, s[12:15], {sm(i)} offen offset:{1024*f} sc1 lds', f'wd{i}')
    def a_dma(q, st):
        for i in range(7):
            pre = f's_add_u32 m0, s66, {st*IMG+1024*i}' if i in (0, 4) else None
            q.vm(pre, f'buffer_load_dwordx4 v{VA0 if i < 4 else VA1}, s[12:15], s{44+st} offen offset:{1024*(i&3)} sc1 lds', f'a{st}')
    x1s = [('vm', f'buffer_store_dwordx4 {v(216+4*hf,4)}, v3, s[12:15], s5 offen offset:{1024*hf} sc1', None) for hf in range(2)]
    if C['x1at'] == 2:
        for x in x1s: k.vm_op(x[1])
    r3 = k.r2; page(k, 3, 1, {2: 5, 3: 6})
    if C['rr']: k.e('s_mov_b32 s82, s57\nv_lshlrev_b32 v129, 7, v2')
    wq = Q(k)
    for i in (REGI[0:4] + REGI[5:9] + REGI[4:5] if not C['wswap'] else [0, 4, 12, 2, 8, 1, 5, 9, 13]): wd_reg(wq, i)
    LI = sorted(WSLOT, key=WSLOT.get)
    n1 = len(su); su.q += su2.q; tot = len(su)
    for n in range(C['r3_drain']): su.cyc(C['su_drain']//(C['r3_drain']+1)); r3.emit(1)
    su.cyc(C['su_drain']//(C['r3_drain']+1))
    r3n = 28 - (len(r3)+1)//2
    k.wait(vm='p2st')
    if C['rr']: k.e('s_mov_b64 exec, 0xffff'); k.vm_op('buffer_load_dword v130, v129, s[12:15], s82 offen sc1'); k.e('s_mov_b64 exec, -1')
    k.e('s_barrier'); k.st('sigA')
    gsignal(k, 0, 2)
    if 0 in C['pollA']: mp_issue(k, 0, 0, 0)
    if not C['wd_early']:
        l = k.label('WS')
        k.e(f's_mov_b32 s75, 99\ns_cmp_lg_u32 s29, 1\ns_cbranch_scc1 {l}\ns_atomic_add s74, s[24:25], s28\ns_atomic_add s74, s[24:25], s28 offset:1024\n{l}:')
    tr = w3_tr(k, R1N, 28); nl = 4*(28 - k.r2n)
    n = 0
    while len(r3) > C['r4']:
        r3.emit(1); n += 1
        if n in C['pollA']: mp_issue(k, 0, C['pollA'].index(n), 0)
        if n == C['pollW'] and C['wd_early']:
            assert tot - len(su) >= n1
            l = k.label('XW'); k.e(f's_mov_b32 s75, 99\ns_cmp_lg_u32 s3, 1\ns_cbranch_scc1 {l}\ns_mov_b32 s75, -1\ns_atomic_and s75, s[24:25], s4 glc\n{l}:')
        if len(tr) > nl: tr.emit(min(4, len(tr)-nl))
        else: su.cyc(32)
    tr.emit(len(tr) - nl)
    while tot - len(su) < n1: su.emit(1)
    k.st('w3done'); assert len(su) > 14*C['pw']
    k.e(f's_mul_i32 s0, s3, 3072\ns_mov_b32 m0, s0\ns_add_u32 s28, s44, s0\ns_lshl_b32 s26, s3, 12\ns_add_u32 s26, s26, 12288\ns_add_u32 s27, s26, s44')
    lds_pad(k, 3, 128); k.wait(lg='tr')
    mp_check(k, 0, 7, 0, False, C['paceA'])
    if not C['tr_late']: r3n = 28
    assert r3n - R1N >= 11
    k.wait(vm=f'w3_{r3n-1}'); k.e('s_barrier'); k.st('flagA')
    for i in range(3): k.vm_op(f'buffer_load_dwordx4 v3, s[12:15], s28 offen offset:{1024*i} sc1 lds', 'a0a')
    k.e('s_mov_b32 m0, s26')
    def xpoll():
        l = k.label('XP'); k.e(f's_cmp_lt_u32 s3, {2 if C["wd_early"] else 1}\ns_cbranch_scc1 {l}\ns_mov_b32 s75, -1\ns_atomic_and s75, s[24:25], s4 glc\n{l}:')
    if C['xp'] == 0: xpoll()
    nl = 4*(28 - r3n)
    for i in range(4): k.vm_op(f'buffer_load_dwordx4 v3, s[12:15], s27 offen offset:{1024*i} sc1 lds', 'a0b'); tr.emit(min(4, len(tr)-nl))
    a1q = Q(k); a_dma(a1q, 1); assert k.r2n - R1N >= 8 or not C['a1_pre']
    for i in range(C['a1_pre']): a1q.emit(1); tr.emit(min(4, len(tr)-nl))
    tr.emit(len(tr)-nl)
    def xcheck(only=None):
        if 'xc' in ABL: return
        if 'xc1' in ABL: only = 1
        if 'xc2' in ABL: only = 2
        if 'xc3' in ABL: only = 3
        l, d = k.label('XC'), k.label('XD')
        if only is not None: k.e(f's_cmp_lg_u32 s3, {only}\ns_cbranch_scc1 {d}')
        k.e(f'''s_cmp_ge_i32 s75, s39
    s_cbranch_scc1 {d}
    s_mov_b32 s1, 0
{l}:
    s_waitcnt lgkmcnt(0)
    s_cmp_ge_i32 s75, s39
    s_cbranch_scc1 {d}
    s_add_u32 s1, s1, 1
    s_cmp_gt_u32 s1, {SPIN_MAX}
    s_cbranch_scc1 {d}
    s_mov_b32 s75, -1
    s_atomic_and s75, s[24:25], s4 glc
    s_branch {l}
{d}:''')
    if C['wd_early']: xcheck(1)
    if C['xp'] == 1: xpoll()
    while tot - len(su) < n1 + 29 + 7*(C['wswap'] == 1): su.emit(1)
    su.debt = 0; su.cyc(C['su_go'])
    vq = [Q(k) for _ in range(4)]
    vq[0].q += a1q.q
    vq[0].q += r3.q; assert C['r4'] % 2 == 0 and (not C['r4'] or (len(su) and C['su_ks'] >= 9 and C['a1_bar']))
    if C['x1at'] == 0: vq[0].q += x1s
    assert len(vq[0]) <= 9
    while len(vq[0]) < 9: vq[0].add(wq.q.pop(0) if len(wq) and C['wd_early'] else (lambda: None))
    for i in range(3): vq[0].vm(None, f'buffer_load_dwordx4 {v(128+4*i,4)}, v3, s[12:15], s37 offen offset:{1024*i} sc1', 'st')
    vq[0].add(lambda: (k.e('v_mov_b64 v[112:113], 0\nv_mov_b64 v[114:115], 0\ns_mov_b32 exec_hi, 0'), k.vm_op('buffer_load_dwordx4 v[112:115], v3, s[12:15], s37 offen offset:3072 sc1', 'st'), k.e('s_mov_b32 exec_hi, -1')))
    a_dma(vq[0], 2)
    vq[0].vm(None, f'buffer_load_dwordx4 {v(WX,4)}, v3, s[12:15], s38 offen sc1', 'wx')
    vq[0].q += wq.q[:C['wd_st'][0]]; wq.q = wq.q[C['wd_st'][0]:]
    vq[1].q += wq.q[:C['x0']] if 'wd' not in ABL else [lambda: None]*C['x0']; wq.q = wq.q[C['x0']:]
    a_dma(vq[1], 3); wd_lds(vq[1], LI[0]); wd_lds(vq[1], LI[1])
    for st in (1, 2):
        vq[st].q += wq.q[:C['wd_st'][st]]; wq.q = wq.q[C['wd_st'][st]:]
        if st == 1: wd_lds(vq[1], LI[2])
    assert len(vq[2]) >= C['sigB0'][1] or ABL
    wd_lds(vq[2], LI[3]); wd_lds(vq[2], LI[4])
    vq[3].q += wq.q
    sq = Q(k)
    for r in range(4): sq.lines(f'v_add_f32 v{128+r}, v{128+r}, v{132+r}\nv_add_f32 v{136+r}, v{136+r}, v{112+r}')
    for r in range(4): sq.add(f'v_add_f32 v{128+r}, v{128+r}, v{136+r}')
    sq.lines(f'''v_lshlrev_b32 v139, 1, v4
    v_bfe_u32 v140, v3, 8, 1
    v_permlane16_swap_b32 v128, v130
    v_permlane16_swap_b32 v129, v131
    v_add_f32 v128, v128, v130
    v_add_f32 v129, v129, v131
    v_add_u32 v139, v139, v140
    v_lshl_add_u32 v139, v5, 5, v139
    v_mov_b32 v130, v128
    v_mov_b32 v131, v129
    s_mul_i32 s6, s3, {IMG}
    v_lshl_add_u32 v138, v139, 4, s6
    v_permlane32_swap_b32 v128, v130
    v_permlane32_swap_b32 v129, v131
    v_add_f32 v128, v128, v130
    v_add_f32 v129, v129, v131
    v_mul_f32 v128, {f2h(-1/448)}, v128
    v_mul_f32 v129, {f2h(1/448)}, v129
    v_fma_f32 v129, -v128, v128, v129
    v_add_f32 v129, {f2h(1e-5)}, v129
    v_max_f32 v129, {f2h(1e-5)}, v129
    v_rsq_f32 v130, v129
    v_sqrt_f32 v131, v129
    v_cvt_pk_bf16_f32 v132, v128, v128
    v_mul_f32 v130, {f2h(-LOG2E)}, v130
    v_cvt_pk_bf16_f32 v136, v131, v131
    v_and_b32 v137, 0xffff0000, v132
    v_and_b32 v136, 0xffff0000, v136
    v_sub_f32 v137, v128, v137
    v_sub_f32 v136, v131, v136
    v_cvt_pk_bf16_f32 v133, v137, v131
    v_cvt_pk_bf16_f32 v134, v131, v136
    v_mov_b32 v135, 0
    s_lshl_b32 s6, s3, 9
    s_add_u32 s6, s6, {KSP}
    v_lshl_add_u32 v137, v139, 3, s6''')
    sq.add(('ds', 'ds_write_b128 v138, v[132:135] offset:28672', 'stw'), ('ds', 'ds_write_b64 v137, v[130:131]', 'stw'))
    wxq = Q(k)
    wxq.add(f'v_mov_b64 {P(WX+4)}, {P(WX)}', f'v_mov_b64 {P(WX+6)}, {P(WX+2)}')
    for r in range(3): wxq.add(f'v_permlane32_swap_b32 v{WX+r}, v{WX+4+r}')
    L = 8; KS = 29 - L
    seq = [(st, ks) for st in range(4) for ks in range(29)]
    X0 = C['x0']; seq.remove((0, 28)); seq.insert(28 + X0, (0, 28))
    def breg(n): return v(RING+4*(n&3),4) if n < 87+KS else v(ACC0+4*(n-87-KS),4)
    def rd(n):
        st, ks = seq[n]
        base, off = ('v3', st*IMG) if st < 2 else ('v7', (st-2)*IMG)
        k.ds_op(f'ds_read_b128 {breg(n)}, {base} offset:{off+1024*ks}', f'b{n}')
    PD = 3
    page(k, 4, 1)
    k.wait(vm='a0a'); k.e('s_barrier'); k.st('P3go')
    for n in range(PD): rd(n)
    k.lq = lq = Q(k); k.nl = 0
    fill = Q(k); rate = 0; nv = [len(q) for q in vq]; assert max(nv) <= 28
    def mf(n, mt):
        st, ks = seq[n]; acc = ACC0 + 32*(st & 1)
        if ks < 28: A = a(8*ks+4*mt, 4); k.wait(lg=[f'b{n}'] + ([f'b{n+1}'] if C['l2'][0] <= n < C['l2'][1] and any(t == f'b{n}' for t, _ in k.lg) else []))
        else: A = v(WX+4*mt, 4); k.wait(vm='wx', lg=f'b{n}')
        c = '0' if ks == 0 else v(acc+16*mt, 16)
        k.e(f'v_mfma_f32_32x32x16_bf16 {v(acc+16*mt,16)}, {A}, {breg(n)}, {c}')
    def events(st, ks):
        e = (st, ks); bar = False
        if C['pw']:
            if e == C['sigB0']: k.wait(vm=['hh0', 'a3']); k.e('s_barrier')
            if e == (3, C['c0_ks']): pw_pre(k, 0)
            if e == (3, C['c01_ks']): pw_pre(k, 1)
            return
        if e == (3, C['c0_ks']): mp_check(k, 0, 14, 0, C['flip']); bar = True
        if e == (3, C['c01_ks']): mp_check(k, 128, 7, 3, C['flip']); bar = True
        if e == C['sigB0']: k.wait(vm=['hh0', 'a3']); bar = True
        if e == C['sigB01']: k.wait(vm='hh1' if 'dr' not in ABL else None); bar = True
        if e == (3, C['sigB2']): k.wait(vm='hh2' if 'dr' not in ABL else None); bar = True
        if bar and not ('bar' in ABL and st == 3): k.e('s_barrier')
        return
    def events2(st, ks):
        e = (st, ks)
        if C['pw']:
            if e == (3, C['c0_ks']): pw_check(k, 0, C['flip'])
            if e == (3, C['c01_ks']): pw_check(k, 1, C['flip'])
            if e == C['sigB0']: pw_signal(k, 0)
            if e == C['sigB01']: k.wait(vm='hh1'); pw_signal(k, 1)
            if e == (3, C['sigB2']): k.wait(vm='hh2'); pw_signal(k, 2)
            if e in C['pollB01']: pw_poll(k, 1, C['pollB01'].index(e), C['flip'])
            if e in C['pollB0']: pw_poll(k, 0, 0, C['flip'])
        else:
            if e == C['sigB0']: gsignal(k, 0, 1)
            if e == C['sigB01']: gsignal(k, 128, 1)
            if e == (3, C['sigB2']):
                gsignal(k, 256, 2); k.st('sigB2')
                if C['rrh']: reread(k, 's42', 5)
            if e in C['pollB01']: mp_issue(k, 128, C['pollB01'].index(e), 3, C['flip'])
            if e in C['pollB0']: mp_issue(k, 0, C['pollB0'].index(e), 0, C['flip'])
        if e == (3, C['c0_ks']):
            lq.vm('s_mov_b32 m0, s71', 'buffer_load_dwordx4 v127, s[12:15], s67 offen sc1 lds', 'x1')
            lq.add(lambda: (k.e('s_add_u32 m0, s71, 1024'), k.vm_op('buffer_load_dwordx4 v127, s[12:15], s68 offen sc1 lds', 'x1'),
                            k.e('s_add_u32 m0, s71, 2048\ns_mov_b64 exec, 0xffff'), k.vm_op('buffer_load_dwordx4 v127, s[12:15], s69 offen sc1 lds', 'x1'), k.e('s_mov_b64 exec, -1')))
            hh(lq, C0[:C['c0_n']])
        if e == (3, C['c01_ks']): k.st('B01ok'); hh(lq, [p for p in C01 if p not in C0[:C['c0_n']]])
    nrd = PD
    for n, (st, ks) in enumerate(seq[:87+KS]):
        k.st(f'k{st}_{ks}')
        s2, k2 = seq[nrd]
        if (s2, k2) == (0, 28): assert not len(tr)
        if (s2, k2) == (0, 12): xcheck(); k.wait(vm='a0b' if C['a1_bar'] else 'a1'); k.e('s_barrier')
        elif n == C['a1b_ks'] and C['a1_bar']: k.wait(vm=['a1', 'w3_27']); k.e('s_barrier')
        elif (s2, k2) == (0, 28):
            assert not len(fill); k.wait(vm='a2', lg='stw'); k.e('s_barrier')
            k.ds_op(f'ds_read_b64 {v(ET,2)}, v8', 'ks0'); k.wait(vm='wx'); fill = wxq; rate = 8
        if nrd >= 87+KS: assert not len(fill)
        rd(nrd); nrd += 1
        if C['pw'] and st == 3 and C['pw_pad'][0] <= ks < C['pw_pad'][1]: lds_pad(k, 1, 5)
        if nrd > 87+KS: rd(nrd); nrd += 1
        if ks == (27 if st < 3 else 5) and st: k.ds_op(f'ds_read_b64 {v(ET+2*(st&1),2)}, v8 offset:{512*st}', f'ks{st}')
        if ks == (2 if st > 1 else X0+2) and st > 0:
            if C['gap']: fill = Epi(k, ACC0 + 32*((st-1) & 1), st-1, C['vmc'], C['join'], x1s if st == 1 and C['x1at'] == 1 else ())
            else:
                fill = epi3(k, ACC0 + 32*((st-1) & 1), st-1)
                rate = fill.cost() / (2*C['epi_span'][st-1])
        if (st, ks) == (0, C['su_ks']): fill = su; rate = su.cost() / (2*C['su_span'])
        if (st, ks) == (0, C['st_ks']): assert not len(fill); k.wait(vm='st'); fill = sq; rate = sq.cost() / (2*(24 + X0 - C['st_ks']))
        events(st, ks)
        for mt in range(2):
            mf(n, mt); n0 = len(k.L)
            if mt == 0: events2(st, ks)
            if st == 0 and (len(tr) > 2*C['r4'] or n >= C['a1b_ks']): tr.emit(C['tr_rate'])
            if st == 0 and ks < 28: assert len(tr) <= 4*(27 - ks - 2) or not len(tr)
            if mt == 1 and (st, ks) == C['pg5']: page(k, 5, 3)
            if mt == 0 and len(vq[st]) > ((nv[st]*(27-ks))//28 if 0 < st < 3 and 'wd' not in ABL else (nv[3]*(C['w3s']-1-ks))//C['w3s'] if st == 3 and ks < C['w3s'] else 0): vq[st].emit(1)
            elif mt == 0 and st == 3 and len(lq) and not len(vq[3]):
                assert (k.nl - 2)//2 < ks; lq.emit(1); k.nl += 1
            if isinstance(fill, Epi):
                was = len(fill)
                fill.pack(C['gap'][st-1] - sum(lcost(l, C['vmc']) for l in k.L[n0:]) - mt*(8 if any(t == f'b{n+1}' for t, _ in k.lg) or not C['l2f'] else 4))
                if was and not len(fill) and os.environ.get('VERB'): print('epi done', st, ks)
            else: fill.cyc(rate)
        if ks == 28:
            assert not len(fill) and not len(vq[st]), (st, len(fill), len(vq[st]))
            k.st(f'S{st}')
    assert not len(vq[3])
    G = ACC0+32; U = G+16; K1 = ET+2; PK = ET+12; k.st('gph')
    for j in range(L):
        if nrd < len(seq): rd(nrd); nrd += 1
        if not j & 1: events(3, KS + j//2)
        mf(87+KS+j, 0)
        if not j & 1: events2(3, KS + j//2)
        if j & 1: lq.emit(1)
        if j < 7: k.e(f'v_mov_b64 {P(128+2*j)}, 0')
        if C['pw'] and 1 <= j < 4: lds_pad(k, 1, 5)
    sg = Q(k); k.st('uph')
    for qq in range(4):
        rr = range(G+4*qq, G+4*qq+4); pk = qq >= C['sg_pk']
        if pk: sg.add(*[f'v_pk_mul_f32 {P(r)}, {P(r)}, {P(K1)} op_sel_hi:[1,0]' for r in rr[::2]])
        else: sg.add(*[f'v_mul_f32 v{r}, v{r}, v{K1}' for r in rr])
        sg.add(*[f'v_exp_f32 v{r}, v{r}' for r in rr])
        if pk: sg.add(*[f'v_pk_fma_f32 {P(r)}, {P(r)}, {P(K1)}, {P(K1)} op_sel:[0,1,1] op_sel_hi:[1,1,1]' for r in rr[::2]])
        else: sg.add(*[f'v_fma_f32 v{r}, v{r}, v{K1+1}, v{K1+1}' for r in rr])
        sg.add(*[f'v_rcp_f32 v{r}, v{r}' for r in rr])
    for j in range(L):
        if not j & 1: events(3, KS + (L+j)//2)
        mf(87+KS+j, 1)
        if not j & 1: events2(3, KS + (L+j)//2)
        if j == 0: lq.emit(1); ldsread(k, LDSI[0])
        elif j == 1:
            lq.emit(1)
            if C['pg6'] == 'u': page(k, 6, 3)
        else:
            if j & 1 and C['u_ld']: lq.emit(1)
            sg.cyc(C['sg_rate'])
    k.st('S3')
    if -1 in C['p4_poll2']:
        if C['pw']: pw_poll(k, 2, C['p4_poll2'].index(-1), not C['flip'])
        else: mp_issue(k, 256, C['p4_poll2'].index(-1), 1, not C['flip'])
    assert not (C['pw'] and (C['sigB2'] > 28 or C['rrh'] or C['rr'] or C['r4'] or C['sigB0'][1] < 12))
    for n in range(C['e_ld']): sg.cyc(64); lq.emit(1)
    sg.flush()
    for hf in range(2):
        for r in range(8*hf, 8*hf+8, 2): k.e(f'v_pk_mul_f32 {P(G+r)}, {P(G+r)}, {P(U+r)}')
        for r in range(4*hf, 4*hf+4): k.e(f'v_cvt_pk_bf16_f32 v{PK+r}, v{G+2*r}, v{G+2*r+1}')
        k.vm_op(f'buffer_store_dwordx4 {v(PK+4*hf,4)}, v3, s[12:15], s43 offen offset:{1024*hf} sc1', 'hh3')
    k.st('epi3')
    if C['pg6'] == 'e': page(k, 6, 3)
    if C['sigB2'] > 28:
        k.wait(vm='hh2'); k.e('s_barrier'); gsignal(k, 256, 2); k.st('sigB2')
        if C['rrh']: reread(k, 's42', 5)

RG = [RING, WX]
def ldsread(k, i):
    slot = LDSI.index(i); ws = WSLOT[i]
    base, off = ('v11', WDL[ws]-WDL[0]) if ws < 2 else ('v10', WDL[ws])
    k.wait(vm=f'wd{i}')
    for f in range(4): k.ds_op(f'ds_read_b128 {v(RG[slot&1]+4*f,4)}, {base} offset:{off+1024*f}', f'wl{i}')
def P4(k, C):
    XRG = list(range(128, 142)) + [122, 123]
    GB = 112; R = RING; R0 = 144
    def acc(rl, u, t): return ACC0 + 32*rl + 16*u + 4*t
    lq = k.lq; started = set(); redw = Q(k)
    ml = []
    for i, rl in C01 + C2: ml += [(i, rl, 0), (i, rl, 1)]
    for u in (1, 0): ml += [(i, rl, u) for i, rl in C3]
    burst = C['p4_burst0']
    for g, (i, rl, u) in enumerate(ml):
        n = g >> 1; post = []; first = None
        if not g & 1:
            k.st(f'n{n}'); bar = False
            if C['pw']:
                if n == 2: k.e('s_barrier')
                if n == C['p4_sig3']: post.append(lambda: (k.wait(vm='hh3'), pw_signal(k, 3)))
                if n == C['p4_c2']: pw_pre(k, 2); first = lambda: (pw_check(k, 2, not C['flip']), hh(lq, C2))
                if n == C['p4_c3']: pw_pre(k, 3); first = lambda: (pw_check(k, 3, not C['flip']), hh(lq, C3, True))
                if n in C['p4_poll2']: post.append(lambda n=n: pw_poll(k, 2, C['p4_poll2'].index(n), not C['flip']))
                if n in C['p4_poll3']: post.append(lambda n=n: pw_poll(k, 3, C['p4_poll3'].index(n), not C['flip']))
            else:
                if n == C['p4_sig3']: k.wait(vm='hh3' if 'dr' not in ABL else None); bar = True; post.append(lambda: (gsignal(k, 384, 0), k.st('sigB3'))); C['rrh'] and post.append(lambda: reread(k, 's43', 5))
                if n == C['p4_c2']: mp_check(k, 256, 7, 1, not C['flip']); bar = True; hh(lq, C2)
                if n == C['p4_c3']: mp_check(k, 384, 7, 2, not C['flip']); bar = True; hh(lq, C3, True); burst = C['p4_burst']
                if bar and 'bar' not in ABL: k.e('s_barrier')
                if n == C['p4_c2']: k.st('B2ok')
                if n == C['p4_c3']: k.st('B3ok'); lq.emit(C['p4_b0'])
                if n in C['p4_poll2']: post.append(lambda n=n: mp_issue(k, 256, C['p4_poll2'].index(n), 1, not C['flip']))
                if n in C['p4_poll3']: post.append(lambda n=n: mp_issue(k, 384, C['p4_poll3'].index(n), 2, not C['flip']))
            if n == 1:
                redw.add(f's_lshl_b32 s6, s35, 8\ns_add_u32 s6, s6, {WS_MOD+GB_N}', 'v_mov_b64 v[122:123], 0\nv_lshlrev_b32 v4, 4, v4')
                redw.vm(None, f'buffer_load_dwordx4 {v(GB,4)}, v4, s[12:15], s6 offen sc1', 'gb')
                redw.add('v_and_b32 v14, 4, v13\nv_sub_u32 v15, 2, v14', 'v_add_u32 v14, v13, v15\nv_add_u32 v15, v14, v15')
            if n == 4:
                assert not len(redw); k.wait(vm='x1')
                for t in range(4):
                    for r in range(4): redw.add(('ds', f'ds_read_u16_d16_hi v{XRG[4*t+r]}, v{12+t} offset:{16*r}', 'xr'), lambda: None)
        nxt = None
        if (rl, u) == (1, 1) and g < 24:
            sl = (g >> 2) + 1
            if sl < 5: nxt = LDSI[sl]; k.wait(vm=f'wd{nxt}'); ws = WSLOT[nxt]; base, off = ('v11', WDL[ws]-WDL[0]) if ws < 2 else ('v10', WDL[ws])
            elif sl == 5: nxt = -1
        def wr(ad, r, t, tag):
            if C['w64']: redw.add(*[('ds', f'ds_write_b64 v{ad}, {v(r+2*x,2)} offset:{1024*t+512*x}', tag) for x in range(2)])
            else: redw.add(('ds', f'ds_write_b128 v{ad}, {v(r,4)} offset:{1024*t}', tag))
        def rdr(r, off, tag):
            if C['w64']: k.ds_op(f'ds_read2st64_b64 {v(r,4)}, v1 offset0:{off//512} offset1:{off//512+1}', tag)
            else: k.ds_op(f'ds_read_b128 {v(r,4)}, v1 offset:{off}', tag)
        if g == 40:
            assert not len(redw)
            for uu in range(2):
                for t in range(4): wr(125+uu, acc(1,uu,t), t, 'rw')
        if g == 48:
            for t in range(4): wr(124, acc(0,1,t), t, 'rv')
        if g == 49 and C['bar2']: assert len(redw) <= 8; k.wait(lg='rw'); k.e('s_barrier')
        if g == 53: assert not len(redw); k.wait(lg='rv'); k.e('s_barrier')
        tags = [f'h{i}_{rl}_{u}']
        if C['w2'] and not g & 1: tags.append('h%d_%d_%d' % ml[g+1])
        k.wait(vm=tags, lg=f'wl{i}' if i in LDSI else None)
        assert not any(isinstance(x, tuple) and x[2] == f'h{i}_{rl}_{u}' for x in lq.q), (i, rl, u)
        k.pend = getattr(k, 'pend', []) + post
        for t in range(4):
            B = v(RG[LDSI.index(i)&1]+4*t, 4) if i in LDSI else wdreg(i, t)
            D = v(acc(rl,u,t), 4); c = D if (rl,u,t) in started else '0'; started.add((rl,u,t))
            k.e(f'v_mfma_f32_16x16x32_bf16 {D}, {hreg(i,rl,u)}, {B}, {c}')
            if t == 0:
                if first: first()
                lq.emit(1)
            elif t == 2:
                if len(redw): redw.emit(1)
                elif burst > 0: lq.emit(1); burst -= 1
            elif k.pend: k.pend.pop(0)()
            if nxt == -1: lds_pad(k, 1, 116)
            elif nxt is not None: k.ds_op(f'ds_read_b128 {v(RG[sl&1]+4*t,4)}, {base} offset:{off+1024*t}', f'wl{nxt}')
            if C['w64'] and g > 40 and t == 0: redw.emit(1)
            if C['bar2']:
                if g in (49, 50, 51, 52) and t & 1: x = 2*(g-49) + (t >> 1); rdr(R+16*(x&1)+4*(x>>1), (1+(x&1))*16384+(x>>1)*1024, 'r12')
                if g == 53: rdr(R0+4*t, 1024*t, 'r0')
                if g in (54, 55):
                    if (g, t) == (54, 0): k.wait(lg='r12')
                    for r in range(8*(g-54)+2*t, 8*(g-54)+2*t+2): k.e(f'v_add_f32 v{R+r}, v{R+r}, v{R+16+r}')
            elif g >= 53: rdr((R, R+16, R0)[g-53]+4*t, ((1, 2, 0)[g-53])*16384+1024*t, f'rr{g}')
    assert not len(redw) and not len(lq) and not k.pend
    k.st('P4mf')
    if not C['bar2']:
        k.wait(lg='rr54')
        for r in range(0, 16, 2): k.e(f'v_pk_add_f32 {P(R+r)}, {P(R+r)}, {P(R+16+r)}')
    k.wait(vm='gb', lg='all')
    for r in range(0, 16, 2): k.e(f'v_pk_add_f32 {P(R+r)}, {P(R+r)}, {P(R0+r)}')
    for r in range(4): k.e(f's_add_u32 s{48+r}, s72, {r*64*896}')
    for h in range(2):
        for t in range(4): k.e(f'v_pk_add_f32 {P(R+4*t+2*h)}, {P(R+4*t+2*h)}, {P(acc(0,0,t)+2*h)}')
        for t in range(4):
            x = XRG[4*t+2*h]
            k.e(f'v_pk_fma_f32 {P(x)}, {P(R+4*t+2*h)}, {P(GB+(t&2))}, {P(x)} op_sel:[0,{t&1},0] op_sel_hi:[1,{t&1},1]')
        for r in (2*h, 2*h+1):
            k.e(f'v_cvt_pk_bf16_f32 v{R0+2*r}, v{XRG[r]}, v{XRG[4+r]}\nv_cvt_pk_bf16_f32 v{R0+2*r+1}, v{XRG[8+r]}, v{XRG[12+r]}')
            k.vm_op(f'buffer_store_dwordx2 {P(R0+2*r)}, v0, s[8:11], s{48+r} offen {C["out_pol"]}')

S_W = 8192
def side(k, C):
    wq = side_head(k, False, C)
    side_tail(k, wq, C)
    k.e('s_endpgm\n' + ('.p2align 12\n' if PAGES else '') + 'SD_Z:'); k.reset_counts()
    side_head(k, True, C)
    k.e('s_branch SD_G3')

ROTB = int(os.environ.get('ROTB', 3))
W = 16; SL = 128; AC = 142; TS = 150; DF = 160; CS = 176
def side_head(k, Z, C):
    T = TS; tg = 'Z' if Z else 'B'
    k.e(f'''
    v_lshrrev_b32 v1, 6, v0
    v_and_b32 v2, 63, v0
    v_readfirstlane_b32 s3, v1
    v_lshrrev_b32 v6, 3, v2
    v_and_b32 v8, 7, v2
    s_mul_i32 s39, s3, 112
    v_add_u32 v7, s39, v6
    v_mul_u32_u24 v7, 5376, v7
    v_lshl_add_u32 v7, v8, 4, v7     ; w_mod voffset
    s_mul_i32 s62, s33, {8*ROTB if not Z else 0}
    v_add_u32 v9, s62, v2
    v_add_u32 v11, 56, v9
    v_subrev_u32 v10, 112, v9
    v_min_u32 v9, v9, v10
    v_subrev_u32 v10, 112, v11
    v_min_u32 v11, v11, v10
    v_add_lshl_u32 v9, v9, s39, 1    ; c voffsets
    v_add_lshl_u32 v11, v11, s39, 1
    s_mul_i32 s62, s62, 5376
    s_mov_b32 s10, {448*5376}
    s_mov_b32 s11, 0x20000
    s_mov_b32 s46, 896
    s_mov_b32 s47, 0x20000
    s_mov_b32 s14, {WS_END}
    s_mov_b32 s15, 0x20000
    ''')
    if Z: k.e('s_lshl_b32 s34, s33, 1\ns_add_u32 s35, s34, 1\ns_lshl_b32 s40, s34, 7\ns_lshl_b32 s41, s35, 7\ns_cmp_eq_u32 s33, 3\ns_cselect_b32 s41, 0x7ff00000, s41')
    else: k.e('s_add_u32 s40, s32, 7\ns_lshl_b32 s40, s40, 7\ns_add_u32 s41, s33, 1\ns_mul_i32 s41, s41, 896\ns_add_u32 s41, s41, s40')
    k.e(f'''
    v_lshlrev_b32 v3, 4, v2
    v_and_b32 v4, 31, v2
    v_lshrrev_b32 v5, 5, v2
    s_and_b32 s42, s3, 1             ; mat
    s_lshr_b32 s43, s3, 1
    s_mov_b32 s52, {f2h(1/448)}
    s_mov_b32 s53, {f2h(-448.0)}
    s_waitcnt lgkmcnt(0)
    s_mov_b32 s44, s22
    s_and_b32 s45, s23, 0xffff
    s_mov_b32 s8, s24
    s_and_b32 s9, s25, 0xffff
    s_mov_b32 s12, s30
    s_and_b32 s13, s31, 0xffff
    ''')
    if Z:
        k.e(f'''s_cmp_lg_u32 s2, {NSIDE-1}
    s_cbranch_scc1 SD_NZ
    v_lshlrev_b32 v10, 4, v0         ; WG 31: zero the barrier counters (16 KB), then raise d_debug[0]
    v_mov_b64 v[16:17], 0
    v_mov_b64 v[18:19], 0
    s_mov_b32 s6, {WS_FLAG+FL_BAR}''')
        for i in range(4): k.e('buffer_store_dwordx4 v[16:19], v10, s[12:15], s6 offen sc1\ns_add_u32 s6, s6, 4096')
        k.e('s_mov_b32 s74, 1\ns_waitcnt vmcnt(0)\ns_barrier\ns_cmp_lg_u32 s3, 0\ns_cbranch_scc1 SD_NZ\ns_atomic_or s74, s[28:29], 0x0\nSD_NZ:')
    k.stamp(1); k.st('sd0')
    k.vm_op('buffer_load_ushort v10, v9, s[44:47], 0 offen', 'c')
    k.vm_op('buffer_load_ushort v11, v11, s[44:47], 0 offen', 'c')
    lq = Q(k)
    for t in range(2):
        for i in range(14):
            wrap = (not Z) and any((ROTB*q + i) % 14 == 0 for q in range(4))
            pre = (f's_add_u32 s62, s62, {8*5376}\n' + (f's_cmp_eq_u32 s62, {112*5376}\ns_cselect_b32 s62, 0, s62\n' if wrap or i == 0 else '') if i or t else '') + f's_add_u32 s63, s62, s{40+t}'
            lq.vm(pre, f'buffer_load_dwordx4 {v(W+56*t+4*i,4)}, v7, s[8:11], s63 offen', f'w{t}_{i}')
    lq.emit(2)
    def ang0(dst, step, ef, df, ph):
        return f'''v_mul_f32 v{dst}, v{ef}, v{df}
        v_mul_f32 v{step}, s52, v{dst}
        v_floor_f32 v{step}, v{step}
        v_fma_f32 v{dst}, v{step}, s53, v{dst}
        v_fma_f32 v{dst}, v{dst}, s52, {ph}
        v_mul_f32 v{step}, s52, v{ef}'''
    f = Q(k)
    f.lines(f'''v_lshlrev_b32 v{T}, 3, v8
    v_add_u32 v{T}, v{T}, v6
    v_lshlrev_b32 v{T}, 2, v{T}
    s_lshl_b32 s57, s3, 8
    v_add_u32 v9, s57, v{T}          ; partial write addr
    v_lshlrev_b32 v241, 2, v2        ; partial read addr
    v_lshlrev_b32 v244, 2, v6
    v_mov_b32 v245, 0''')
    for i in range(0, 8, 2): f.add(f'v_mov_b64 {P(AC+i)}, 0')
    if not Z:
        f.lines(f'''
        s_lshl_b32 s6, s33, 2
        v_lshl_add_u32 v12, v5, 1, s6    ; 4kk+2h
        s_lshl_b32 s6, s32, 6
        v_add_u32 v{T}, s6, v12
        v_cvt_f32_u32 v{T}, v{T}         ; d0
        v_lshlrev_b32 v12, 2, v12        ; bpermute addr
        s_lshl_b32 s6, s43, 5
        v_add_u32 v{T+1}, s6, v4
        v_cmp_eq_u32 vcc, 0, v{T+1}
        v_cvt_f32_u32 v{T+1}, v{T+1}''')
        f.add(f'''s_cmp_eq_u32 s42, 1
        s_cselect_b32 s6, {f2h(-0.25)}, 0
        s_cselect_b32 s7, {f2h(224.0)}, 0''')
        f.lines(f'''v_mov_b32 v{T+2}, s6
        v_mov_b32 v{T+3}, s7
        v_cndmask_b32 v{T+3}, v{T+1}, v{T+3}, vcc
        v_cndmask_b32 v{T+4}, v{T+2}, 0, vcc''')
        for jj in range(4):
            if jj: f.add(f'v_add_f32 v{T+1}, {f2h(64.0)}, v{T+1}')
            f.lines(ang0(T+5, T+6, T+3 if jj == 0 else T+1, T, f'v{T+4}' if jj == 0 else f'v{T+2}'))
            for n in range(8): f.add(f'v_fmamk_f32 v{CS+8*jj+n}, v{T+6}, {f2h(16*(n&3)+(n>>2))}, v{T+5}')
            for n in range(8): f.add(f'v_cos_f32 v{CS+8*jj+n}, v{CS+8*jj+n}')
        f.lines(f'''s_mul_i32 s58, s3, 28
        s_lshl_b32 s7, s32, 2
        s_add_u32 s58, s58, s7
        s_add_u32 s58, s58, s33
        s_lshl_b32 s58, s58, 10
        s_add_u32 s58, s58, {WS_CP}
        s_mul_i32 s7, s33, 7
        s_add_u32 s7, s7, s32
        s_lshl_b32 s59, s7, 10
        s_add_u32 s59, s59, {WS_FLAG}''')
        if not C['pw']: f.add('s_cmp_lt_u32 s7, 20\ns_cselect_b32 s59, s59, 0x7fff0000\ns_cmp_eq_u32 s3, 3\ns_cselect_b32 s59, s59, 0x7fff0000')
        else: f.add(f's_cmp_lt_u32 s7, 24\ns_mov_b32 s6, 0x7f000000\ns_cselect_b32 s6, {FL_B+8192}, s6\ns_cmp_lt_u32 s7, 20\ns_cselect_b32 s6, 0, s6\ns_cmp_eq_u32 s3, 2\ns_cselect_b32 s6, {FL_B}, s6\ns_add_u32 s59, s59, s6')
    else:
        f.lines(f'v_cvt_f32_u32 v{T+1}, v0\ns_lshl_b32 s6, s33, 7\nv_cvt_f32_u32 v{T}, s6')
        for t in range(2):
            f.lines(ang0(13, 14, T+1, T, '0') + f'\nv_add_f32 v{T}, {f2h(64.0)}, v{T}')
            for n in range(0, 64, 4):
                for i in range(4): f.add(f'v_fmamk_f32 v{T+2+i}, v14, {f2h(n+i)}, v13')
                for i in range(4): f.add(f'v_cos_f32 v{T+2+i}, v{T+2+i}')
                for i in range(2): f.add(f'v_cvt_pk_bf16_f32 v{CS+32*t+n//2+i}, v{T+2+2*i}, v{T+3+2*i}')
    for n in range(8): f.cyc(56); lq.emit(1)
    f.cyc(100)
    if Z: f.cyc(C['z_f0'])
    k.stamp(2)
    k.wait(vm='c')
    for txt in ('v_lshlrev_b32 v#, 16, v#', f'v_mul_f32 v@, {f2h(-LOG2E)}, v#', 'v_exp_f32 v@, v@', 'v_add_f32 v@, 1.0, v@', 'v_rcp_f32 v@, v@', 'v_mul_f32 v#, v#, v@', 'v_cvt_pk_bf16_f32 v#, v#, v245'):
        for r in range(2): k.e(txt.replace('#', str(10+r)).replace('@', str(246+r)))
    for i in range(14): k.ds_op(f'ds_bpermute_b32 v{SL+i}, v244, v{10+i//7} offset:{32*(i%7)}', f'sl{i}')
    lq.emit(2)
    if Z:
        while len(f): f.cyc(C['z_pace']); lq.emit(1)
    f.flush()
    k.stamp(3)
    def gemv(t, split=99, mid=None):
        if t:
            for i in range(0, 8, 2): k.e(f'v_mov_b64 {P(AC+i)}, 0')
        for i in range(14):
            if i == split: mid()
            k.wait(vm=f'w{t}_{i}', lg=f'sl{i}')
            if Z or len(lq) > 14 or (t == 0 and i < C['sd_l1']): lq.emit(1)
            k.e(f'v_lshlrev_b32 v{T}, 16, v{SL+i}')
            for d in range(4): k.e(f'v_dot2_f32_bf16 v{AC+2*d}, v{W+56*t+4*i+d}, v{SL+i}, v{AC+2*d}')
            for d in range(4): k.e(f'v_dot2_f32_bf16 v{AC+2*d+1}, v{W+56*t+4*i+d}, v{T}, v{AC+2*d+1}')
        for i in range(4): k.e(f'v_permlane32_swap_b32 v{AC+i}, v{AC+4+i}')
        for i in range(0, 4, 2): k.e(f'v_pk_add_f32 {P(AC+i)}, {P(AC+i)}, {P(AC+4+i)}')
        for i in range(2): k.e(f'v_permlane16_swap_b32 v{AC+i}, v{AC+2+i}')
        k.e(f'''v_pk_add_f32 {P(AC)}, {P(AC)}, {P(AC+2)}
        v_add_f32_dpp v{AC+2}, v{AC}, v{AC} row_ror:8 row_mask:0xf bank_mask:0xf
        v_add_f32_dpp v{AC+2}, v{AC+1}, v{AC+1} row_ror:8 row_mask:0xf bank_mask:0xc''')
        k.ds_op(f'ds_write_b32 v9, v{AC+2} offset:{1024*t}')
    def gemv_fin(t):
        for i in range(2): k.ds_op(f'ds_read2st64_b32 {P(AC+2*i)}, v241 offset0:{4*t+2*i} offset1:{4*t+2*i+1}')
        k.wait(lg='all')
        k.e(f'''v_pk_add_f32 {P(AC)}, {P(AC)}, {P(AC+2)}
        v_add_f32 v{AC}, v{AC}, v{AC+1}
        v_cvt_pk_bf16_f32 v{AC}, v{AC}, v{AC}
        v_and_b32 v{AC}, 0xffff0000, v{AC}''')
        if not Z: k.e(f'''v_add_f32 v{AC+1}, 1.0, v{AC}
        v_cvt_pk_bf16_f32 v{AC+1}, v{AC+1}, v{AC+1}
        v_and_b32 v{AC+1}, 0xffff0000, v{AC+1}''')
    def zfin():
        for t in range(2):
            gemv_fin(t)
            if t: k.e(f's_cmp_eq_u32 s33, 3\ns_cselect_b32 s6, 0, -1\nv_and_b32 v{AC}, s6, v{AC}')
            else: k.e(f'v_lshl_add_u32 v{T}, v2, 1, s57\nv_mov_b32 v{T+1}, s57')
            k.e(f'ds_write_b16_d16_hi v{T}, v{AC} offset:{4096+128*t}')
        for i in range(16): k.ds_op(f'ds_read_b128 {v(W+4*i,4)}, v{T+1} offset:{4096+16*i}', f'z{i}')
        k.e(f'''v_mov_b64 {P(AC+2)}, 0
        v_mov_b64 {P(AC+4)}, 0
        s_lshl_b32 s6, s33, 10
        s_add_u32 s6, s6, {WS_ZF}
        v_lshlrev_b32 v{T}, 2, v0
        v_cmp_ge_u32 vcc, 224, v0
        v_mov_b32 v{T+2}, 0x7fff0000
        v_add_u32 v{T+1}, 896, v{T}
        v_cndmask_b32 v{T}, v{T+2}, v{T}, vcc
        v_subrev_u32 v{T+3}, 1, v0
        v_cmp_gt_u32 vcc, 31, v{T+3}
        v_cndmask_b32 v{T+1}, v{T+2}, v{T+1}, vcc''')
        for i in range(16):
            k.wait(lg=f'z{i}')
            for d in range(4): k.e(f'v_dot2_f32_bf16 v{AC+2+d}, v{CS+4*i+d}, v{W+4*i+d}, v{AC+2+d}')
        k.e(f'''v_pk_add_f32 {P(AC+2)}, {P(AC+2)}, {P(AC+4)}
        v_add_f32 v{AC+2}, v{AC+2}, v{AC+3}
        v_cvt_pk_bf16_f32 v{AC+3}, v{AC+2}, v{AC+2}
        v_and_b32 v{AC+3}, 0xffff0000, v{AC+3}
        v_sub_f32 v{AC+3}, v{AC+2}, v{AC+3}
        v_cvt_pk_bf16_f32 v{AC+2}, v{AC+2}, v{AC+3}''')
        k.vm_op(f'buffer_store_dword v{AC+2}, v{T}, s[12:15], s6 offen sc1')
        k.vm_op(f'buffer_store_dword v{AC+2}, v{T+1}, s[12:15], s6 offen sc1')
    gemv(0); k.stamp(4)
    if not Z:
        k.wait(lg='all'); k.e('s_barrier'); gemv_fin(0); k.stamp(5)
        for n in range(8): k.e(f'ds_bpermute_b32 v{DF+n}, v12, v{AC+1} offset:{4*(16*(n&3)+(n>>2))}')
        k.e('s_waitcnt lgkmcnt(0)')
        for jj in range(4):
            if jj == 3:
                k.e('s_cmp_eq_u32 s43, 1\ns_cselect_b32 s58, s59, s58\ns_cselect_b32 s6, 0, -1')
            for n in range(0, 8, 2): k.e(f'v_pk_mul_f32 {P(CS+8*jj+n)}, {P(CS+8*jj+n)}, {P(DF+n)}')
            for r in range(4): k.e(f'v_cvt_pk_bf16_f32 v{W+4*jj+r}, v{CS+8*jj+2*r}, v{CS+8*jj+2*r+1}')
            if jj == 3:
                for r in range(4): k.e(f'v_and_b32 v{W+12+r}, s6, v{W+12+r}')
            k.vm_op(f'buffer_store_dwordx4 {v(W+4*jj,4)}, v3, s[12:15], s58 offen sc1', 'cp')
            if jj < 3: k.e(f's_add_u32 s58, s58, {4*28*1024}')
    else: k.stamp(5)
    k.stamp(6); k.st('sd1'); k.e('s_load_dword s75, s[28:29], 0x0')
    if C['sd_bar'] and not Z: k.e('s_barrier')
    lq.emit(C['sd_l1b'])
    k.e(f'''
    s_lshr_b32 s36, s32, 1
    s_lshl_b32 s6, s33, 2
    s_add_u32 s36, s36, s6           ; idx
    s_and_b32 s6, s32, 1
    s_mul_i32 s6, s6, 14
    s_add_u32 s37, s6, s36           ; 2m+half
    s_cmp_eq_u32 s42, 0
    s_cselect_b32 s48, s16, s18
    s_cselect_b32 s49, s17, s19
    s_and_b32 s49, s49, 0xffff
    s_cmp_lt_u32 s36, 14
    s_cselect_b32 s50, {448*3584}, 0
    s_mov_b32 s51, 0x20000
    v_bfe_u32 v{T}, v2, 4, 1
    v_lshlrev_b32 v{T}, 2, v{T}
    v_xor_b32 v{T}, v{T}, v8
    v_mul_u32_u24 v15, 3584, v6
    v_lshl_add_u32 v15, v{T}, 4, v15
    s_mul_i32 s54, s43, {224*3584}
    s_lshl_b32 s6, s37, 7
    s_add_u32 s54, s54, s6
    s_mul_i32 s55, s42, 57344
    s_mul_i32 s6, s43, 28672
    s_add_u32 s56, s55, s6
    s_add_u32 m0, s56, {S_W + (16*1024 if C['sd_ord'] else 0)}
    s_add_u32 s54, s54, {16*8*3584 if C['sd_ord'] else 0}
    s_cmp_eq_u32 s43, {0 if C['sd_ord'] else 's43'}
    s_cselect_b32 s64, 1, -1
    s_cselect_b32 s66, -27, s64
    s_cselect_b32 s68, s64, 27
    s_mul_i32 s65, s64, {8*3584}
    s_mul_i32 s67, s66, {8*3584}
    s_mul_i32 s69, s68, {8*3584}
    s_lshl_b32 s64, s64, 10
    s_lshl_b32 s66, s66, 10
    s_lshl_b32 s68, s68, 10
    s_lshl_b32 s58, s32, 7
    s_lshl_b32 s6, s3, 12
    s_add_u32 s58, s58, s6
    s_add_u32 s24, s30, {WS_FLAG}
    s_addc_u32 s25, s31, 0
    s_mov_b32 s74, 1
    ''')
    wq = Q(k)
    for i in range(28):
        r = (66 if i == 12 else 68 if i == 17 else 64) if C['sd_ord'] else 64
        wq.vm(f's_add_u32 m0, m0, s{r}\ns_add_u32 s54, s54, s{r+1}' if i else None, 'buffer_load_dwordx4 v15, s[48:51], s54 offen lds', 'wst')
    if not Z: k.e(f'''
    s_lshl_b32 s6, s32, 6
    v_add_u32 v{DF}, s6, v2          ; col
    v_cmp_le_u32 vcc, 224, v{DF}
    v_sub_u32 v{DF+1}, 448, v{DF}
    v_cndmask_b32 v{DF+1}, v{DF}, v{DF+1}, vcc
    v_cndmask_b32 v{DF+2}, 0, 32, vcc
    v_cmp_eq_u32 vcc, 224, v{DF+1}
    v_cndmask_b32 v{DF+1}, v{DF+1}, 0, vcc
    v_lshrrev_b32 v{DF+3}, 5, v{DF+1}
    v_lshl_add_u32 v{DF+2}, v{DF+3}, 6, v{DF+2}
    v_and_b32 v{DF+1}, 31, v{DF+1}
    v_add_u32 v{DF+1}, v{DF+1}, v{DF+2} ; position
    s_mov_b32 s60, {WS_MOD+GA_P}
    s_cmp_eq_u32 s33, 3
    s_cselect_b64 vcc, -1, 0
    s_cselect_b32 s60, {WS_MOD+GB_N}, s60
    v_cndmask_b32 v{DF+1}, v{DF+1}, v{DF}, vcc
    s_mov_b32 s61, 0x7fff0000
    s_cmp_eq_u32 s33, 1
    s_cselect_b32 s61, {WS_MOD+SB_K}, s61
    s_cselect_b32 s60, 0x7fff0000, s60
    s_cmp_eq_u32 s33, 2
    s_cselect_b64 vcc, -1, 0
    s_cselect_b32 s60, {WS_MOD+CB1_P}, s60
    s_cselect_b32 s61, {WS_MOD+CB1_K}, s61
    v_lshlrev_b32 v{DF+1}, 2, v{DF+1}
    v_lshlrev_b32 v{DF}, 1, v{DF}
    ''')
    def midsig():
        k.wait(vm='cp', lg='all'); k.e('s_barrier'); ready_loop(k, 242, 243)
        for i in range(4): k.e(f's_atomic_add s74, s[24:25], s58 offset:{FL_BAR+1024*i}')
        k.stamp(7); k.st('sd2'); lq.flush()
    assert C['sd_split'] < 14
    gemv(1, C['sd_split'] if not Z else 99, midsig)
    k.wait(lg='all'); k.e('s_barrier')
    if Z: ready_loop(k, 242, 243); k.stamp(7)
    if Z:
        zfin()
        k.wait(vm='all'); k.e('s_barrier'); signal(k, FL_Z)
        return
    k.e('s_cmp_lg_u32 s3, 0\ns_cbranch_scc1 SD_G4')
    gemv_fin(1)
    k.e(f'''v_cndmask_b32 v{AC}, v{AC}, v{AC+1}, vcc
    buffer_store_dword v{AC}, v{DF+1}, s[12:15], s60 offen sc1
    buffer_store_short_d16_hi v{AC}, v{DF}, s[12:15], s61 offen sc1
    s_barrier
    s_waitcnt vmcnt(0)''')
    for r in list(range(0, 16, 2)) + [3, 5]: k.e(f's_atomic_add s74, s[24:25], {FL_BAR+1024*r+7*128}')
    k.e('s_branch SD_G3\nSD_G4:\ns_barrier')
    return wq

def side_tail(k, wq, C):
    T = TS
    k.e('SD_G3:'); k.vm = []; k.lg = []
    k.stamp(8); k.st('sd3')
    k.e('s_cmp_lt_u32 s36, 14\ns_cbranch_scc0 ' + ('SD_PF' if C['sd_pf'] else 'KP_END'))
    f = Q(k)
    f.lines(f'''
    s_lshr_b32 s38, s37, 1
    s_lshl_b32 s38, s38, 7
    s_add_u32 s38, s38, {FL_SIDE}
    s_and_b32 s39, s32, 1
    s_lshl_b32 s39, s39, 11
    s_add_u32 s39, s39, {FL_MODS}''')
    f.lines(f'''v_bfe_u32 v{T}, v2, 2, 2
    v_lshl_add_u32 v{T+1}, v5, 3, v{T}
    v_lshlrev_b32 v8, 7, v{T+1}
    v_lshrrev_b32 v{T}, 1, v{T}
    v_xor_b32 v{T}, s43, v{T}
    v_lshl_add_u32 v8, v{T}, 6, v8
    v_bfe_u32 v{T}, v2, 4, 1
    v_lshl_add_u32 v8, v{T}, 5, v8
    v_and_b32 v{T}, 3, v2
    v_lshl_add_u32 v8, v{T}, 3, v8
    s_add_u32 s55, s55, {S_W}
    v_add_u32 v8, s55, v8            ; tr read addr
    v_and_b32 v9, 1, v2
    v_mul_u32_u24 v9, 1152, v9
    v_lshl_add_u32 v9, v5, 4, v9     ; vec read addr
    s_lshl2_add_u32 s19, s37, s3
    s_lshl_b32 s19, s19, 9
    s_add_u32 s19, s19, {WS_WEXT}''')
    if C['sd_late']:
        f.flush(); poll_issue(k, 's39', 's0', 1); poll_check(k, 's39', 28, 's0', 1); k.e('s_barrier')
    while len(wq): wq.emit(1); f.emit(3)
    poll_issue(k, 's39', 's0', 1)
    k.wait(vm='all'); k.e('s_barrier')
    poll_check(k, 's39', 28, 's0', 1)
    k.e(f's_cmp_lg_u32 s3, 1\ns_cbranch_scc1 SD_V\ns_mov_b32 m0, 4096\ns_mov_b32 s6, {WS_MOD+CB1_K}')
    k.e('buffer_load_dwordx4 v3, s[12:15], s6 offen sc1 lds\ns_mov_b32 m0, 4224\ns_nop 0\nbuffer_load_dwordx4 v3, s[12:15], s6 offen offset:1024 sc1 lds\nSD_V:')
    for ks in range(28):
        for hf in range(2): k.ds_op(f'ds_read_b64_tr_b16 {a(4*ks+2*hf,2)}, v8 offset:{2048*ks+512*hf}')
    k.wait(vm='all'); k.e('s_barrier'); k.stamp(9); k.st('sd4')
    A2 = 240
    def rd(ks): k.ds_op(f'ds_read_b128 {v(W+4*ks,4)}, v9 offset:{4096+32*ks}', f'a{ks}')
    for ks in range(6): rd(ks)
    for ks in range(28):
        k.wait(lg=f'a{ks}')
        c = '0' if ks == 0 else v(A2,16)
        k.e(f'v_mfma_f32_32x32x16_bf16 {v(A2,16)}, {v(W+4*ks,4)}, {a(4*ks,4)}, {c}')
        if ks+6 < 28: rd(ks+6)
    k.e(f'''
    v_pk_mul_f32 {P(A2)}, {P(A2)}, 0.5 op_sel_hi:[1,0]      ; both k-halves of the extra step carry it
    v_cvt_pk_bf16_f32 v9, v{A2}, v{A2+1}
    v_lshlrev_b32 v12, 16, v9
    v_and_b32 v13, 0xffff0000, v9
    v_sub_f32 v12, v{A2}, v12
    v_sub_f32 v13, v{A2+1}, v13
    v_cvt_pk_bf16_f32 v8, v{A2}, v12
    v_cvt_pk_bf16_f32 v10, v13, v{A2+1}
    v_mov_b32 v11, 0
    s_mov_b32 exec_hi, 0
    ''')
    k.vm_op('buffer_store_dwordx4 v[8:11], v3, s[12:15], s19 offen sc1')
    k.e('s_mov_b32 exec_hi, -1'); k.wait(vm='all'); k.e('s_barrier'); signal(k, 's38')
    if C['sd_pf']:
        k.e(f'''SD_PF:
    s_add_u32 s24, s30, {WS_FLAG+FL_WD}
    s_addc_u32 s25, s31, 0
    s_and_b32 s34, s32, 1
    s_lshl_b32 s6, s34, 10
    s_lshl_b32 s7, s3, 8
    s_add_u32 s6, s6, s7
    s_cmp_eq_u32 s3, 3
    s_cselect_b32 s7, 0, 128
    s_add_u32 s7, s7, s6
    s_lshl2_add_u32 s35, s33, s3
    s_mul_i32 s35, s35, 56
    v_min_u32 v6, 55, v2
    v_add_u32 v6, s35, v6
    v_lshrrev_b32 v7, 5, v6
    v_and_b32 v6, 31, v6
    v_mul_u32_u24 v7, 57344, v7
    v_lshl_add_u32 v6, v6, 7, v7
    s_mul_i32 s34, s34, {7*4096}
    s_sub_u32 s35, {WS_WDP+7*4096}, s34
    s_add_u32 s34, s34, {WS_WDP}
    s_mov_b32 s1, 0
SD_PL:
    s_mov_b32 s0, 0
    s_mov_b32 s4, 0
    s_atomic_add s0, s[24:25], s6 glc
    s_atomic_add s4, s[24:25], s7 glc
    s_add_u32 s1, s1, 1
    s_waitcnt lgkmcnt(0)
    s_add_u32 s0, s0, s4
    s_cmp_eq_u32 s0, 56
    s_cbranch_scc1 SD_PD
    s_sleep 8
    s_cmp_lt_u32 s1, {SPIN_MAX}
    s_cbranch_scc1 SD_PL
SD_PD:
    s_barrier''')
        for j, (own, lo) in enumerate(C['sd_pf']):
            k.e(f's_add_u32 s6, s{34 if own else 35}, {4096*lo}\nbuffer_load_dword v{16+j}, v6, s[12:15], s6 offen sc1')
    if K.MARK and K.MARK.startswith('sd'): k.mark_spin()
    k.stamp_out(0, 11)
```
